```python
import torch

def _softmax(x, axis=-1):
    return torch.softmax(x, dim=axis)
def _gelu(x):
    return torch.nn.functional.gelu(x, approximate="tanh")
def _silu(x):
    return torch.nn.functional.silu(x)
def _sigmoid(x):
    return torch.sigmoid(x)
def _layernorm(x, axis=-1, eps=1e-5):
    m = x.mean(dim=axis, keepdim=True)
    v = x.var(dim=axis, keepdim=True, unbiased=False)
    return (x - m) / torch.sqrt(v + eps)
def _scatter_add(tgt, idx, src, axis=0):
    return tgt.clone().index_add_(axis, idx, src)
def _segment_sum(src, seg, n):
    out = torch.zeros((n,) + src.shape[1:], dtype=src.dtype)
    return out.index_add_(0, seg, src)
def _pad(x, pw):
    flat = tuple(v for pair in reversed(pw) for v in pair)
    return torch.nn.functional.pad(x, flat)

kernel_name = 'parallel_sum__gqa_block_cached__dense_activation_squared_relu__decode'

def setup_inputs():

    _w = (lambda a: (lambda t: t.to(torch.bfloat16) if t.is_floating_point() else t)(torch.as_tensor(a)))
    def _A_setup():
        B, Sq, D = 4, 1, 640
        Hq, Hkv, Sk, Dh = 32, 32, 8192, 192
        assert Hq % Hkv == 0, (Hq, Hkv)
        return {
            "x": _w((lambda *s: torch.randn(*s, dtype=torch.bfloat16) * 0.05)(B, Sq, D)),
            "k_cache": _w((lambda *s: torch.randn(*s, dtype=torch.bfloat16) * 1.6)(B, Hkv, Sk, Dh)),
            "v_cache": _w((lambda *s: torch.randn(*s, dtype=torch.bfloat16) * 3.2)(B, Hkv, Sk, Dh)),
            "wq": _w((lambda *s: torch.randn(*s, dtype=torch.bfloat16) * 1.6)(D, Hq * Dh) * (D ** -0.5)),
            "wo": _w((lambda *s: torch.randn(*s, dtype=torch.bfloat16) * 3.2)(Hq * Dh, D) * ((Hq * Dh) ** -0.5)),
        }
    _A_in = _A_setup()

    def _B_setup():
        B, S, D, F = 4, 1, 640, 1536
        return {
            "x": _w((lambda *s: torch.randn(*s, dtype=torch.bfloat16) * 0.05)(B, S, D)),
            "w1": _w((lambda *s: torch.randn(*s, dtype=torch.bfloat16) * 0.05)(D, F)),
            "b1": _w((lambda *s: torch.randn(*s, dtype=torch.bfloat16) * 0.2)(F)),
            "w2": _w((lambda *s: torch.randn(*s, dtype=torch.bfloat16) * 0.05)(F, D)),
            "b2": _w((lambda *s: torch.randn(*s, dtype=torch.bfloat16) * 0.8)(D)),
        }
    _B_in = _B_setup()

    return {
        "A_x": _A_in["x"],
        "A_k_cache": _A_in["k_cache"],
        "A_v_cache": _A_in["v_cache"],
        "A_wq": _A_in["wq"],
        "A_wo": _A_in["wo"],
        "B_x": _B_in["x"],
        "B_w1": _B_in["w1"],
        "B_b1": _B_in["b1"],
        "B_w2": _B_in["w2"],
        "B_b2": _B_in["b2"],
    }

def reference(A_x, A_k_cache, A_v_cache, A_wq, A_wo, B_x, B_w1, B_b1, B_w2, B_b2):
    def _A_ref(x, k_cache, v_cache, wq, wo):
        B, Sq, D = x.shape
        Hq, Dh = 32, 192
        Hkv = k_cache.shape[1]
        rep = Hq // Hkv
        q = (lambda x, *d: x.permute(*d))((x @ wq).reshape(B, Sq, Hq, Dh), 0, 2, 1, 3)
        k = (lambda x, n, axis: torch.repeat_interleave(x, n, dim=axis))(k_cache, rep, axis=1)
        v = (lambda x, n, axis: torch.repeat_interleave(x, n, dim=axis))(v_cache, rep, axis=1)
        scores = torch.einsum("bhqd,bhkd->bhqk", q, k) * (Dh ** -0.5)
        p = _softmax(scores, axis=-1)
        o = torch.einsum("bhqk,bhkd->bhqd", p, v)
        return (lambda x, *d: x.permute(*d))(o, 0, 2, 1, 3).reshape(B, Sq, Hq * Dh) @ wo

    def _B_ref(x, w1, b1, w2, b2):
        h = torch.einsum("bsd,df->bsf", x, w1) + b1
        zero = torch.zeros_like(h)
        r = torch.where(h > zero, h, zero)
        h = r * r
        out = torch.einsum("bsf,fd->bsd", h, w2) + b2
        return out

    x = A_x
    xn = _layernorm(x, axis=-1)
    return x + _A_ref(xn, A_k_cache, A_v_cache, A_wq, A_wo) + _B_ref(xn, B_w1, B_b1, B_w2, B_b2)
```

```python
import sys

NAME = "parallel_sum__gqa_block_cached__dense_activation_squared_relu__decode"

HEADER = """; Kernarg layout for this problem (104 bytes, ptrs only, base s[0:1]):
"""

L_SC = 0
L_XN = 16384
L_QP = L_XN + 2560
L_QB = L_QP + 7168
L_HID = L_QB + 384
L_MISC = L_HID + 128
L_OP = L_MISC + 128
L_YP = L_OP + 6144
L_TOTAL = L_YP + 20480
M_CNT, M_WMAX, M_WSUM, M_SCALE, M_FIN = 0, 16, 48, 80, 84

W_ACCA = 0
W_ACCB = 10240
W_ML = 32768
D_ZERO = 0
D_PAIR = 32
D_CNT = 128

STAMPS = False


class Gen:
    def __init__(self):
        self.L = []

    def A(self, s):
        self.L.append("  " + s)

    def label(self, s):
        self.L.append(s + ":")

    def C(self, s):
        self.L.append("  ; " + s)


def build(stamps=False):
    g = Gen()
    A, LB, C = g.A, g.label, g.C
    sX, sKp, sVp, sWQp, sWOp, sW1p, sB1p = 16, 18, 20, 22, 24, 28, 30
    sW2p, sB2p, sOUT, sDBG, sWS = 32, 34, 36, 38, 40
    sW = 3
    sH, sB, sS, sCc = 4, 5, 6, 7
    sT0, sT1, sT2, sT3 = 8, 9, 10, 11
    sN, sCur, sOff = 12, 13, 14
    sMsk = 15
    rK, rV, rCur, rWQ, rWO, rW1, rW2 = 44, 48, 52, 56, 60, 64, 68
    sO = 72
    sTs = 96
    vTid, vL, vKoff, vSW, vPR, vT0, vT1, vC, vOne, vB1, vMax, vS = range(12)
    P = 12
    SL = 48
    W = 144
    QF = P
    DA = [P + 12, P + 20]
    ACC = P
    PP = P + 24
    TP = P + 32
    QACC = P
    HACC = P + 24
    PRO = SL + 48
    W1R = PRO
    WQX = PRO + 20
    XNR = PRO + 28

    def slot(u):
        return SL + 24 * u

    def wq_reg(i):
        return W + 4 * i if i < 28 else WQX + 4 * (i - 28)

    boff = [0, 128, 256, 3072, 3200, 3328]

    def tile_loads(u, srd):
        for j in range(6):
            r = slot(u) + 4 * j
            A(f"buffer_load_dwordx4 v[{r}:{r+3}], v{vKoff}, s[{srd}:{srd+3}], s{sOff} offen offset:{boff[j]} nt")
        A(f"s_add_u32 s{sOff}, s{sOff}, 6144")

    def dpp(op, r, ctrl):
        A(f"{op}_dpp v{r}, v{r}, v{r} {ctrl} row_mask:0xf bank_mask:0xf")

    def butterfly(op, regs, steps):
        ctrls = ["quad_perm:[1,0,3,2]", "quad_perm:[2,3,0,1]", "row_half_mirror", "row_mirror"][:steps]
        for c in ctrls:
            if len(regs) < 3:
                A("s_nop 1")
            for r in regs:
                dpp(op, r, c)

    def wave_allreduce(op, r):
        butterfly(op, [r], 4)
        A("s_nop 0")
        A(f"v_readlane_b32 s{sT0}, v{r}, 0")
        A(f"v_readlane_b32 s{sT1}, v{r}, 16")
        A(f"v_readlane_b32 s{sT2}, v{r}, 32")
        A(f"v_readlane_b32 s{sT3}, v{r}, 48")
        A(f"v_mov_b32 v{r}, s{sT0}")
        A(f"{op} v{r}, s{sT1}, v{r}")
        A(f"{op} v{r}, s{sT2}, v{r}")
        A(f"{op} v{r}, s{sT3}, v{r}")

    def rnd1(r, t):
        A(f"v_cvt_pk_bf16_f32 v{t}, v{r}, v{r}")
        A(f"v_lshlrev_b32 v{r}, 16, v{t}")

    def rnd2(r0, r1, t):
        A(f"v_cvt_pk_bf16_f32 v{t}, v{r0}, v{r1}")
        A(f"v_lshlrev_b32 v{r0}, 16, v{t}")
        A(f"v_and_b32 v{r1}, s{sMsk}, v{t}")

    tp_ctr = [0]

    def set_exec(mask):
        if mask == -1 or (0 <= mask <= 64):
            A(f"s_mov_b64 exec, {mask}")
        else:
            A(f"s_mov_b32 exec_lo, {mask & 0xffffffff:#x}")
            A(f"s_mov_b32 exec_hi, {mask >> 32:#x}")

    def fma_dword(src, acc, mul, mul_is_s=False):
        t = TP + 2 * (tp_ctr[0] & 1)
        tp_ctr[0] += 1
        A(f"v_lshlrev_b32 v{t}, 16, v{src}")
        A(f"v_and_b32 v{t+1}, s{sMsk}, v{src}")
        base = mul & ~1
        sel = "op_sel_hi:[1,0,1]" if (mul & 1) == 0 else "op_sel:[0,1,0] op_sel_hi:[1,1,1]"
        pre = "s" if mul_is_s else "v"
        A(f"v_pk_fma_f32 v[{acc}:{acc+1}], v[{t}:{t+1}], {pre}[{base}:{base+1}], v[{acc}:{acc+1}] {sel}")

    def xgroup_reduce(regs, t):
        for r in regs:
            A(f"v_mov_b32 v{t}, v{r}")
            A("s_nop 1")
            A(f"v_permlane32_swap_b32 v{r}, v{t}")
            A("s_nop 0")
            A(f"v_add_f32 v{r}, v{r}, v{t}")
            A(f"v_mov_b32 v{t}, v{r}")
            A("s_nop 1")
            A(f"v_permlane16_swap_b32 v{r}, v{t}")
            A("s_nop 0")
            A(f"v_add_f32 v{r}, v{r}, v{t}")

    LB(f"{NAME}_kernel")
    A("s_cmp_ge_u32 s2, 256")
    A("s_cbranch_scc1 L_end")
    if stamps:
        A(f"s_memrealtime s[{sTs}:{sTs+1}]")
    A("s_load_dwordx16 s[16:31], s[0:1], 0")
    A("s_load_dwordx8 s[32:39], s[0:1], 64")
    A("s_load_dwordx2 s[40:41], s[0:1], 96")
    A(f"v_and_b32 v{vL}, 63, v0")
    A(f"v_lshrrev_b32 v{vT0}, 6, v0")
    A(f"s_mov_b32 s{sMsk}, 0xffff0000")
    A(f"v_readfirstlane_b32 s{sW}, v{vT0}")
    C("decode wg -> (h, b, s)")
    A(f"s_and_b32 s{sT0}, s2, 7")
    A(f"s_lshr_b32 s{sT1}, s2, 3")
    A(f"s_lshr_b32 s{sH}, s{sT1}, 3")
    A(f"s_lshl_b32 s{sT0}, s{sT0}, 2")
    A(f"s_add_u32 s{sH}, s{sH}, s{sT0}")
    A(f"s_bfe_u32 s{sB}, s{sT1}, 0x20001")
    A(f"s_and_b32 s{sS}, s{sT1}, 1")
    A(f"s_lshl_b32 s{sCc}, s{sH}, 1")
    A(f"s_add_u32 s{sCc}, s{sCc}, s{sS}")
    C("lane offsets")
    A(f"v_and_b32 v{vT0}, 7, v{vL}")
    A(f"v_lshrrev_b32 v{vT1}, 3, v{vL}")
    A(f"v_mul_u32_u24 v{vKoff}, 384, v{vT0}")
    A(f"v_lshl_add_u32 v{vKoff}, v{vT1}, 4, v{vKoff}")
    A(f"v_lshlrev_b32 v{vPR}, 5, v{vT0}")
    A(f"v_lshl_add_u32 v{vSW}, v{vT1}, 2, v{vPR}")
    C("wq lane offset -> vC (temp): r*12288 + e*16")
    A(f"v_mul_u32_u24 v{vC}, 12288, v{vT0}")
    A(f"v_lshl_add_u32 v{vC}, v{vT1}, 4, v{vC}")
    C("w1 lane offset -> vMax (temp): (l&15)*3072 + (l>>4)*16")
    A(f"v_and_b32 v{vMax}, 15, v{vL}")
    A(f"v_mul_u32_u24 v{vMax}, 3072, v{vMax}")
    A(f"v_lshrrev_b32 v{vS}, 4, v{vL}")
    A(f"v_lshl_add_u32 v{vMax}, v{vS}, 4, v{vMax}")
    C("x offsets")
    A(f"s_mul_i32 s{sT2}, s{sB}, 1280")
    A(f"v_lshl_add_u32 v{vT0}, v{vL}, 4, s{sT2}")
    A(f"v_lshl_add_u32 v{vT1}, v{vL}, 2, s{sT2}")
    C("b1 offset")
    A(f"v_min_u32 v{vB1}, 23, v{vL}")
    A(f"s_mul_i32 s{sT3}, s{sCc}, 24")
    A(f"v_add_lshl_u32 v{vB1}, v{vB1}, s{sT3}, 1")
    A(f"v_mov_b32 v{vOne}, 1")
    A("s_waitcnt lgkmcnt(0)")
    C("x loads")
    A(f"global_load_dwordx4 v[{XNR}:{XNR+3}], v{vT0}, s[{sX}:{sX+1}]")
    A(f"global_load_dword v{XNR+4}, v{vT1}, s[{sX}:{sX+1}] offset:1024")
    A(f"global_load_ushort v{vB1}, v{vB1}, s[{sB1p}:{sB1p+1}]")
    C("SRDs")
    A(f"s_mov_b32 s{rWQ}, s{sWQp}")
    A(f"s_mov_b32 s{rWQ+1}, s{sWQp+1}")
    A(f"s_mov_b32 s{rWQ+2}, 7864320")
    A(f"s_mov_b32 s{rWQ+3}, 0x20000")
    C("wq loads: rows 80w+8t+r, cols h*192..")
    A(f"s_mul_i32 s{sOff}, s{sW}, {80*12288}")
    A(f"s_mul_i32 s{sT0}, s{sH}, 384")
    A(f"s_add_u32 s{sOff}, s{sOff}, s{sT0}")
    for t in range(10):
        for n in range(3):
            r = wq_reg(3 * t + n)
            A(f"buffer_load_dwordx4 v[{r}:{r+3}], v{vC}, s[{rWQ}:{rWQ+3}], s{sOff} offen offset:{128*n}")
        if t < 9:
            A(f"s_add_u32 s{sOff}, s{sOff}, {8*12288}")
    C("w1 loads: rows 80w+16u+(l&15), cols 24c..")
    A(f"s_mov_b32 s{rW1}, s{sW1p}")
    A(f"s_mov_b32 s{rW1+1}, s{sW1p+1}")
    A(f"s_mov_b32 s{rW1+2}, 1966080")
    A(f"s_mov_b32 s{rW1+3}, 0x20000")
    A(f"s_mul_i32 s{sOff}, s{sW}, {80*3072}")
    A(f"s_mul_i32 s{sT0}, s{sCc}, 48")
    A(f"s_add_u32 s{sOff}, s{sOff}, s{sT0}")
    for u in range(5):
        r = W1R + 4 * u
        A(f"buffer_load_dwordx4 v[{r}:{r+3}], v{vMax}, s[{rW1}:{rW1+3}], s{sOff} offen")
        if u < 4:
            A(f"s_add_u32 s{sOff}, s{sOff}, {16*3072}")
    C("K / V SRDs: base + ((b*32+h)*2+s)*1572864")
    A(f"s_lshl_b32 s{sT0}, s{sB}, 6")
    A(f"s_add_u32 s{sT0}, s{sT0}, s{sCc}")
    A(f"s_mul_i32 s{sT0}, s{sT0}, 1572864")
    A(f"s_add_u32 s{rK}, s{sKp}, s{sT0}")
    A(f"s_addc_u32 s{rK+1}, s{sKp+1}, 0")
    A(f"s_mov_b32 s{rK+2}, 1572864")
    A(f"s_mov_b32 s{rK+3}, 0x20000")
    A(f"s_add_u32 s{rV}, s{sVp}, s{sT0}")
    A(f"s_addc_u32 s{rV+1}, s{sVp+1}, 0")
    A(f"s_mov_b32 s{rV+2}, 1572864")
    A(f"s_mov_b32 s{rV+3}, 0x20000")
    A(f"s_mov_b32 s{rCur}, s{rK}")
    A(f"s_mov_b32 s{rCur+1}, s{rK+1}")
    A(f"s_mov_b32 s{rCur+2}, 1572864")
    A(f"s_mov_b32 s{rCur+3}, 0x20000")
    A(f"s_mov_b32 s{sCur}, s{sW}")
    A(f"s_mul_i32 s{sOff}, s{sW}, 24576")
    tile_loads(0, rK)
    tile_loads(1, rK)
    C("WG0 wave7: zero the accumulators (20 KB) with write-through stores")
    A(f"s_or_b32 s{sT0}, s2, s{sW}")
    A(f"s_cmp_eq_u32 s2, 0")
    A("s_cbranch_scc0 L_nozero")
    A(f"s_cmp_eq_u32 s{sW}, 7")
    A("s_cbranch_scc0 L_nozero")
    for i in range(4):
        A(f"v_mov_b32 v{QACC+i}, 0")
    A(f"v_lshlrev_b32 v{vT0}, 4, v{vL}")
    for i in range(20):
        if i and i % 4 == 0:
            A(f"v_add_u32 v{vT0}, 4096, v{vT0}")
        A(f"global_store_dwordx4 v{vT0}, v[{QACC}:{QACC+3}], s[{sWS}:{sWS+1}] offset:{(i%4)*1024} sc0 sc1")
    A("s_waitcnt vmcnt(0)")
    LB("L_nozero")
    C("other SRDs")
    A(f"s_mul_i32 s{sT0}, s{sH}, 245760")
    A(f"s_add_u32 s{rWO}, s{sWOp}, s{sT0}")
    A(f"s_addc_u32 s{rWO+1}, s{sWOp+1}, 0")
    A(f"s_mov_b32 s{rWO+2}, 245760")
    A(f"s_mov_b32 s{rWO+3}, 0x20000")
    A(f"s_mov_b32 s{rW2}, s{sW2p}")
    A(f"s_mov_b32 s{rW2+1}, s{sW2p+1}")
    A(f"s_mov_b32 s{rW2+2}, 1966080")
    A(f"s_mov_b32 s{rW2+3}, 0x20000")
    for i in range(32):
        A(f"v_mov_b32 v{QACC+i}, 0")
    C("LDS counter init")
    A(f"v_mov_b32 v{vT0}, {L_MISC}")
    A(f"v_mov_b32 v{vT1}, 8")
    A(f"ds_write_b32 v{vT0}, v{vT1} offset:{M_CNT}")
    C("---- LayerNorm ----")
    A("s_waitcnt vmcnt(48)")
    X = XNR + 6
    for k in range(5):
        A(f"v_lshlrev_b32 v{X+2*k}, 16, v{XNR+k}")
        A(f"v_and_b32 v{X+2*k+1}, s{sMsk}, v{XNR+k}")
    a = XNR
    A(f"v_add_f32 v{a}, v{X}, v{X+1}")
    for k in range(2, 10):
        A(f"v_add_f32 v{a}, v{a}, v{X+k}")
    wave_allreduce("v_add_f32", a)
    A(f"v_mul_f32 v{a}, {1.0/640.0!r}, v{a}")
    A(f"v_sub_f32 v{a+1}, v{X}, v{a}")
    A(f"v_mul_f32 v{a+2}, v{a+1}, v{a+1}")
    for k in range(1, 10):
        A(f"v_sub_f32 v{a+1}, v{X+k}, v{a}")
        A(f"v_fmac_f32 v{a+2}, v{a+1}, v{a+1}")
    wave_allreduce("v_add_f32", a + 2)
    A(f"v_mul_f32 v{a+2}, {1.0/640.0!r}, v{a+2}")
    rnd2(a, a + 2, a + 1)
    A(f"v_add_f32 v{a+2}, 0x3727c5ac, v{a+2}")
    rnd1(a + 2, a + 1)
    A(f"v_sqrt_f32 v{a+2}, v{a+2}")
    A("s_nop 0")
    rnd1(a + 2, a + 1)
    A(f"v_rcp_f32 v{a+3}, v{a+2}")
    for k in range(10):
        A(f"v_sub_f32 v{X+k}, v{X+k}, v{a}")
    for k in range(0, 10, 2):
        rnd2(X + k, X + k + 1, a + 1)
    for k in range(10):
        A(f"v_mul_f32 v{a+4}, v{X+k}, v{a+3}")
        A(f"v_fma_f32 v{a+5}, -v{a+4}, v{a+2}, v{X+k}")
        A(f"v_fma_f32 v{X+k}, v{a+5}, v{a+3}, v{a+4}")
    for k in range(0, 10, 2):
        rnd2(X + k, X + k + 1, a + 1)
    assert X % 2 == 0
    A(f"v_lshlrev_b32 v{vT0}, 5, v{vL}")
    A(f"ds_write_b128 v{vT0}, v[{X}:{X+3}] offset:{L_XN}")
    A(f"ds_write_b128 v{vT0}, v[{X+4}:{X+7}] offset:{L_XN+16}")
    A(f"v_lshlrev_b32 v{vT0}, 3, v{vL}")
    A(f"ds_write_b64 v{vT0}, v[{X+8}:{X+9}] offset:{L_XN+2048}")
    C("read back xn in the two lane layouts")
    A(f"s_mul_i32 s{sT0}, s{sW}, 320")
    A(f"v_and_b32 v{vT0}, 7, v{vL}")
    A(f"v_lshl_add_u32 v{vT0}, v{vT0}, 2, s{sT0}")
    A(f"v_and_b32 v{vT1}, 15, v{vL}")
    A(f"v_lshl_add_u32 v{vT1}, v{vT1}, 2, s{sT0}")
    A("s_waitcnt lgkmcnt(0)")
    for t in range(10):
        A(f"ds_read_b32 v{XNR+t}, v{vT0} offset:{L_XN+32*t}")
    for u in range(5):
        A(f"ds_read_b32 v{XNR+10+u}, v{vT1} offset:{L_XN+64*u}")
    A("s_waitcnt lgkmcnt(0)")
    C("---- q projection partials ----")
    for t in range(10):
        A(f"s_waitcnt vmcnt({47 - 3*(t+1)})")
        for n in range(3):
            r = wq_reg(3 * t + n)
            for k in range(4):
                fma_dword(r + k, QACC + 8 * n + 2 * k, XNR + t)
    A("s_waitcnt vmcnt(12)")
    for u in range(5):
        for k in range(4):
            fma_dword(W1R + 4 * u + k, HACC + 2 * k, XNR + 10 + u)
    C("slots 2,3 are free now: continue the K prefetch; w2 loads into W region")
    tile_loads(2, rK)
    tile_loads(3, rK)
    W2A = W
    W2B = W + 12
    A(f"s_mul_i32 s{sT0}, s{sCc}, 24")
    A(f"s_mul_i32 s{sT1}, s{sW}, 3")
    A(f"s_add_u32 s{sT0}, s{sT0}, s{sT1}")
    A(f"s_mul_i32 s{sT0}, s{sT0}, 1280")
    A(f"v_lshlrev_b32 v{vT0}, 4, v{vL}")
    A(f"v_lshrrev_b32 v{vT1}, 4, v{vL}")
    A(f"v_mul_u32_u24 v{vT1}, 1280, v{vT1}")
    A(f"v_and_b32 v{vC}, 15, v{vL}")
    A(f"v_lshl_add_u32 v{vT1}, v{vC}, 4, v{vT1}")
    for i in range(4):
        A(f"v_mov_b32 v{W2B+i}, 0")
    for i in range(3):
        A(f"buffer_load_dwordx4 v[{W2A+4*i}:{W2A+4*i+3}], v{vT0}, s[{rW2}:{rW2+3}], s{sT0} offen offset:{1280*i}")
    set_exec(0x0000ffffffffffff)
    A(f"buffer_load_dwordx4 v[{W2B}:{W2B+3}], v{vT1}, s[{rW2}:{rW2+3}], s{sT0} offen offset:1024")
    A("s_mov_b64 exec, -1")
    C("reduce partials across lanes, write to LDS")
    butterfly("v_add_f32", list(range(QACC, QACC + 32)), 3)
    for r in range(HACC, HACC + 8):
        dpp("v_add_f32", r, "row_mirror")
    A(f"s_mul_i32 s{sT0}, s{sW}, 896")
    A(f"v_lshrrev_b32 v{vT0}, 3, v{vL}")
    A(f"v_lshl_add_u32 v{vT0}, v{vT0}, 5, s{sT0}")
    A(f"v_lshrrev_b32 v{vT1}, 4, v{vL}")
    A(f"v_lshl_add_u32 v{vT1}, v{vT1}, 5, s{sT0}")
    set_exec(0x0101010101010101)
    for n in range(3):
        A(f"ds_write_b128 v{vT0}, v[{QACC+8*n}:{QACC+8*n+3}] offset:{L_QP+256*n}")
        A(f"ds_write_b128 v{vT0}, v[{QACC+8*n+4}:{QACC+8*n+7}] offset:{L_QP+256*n+16}")
    set_exec(0x0000000100010001)
    A(f"ds_write_b128 v{vT1}, v[{HACC}:{HACC+3}] offset:{L_QP+768}")
    A(f"ds_write_b128 v{vT1}, v[{HACC+4}:{HACC+7}] offset:{L_QP+768+16}")
    A("s_mov_b64 exec, -1")
    A("s_waitcnt lgkmcnt(0)")
    A("s_barrier")
    C("threads < 216 finish q / hid")
    A(f"s_cmp_ge_u32 s{sW}, 4")
    A("s_cbranch_scc1 L_q_done")
    A(f"v_min_u32 v{vT0}, 223, v0")
    A(f"v_lshlrev_b32 v{vT0}, 2, v{vT0}")
    for i in range(8):
        A(f"ds_read_b32 v{P+i}, v{vT0} offset:{L_QP+896*i}")
    A("s_waitcnt lgkmcnt(0)")
    for i in range(1, 8):
        A(f"v_add_f32 v{P}, v{P}, v{P+i}")
    A(f"s_cmp_eq_u32 s{sW}, 3")
    A("s_cbranch_scc1 L_hid")
    A(f"v_cvt_pk_bf16_f32 v{P}, v{P}, v{P}")
    A(f"v_lshlrev_b32 v{vT0}, 1, v0")
    A(f"ds_write_b16 v{vT0}, v{P} offset:{L_QB}")
    A("s_branch L_q_done")
    LB("L_hid")
    rnd1(P, P + 1)
    A(f"v_lshlrev_b32 v{vB1}, 16, v{vB1}")
    A(f"v_add_f32 v{P}, v{P}, v{vB1}")
    rnd1(P, P + 1)
    A(f"v_cmp_gt_f32 vcc, v{P}, 0")
    A("s_nop 1")
    A(f"v_cndmask_b32 v{P}, 0, v{P}, vcc")
    A(f"v_mul_f32 v{P}, v{P}, v{P}")
    rnd1(P, P + 1)
    A(f"v_lshlrev_b32 v{vT0}, 2, v{vL}")
    set_exec(0xffffff)
    A(f"ds_write_b32 v{vT0}, v{P} offset:{L_HID}")
    A("s_mov_b64 exec, -1")
    LB("L_q_done")
    A("s_waitcnt lgkmcnt(0)")
    A("s_barrier")
    C("q fragments: chunk 8n + 2g + (l&1)")
    A(f"v_lshrrev_b32 v{vT0}, 4, v{vL}")
    A(f"v_lshlrev_b32 v{vT0}, 5, v{vT0}")
    A(f"v_and_b32 v{vT1}, 1, v{vL}")
    A(f"v_lshl_add_u32 v{vT0}, v{vT1}, 4, v{vT0}")
    for n in range(3):
        A(f"ds_read_b128 v[{QF+4*n}:{QF+4*n+3}], v{vT0} offset:{L_QB+128*n}")
    A(f"v_mov_b32 v{vMax}, 0xff800000")
    A(f"v_mov_b32 v{vB1}, {L_MISC}")
    vMisc = vB1
    A("s_waitcnt lgkmcnt(0)")
    C("==== K loop ====")
    LB("L_kloop")
    A("s_mov_b64 exec, 1")
    A(f"ds_add_rtn_u32 v{vC}, v{vMisc}, v{vOne} offset:{M_CNT}")
    A("s_mov_b64 exec, -1")
    for u in range(4):
        s0 = slot(u)
        Da, Db = DA[u & 1], DA[u & 1] + 4
        A("s_waitcnt vmcnt(18)")
        for n in range(3):
            ca = "0" if n == 0 else f"v[{Da}:{Da+3}]"
            cb = "0" if n == 0 else f"v[{Db}:{Db+3}]"
            A(f"v_mfma_f32_16x16x32_bf16 v[{Da}:{Da+3}], v[{QF+4*n}:{QF+4*n+3}], v[{s0+4*n}:{s0+4*n+3}], {ca}")
            A(f"v_mfma_f32_16x16x32_bf16 v[{Db}:{Db+3}], v[{QF+4*n}:{QF+4*n+3}], v[{s0+12+4*n}:{s0+12+4*n+3}], {cb}")
        if u == 0:
            A("s_waitcnt lgkmcnt(0)")
            A(f"v_readfirstlane_b32 s{sN}, v{vC}")
            A("s_nop 3")
            A(f"s_cmp_lt_u32 s{sN}, 64")
            A(f"s_cselect_b32 s{rCur}, s{rK}, s{rV}")
            A(f"s_cselect_b32 s{rCur+1}, s{rK+1}, s{rV+1}")
            A(f"s_and_b32 s{sT0}, s{sN}, 63")
            A(f"s_mul_i32 s{sOff}, s{sT0}, 24576")
        tile_loads(u, rCur)
        A("s_nop 1")
        A(f"v_add_f32_dpp v{vS}, v{Da+1}, v{Da} row_ror:8 row_mask:{1<<u:#x} bank_mask:0x3")
        A(f"v_add_f32_dpp v{vS}, v{Db}, v{Db+1} row_ror:8 row_mask:{1<<u:#x} bank_mask:0xc")
    A(f"s_lshl_b32 s{sT0}, s{sCur}, 8")
    A(f"v_add_u32 v{vT0}, s{sT0}, v{vSW}")
    A(f"v_max_f32 v{vMax}, v{vMax}, v{vS}")
    A(f"ds_write_b32 v{vT0}, v{vS} offset:{L_SC}")
    A(f"s_mov_b32 s{sCur}, s{sN}")
    A(f"s_cmp_lt_u32 s{sN}, 64")
    A("s_cbranch_scc1 L_kloop")
    C("==== mid phase ====")
    wave_allreduce("v_max_f32", vMax)
    A(f"s_lshl_b32 s{sT0}, s{sW}, 2")
    A(f"v_add_u32 v{vT0}, s{sT0}, v{vMisc}")
    A(f"ds_write_b32 v{vT0}, v{vMax} offset:{M_WMAX}")
    C("FFN2 partials (w2 rows 3w..3w+2)")
    YA, YB = P, P + 8
    HM = P + 16
    A(f"s_mul_i32 s{sT0}, s{sW}, 12")
    A(f"v_mov_b32 v{vT0}, s{sT0}")
    A(f"v_lshrrev_b32 v{vT1}, 4, v{vL}")
    A(f"v_min_u32 v{vT1}, 2, v{vT1}")
    A(f"v_lshl_add_u32 v{vT1}, v{vT1}, 2, s{sT0}")
    for i in range(3):
        A(f"ds_read_b32 v{HM+i}, v{vT0} offset:{L_HID+4*i}")
    A(f"ds_read_b32 v{HM+3}, v{vT1} offset:{L_HID}")
    for i in range(16):
        A(f"v_mov_b32 v{YA+i}, 0")
    A("s_waitcnt lgkmcnt(0)")
    for i in range(3):
        for k in range(4):
            fma_dword(W2A + 4 * i + k, YA + 2 * k, HM + i)
    for k in range(4):
        fma_dword(W2B + k, YB + 2 * k, HM + 3)
    xgroup_reduce(range(YB, YB + 8), vT0)

    def write_y():
        A(f"s_mul_i32 s{sT0}, s{sW}, 2560")
        A(f"v_lshl_add_u32 v{vT0}, v{vL}, 5, s{sT0}")
        A(f"ds_write_b128 v{vT0}, v[{YA}:{YA+3}] offset:{L_YP}")
        A(f"ds_write_b128 v{vT0}, v[{YA+4}:{YA+7}] offset:{L_YP+16}")
        set_exec(0xffff)
        A(f"ds_write_b128 v{vT0}, v[{YB}:{YB+3}] offset:{L_YP+2048}")
        A(f"ds_write_b128 v{vT0}, v[{YB+4}:{YB+7}] offset:{L_YP+2048+16}")
        A("s_mov_b64 exec, -1")
    write_y()
    A("s_waitcnt lgkmcnt(0)")
    A("s_barrier")
    C("M = max over waves; convert own 512 scores to p")
    E = P
    A(f"ds_read_b128 v[{E+8}:{E+11}], v{vMisc} offset:{M_WMAX}")
    A(f"ds_read_b128 v[{E+12}:{E+15}], v{vMisc} offset:{M_WMAX+16}")
    A(f"s_lshl_b32 s{sT0}, s{sW}, 11")
    A(f"v_lshl_add_u32 v{vT0}, v{vL}, 4, s{sT0}")
    A(f"ds_read_b128 v[{E}:{E+3}], v{vT0} offset:{L_SC}")
    A(f"ds_read_b128 v[{E+4}:{E+7}], v{vT0} offset:{L_SC+1024}")
    A("s_waitcnt lgkmcnt(2)")
    A(f"v_max3_f32 v{vMax}, v{E+8}, v{E+9}, v{E+10}")
    A(f"v_max3_f32 v{vMax}, v{vMax}, v{E+11}, v{E+12}")
    A(f"v_max3_f32 v{vMax}, v{vMax}, v{E+13}, v{E+14}")
    A(f"v_max_f32 v{vMax}, v{vMax}, v{E+15}")
    SCALE = "0x3d93cd3a"
    LOG2E = "0x3fb8aa3b"
    rnd1(vMax, vT1)
    A(f"v_mul_f32 v{vMax}, {SCALE}, v{vMax}")
    rnd1(vMax, vT1)
    A("s_waitcnt lgkmcnt(0)")
    for k in range(0, 8, 2):
        rnd2(E + k, E + k + 1, vT1)
    for k in range(8):
        A(f"v_mul_f32 v{E+k}, {SCALE}, v{E+k}")
    for k in range(0, 8, 2):
        rnd2(E + k, E + k + 1, vT1)
    for k in range(8):
        A(f"v_sub_f32 v{E+k}, v{E+k}, v{vMax}")
    for k in range(8):
        A(f"v_mul_f32 v{E+k}, {LOG2E}, v{E+k}")
    for k in range(8):
        A(f"v_exp_f32 v{E+k}, v{E+k}")
    A("s_nop 0")
    A(f"ds_write_b128 v{vT0}, v[{E}:{E+3}] offset:{L_SC}")
    A(f"ds_write_b128 v{vT0}, v[{E+4}:{E+7}] offset:{L_SC+1024}")
    A(f"v_add_f32 v{vS}, v{E}, v{E+1}")
    for k in range(2, 8):
        A(f"v_add_f32 v{vS}, v{vS}, v{E+k}")
    wave_allreduce("v_add_f32", vS)
    A(f"s_lshl_b32 s{sT0}, s{sW}, 2")
    A(f"v_add_u32 v{vT0}, s{sT0}, v{vMisc}")
    A(f"ds_write_b32 v{vT0}, v{vS} offset:{M_WSUM}")
    A("s_waitcnt lgkmcnt(0)")
    A("s_barrier")
    C("wave 7 publishes (M, L)")
    A(f"s_cmp_eq_u32 s{sW}, 7")
    A("s_cbranch_scc0 L_nopub")

    def read_L(dst):
        A(f"ds_read_b128 v[{E}:{E+3}], v{vMisc} offset:{M_WSUM}")
        A(f"ds_read_b128 v[{E+4}:{E+7}], v{vMisc} offset:{M_WSUM+16}")
        A("s_waitcnt lgkmcnt(0)")
        A(f"v_add_f32 v{dst}, v{E}, v{E+1}")
        for k in range(2, 8):
            A(f"v_add_f32 v{dst}, v{dst}, v{E+k}")
    read_L(E + 9)
    A(f"v_mov_b32 v{E+8}, v{vMax}")
    A(f"s_lshl_b32 s{sT0}, s2, 6")
    A(f"s_add_u32 s{sT0}, s{sT0}, {W_ML}")
    A(f"v_mov_b32 v{vT0}, s{sT0}")
    A("s_mov_b64 exec, 1")
    A(f"global_store_dwordx2 v{vT0}, v[{E+8}:{E+9}], s[{sWS}:{sWS+1}] sc0 sc1")
    A("s_waitcnt vmcnt(0)")
    A(f"s_lshr_b32 s{sT0}, s2, 5")
    A(f"s_lshl_b32 s{sT0}, s{sT0}, 2")
    A(f"s_and_b32 s{sT1}, s2, 31")
    A(f"s_lshl_b32 s{sT1}, 1, s{sT1}")
    A(f"v_mov_b32 v{vT0}, s{sT0}")
    A(f"v_mov_b32 v{vT1}, s{sT1}")
    A(f"global_atomic_or v{vT0}, v{vT1}, s[{sDBG}:{sDBG+1}] offset:{D_PAIR} sc1")
    A("s_cmp_eq_u32 s2, 0")
    A("s_cbranch_scc0 L_nozf")
    A(f"v_mov_b32 v{vT0}, 0")
    A(f"global_atomic_or v{vT0}, v{vOne}, s[{sDBG}:{sDBG+1}] offset:{D_ZERO} sc1")
    LB("L_nozf")
    A("s_mov_b64 exec, -1")
    LB("L_nopub")
    for i in range(24):
        A(f"v_mov_b32 v{ACC+i}, 0")
    C("==== V loop ====")

    def v_tile(u):
        s0 = slot(u)
        for half in range(2):
            for n in range(3):
                for k in range(4):
                    fma_dword(s0 + 12 * half + 4 * n + k, ACC + 8 * n + 2 * k, PP + 2 * u + half)

    LB("L_vloop")
    A("s_mov_b64 exec, 1")
    A(f"ds_add_rtn_u32 v{vC}, v{vMisc}, v{vOne} offset:{M_CNT}")
    A("s_mov_b64 exec, -1")
    A(f"s_and_b32 s{sT0}, s{sCur}, 63")
    A(f"s_lshl_b32 s{sT0}, s{sT0}, 8")
    A(f"v_add_u32 v{vT0}, s{sT0}, v{vPR}")
    A(f"ds_read_b128 v[{PP}:{PP+3}], v{vT0} offset:{L_SC}")
    A(f"ds_read_b128 v[{PP+4}:{PP+7}], v{vT0} offset:{L_SC+16}")
    A("s_waitcnt lgkmcnt(0)")
    A(f"v_readfirstlane_b32 s{sN}, v{vC}")
    A("s_nop 3")
    A(f"s_cmp_ge_u32 s{sN}, 128")
    A("s_cbranch_scc1 L_vlast")
    A(f"s_cmp_eq_u32 s{sN}, 96")
    A("s_cbranch_scc1 L_side")
    LB("L_vcont")
    A(f"s_and_b32 s{sT0}, s{sN}, 63")
    A(f"s_mul_i32 s{sOff}, s{sT0}, 24576")
    for u in range(4):
        A("s_waitcnt vmcnt(18)")
        v_tile(u)
        tile_loads(u, rV)
    A(f"s_mov_b32 s{sCur}, s{sN}")
    A("s_branch L_vloop")
    C("side routine: partner (M,L), scale, FFN atomics.  Uses W region temps")
    LB("L_side")
    Z = W + 16
    A(f"s_xor_b32 s{sT2}, s2, 8")
    A(f"s_lshr_b32 s{sT0}, s{sT2}, 5")
    A(f"s_lshl_b32 s{sT0}, s{sT0}, 2")
    A(f"s_and_b32 s{sT1}, s{sT2}, 31")
    A(f"s_lshl_b32 s{sT1}, 1, s{sT1}")
    A(f"v_mov_b32 v{Z}, s{sT0}")
    A(f"v_mov_b32 v{Z+1}, 0")
    A(f"s_mov_b32 s{sOff}, 0x40000")
    LB("L_poll")
    A(f"global_load_dword v{Z+2}, v{Z}, s[{sDBG}:{sDBG+1}] offset:{D_PAIR} sc0 sc1")
    A(f"global_load_dword v{Z+3}, v{Z+1}, s[{sDBG}:{sDBG+1}] offset:{D_ZERO} sc0 sc1")
    A("s_waitcnt vmcnt(0)")
    A(f"v_readfirstlane_b32 s{sT0}, v{Z+2}")
    A(f"v_readfirstlane_b32 s{sT3}, v{Z+3}")
    A("s_nop 3")
    A(f"s_and_b32 s{sT0}, s{sT0}, s{sT1}")
    A(f"s_cselect_b32 s{sT0}, s{sT3}, 0")
    A(f"s_cmp_lg_u32 s{sT0}, 0")
    A("s_cbranch_scc1 L_polled")
    A("s_sleep 8")
    A(f"s_sub_u32 s{sOff}, s{sOff}, 1")
    A(f"s_cmp_lg_u32 s{sOff}, 0")
    A("s_cbranch_scc1 L_poll")
    LB("L_polled")
    A(f"s_lshl_b32 s{sT0}, s{sT2}, 6")
    A(f"s_add_u32 s{sT0}, s{sT0}, {W_ML}")
    A(f"v_mov_b32 v{Z}, s{sT0}")
    A(f"global_load_dwordx2 v[{Z+2}:{Z+3}], v{Z}, s[{sWS}:{sWS+1}] sc0 sc1")
    C("own L")
    A(f"ds_read_b128 v[{Z+4}:{Z+7}], v{vMisc} offset:{M_WSUM}")
    A(f"ds_read_b128 v[{Z+8}:{Z+11}], v{vMisc} offset:{M_WSUM+16}")
    A("s_waitcnt lgkmcnt(0)")
    for k in range(1, 8):
        A(f"v_add_f32 v{Z+4}, v{Z+4}, v{Z+4+k}")
    A("s_waitcnt vmcnt(0)")
    A(f"v_max_f32 v{Z+5}, v{vMax}, v{Z+2}")
    A(f"v_sub_f32 v{Z+6}, v{vMax}, v{Z+5}")
    A(f"v_sub_f32 v{Z+7}, v{Z+2}, v{Z+5}")
    A(f"v_mul_f32 v{Z+6}, {LOG2E}, v{Z+6}")
    A(f"v_mul_f32 v{Z+7}, {LOG2E}, v{Z+7}")
    A(f"v_exp_f32 v{Z+6}, v{Z+6}")
    A(f"v_exp_f32 v{Z+7}, v{Z+7}")
    A("s_nop 0")
    A(f"v_mul_f32 v{Z+8}, v{Z+4}, v{Z+6}")
    A(f"v_fmac_f32 v{Z+8}, v{Z+3}, v{Z+7}")
    A(f"v_rcp_f32 v{Z+9}, v{Z+8}")
    A("s_nop 0")
    A(f"v_mul_f32 v{Z+10}, v{Z+6}, v{Z+9}")
    A(f"v_fma_f32 v{Z+11}, -v{Z+10}, v{Z+8}, v{Z+6}")
    A(f"v_fma_f32 v{Z+10}, v{Z+11}, v{Z+9}, v{Z+10}")
    A(f"ds_write_b32 v{vMisc}, v{Z+10} offset:{M_SCALE}")
    C("FFN column sums -> accB atomics")
    A(f"s_mul_i32 s{sT0}, s{sB}, 2560")
    A(f"s_add_u32 s{sT0}, s{sT0}, {W_ACCB}")
    A(f"v_lshlrev_b32 v{Z}, 2, v{vL}")
    A(f"v_add_u32 v{Z+1}, s{sT0}, v{Z}")
    for c in range(10):
        for i in range(8):
            A(f"ds_read_b32 v{Z+4+i}, v{Z} offset:{L_YP+2560*i+256*c}")
        A("s_waitcnt lgkmcnt(0)")
        A(f"v_add_f32 v{Z+12+c}, v{Z+4}, v{Z+5}")
        for i in range(2, 8):
            A(f"v_add_f32 v{Z+12+c}, v{Z+12+c}, v{Z+4+i}")
        A(f"global_atomic_add_f32 v{Z+1}, v{Z+12+c}, s[{sWS}:{sWS+1}] offset:{256*c}")
    A("s_waitcnt vmcnt(0)")
    A("s_branch L_vcont")
    C("last V chunk of this wave: prefetch wo instead of V")
    LB("L_vlast")
    A(f"s_mul_i32 s{sOff}, s{sW}, {24*1280}")
    A(f"v_lshlrev_b32 v{vT0}, 4, v{vL}")
    for i in range(24):
        r = W + 4 * i
        A(f"buffer_load_dwordx4 v[{r}:{r+3}], v{vT0}, s[{rWO}:{rWO+3}], s{sOff} offen offset:{1280*(i%3)}")
        if i % 3 == 2 and i < 23:
            A(f"s_add_u32 s{sOff}, s{sOff}, 3840")
    A(f"s_mul_i32 s{sOff}, s{sW}, {24*1280}")
    A(f"v_lshrrev_b32 v{vT1}, 4, v{vL}")
    A(f"v_mul_u32_u24 v{vT1}, {6*1280}, v{vT1}")
    A(f"v_and_b32 v{vC}, 15, v{vL}")
    A(f"v_lshl_add_u32 v{vT1}, v{vC}, 4, v{vT1}")
    A(f"v_add_u32 v{vT1}, 1024, v{vT1}")
    A("s_waitcnt vmcnt(42)")
    v_tile(0)
    WB = slot(0)
    for i in range(6):
        r = WB + 4 * i
        if i == 3:
            A(f"s_add_u32 s{sOff}, s{sOff}, 3840")
        A(f"buffer_load_dwordx4 v[{r}:{r+3}], v{vT1}, s[{rWO}:{rWO+3}], s{sOff} offen offset:{1280*(i%3)}")
    A("s_waitcnt vmcnt(42)")
    v_tile(1)
    A("s_waitcnt vmcnt(36)")
    v_tile(2)
    A("s_waitcnt vmcnt(30)")
    v_tile(3)
    C("==== tail ====")
    butterfly("v_add_f32", list(range(ACC, ACC + 24)), 3)
    A(f"s_mul_i32 s{sT0}, s{sW}, 768")
    A(f"v_lshrrev_b32 v{vT0}, 3, v{vL}")
    A(f"v_lshl_add_u32 v{vT0}, v{vT0}, 5, s{sT0}")
    set_exec(0x0101010101010101)
    for n in range(3):
        A(f"ds_write_b128 v{vT0}, v[{ACC+8*n}:{ACC+8*n+3}] offset:{L_OP+256*n}")
        A(f"ds_write_b128 v{vT0}, v[{ACC+8*n+4}:{ACC+8*n+7}] offset:{L_OP+256*n+16}")
    A("s_mov_b64 exec, -1")
    C("speculative loads for the final stage: x, b2")
    FX = slot(1)
    A(f"v_min_u32 v{vS}, 319, v0")
    A(f"v_mul_u32_u24 v{vT1}, 205, v{vS}")
    A(f"v_lshrrev_b32 v{vT1}, 14, v{vT1}")
    A(f"v_mul_u32_u24 v{vT1}, 80, v{vT1}")
    A(f"v_sub_u32 v{vT1}, v{vS}, v{vT1}")
    A(f"v_lshlrev_b32 v{vT1}, 4, v{vT1}")
    A(f"v_lshlrev_b32 v{vS}, 4, v{vS}")
    A(f"global_load_dwordx4 v[{FX}:{FX+3}], v{vS}, s[{sX}:{sX+1}]")
    A(f"global_load_dwordx4 v[{FX+4}:{FX+7}], v{vT1}, s[{sB2p}:{sB2p+1}]")
    A("s_waitcnt lgkmcnt(0)")
    A("s_barrier")
    C("o[24w + l] for l < 24")
    A(f"s_mul_i32 s{sT0}, s{sW}, 96")
    A(f"v_min_u32 v{vT0}, 23, v{vL}")
    A(f"v_lshl_add_u32 v{vT0}, v{vT0}, 2, s{sT0}")
    for i in range(8):
        A(f"ds_read_b32 v{P+16+i}, v{vT0} offset:{L_OP+768*i}")
    A(f"ds_read_b32 v{P+24}, v{vMisc} offset:{M_SCALE}")
    A(f"v_lshrrev_b32 v{vT1}, 4, v{vL}")
    A(f"v_mul_u32_u24 v{vT1}, 24, v{vT1}")
    for i in range(16):
        A(f"v_mov_b32 v{YA+i}, 0")
    A("s_waitcnt lgkmcnt(0)")
    O = P + 16
    for i in range(1, 8):
        A(f"v_add_f32 v{O}, v{O}, v{O+i}")
    A(f"v_mul_f32 v{O}, v{O}, v{P+24}")
    OB = P + 24
    for i in range(6):
        A(f"ds_bpermute_b32 v{OB+i}, v{vT1}, v{O} offset:{4*i}")
    for i in range(24):
        A(f"v_readlane_b32 s{sO+i}, v{O}, {i}")
    A("s_waitcnt vmcnt(2)")
    for i in range(24):
        for k in range(4):
            fma_dword(W + 4 * i + k, YA + 2 * k, sO + i, mul_is_s=True)
    A("s_waitcnt lgkmcnt(0)")
    for i in range(6):
        for k in range(4):
            fma_dword(WB + 4 * i + k, YB + 2 * k, OB + i)
    xgroup_reduce(range(YB, YB + 8), vT0)
    write_y()
    A("s_waitcnt lgkmcnt(0)")
    A("s_barrier")
    C("column sums + atomics")
    A(f"v_lshlrev_b32 v{vT0}, 2, v0")
    for i in range(8):
        A(f"ds_read_b32 v{P+i}, v{vT0} offset:{L_YP+2560*i}")
    A(f"s_mul_i32 s{sT0}, s{sB}, 2560")
    A(f"v_add_u32 v{vT1}, s{sT0}, v{vT0}")
    A(f"s_cmp_ge_u32 s{sW}, 2")
    A("s_cbranch_scc1 L_nob")
    for i in range(8):
        A(f"ds_read_b32 v{P+8+i}, v{vT0} offset:{L_YP+2560*i+2048}")
    A("s_waitcnt lgkmcnt(0)")
    for i in range(1, 8):
        A(f"v_add_f32 v{P+8}, v{P+8}, v{P+8+i}")
    A(f"global_atomic_add_f32 v{vT1}, v{P+8}, s[{sWS}:{sWS+1}] offset:{W_ACCA+2048}")
    LB("L_nob")
    A("s_waitcnt lgkmcnt(0)")
    for i in range(1, 8):
        A(f"v_add_f32 v{P}, v{P}, v{P+i}")
    A(f"global_atomic_add_f32 v{vT1}, v{P}, s[{sWS}:{sWS+1}] offset:{W_ACCA}")
    A("s_waitcnt vmcnt(0)")
    A("s_barrier")
    A(f"s_cmp_eq_u32 s{sW}, 0")
    A("s_cbranch_scc0 L_nocnt")
    A(f"v_mov_b32 v{vT0}, 0")
    A("s_mov_b64 exec, 1")
    A(f"global_atomic_add v{vC}, v{vT0}, v{vOne}, s[{sDBG}:{sDBG+1}] offset:{D_CNT} sc0 sc1")
    A("s_waitcnt vmcnt(0)")
    A(f"ds_write_b32 v{vMisc}, v{vC} offset:{M_FIN}")
    A("s_mov_b64 exec, -1")
    A("s_waitcnt lgkmcnt(0)")
    LB("L_nocnt")
    A("s_barrier")
    A(f"ds_read_b32 v{vC}, v{vMisc} offset:{M_FIN}")
    A("s_waitcnt lgkmcnt(0)")
    A(f"v_readfirstlane_b32 s{sT0}, v{vC}")
    A("s_nop 3")
    if stamps:
        A(f"s_memrealtime s[{sTs+2}:{sTs+3}]")
        A(f"s_getreg_b32 s{sT2}, hwreg(HW_REG_XCC_ID)")
        A(f"s_lshl_b32 s{sT1}, s2, 3")
        A(f"s_add_u32 s{sT1}, s{sT1}, s{sW}")
        A(f"s_lshl_b32 s{sT1}, s{sT1}, 4")
        A(f"s_add_u32 s{sT1}, s{sT1}, 0x1000000")
        A("s_waitcnt lgkmcnt(0)")
        A(f"v_mov_b32 v{P}, s{sTs}")
        A(f"v_mov_b32 v{P+1}, s{sTs+2}")
        A(f"v_mov_b32 v{P+2}, s{sT2}")
        A(f"v_mov_b32 v{P+3}, 0x12345678")
        A(f"v_mov_b32 v{vT0}, s{sT1}")
        A("s_mov_b64 exec, 1")
        A(f"global_store_dwordx4 v{vT0}, v[{P}:{P+3}], s[{sWS}:{sWS+1}]")
        A("s_mov_b64 exec, -1")
    A(f"s_cmp_eq_u32 s{sT0}, 255")
    A("s_cbranch_scc0 L_end")
    A(f"s_cmp_ge_u32 s{sW}, 5")
    A("s_cbranch_scc1 L_end")
    C("final: out = bf16(bf16(x + bf16(A)) + bf16(bf16(F) + b2))")
    FA, FB = FX + 8, FX + 16
    A(f"v_lshlrev_b32 v{vT0}, 1, v{vS}")
    A(f"global_load_dwordx4 v[{FA}:{FA+3}], v{vT0}, s[{sWS}:{sWS+1}] offset:{W_ACCA} sc0 sc1")
    A(f"global_load_dwordx4 v[{FA+4}:{FA+7}], v{vT0}, s[{sWS}:{sWS+1}] offset:{W_ACCA+16} sc0 sc1")
    A(f"v_add_u32 v{vT0}, {W_ACCB}, v{vT0}")
    A(f"global_load_dwordx4 v[{FB}:{FB+3}], v{vT0}, s[{sWS}:{sWS+1}] sc0 sc1")
    A(f"global_load_dwordx4 v[{FB+4}:{FB+7}], v{vT0}, s[{sWS}:{sWS+1}] offset:16 sc0 sc1")
    XU, BU = P, P + 8
    for k in range(4):
        A(f"v_lshlrev_b32 v{XU+2*k}, 16, v{FX+k}")
        A(f"v_and_b32 v{XU+2*k+1}, s{sMsk}, v{FX+k}")
        A(f"v_lshlrev_b32 v{BU+2*k}, 16, v{FX+4+k}")
        A(f"v_and_b32 v{BU+2*k+1}, s{sMsk}, v{FX+4+k}")
    A("s_waitcnt vmcnt(0)")
    for k in range(0, 8, 2):
        rnd2(FA + k, FA + k + 1, vT1)
        rnd2(FB + k, FB + k + 1, vT1)
    for k in range(8):
        A(f"v_add_f32 v{FA+k}, v{XU+k}, v{FA+k}")
        A(f"v_add_f32 v{FB+k}, v{FB+k}, v{BU+k}")
    for k in range(0, 8, 2):
        rnd2(FA + k, FA + k + 1, vT1)
        rnd2(FB + k, FB + k + 1, vT1)
    for k in range(8):
        A(f"v_add_f32 v{FA+k}, v{FA+k}, v{FB+k}")
    for k in range(4):
        A(f"v_cvt_pk_bf16_f32 v{P+16+k}, v{FA+2*k}, v{FA+2*k+1}")
    A(f"global_store_dwordx4 v{vS}, v[{P+16}:{P+19}], s[{sOUT}:{sOUT+1}]")
    LB("L_end")
    A("s_endpgm")

    body = "\n".join(g.L)
    txt = HEADER
    txt += f"; @launch grid=(256,1,1) block=(512,1,1) lds={L_TOTAL}\n"
    txt += '.amdgcn_target "amdgcn-amd-amdhsa--gfx950"\n.text\n'
    txt += f".globl {NAME}_kernel\n.p2align 8\n.type {NAME}_kernel,@function\n"
    txt += body + "\n"
    txt += f""".section .rodata,"a"
.p2align 6
.amdhsa_kernel {NAME}_kernel
  .amdhsa_next_free_vgpr 256
  .amdhsa_next_free_sgpr 102
  .amdhsa_accum_offset 256
  .amdhsa_group_segment_fixed_size 0
  .amdhsa_kernarg_size 104
  .amdhsa_user_sgpr_count 2
  .amdhsa_user_sgpr_kernarg_segment_ptr 1
  .amdhsa_system_sgpr_workgroup_id_x 1
  .amdhsa_float_denorm_mode_32 3
.end_amdhsa_kernel
"""
    return txt


if __name__ == "__main__":
    out = sys.argv[1] if len(sys.argv) > 1 else f"cdna_kernels/{NAME}.s"
    stamps = len(sys.argv) > 2 and sys.argv[2] == "stamps"
    open(out, "w").write(build(stamps))
    print("wrote", out, "lds", L_TOTAL)
```

```python
import sys

NAME = "parallel_sum__gqa_block_cached__dense_activation_squared_relu__decode"

HEADER = """; Kernarg layout for this problem (104 bytes, ptrs only, base s[0:1]):
"""

L_SC = 0
L_XN = 16384
L_QP = L_XN + 2560
L_QB = L_QP + 7168
L_HID = L_QB + 384
L_MISC = L_HID + 128
L_OP = L_MISC + 128
L_YP = L_OP + 6144
L_TOTAL = L_YP + 20480
M_CNT, M_WMAX, M_WSUM, M_SCALE, M_FIN = 0, 16, 48, 80, 84

W_ACCA = 0
W_ACCB = 10240
W_ML = 32768
D_ZERO = 0
D_PAIR = 32
D_CNT = 128

STAMPS = False


class Gen:
    def __init__(self):
        self.L = []

    def A(self, s):
        self.L.append("  " + s)

    def label(self, s):
        self.L.append(s + ":")

    def C(self, s):
        self.L.append("  ; " + s)


def build(stamps=False):
    g = Gen()
    A, LB, C = g.A, g.label, g.C
    sX, sKp, sVp, sWQp, sWOp, sW1p, sB1p = 16, 18, 20, 22, 24, 28, 30
    sW2p, sB2p, sOUT, sDBG, sWS = 32, 34, 36, 38, 40
    sW = 3
    sH, sB, sS, sCc = 4, 5, 6, 7
    sT0, sT1, sT2, sT3 = 8, 9, 10, 11
    sN, sCur, sOff = 12, 13, 14
    sMsk = 15
    rK, rV, rCur, rWQ, rWO, rW1, rW2 = 44, 48, 52, 56, 60, 64, 68
    sO = 72
    sTs = 96
    vTid, vL, vKoff, vSW, vPR, vT0, vT1, vC, vOne, vB1, vMax, vS = range(12)
    P = 12
    SL = 48
    W = 144
    QF = P
    DA = [P + 12, P + 20]
    ACC = P
    PP = P + 24
    TP = P + 32
    QACC = P
    HACC = P + 24
    PRO = SL + 48
    W1R = PRO
    WQX = PRO + 20
    XNR = PRO + 28

    def slot(u):
        return SL + 24 * u

    def wq_reg(i):
        return W + 4 * i if i < 28 else WQX + 4 * (i - 28)

    boff = [0, 128, 256, 3072, 3200, 3328]

    def tile_loads(u, srd):
        for j in range(6):
            r = slot(u) + 4 * j
            A(f"buffer_load_dwordx4 v[{r}:{r+3}], v{vKoff}, s[{srd}:{srd+3}], s{sOff} offen offset:{boff[j]} nt")
        A(f"s_add_u32 s{sOff}, s{sOff}, 6144")

    def dpp(op, r, ctrl):
        A(f"{op}_dpp v{r}, v{r}, v{r} {ctrl} row_mask:0xf bank_mask:0xf")

    def butterfly(op, regs, steps):
        ctrls = ["quad_perm:[1,0,3,2]", "quad_perm:[2,3,0,1]", "row_half_mirror", "row_mirror"][:steps]
        for c in ctrls:
            if len(regs) < 3:
                A("s_nop 1")
            for r in regs:
                dpp(op, r, c)

    def wave_allreduce(op, r):
        butterfly(op, [r], 4)
        A("s_nop 0")
        A(f"v_readlane_b32 s{sT0}, v{r}, 0")
        A(f"v_readlane_b32 s{sT1}, v{r}, 16")
        A(f"v_readlane_b32 s{sT2}, v{r}, 32")
        A(f"v_readlane_b32 s{sT3}, v{r}, 48")
        A(f"v_mov_b32 v{r}, s{sT0}")
        A(f"{op} v{r}, s{sT1}, v{r}")
        A(f"{op} v{r}, s{sT2}, v{r}")
        A(f"{op} v{r}, s{sT3}, v{r}")

    def rnd1(r, t):
        A(f"v_cvt_pk_bf16_f32 v{t}, v{r}, v{r}")
        A(f"v_lshlrev_b32 v{r}, 16, v{t}")

    def rnd2(r0, r1, t):
        A(f"v_cvt_pk_bf16_f32 v{t}, v{r0}, v{r1}")
        A(f"v_lshlrev_b32 v{r0}, 16, v{t}")
        A(f"v_and_b32 v{r1}, s{sMsk}, v{t}")

    tp_ctr = [0]

    def set_exec(mask):
        if mask == -1 or (0 <= mask <= 64):
            A(f"s_mov_b64 exec, {mask}")
        else:
            A(f"s_mov_b32 exec_lo, {mask & 0xffffffff:#x}")
            A(f"s_mov_b32 exec_hi, {mask >> 32:#x}")

    def fma_dword(src, acc, mul, mul_is_s=False):
        t = TP + 2 * (tp_ctr[0] & 1)
        tp_ctr[0] += 1
        A(f"v_lshlrev_b32 v{t}, 16, v{src}")
        A(f"v_and_b32 v{t+1}, s{sMsk}, v{src}")
        base = mul & ~1
        sel = "op_sel_hi:[1,0,1]" if (mul & 1) == 0 else "op_sel:[0,1,0] op_sel_hi:[1,1,1]"
        pre = "s" if mul_is_s else "v"
        A(f"v_pk_fma_f32 v[{acc}:{acc+1}], v[{t}:{t+1}], {pre}[{base}:{base+1}], v[{acc}:{acc+1}] {sel}")

    def xgroup_reduce(regs, t):
        for r in regs:
            A(f"v_mov_b32 v{t}, v{r}")
            A("s_nop 1")
            A(f"v_permlane32_swap_b32 v{r}, v{t}")
            A("s_nop 0")
            A(f"v_add_f32 v{r}, v{r}, v{t}")
            A(f"v_mov_b32 v{t}, v{r}")
            A("s_nop 1")
            A(f"v_permlane16_swap_b32 v{r}, v{t}")
            A("s_nop 0")
            A(f"v_add_f32 v{r}, v{r}, v{t}")

    LB(f"{NAME}_kernel")
    A("s_cmp_ge_u32 s2, 256")
    A("s_cbranch_scc1 L_end")
    def stamp(k, mode="main"):
        if stamps == mode or (stamps and k in (0, 5) and mode == "main"):
            A("s_memrealtime s[42:43]")
            A("s_waitcnt lgkmcnt(0)")
            A(f"s_mov_b32 s{sTs+k}, s42")
    stamp(0)
    A("s_load_dwordx16 s[16:31], s[0:1], 0")
    A("s_load_dwordx8 s[32:39], s[0:1], 64")
    A("s_load_dwordx2 s[40:41], s[0:1], 96")
    A(f"v_and_b32 v{vL}, 63, v0")
    A(f"v_lshrrev_b32 v{vT0}, 6, v0")
    A(f"s_mov_b32 s{sMsk}, 0xffff0000")
    A(f"v_readfirstlane_b32 s{sW}, v{vT0}")
    C("decode wg -> (h, b, s)")
    A(f"s_and_b32 s{sT0}, s2, 7")
    A(f"s_lshr_b32 s{sT1}, s2, 3")
    A(f"s_lshr_b32 s{sH}, s{sT1}, 3")
    A(f"s_lshl_b32 s{sT0}, s{sT0}, 2")
    A(f"s_add_u32 s{sH}, s{sH}, s{sT0}")
    A(f"s_bfe_u32 s{sB}, s{sT1}, 0x20001")
    A(f"s_and_b32 s{sS}, s{sT1}, 1")
    A(f"s_lshl_b32 s{sCc}, s{sH}, 1")
    A(f"s_add_u32 s{sCc}, s{sCc}, s{sS}")
    C("lane offsets")
    A(f"v_and_b32 v{vT0}, 7, v{vL}")
    A(f"v_lshrrev_b32 v{vT1}, 3, v{vL}")
    A(f"v_mul_u32_u24 v{vKoff}, 384, v{vT0}")
    A(f"v_lshl_add_u32 v{vKoff}, v{vT1}, 4, v{vKoff}")
    A(f"v_lshlrev_b32 v{vPR}, 5, v{vT0}")
    A(f"v_lshl_add_u32 v{vSW}, v{vT1}, 2, v{vPR}")
    C("wq lane offset -> vC (temp): r*12288 + e*16")
    A(f"v_mul_u32_u24 v{vC}, 12288, v{vT0}")
    A(f"v_lshl_add_u32 v{vC}, v{vT1}, 4, v{vC}")
    C("w1 lane offset -> vMax (temp): (l&15)*3072 + (l>>4)*16")
    A(f"v_and_b32 v{vMax}, 15, v{vL}")
    A(f"v_mul_u32_u24 v{vMax}, 3072, v{vMax}")
    A(f"v_lshrrev_b32 v{vS}, 4, v{vL}")
    A(f"v_lshl_add_u32 v{vMax}, v{vS}, 4, v{vMax}")
    C("x offsets")
    A(f"s_mul_i32 s{sT2}, s{sB}, 1280")
    A(f"v_lshl_add_u32 v{vT0}, v{vL}, 4, s{sT2}")
    A(f"v_lshl_add_u32 v{vT1}, v{vL}, 2, s{sT2}")
    C("b1 offset")
    A(f"v_min_u32 v{vB1}, 23, v{vL}")
    A(f"s_mul_i32 s{sT3}, s{sCc}, 24")
    A(f"v_add_lshl_u32 v{vB1}, v{vB1}, s{sT3}, 1")
    A(f"v_mov_b32 v{vOne}, 1")
    A("s_waitcnt lgkmcnt(0)")
    C("x loads")
    A(f"global_load_dwordx4 v[{XNR}:{XNR+3}], v{vT0}, s[{sX}:{sX+1}]")
    A(f"global_load_dword v{XNR+4}, v{vT1}, s[{sX}:{sX+1}] offset:1024")
    A(f"global_load_ushort v{vB1}, v{vB1}, s[{sB1p}:{sB1p+1}]")
    C("SRDs")
    A(f"s_mov_b32 s{rWQ}, s{sWQp}")
    A(f"s_mov_b32 s{rWQ+1}, s{sWQp+1}")
    A(f"s_mov_b32 s{rWQ+2}, 7864320")
    A(f"s_mov_b32 s{rWQ+3}, 0x20000")
    C("wq loads: rows 80w+8t+r, cols h*192..")
    A(f"s_mul_i32 s{sOff}, s{sW}, {80*12288}")
    A(f"s_mul_i32 s{sT0}, s{sH}, 384")
    A(f"s_add_u32 s{sOff}, s{sOff}, s{sT0}")
    for t in range(10):
        for n in range(3):
            r = wq_reg(3 * t + n)
            A(f"buffer_load_dwordx4 v[{r}:{r+3}], v{vC}, s[{rWQ}:{rWQ+3}], s{sOff} offen offset:{128*n}")
        if t < 9:
            A(f"s_add_u32 s{sOff}, s{sOff}, {8*12288}")
    C("w1 loads: rows 80w+16u+(l&15), cols 24c..")
    A(f"s_mov_b32 s{rW1}, s{sW1p}")
    A(f"s_mov_b32 s{rW1+1}, s{sW1p+1}")
    A(f"s_mov_b32 s{rW1+2}, 1966080")
    A(f"s_mov_b32 s{rW1+3}, 0x20000")
    A(f"s_mul_i32 s{sOff}, s{sW}, {80*3072}")
    A(f"s_mul_i32 s{sT0}, s{sCc}, 48")
    A(f"s_add_u32 s{sOff}, s{sOff}, s{sT0}")
    for u in range(5):
        r = W1R + 4 * u
        A(f"buffer_load_dwordx4 v[{r}:{r+3}], v{vMax}, s[{rW1}:{rW1+3}], s{sOff} offen")
        if u < 4:
            A(f"s_add_u32 s{sOff}, s{sOff}, {16*3072}")
    C("K / V SRDs: base + ((b*32+h)*2+s)*1572864")
    A(f"s_lshl_b32 s{sT0}, s{sB}, 6")
    A(f"s_add_u32 s{sT0}, s{sT0}, s{sCc}")
    A(f"s_mul_i32 s{sT0}, s{sT0}, 1572864")
    A(f"s_add_u32 s{rK}, s{sKp}, s{sT0}")
    A(f"s_addc_u32 s{rK+1}, s{sKp+1}, 0")
    A(f"s_mov_b32 s{rK+2}, 1572864")
    A(f"s_mov_b32 s{rK+3}, 0x20000")
    A(f"s_add_u32 s{rV}, s{sVp}, s{sT0}")
    A(f"s_addc_u32 s{rV+1}, s{sVp+1}, 0")
    A(f"s_mov_b32 s{rV+2}, 1572864")
    A(f"s_mov_b32 s{rV+3}, 0x20000")
    A(f"s_mov_b32 s{rCur}, s{rK}")
    A(f"s_mov_b32 s{rCur+1}, s{rK+1}")
    A(f"s_mov_b32 s{rCur+2}, 1572864")
    A(f"s_mov_b32 s{rCur+3}, 0x20000")
    A(f"s_mov_b32 s{sCur}, s{sW}")
    A(f"s_mul_i32 s{sOff}, s{sW}, 24576")
    tile_loads(0, rK)
    tile_loads(1, rK)
    C("WG0 wave7: zero the accumulators (20 KB) with write-through stores")
    A(f"s_or_b32 s{sT0}, s2, s{sW}")
    A(f"s_cmp_eq_u32 s2, 0")
    A("s_cbranch_scc0 L_nozero")
    A(f"s_cmp_eq_u32 s{sW}, 7")
    A("s_cbranch_scc0 L_nozero")
    for i in range(4):
        A(f"v_mov_b32 v{QACC+i}, 0")
    A(f"v_lshlrev_b32 v{vT0}, 4, v{vL}")
    for i in range(20):
        if i and i % 4 == 0:
            A(f"v_add_u32 v{vT0}, 4096, v{vT0}")
        A(f"global_store_dwordx4 v{vT0}, v[{QACC}:{QACC+3}], s[{sWS}:{sWS+1}] offset:{(i%4)*1024} sc0 sc1")
    A("s_waitcnt vmcnt(0)")
    LB("L_nozero")
    C("other SRDs")
    A(f"s_mul_i32 s{sT0}, s{sH}, 245760")
    A(f"s_add_u32 s{rWO}, s{sWOp}, s{sT0}")
    A(f"s_addc_u32 s{rWO+1}, s{sWOp+1}, 0")
    A(f"s_mov_b32 s{rWO+2}, 245760")
    A(f"s_mov_b32 s{rWO+3}, 0x20000")
    A(f"s_mov_b32 s{rW2}, s{sW2p}")
    A(f"s_mov_b32 s{rW2+1}, s{sW2p+1}")
    A(f"s_mov_b32 s{rW2+2}, 1966080")
    A(f"s_mov_b32 s{rW2+3}, 0x20000")
    for i in range(32):
        A(f"v_mov_b32 v{QACC+i}, 0")
    C("LDS counter init")
    A(f"v_mov_b32 v{vT0}, {L_MISC}")
    A(f"v_mov_b32 v{vT1}, 8")
    A(f"ds_write_b32 v{vT0}, v{vT1} offset:{M_CNT}")
    C("---- LayerNorm ----")
    A("s_waitcnt vmcnt(48)")
    stamp(1, "pro")
    X = XNR + 6
    for k in range(5):
        A(f"v_lshlrev_b32 v{X+2*k}, 16, v{XNR+k}")
        A(f"v_and_b32 v{X+2*k+1}, s{sMsk}, v{XNR+k}")
    a = XNR
    A(f"v_add_f32 v{a}, v{X}, v{X+1}")
    for k in range(2, 10):
        A(f"v_add_f32 v{a}, v{a}, v{X+k}")
    wave_allreduce("v_add_f32", a)
    A(f"v_mul_f32 v{a}, {1.0/640.0!r}, v{a}")
    A(f"v_sub_f32 v{a+1}, v{X}, v{a}")
    A(f"v_mul_f32 v{a+2}, v{a+1}, v{a+1}")
    for k in range(1, 10):
        A(f"v_sub_f32 v{a+1}, v{X+k}, v{a}")
        A(f"v_fmac_f32 v{a+2}, v{a+1}, v{a+1}")
    wave_allreduce("v_add_f32", a + 2)
    A(f"v_mul_f32 v{a+2}, {1.0/640.0!r}, v{a+2}")
    rnd2(a, a + 2, a + 1)
    A(f"v_add_f32 v{a+2}, 0x3727c5ac, v{a+2}")
    rnd1(a + 2, a + 1)
    A(f"v_sqrt_f32 v{a+2}, v{a+2}")
    A("s_nop 0")
    rnd1(a + 2, a + 1)
    A(f"v_rcp_f32 v{a+3}, v{a+2}")
    for k in range(10):
        A(f"v_sub_f32 v{X+k}, v{X+k}, v{a}")
    for k in range(0, 10, 2):
        rnd2(X + k, X + k + 1, a + 1)
    for k in range(10):
        A(f"v_mul_f32 v{a+4}, v{X+k}, v{a+3}")
        A(f"v_fma_f32 v{a+5}, -v{a+4}, v{a+2}, v{X+k}")
        A(f"v_fma_f32 v{X+k}, v{a+5}, v{a+3}, v{a+4}")
    for k in range(0, 10, 2):
        rnd2(X + k, X + k + 1, a + 1)
    assert X % 2 == 0
    A(f"v_lshlrev_b32 v{vT0}, 5, v{vL}")
    A(f"ds_write_b128 v{vT0}, v[{X}:{X+3}] offset:{L_XN}")
    A(f"ds_write_b128 v{vT0}, v[{X+4}:{X+7}] offset:{L_XN+16}")
    A(f"v_lshlrev_b32 v{vT0}, 3, v{vL}")
    A(f"ds_write_b64 v{vT0}, v[{X+8}:{X+9}] offset:{L_XN+2048}")
    C("read back xn in the two lane layouts")
    A(f"s_mul_i32 s{sT0}, s{sW}, 320")
    A(f"v_and_b32 v{vT0}, 7, v{vL}")
    A(f"v_lshl_add_u32 v{vT0}, v{vT0}, 2, s{sT0}")
    A(f"v_and_b32 v{vT1}, 15, v{vL}")
    A(f"v_lshl_add_u32 v{vT1}, v{vT1}, 2, s{sT0}")
    A("s_waitcnt lgkmcnt(0)")
    for t in range(10):
        A(f"ds_read_b32 v{XNR+t}, v{vT0} offset:{L_XN+32*t}")
    for u in range(5):
        A(f"ds_read_b32 v{XNR+10+u}, v{vT1} offset:{L_XN+64*u}")
    A("s_waitcnt lgkmcnt(0)")
    stamp(2, "pro")
    C("---- q projection partials ----")
    for t in range(10):
        A(f"s_waitcnt vmcnt({47 - 3*(t+1)})")
        for n in range(3):
            r = wq_reg(3 * t + n)
            for k in range(4):
                fma_dword(r + k, QACC + 8 * n + 2 * k, XNR + t)
    A("s_waitcnt vmcnt(12)")
    for u in range(5):
        for k in range(4):
            fma_dword(W1R + 4 * u + k, HACC + 2 * k, XNR + 10 + u)
    stamp(3, "pro")
    C("slots 2,3 are free now: continue the K prefetch; w2 loads into W region")
    tile_loads(2, rK)
    tile_loads(3, rK)
    W2A = W
    W2B = W + 12
    A(f"s_mul_i32 s{sT0}, s{sCc}, 24")
    A(f"s_mul_i32 s{sT1}, s{sW}, 3")
    A(f"s_add_u32 s{sT0}, s{sT0}, s{sT1}")
    A(f"s_mul_i32 s{sT0}, s{sT0}, 1280")
    A(f"v_lshlrev_b32 v{vT0}, 4, v{vL}")
    A(f"v_lshrrev_b32 v{vT1}, 4, v{vL}")
    A(f"v_mul_u32_u24 v{vT1}, 1280, v{vT1}")
    A(f"v_and_b32 v{vC}, 15, v{vL}")
    A(f"v_lshl_add_u32 v{vT1}, v{vC}, 4, v{vT1}")
    for i in range(4):
        A(f"v_mov_b32 v{W2B+i}, 0")
    for i in range(3):
        A(f"buffer_load_dwordx4 v[{W2A+4*i}:{W2A+4*i+3}], v{vT0}, s[{rW2}:{rW2+3}], s{sT0} offen offset:{1280*i}")
    set_exec(0x0000ffffffffffff)
    A(f"buffer_load_dwordx4 v[{W2B}:{W2B+3}], v{vT1}, s[{rW2}:{rW2+3}], s{sT0} offen offset:1024")
    A("s_mov_b64 exec, -1")
    C("reduce partials across lanes, write to LDS")
    butterfly("v_add_f32", list(range(QACC, QACC + 32)), 3)
    for r in range(HACC, HACC + 8):
        dpp("v_add_f32", r, "row_mirror")
    A(f"s_mul_i32 s{sT0}, s{sW}, 896")
    A(f"v_lshrrev_b32 v{vT0}, 3, v{vL}")
    A(f"v_lshl_add_u32 v{vT0}, v{vT0}, 5, s{sT0}")
    A(f"v_lshrrev_b32 v{vT1}, 4, v{vL}")
    A(f"v_lshl_add_u32 v{vT1}, v{vT1}, 5, s{sT0}")
    set_exec(0x0101010101010101)
    for n in range(3):
        A(f"ds_write_b128 v{vT0}, v[{QACC+8*n}:{QACC+8*n+3}] offset:{L_QP+256*n}")
        A(f"ds_write_b128 v{vT0}, v[{QACC+8*n+4}:{QACC+8*n+7}] offset:{L_QP+256*n+16}")
    set_exec(0x0000000100010001)
    A(f"ds_write_b128 v{vT1}, v[{HACC}:{HACC+3}] offset:{L_QP+768}")
    A(f"ds_write_b128 v{vT1}, v[{HACC+4}:{HACC+7}] offset:{L_QP+768+16}")
    A("s_mov_b64 exec, -1")
    A("s_waitcnt lgkmcnt(0)")
    A("s_barrier")
    stamp(4, "pro")
    C("threads < 216 finish q / hid")
    A(f"s_cmp_ge_u32 s{sW}, 4")
    A("s_cbranch_scc1 L_q_done")
    A(f"v_min_u32 v{vT0}, 223, v0")
    A(f"v_lshlrev_b32 v{vT0}, 2, v{vT0}")
    for i in range(8):
        A(f"ds_read_b32 v{P+i}, v{vT0} offset:{L_QP+896*i}")
    A("s_waitcnt lgkmcnt(0)")
    for i in range(1, 8):
        A(f"v_add_f32 v{P}, v{P}, v{P+i}")
    A(f"s_cmp_eq_u32 s{sW}, 3")
    A("s_cbranch_scc1 L_hid")
    A(f"v_cvt_pk_bf16_f32 v{P}, v{P}, v{P}")
    A(f"v_lshlrev_b32 v{vT0}, 1, v0")
    A(f"ds_write_b16 v{vT0}, v{P} offset:{L_QB}")
    A("s_branch L_q_done")
    LB("L_hid")
    rnd1(P, P + 1)
    A(f"v_lshlrev_b32 v{vB1}, 16, v{vB1}")
    A(f"v_add_f32 v{P}, v{P}, v{vB1}")
    rnd1(P, P + 1)
    A(f"v_cmp_gt_f32 vcc, v{P}, 0")
    A("s_nop 1")
    A(f"v_cndmask_b32 v{P}, 0, v{P}, vcc")
    A(f"v_mul_f32 v{P}, v{P}, v{P}")
    rnd1(P, P + 1)
    A(f"v_lshlrev_b32 v{vT0}, 2, v{vL}")
    set_exec(0xffffff)
    A(f"ds_write_b32 v{vT0}, v{P} offset:{L_HID}")
    A("s_mov_b64 exec, -1")
    LB("L_q_done")
    A("s_waitcnt lgkmcnt(0)")
    A("s_barrier")
    C("q fragments: chunk 8n + 2g + (l&1)")
    A(f"v_lshrrev_b32 v{vT0}, 4, v{vL}")
    A(f"v_lshlrev_b32 v{vT0}, 5, v{vT0}")
    A(f"v_and_b32 v{vT1}, 1, v{vL}")
    A(f"v_lshl_add_u32 v{vT0}, v{vT1}, 4, v{vT0}")
    for n in range(3):
        A(f"ds_read_b128 v[{QF+4*n}:{QF+4*n+3}], v{vT0} offset:{L_QB+128*n}")
    A(f"v_mov_b32 v{vMax}, 0xff800000")
    A(f"v_mov_b32 v{vB1}, {L_MISC}")
    vMisc = vB1
    A("s_waitcnt lgkmcnt(0)")
    stamp(1)
    C("==== K loop ====")
    LB("L_kloop")
    A("s_mov_b64 exec, 1")
    A(f"ds_add_rtn_u32 v{vC}, v{vMisc}, v{vOne} offset:{M_CNT}")
    A("s_mov_b64 exec, -1")
    for u in range(4):
        s0 = slot(u)
        Da, Db = DA[u & 1], DA[u & 1] + 4
        A("s_waitcnt vmcnt(18)")
        for n in range(3):
            ca = "0" if n == 0 else f"v[{Da}:{Da+3}]"
            cb = "0" if n == 0 else f"v[{Db}:{Db+3}]"
            A(f"v_mfma_f32_16x16x32_bf16 v[{Da}:{Da+3}], v[{QF+4*n}:{QF+4*n+3}], v[{s0+4*n}:{s0+4*n+3}], {ca}")
            A(f"v_mfma_f32_16x16x32_bf16 v[{Db}:{Db+3}], v[{QF+4*n}:{QF+4*n+3}], v[{s0+12+4*n}:{s0+12+4*n+3}], {cb}")
        if u == 0:
            A("s_waitcnt lgkmcnt(0)")
            A(f"v_readfirstlane_b32 s{sN}, v{vC}")
            A("s_nop 3")
            A(f"s_cmp_lt_u32 s{sN}, 64")
            A(f"s_cselect_b32 s{rCur}, s{rK}, s{rV}")
            A(f"s_cselect_b32 s{rCur+1}, s{rK+1}, s{rV+1}")
            A(f"s_and_b32 s{sT0}, s{sN}, 63")
            A(f"s_mul_i32 s{sOff}, s{sT0}, 24576")
        tile_loads(u, rCur)
        A("s_nop 1")
        A(f"v_add_f32_dpp v{vS}, v{Da+1}, v{Da} row_ror:8 row_mask:{1<<u:#x} bank_mask:0x3")
        A(f"v_add_f32_dpp v{vS}, v{Db}, v{Db+1} row_ror:8 row_mask:{1<<u:#x} bank_mask:0xc")
    A(f"s_lshl_b32 s{sT0}, s{sCur}, 8")
    A(f"v_add_u32 v{vT0}, s{sT0}, v{vSW}")
    A(f"v_max_f32 v{vMax}, v{vMax}, v{vS}")
    A(f"ds_write_b32 v{vT0}, v{vS} offset:{L_SC}")
    A(f"s_mov_b32 s{sCur}, s{sN}")
    A(f"s_cmp_lt_u32 s{sN}, 64")
    A("s_cbranch_scc1 L_kloop")
    stamp(2)
    C("==== mid phase ====")
    wave_allreduce("v_max_f32", vMax)
    A(f"s_lshl_b32 s{sT0}, s{sW}, 2")
    A(f"v_add_u32 v{vT0}, s{sT0}, v{vMisc}")
    A(f"ds_write_b32 v{vT0}, v{vMax} offset:{M_WMAX}")
    C("FFN2 partials (w2 rows 3w..3w+2)")
    YA, YB = P, P + 8
    HM = P + 16
    A(f"s_mul_i32 s{sT0}, s{sW}, 12")
    A(f"v_mov_b32 v{vT0}, s{sT0}")
    A(f"v_lshrrev_b32 v{vT1}, 4, v{vL}")
    A(f"v_min_u32 v{vT1}, 2, v{vT1}")
    A(f"v_lshl_add_u32 v{vT1}, v{vT1}, 2, s{sT0}")
    for i in range(3):
        A(f"ds_read_b32 v{HM+i}, v{vT0} offset:{L_HID+4*i}")
    A(f"ds_read_b32 v{HM+3}, v{vT1} offset:{L_HID}")
    for i in range(16):
        A(f"v_mov_b32 v{YA+i}, 0")
    A("s_waitcnt lgkmcnt(0)")
    for i in range(3):
        for k in range(4):
            fma_dword(W2A + 4 * i + k, YA + 2 * k, HM + i)
    for k in range(4):
        fma_dword(W2B + k, YB + 2 * k, HM + 3)
    xgroup_reduce(range(YB, YB + 8), vT0)

    def write_y():
        A(f"s_mul_i32 s{sT0}, s{sW}, 2560")
        A(f"v_lshl_add_u32 v{vT0}, v{vL}, 5, s{sT0}")
        A(f"ds_write_b128 v{vT0}, v[{YA}:{YA+3}] offset:{L_YP}")
        A(f"ds_write_b128 v{vT0}, v[{YA+4}:{YA+7}] offset:{L_YP+16}")
        set_exec(0xffff)
        A(f"ds_write_b128 v{vT0}, v[{YB}:{YB+3}] offset:{L_YP+2048}")
        A(f"ds_write_b128 v{vT0}, v[{YB+4}:{YB+7}] offset:{L_YP+2048+16}")
        A("s_mov_b64 exec, -1")
    write_y()
    A("s_waitcnt lgkmcnt(0)")
    A("s_barrier")
    C("M = max over waves; convert own 512 scores to p")
    E = P
    A(f"ds_read_b128 v[{E+8}:{E+11}], v{vMisc} offset:{M_WMAX}")
    A(f"ds_read_b128 v[{E+12}:{E+15}], v{vMisc} offset:{M_WMAX+16}")
    A(f"s_lshl_b32 s{sT0}, s{sW}, 11")
    A(f"v_lshl_add_u32 v{vT0}, v{vL}, 4, s{sT0}")
    A(f"ds_read_b128 v[{E}:{E+3}], v{vT0} offset:{L_SC}")
    A(f"ds_read_b128 v[{E+4}:{E+7}], v{vT0} offset:{L_SC+1024}")
    A("s_waitcnt lgkmcnt(2)")
    A(f"v_max3_f32 v{vMax}, v{E+8}, v{E+9}, v{E+10}")
    A(f"v_max3_f32 v{vMax}, v{vMax}, v{E+11}, v{E+12}")
    A(f"v_max3_f32 v{vMax}, v{vMax}, v{E+13}, v{E+14}")
    A(f"v_max_f32 v{vMax}, v{vMax}, v{E+15}")
    SCALE = "0x3d93cd3a"
    LOG2E = "0x3fb8aa3b"
    rnd1(vMax, vT1)
    A(f"v_mul_f32 v{vMax}, {SCALE}, v{vMax}")
    rnd1(vMax, vT1)
    A("s_waitcnt lgkmcnt(0)")
    for k in range(0, 8, 2):
        rnd2(E + k, E + k + 1, vT1)
    for k in range(8):
        A(f"v_mul_f32 v{E+k}, {SCALE}, v{E+k}")
    for k in range(0, 8, 2):
        rnd2(E + k, E + k + 1, vT1)
    for k in range(8):
        A(f"v_sub_f32 v{E+k}, v{E+k}, v{vMax}")
    for k in range(8):
        A(f"v_mul_f32 v{E+k}, {LOG2E}, v{E+k}")
    for k in range(8):
        A(f"v_exp_f32 v{E+k}, v{E+k}")
    A("s_nop 0")
    A(f"ds_write_b128 v{vT0}, v[{E}:{E+3}] offset:{L_SC}")
    A(f"ds_write_b128 v{vT0}, v[{E+4}:{E+7}] offset:{L_SC+1024}")
    A(f"v_add_f32 v{vS}, v{E}, v{E+1}")
    for k in range(2, 8):
        A(f"v_add_f32 v{vS}, v{vS}, v{E+k}")
    wave_allreduce("v_add_f32", vS)
    A(f"s_lshl_b32 s{sT0}, s{sW}, 2")
    A(f"v_add_u32 v{vT0}, s{sT0}, v{vMisc}")
    A(f"ds_write_b32 v{vT0}, v{vS} offset:{M_WSUM}")
    A("s_waitcnt lgkmcnt(0)")
    A("s_barrier")
    C("wave 7 publishes (M, L)")
    A(f"s_cmp_eq_u32 s{sW}, 7")
    A("s_cbranch_scc0 L_nopub")

    def read_L(dst):
        A(f"ds_read_b128 v[{E}:{E+3}], v{vMisc} offset:{M_WSUM}")
        A(f"ds_read_b128 v[{E+4}:{E+7}], v{vMisc} offset:{M_WSUM+16}")
        A("s_waitcnt lgkmcnt(0)")
        A(f"v_add_f32 v{dst}, v{E}, v{E+1}")
        for k in range(2, 8):
            A(f"v_add_f32 v{dst}, v{dst}, v{E+k}")
    read_L(E + 9)
    A(f"v_mov_b32 v{E+8}, v{vMax}")
    A(f"s_lshl_b32 s{sT0}, s2, 6")
    A(f"s_add_u32 s{sT0}, s{sT0}, {W_ML}")
    A(f"v_mov_b32 v{vT0}, s{sT0}")
    A("s_mov_b64 exec, 1")
    A(f"global_store_dwordx2 v{vT0}, v[{E+8}:{E+9}], s[{sWS}:{sWS+1}] sc0 sc1")
    A("s_waitcnt vmcnt(0)")
    A(f"s_lshr_b32 s{sT0}, s2, 5")
    A(f"s_lshl_b32 s{sT0}, s{sT0}, 2")
    A(f"s_and_b32 s{sT1}, s2, 31")
    A(f"s_lshl_b32 s{sT1}, 1, s{sT1}")
    A(f"v_mov_b32 v{vT0}, s{sT0}")
    A(f"v_mov_b32 v{vT1}, s{sT1}")
    A(f"global_atomic_or v{vT0}, v{vT1}, s[{sDBG}:{sDBG+1}] offset:{D_PAIR} sc1")
    A("s_cmp_eq_u32 s2, 0")
    A("s_cbranch_scc0 L_nozf")
    A(f"v_mov_b32 v{vT0}, 0")
    A(f"global_atomic_or v{vT0}, v{vOne}, s[{sDBG}:{sDBG+1}] offset:{D_ZERO} sc1")
    LB("L_nozf")
    A("s_mov_b64 exec, -1")
    LB("L_nopub")
    for i in range(24):
        A(f"v_mov_b32 v{ACC+i}, 0")
    stamp(3)
    C("==== V loop ====")

    def v_tile(u):
        s0 = slot(u)
        for half in range(2):
            for n in range(3):
                for k in range(4):
                    fma_dword(s0 + 12 * half + 4 * n + k, ACC + 8 * n + 2 * k, PP + 2 * u + half)

    LB("L_vloop")
    A("s_mov_b64 exec, 1")
    A(f"ds_add_rtn_u32 v{vC}, v{vMisc}, v{vOne} offset:{M_CNT}")
    A("s_mov_b64 exec, -1")
    A(f"s_and_b32 s{sT0}, s{sCur}, 63")
    A(f"s_lshl_b32 s{sT0}, s{sT0}, 8")
    A(f"v_add_u32 v{vT0}, s{sT0}, v{vPR}")
    A(f"ds_read_b128 v[{PP}:{PP+3}], v{vT0} offset:{L_SC}")
    A(f"ds_read_b128 v[{PP+4}:{PP+7}], v{vT0} offset:{L_SC+16}")
    A("s_waitcnt lgkmcnt(0)")
    A(f"v_readfirstlane_b32 s{sN}, v{vC}")
    A("s_nop 3")
    A(f"s_cmp_ge_u32 s{sN}, 128")
    A("s_cbranch_scc1 L_vlast")
    A(f"s_cmp_eq_u32 s{sN}, 96")
    A("s_cbranch_scc1 L_side")
    LB("L_vcont")
    A(f"s_and_b32 s{sT0}, s{sN}, 63")
    A(f"s_mul_i32 s{sOff}, s{sT0}, 24576")
    for u in range(4):
        A("s_waitcnt vmcnt(18)")
        v_tile(u)
        tile_loads(u, rV)
    A(f"s_mov_b32 s{sCur}, s{sN}")
    A("s_branch L_vloop")
    C("side routine: partner (M,L), scale, FFN atomics.  Uses W region temps")
    LB("L_side")
    Z = W + 16
    A(f"s_xor_b32 s{sT2}, s2, 8")
    A(f"s_lshr_b32 s{sT0}, s{sT2}, 5")
    A(f"s_lshl_b32 s{sT0}, s{sT0}, 2")
    A(f"s_and_b32 s{sT1}, s{sT2}, 31")
    A(f"s_lshl_b32 s{sT1}, 1, s{sT1}")
    A(f"v_mov_b32 v{Z}, s{sT0}")
    A(f"v_mov_b32 v{Z+1}, 0")
    A(f"s_mov_b32 s{sOff}, 0x40000")
    LB("L_poll")
    A(f"global_load_dword v{Z+2}, v{Z}, s[{sDBG}:{sDBG+1}] offset:{D_PAIR} sc0 sc1")
    A(f"global_load_dword v{Z+3}, v{Z+1}, s[{sDBG}:{sDBG+1}] offset:{D_ZERO} sc0 sc1")
    A("s_waitcnt vmcnt(0)")
    A(f"v_readfirstlane_b32 s{sT0}, v{Z+2}")
    A(f"v_readfirstlane_b32 s{sT3}, v{Z+3}")
    A("s_nop 3")
    A(f"s_and_b32 s{sT0}, s{sT0}, s{sT1}")
    A(f"s_cselect_b32 s{sT0}, s{sT3}, 0")
    A(f"s_cmp_lg_u32 s{sT0}, 0")
    A("s_cbranch_scc1 L_polled")
    A("s_sleep 8")
    A(f"s_sub_u32 s{sOff}, s{sOff}, 1")
    A(f"s_cmp_lg_u32 s{sOff}, 0")
    A("s_cbranch_scc1 L_poll")
    LB("L_polled")
    A(f"s_lshl_b32 s{sT0}, s{sT2}, 6")
    A(f"s_add_u32 s{sT0}, s{sT0}, {W_ML}")
    A(f"v_mov_b32 v{Z}, s{sT0}")
    A(f"global_load_dwordx2 v[{Z+2}:{Z+3}], v{Z}, s[{sWS}:{sWS+1}] sc0 sc1")
    C("own L")
    A(f"ds_read_b128 v[{Z+4}:{Z+7}], v{vMisc} offset:{M_WSUM}")
    A(f"ds_read_b128 v[{Z+8}:{Z+11}], v{vMisc} offset:{M_WSUM+16}")
    A("s_waitcnt lgkmcnt(0)")
    for k in range(1, 8):
        A(f"v_add_f32 v{Z+4}, v{Z+4}, v{Z+4+k}")
    A("s_waitcnt vmcnt(0)")
    A(f"v_max_f32 v{Z+5}, v{vMax}, v{Z+2}")
    A(f"v_sub_f32 v{Z+6}, v{vMax}, v{Z+5}")
    A(f"v_sub_f32 v{Z+7}, v{Z+2}, v{Z+5}")
    A(f"v_mul_f32 v{Z+6}, {LOG2E}, v{Z+6}")
    A(f"v_mul_f32 v{Z+7}, {LOG2E}, v{Z+7}")
    A(f"v_exp_f32 v{Z+6}, v{Z+6}")
    A(f"v_exp_f32 v{Z+7}, v{Z+7}")
    A("s_nop 0")
    A(f"v_mul_f32 v{Z+8}, v{Z+4}, v{Z+6}")
    A(f"v_fmac_f32 v{Z+8}, v{Z+3}, v{Z+7}")
    A(f"v_rcp_f32 v{Z+9}, v{Z+8}")
    A("s_nop 0")
    A(f"v_mul_f32 v{Z+10}, v{Z+6}, v{Z+9}")
    A(f"v_fma_f32 v{Z+11}, -v{Z+10}, v{Z+8}, v{Z+6}")
    A(f"v_fma_f32 v{Z+10}, v{Z+11}, v{Z+9}, v{Z+10}")
    A(f"ds_write_b32 v{vMisc}, v{Z+10} offset:{M_SCALE}")
    C("FFN column sums -> accB atomics")
    A(f"s_mul_i32 s{sT0}, s{sB}, 2560")
    A(f"s_add_u32 s{sT0}, s{sT0}, {W_ACCB}")
    A(f"v_lshlrev_b32 v{Z}, 2, v{vL}")
    A(f"v_add_u32 v{Z+1}, s{sT0}, v{Z}")
    for c in range(10):
        for i in range(8):
            A(f"ds_read_b32 v{Z+4+i}, v{Z} offset:{L_YP+2560*i+256*c}")
        A("s_waitcnt lgkmcnt(0)")
        A(f"v_add_f32 v{Z+12+c}, v{Z+4}, v{Z+5}")
        for i in range(2, 8):
            A(f"v_add_f32 v{Z+12+c}, v{Z+12+c}, v{Z+4+i}")
        A(f"global_atomic_add_f32 v{Z+1}, v{Z+12+c}, s[{sWS}:{sWS+1}] offset:{256*c}")
    A("s_waitcnt vmcnt(0)")
    A("s_branch L_vcont")
    C("last V chunk of this wave: prefetch wo instead of V")
    LB("L_vlast")
    A(f"s_mul_i32 s{sOff}, s{sW}, {24*1280}")
    A(f"v_lshlrev_b32 v{vT0}, 4, v{vL}")
    for i in range(24):
        r = W + 4 * i
        A(f"buffer_load_dwordx4 v[{r}:{r+3}], v{vT0}, s[{rWO}:{rWO+3}], s{sOff} offen offset:{1280*(i%3)}")
        if i % 3 == 2 and i < 23:
            A(f"s_add_u32 s{sOff}, s{sOff}, 3840")
    A(f"s_mul_i32 s{sOff}, s{sW}, {24*1280}")
    A(f"v_lshrrev_b32 v{vT1}, 4, v{vL}")
    A(f"v_mul_u32_u24 v{vT1}, {6*1280}, v{vT1}")
    A(f"v_and_b32 v{vC}, 15, v{vL}")
    A(f"v_lshl_add_u32 v{vT1}, v{vC}, 4, v{vT1}")
    A(f"v_add_u32 v{vT1}, 1024, v{vT1}")
    A("s_waitcnt vmcnt(42)")
    v_tile(0)
    WB = slot(0)
    for i in range(6):
        r = WB + 4 * i
        if i == 3:
            A(f"s_add_u32 s{sOff}, s{sOff}, 3840")
        A(f"buffer_load_dwordx4 v[{r}:{r+3}], v{vT1}, s[{rWO}:{rWO+3}], s{sOff} offen offset:{1280*(i%3)}")
    A("s_waitcnt vmcnt(42)")
    v_tile(1)
    A("s_waitcnt vmcnt(36)")
    v_tile(2)
    A("s_waitcnt vmcnt(30)")
    v_tile(3)
    stamp(4)
    C("==== tail ====")
    butterfly("v_add_f32", list(range(ACC, ACC + 24)), 3)
    A(f"s_mul_i32 s{sT0}, s{sW}, 768")
    A(f"v_lshrrev_b32 v{vT0}, 3, v{vL}")
    A(f"v_lshl_add_u32 v{vT0}, v{vT0}, 5, s{sT0}")
    set_exec(0x0101010101010101)
    for n in range(3):
        A(f"ds_write_b128 v{vT0}, v[{ACC+8*n}:{ACC+8*n+3}] offset:{L_OP+256*n}")
        A(f"ds_write_b128 v{vT0}, v[{ACC+8*n+4}:{ACC+8*n+7}] offset:{L_OP+256*n+16}")
    A("s_mov_b64 exec, -1")
    C("speculative loads for the final stage: x, b2")
    FX = slot(1)
    A(f"v_min_u32 v{vS}, 319, v0")
    A(f"v_mul_u32_u24 v{vT1}, 205, v{vS}")
    A(f"v_lshrrev_b32 v{vT1}, 14, v{vT1}")
    A(f"v_mul_u32_u24 v{vT1}, 80, v{vT1}")
    A(f"v_sub_u32 v{vT1}, v{vS}, v{vT1}")
    A(f"v_lshlrev_b32 v{vT1}, 4, v{vT1}")
    A(f"v_lshlrev_b32 v{vS}, 4, v{vS}")
    A(f"global_load_dwordx4 v[{FX}:{FX+3}], v{vS}, s[{sX}:{sX+1}]")
    A(f"global_load_dwordx4 v[{FX+4}:{FX+7}], v{vT1}, s[{sB2p}:{sB2p+1}]")
    A("s_waitcnt lgkmcnt(0)")
    A("s_barrier")
    C("o[24w + l] for l < 24")
    A(f"s_mul_i32 s{sT0}, s{sW}, 96")
    A(f"v_min_u32 v{vT0}, 23, v{vL}")
    A(f"v_lshl_add_u32 v{vT0}, v{vT0}, 2, s{sT0}")
    for i in range(8):
        A(f"ds_read_b32 v{P+16+i}, v{vT0} offset:{L_OP+768*i}")
    A(f"ds_read_b32 v{P+24}, v{vMisc} offset:{M_SCALE}")
    A(f"v_lshrrev_b32 v{vT1}, 4, v{vL}")
    A(f"v_mul_u32_u24 v{vT1}, 24, v{vT1}")
    for i in range(16):
        A(f"v_mov_b32 v{YA+i}, 0")
    A("s_waitcnt lgkmcnt(0)")
    O = P + 16
    for i in range(1, 8):
        A(f"v_add_f32 v{O}, v{O}, v{O+i}")
    A(f"v_mul_f32 v{O}, v{O}, v{P+24}")
    OB = P + 24
    for i in range(6):
        A(f"ds_bpermute_b32 v{OB+i}, v{vT1}, v{O} offset:{4*i}")
    for i in range(24):
        A(f"v_readlane_b32 s{sO+i}, v{O}, {i}")
    A("s_waitcnt vmcnt(2)")
    for i in range(24):
        for k in range(4):
            fma_dword(W + 4 * i + k, YA + 2 * k, sO + i, mul_is_s=True)
    A("s_waitcnt lgkmcnt(0)")
    for i in range(6):
        for k in range(4):
            fma_dword(WB + 4 * i + k, YB + 2 * k, OB + i)
    xgroup_reduce(range(YB, YB + 8), vT0)
    write_y()
    A("s_waitcnt lgkmcnt(0)")
    A("s_barrier")
    C("column sums + atomics")
    A(f"v_lshlrev_b32 v{vT0}, 2, v0")
    for i in range(8):
        A(f"ds_read_b32 v{P+i}, v{vT0} offset:{L_YP+2560*i}")
    A(f"s_mul_i32 s{sT0}, s{sB}, 2560")
    A(f"v_add_u32 v{vT1}, s{sT0}, v{vT0}")
    A(f"s_cmp_ge_u32 s{sW}, 2")
    A("s_cbranch_scc1 L_nob")
    for i in range(8):
        A(f"ds_read_b32 v{P+8+i}, v{vT0} offset:{L_YP+2560*i+2048}")
    A("s_waitcnt lgkmcnt(0)")
    for i in range(1, 8):
        A(f"v_add_f32 v{P+8}, v{P+8}, v{P+8+i}")
    A(f"global_atomic_add_f32 v{vT1}, v{P+8}, s[{sWS}:{sWS+1}] offset:{W_ACCA+2048}")
    LB("L_nob")
    A("s_waitcnt lgkmcnt(0)")
    for i in range(1, 8):
        A(f"v_add_f32 v{P}, v{P}, v{P+i}")
    A(f"global_atomic_add_f32 v{vT1}, v{P}, s[{sWS}:{sWS+1}] offset:{W_ACCA}")
    A("s_waitcnt vmcnt(0)")
    A("s_barrier")
    A(f"s_cmp_eq_u32 s{sW}, 0")
    A("s_cbranch_scc0 L_nocnt")
    A(f"v_mov_b32 v{vT0}, 0")
    A("s_mov_b64 exec, 1")
    A(f"global_atomic_add v{vC}, v{vT0}, v{vOne}, s[{sDBG}:{sDBG+1}] offset:{D_CNT} sc0 sc1")
    A("s_waitcnt vmcnt(0)")
    A(f"ds_write_b32 v{vMisc}, v{vC} offset:{M_FIN}")
    A("s_mov_b64 exec, -1")
    A("s_waitcnt lgkmcnt(0)")
    LB("L_nocnt")
    A("s_barrier")
    A(f"ds_read_b32 v{vC}, v{vMisc} offset:{M_FIN}")
    A("s_waitcnt lgkmcnt(0)")
    A(f"v_readfirstlane_b32 s{sT0}, v{vC}")
    A("s_nop 3")
    if stamps:
        stamp(5)
        A(f"s_getreg_b32 s{sT2}, hwreg(HW_REG_XCC_ID)")
        A(f"s_lshl_b32 s{sT1}, s2, 3")
        A(f"s_add_u32 s{sT1}, s{sT1}, s{sW}")
        A(f"s_lshl_b32 s{sT1}, s{sT1}, 5")
        A(f"s_add_u32 s{sT1}, s{sT1}, 0x1000000")
        for k in range(6):
            A(f"v_mov_b32 v{P+k}, s{sTs+k}")
        A(f"v_mov_b32 v{P+6}, s{sT2}")
        A(f"v_mov_b32 v{P+7}, 0x12345678")
        A(f"v_mov_b32 v{vT0}, s{sT1}")
        A("s_mov_b64 exec, 1")
        A(f"global_store_dwordx4 v{vT0}, v[{P}:{P+3}], s[{sWS}:{sWS+1}]")
        A(f"global_store_dwordx4 v{vT0}, v[{P+4}:{P+7}], s[{sWS}:{sWS+1}] offset:16")
        A("s_mov_b64 exec, -1")
        A("s_nop 1")
    A(f"s_cmp_eq_u32 s{sT0}, 255")
    A("s_cbranch_scc0 L_end")
    A(f"s_cmp_ge_u32 s{sW}, 5")
    A("s_cbranch_scc1 L_end")
    C("final: out = bf16(bf16(x + bf16(A)) + bf16(bf16(F) + b2))")
    FA, FB = FX + 8, FX + 16
    A(f"v_lshlrev_b32 v{vT0}, 1, v{vS}")
    A(f"global_load_dwordx4 v[{FA}:{FA+3}], v{vT0}, s[{sWS}:{sWS+1}] offset:{W_ACCA} sc0 sc1")
    A(f"global_load_dwordx4 v[{FA+4}:{FA+7}], v{vT0}, s[{sWS}:{sWS+1}] offset:{W_ACCA+16} sc0 sc1")
    A(f"v_add_u32 v{vT0}, {W_ACCB}, v{vT0}")
    A(f"global_load_dwordx4 v[{FB}:{FB+3}], v{vT0}, s[{sWS}:{sWS+1}] sc0 sc1")
    A(f"global_load_dwordx4 v[{FB+4}:{FB+7}], v{vT0}, s[{sWS}:{sWS+1}] offset:16 sc0 sc1")
    XU, BU = P, P + 8
    for k in range(4):
        A(f"v_lshlrev_b32 v{XU+2*k}, 16, v{FX+k}")
        A(f"v_and_b32 v{XU+2*k+1}, s{sMsk}, v{FX+k}")
        A(f"v_lshlrev_b32 v{BU+2*k}, 16, v{FX+4+k}")
        A(f"v_and_b32 v{BU+2*k+1}, s{sMsk}, v{FX+4+k}")
    A("s_waitcnt vmcnt(0)")
    for k in range(0, 8, 2):
        rnd2(FA + k, FA + k + 1, vT1)
        rnd2(FB + k, FB + k + 1, vT1)
    for k in range(8):
        A(f"v_add_f32 v{FA+k}, v{XU+k}, v{FA+k}")
        A(f"v_add_f32 v{FB+k}, v{FB+k}, v{BU+k}")
    for k in range(0, 8, 2):
        rnd2(FA + k, FA + k + 1, vT1)
        rnd2(FB + k, FB + k + 1, vT1)
    for k in range(8):
        A(f"v_add_f32 v{FA+k}, v{FA+k}, v{FB+k}")
    for k in range(4):
        A(f"v_cvt_pk_bf16_f32 v{P+16+k}, v{FA+2*k}, v{FA+2*k+1}")
    A(f"global_store_dwordx4 v{vS}, v[{P+16}:{P+19}], s[{sOUT}:{sOUT+1}]")
    LB("L_end")
    A("s_endpgm")

    body = "\n".join(g.L)
    txt = HEADER
    txt += f"; @launch grid=(256,1,1) block=(512,1,1) lds={L_TOTAL}\n"
    txt += '.amdgcn_target "amdgcn-amd-amdhsa--gfx950"\n.text\n'
    txt += f".globl {NAME}_kernel\n.p2align 8\n.type {NAME}_kernel,@function\n"
    txt += body + "\n"
    txt += f""".section .rodata,"a"
.p2align 6
.amdhsa_kernel {NAME}_kernel
  .amdhsa_next_free_vgpr 256
  .amdhsa_next_free_sgpr 102
  .amdhsa_accum_offset 256
  .amdhsa_group_segment_fixed_size 0
  .amdhsa_kernarg_size 104
  .amdhsa_user_sgpr_count 2
  .amdhsa_user_sgpr_kernarg_segment_ptr 1
  .amdhsa_system_sgpr_workgroup_id_x 1
  .amdhsa_float_denorm_mode_32 3
.end_amdhsa_kernel
"""
    return txt


if __name__ == "__main__":
    out = sys.argv[1] if len(sys.argv) > 1 else f"cdna_kernels/{NAME}.s"
    stamps = sys.argv[2] if len(sys.argv) > 2 else False
    open(out, "w").write(build(stamps))
    print("wrote", out, "lds", L_TOTAL)
```

```python
import sys
from gen_v1 import HEADER, NAME

W_ACCA = 0
W_ACCB = 10240
W_QCNT = 0x8000
W_FCNT = 0xA000
W_ZERO_BYTES = 0xB000
W_QP = 0x100000
W_REC = 0x200000
W_STAMP = 0x1000000

SCALE = "0x3d93cd3a"
LOG2E = "0x3fb8aa3b"
NEGBIG = "0xff61b1e6"


class K:
    def __init__(self, name):
        self.name = name
        self.L = []
        self.tp = 0
        self.sMsk = 15
        self.sT = (8, 9, 10, 11)
        self.TP = None
        self.ntp = 2

    def A(self, s):
        self.L.append("  " + s)

    def LB(self, s):
        self.L.append(f"{self.name}_{s}:")

    def lab(self, s):
        return f"{self.name}_{s}"

    def C(self, s):
        self.L.append("  ; " + s)

    def set_exec(self, mask):
        if mask == -1 or (0 <= mask <= 64):
            self.A(f"s_mov_b64 exec, {mask}")
        else:
            self.A(f"s_mov_b32 exec_lo, {mask & 0xffffffff:#x}")
            self.A(f"s_mov_b32 exec_hi, {mask >> 32:#x}")

    def dpp(self, op, r, ctrl):
        self.A(f"{op}_dpp v{r}, v{r}, v{r} {ctrl} row_mask:0xf bank_mask:0xf")

    def butterfly(self, op, regs, steps):
        ctrls = ["quad_perm:[1,0,3,2]", "quad_perm:[2,3,0,1]", "row_half_mirror", "row_mirror"][:steps]
        regs = list(regs)
        for c in ctrls:
            if len(regs) < 3:
                self.A("s_nop 1")
            for r in regs:
                self.dpp(op, r, c)

    def wave_allreduce(self, op, r):
        t0, t1, t2, t3 = self.sT
        self.butterfly(op, [r], 4)
        self.A("s_nop 0")
        self.A(f"v_readlane_b32 s{t0}, v{r}, 0")
        self.A(f"v_readlane_b32 s{t1}, v{r}, 16")
        self.A(f"v_readlane_b32 s{t2}, v{r}, 32")
        self.A(f"v_readlane_b32 s{t3}, v{r}, 48")
        self.A(f"v_mov_b32 v{r}, s{t0}")
        self.A(f"{op} v{r}, s{t1}, v{r}")
        self.A(f"{op} v{r}, s{t2}, v{r}")
        self.A(f"{op} v{r}, s{t3}, v{r}")

    def rnd1(self, r, t):
        self.A(f"v_cvt_pk_bf16_f32 v{t}, v{r}, v{r}")
        self.A(f"v_lshlrev_b32 v{r}, 16, v{t}")

    def rnd2(self, r0, r1, t):
        self.A(f"v_cvt_pk_bf16_f32 v{t}, v{r0}, v{r1}")
        self.A(f"v_lshlrev_b32 v{r0}, 16, v{t}")
        self.A(f"v_and_b32 v{r1}, s{self.sMsk}, v{t}")

    def unpack(self, src):
        t = self.TP + 2 * (self.tp % self.ntp)
        self.tp += 1
        self.A(f"v_lshlrev_b32 v{t}, 16, v{src}")
        self.A(f"v_and_b32 v{t+1}, s{self.sMsk}, v{src}")
        return t

    def pkfma(self, acc, t, mul, pre="v"):
        base = mul & ~1
        sel = "op_sel_hi:[1,0,1]" if (mul & 1) == 0 else "op_sel:[0,1,0] op_sel_hi:[1,1,1]"
        self.A(f"v_pk_fma_f32 v[{acc}:{acc+1}], v[{t}:{t+1}], {pre}[{base}:{base+1}], v[{acc}:{acc+1}] {sel}")

    def pkmul(self, acc, mul):
        base = mul & ~1
        sel = "op_sel_hi:[1,0]" if (mul & 1) == 0 else "op_sel:[0,1] op_sel_hi:[1,1]"
        self.A(f"v_pk_mul_f32 v[{acc}:{acc+1}], v[{acc}:{acc+1}], v[{base}:{base+1}] {sel}")

    def srd(self, r, ptr, size, add=None):
        if add is None:
            self.A(f"s_mov_b32 s{r}, s{ptr}")
            self.A(f"s_mov_b32 s{r+1}, s{ptr+1}")
        else:
            self.A(f"s_add_u32 s{r}, s{ptr}, s{add}")
            self.A(f"s_addc_u32 s{r+1}, s{ptr+1}, 0")
        self.A(f"s_mov_b32 s{r+2}, {size}")
        self.A(f"s_mov_b32 s{r+3}, 0x20000")

    def text(self):
        return (f".globl {self.name}\n.p2align 8\n.type {self.name},@function\n{self.name}:\n"
                + "\n".join(self.L) + "\n")

    def desc(self, vgpr, accum, sgpr=102):
        return f""".p2align 6
.amdhsa_kernel {self.name}
  .amdhsa_next_free_vgpr {vgpr}
  .amdhsa_next_free_sgpr {sgpr}
  .amdhsa_accum_offset {accum}
  .amdhsa_group_segment_fixed_size 0
  .amdhsa_kernarg_size 104
  .amdhsa_user_sgpr_count 2
  .amdhsa_user_sgpr_kernarg_segment_ptr 1
  .amdhsa_system_sgpr_workgroup_id_x 1
  .amdhsa_float_denorm_mode_32 3
.end_amdhsa_kernel
"""


sX, sKp, sVp, sWQp, sWOp, sW1p, sB1p = 16, 18, 20, 22, 24, 28, 30
sW2p, sB2p, sOUT, sDBG, sWS = 32, 34, 36, 38, 40


def load_kernargs(k):
    k.A("s_load_dwordx16 s[16:31], s[0:1], 0")
    k.A("s_load_dwordx8 s[32:39], s[0:1], 64")
    k.A("s_load_dwordx2 s[40:41], s[0:1], 96")


def build_k1():
    k = K("proj_kernel")
    A, LB, C = k.A, k.LB, k.C
    sT0, sT1, sT2, sT3 = k.sT
    sW, sH, sJ, sOff = 3, 4, 5, 6
    rW = 44
    vL, vT0, vT1, vOff = 1, 2, 3, 4
    XR = 6
    X = 12
    k.TP = 22
    ACC = 26
    XN = 58
    WR = 98
    L_XN = 0
    A("s_cmp_ge_u32 s2, 256")
    A(f"s_cbranch_scc1 {k.lab('end')}")
    load_kernargs(k)
    A(f"v_and_b32 v{vL}, 63, v0")
    A(f"v_lshrrev_b32 v{vT0}, 6, v0")
    A(f"s_mov_b32 s{k.sMsk}, 0xffff0000")
    A(f"v_readfirstlane_b32 s{sW}, v{vT0}")
    A(f"s_lshr_b32 s{sH}, s2, 3")
    A(f"s_and_b32 s{sJ}, s2, 7")
    A(f"v_and_b32 v{vT0}, 7, v{vL}")
    A(f"v_lshrrev_b32 v{vT1}, 3, v{vL}")
    C("waves 0..2: wq line w ; wave 3: w1 96-byte segment")
    A(f"s_cmp_eq_u32 s{sW}, 3")
    A(f"s_movk_i32 s{sT0}, 3072")
    A(f"s_cselect_b32 s{sT0}, s{sT0}, 12288")
    A(f"v_mul_lo_u32 v{vOff}, v{vT0}, s{sT0}")
    A(f"v_lshl_add_u32 v{vOff}, v{vT1}, 4, v{vOff}")
    A(f"s_mul_i32 s{sOff}, s{sJ}, 80")
    A(f"s_mul_i32 s{sOff}, s{sOff}, s{sT0}")
    A(f"s_lshl_b32 s{sT3}, s{sT0}, 3")
    A(f"s_mul_i32 s{sT1}, s{sH}, 384")
    A(f"s_lshl_b32 s{sT2}, s{sW}, 7")
    A(f"s_add_u32 s{sT1}, s{sT1}, s{sT2}")
    A(f"s_mul_i32 s{sT2}, s{sH}, 96")
    A(f"s_cmp_eq_u32 s{sW}, 3")
    A(f"s_cselect_b32 s{sT1}, s{sT2}, s{sT1}")
    A(f"s_add_u32 s{sOff}, s{sOff}, s{sT1}")
    A(f"s_mul_i32 s{sT2}, s{sW}, 1280")
    A(f"v_lshl_add_u32 v{vT0}, v{vL}, 4, s{sT2}")
    A(f"v_lshl_add_u32 v{vT1}, v{vL}, 2, s{sT2}")
    A("s_waitcnt lgkmcnt(0)")
    A(f"global_load_dwordx4 v[{XR}:{XR+3}], v{vT0}, s[{sX}:{sX+1}]")
    A(f"global_load_dword v{XR+4}, v{vT1}, s[{sX}:{sX+1}] offset:1024")
    A(f"s_cmp_eq_u32 s{sW}, 3")
    A(f"s_cselect_b32 s{rW}, s{sW1p}, s{sWQp}")
    A(f"s_cselect_b32 s{rW+1}, s{sW1p+1}, s{sWQp+1}")
    A(f"s_mov_b32 s{rW+2}, 1966080")
    A(f"s_cselect_b32 s{rW+2}, s{rW+2}, 7864320")
    A(f"s_mov_b32 s{rW+3}, 0x20000")
    for t in range(10):
        A(f"buffer_load_dwordx4 v[{WR+4*t}:{WR+4*t+3}], v{vOff}, s[{rW}:{rW+3}], s{sOff} offen nt")
        if t < 9:
            A(f"s_add_u32 s{sOff}, s{sOff}, s{sT3}")
    for i in range(32):
        A(f"v_mov_b32 v{ACC+i}, 0")
    C("zero accumulators / counters: WGs 0..10, 4 KB each")
    A(f"s_cmp_ge_u32 s2, {W_ZERO_BYTES // 4096}")
    A(f"s_cbranch_scc1 {k.lab('nozero')}")
    A(f"s_lshl_b32 s{sT0}, s2, 12")
    A(f"v_lshl_add_u32 v{vT0}, v0, 4, s{sT0}")
    A(f"global_store_dwordx4 v{vT0}, v[{ACC}:{ACC+3}], s[{sWS}:{sWS+1}]")
    A("s_waitcnt vmcnt(0)")
    LB("nozero")
    C("---- LayerNorm of batch w ----")
    A("s_waitcnt vmcnt(10)")
    for i in range(5):
        A(f"v_lshlrev_b32 v{X+2*i}, 16, v{XR+i}")
        A(f"v_and_b32 v{X+2*i+1}, s{k.sMsk}, v{XR+i}")
    a = XR
    A(f"v_add_f32 v{a}, v{X}, v{X+1}")
    for i in range(2, 10):
        A(f"v_add_f32 v{a}, v{a}, v{X+i}")
    k.wave_allreduce("v_add_f32", a)
    A(f"v_mul_f32 v{a}, {1.0/640.0!r}, v{a}")
    A(f"v_sub_f32 v{a+1}, v{X}, v{a}")
    A(f"v_mul_f32 v{a+2}, v{a+1}, v{a+1}")
    for i in range(1, 10):
        A(f"v_sub_f32 v{a+1}, v{X+i}, v{a}")
        A(f"v_fmac_f32 v{a+2}, v{a+1}, v{a+1}")
    k.wave_allreduce("v_add_f32", a + 2)
    A(f"v_mul_f32 v{a+2}, {1.0/640.0!r}, v{a+2}")
    k.rnd2(a, a + 2, a + 1)
    A(f"v_add_f32 v{a+2}, 0x3727c5ac, v{a+2}")
    k.rnd1(a + 2, a + 1)
    A(f"v_sqrt_f32 v{a+2}, v{a+2}")
    A("s_nop 0")
    k.rnd1(a + 2, a + 1)
    A(f"v_rcp_f32 v{a+3}, v{a+2}")
    for i in range(10):
        A(f"v_sub_f32 v{X+i}, v{X+i}, v{a}")
    for i in range(0, 10, 2):
        k.rnd2(X + i, X + i + 1, a + 1)
    for i in range(10):
        A(f"v_mul_f32 v{a+4}, v{X+i}, v{a+3}")
        A(f"v_fma_f32 v{a+5}, -v{a+4}, v{a+2}, v{X+i}")
        A(f"v_fma_f32 v{X+i}, v{a+5}, v{a+3}, v{a+4}")
    for i in range(0, 10, 2):
        k.rnd2(X + i, X + i + 1, a + 1)
    C("xn[k][b] layout: byte (k*4 + b)*4")
    A(f"s_lshl_b32 s{sT0}, s{sW}, 2")
    A(f"v_lshl_add_u32 v{vT0}, v{vL}, 7, s{sT0}")
    A(f"v_lshl_add_u32 v{vT1}, v{vL}, 5, s{sT0}")
    for i in range(8):
        A(f"ds_write_b32 v{vT0}, v{X+i} offset:{L_XN+16*i}")
    for i in range(2):
        A(f"ds_write_b32 v{vT1}, v{X+8+i} offset:{L_XN+8192+16*i}")
    A(f"s_mul_i32 s{sT0}, s{sJ}, 1280")
    A(f"v_and_b32 v{vT0}, 7, v{vL}")
    A(f"v_lshl_add_u32 v{vT0}, v{vT0}, 4, s{sT0}")
    A("s_waitcnt lgkmcnt(0)")
    A("s_barrier")
    for t in range(10):
        A(f"ds_read_b128 v[{XN+4*t}:{XN+4*t+3}], v{vT0} offset:{L_XN+128*t}")
    for t in range(10):
        A(f"s_waitcnt vmcnt({9-t}) lgkmcnt({9-t})")
        for d in range(4):
            tt = k.unpack(WR + 4 * t + d)
            for b in range(4):
                k.pkfma(ACC + 8 * b + 2 * d, tt, XN + 4 * t + b)
    k.butterfly("v_add_f32", range(ACC, ACC + 32), 3)
    C("store: QP[h][j][b][64w + 8e .. +8]")
    A(f"s_lshl_b32 s{sT0}, s2, 12")
    A(f"s_lshl_b32 s{sT1}, s{sW}, 8")
    A(f"s_add_u32 s{sT0}, s{sT0}, s{sT1}")
    A(f"s_add_u32 s{sT0}, s{sT0}, {W_QP}")
    A(f"v_lshrrev_b32 v{vT0}, 3, v{vL}")
    A(f"v_lshl_add_u32 v{vT0}, v{vT0}, 5, s{sT0}")
    k.set_exec(0x0101010101010101)
    for b in range(4):
        A(f"global_store_dwordx4 v{vT0}, v[{ACC+8*b}:{ACC+8*b+3}], s[{sWS}:{sWS+1}] offset:{1024*b}")
        A(f"global_store_dwordx4 v{vT0}, v[{ACC+8*b+4}:{ACC+8*b+7}], s[{sWS}:{sWS+1}] offset:{1024*b+16}")
    LB("end")
    A("s_endpgm")
    return k, (144, 144), 10240


def build_k2(stamps=False, DP=32):
    k = K("attn_kernel")
    A, LB, C = k.A, k.LB, k.C
    sT0, sT1, sT2, sT3 = k.sT
    NS = (256 - DP) // 8
    LDP = DP.bit_length() - 1
    NPOOL = 4 * DP
    sW, sH, sJ = 3, 4, 5
    sRem, sCurOff, sNxtOff, sOff = 6, 7, 12, 13
    sPairCur, sPairN, sPairSt, sSlot = 14, 42, 43, 52
    sHoff = 53
    rK, rV = 44, 48
    sTs = 96
    vL, vKoff, vT0, vT1, vClaim, vOne, vM, vLs, vAl, vQa, vCa = range(1, 12)
    S = 12
    k.TP = 16
    k.ntp = 4
    QF = 24
    D = 36
    ACC = 52
    SL = 76
    MG = 172
    L_QB = 0
    L_REC = 2048
    L_TOTAL = L_REC + 20 * 1024
    boff = [0, 128, 256, 3072, 3200, 3328]

    def stamp(i):
        if stamps:
            A("s_memrealtime s[54:55]")
            A("s_waitcnt lgkmcnt(0)")
            A(f"s_mov_b32 s{sTs+i}, s54")

    def tile_loads(u, first_off=None):
        srd = rK if u < 2 else rV
        so = sNxtOff if (u & 1) == 0 else sOff
        for j in range(6):
            r = SL + 24 * u + 4 * j
            A(f"buffer_load_dwordx4 v[{r}:{r+3}], v{vKoff}, s[{srd}:{srd+3}], s{so} offen offset:{boff[j]} nt")

    def k_tile(u):
        s0 = SL + 24 * u
        Da, Db = D + 8 * u, D + 8 * u + 4
        for n in range(3):
            ca = "0" if n == 0 else f"v[{Da}:{Da+3}]"
            cb = "0" if n == 0 else f"v[{Db}:{Db+3}]"
            A(f"v_mfma_f32_16x16x32_bf16 v[{Da}:{Da+3}], v[{QF+4*n}:{QF+4*n+3}], v[{s0+4*n}:{s0+4*n+3}], {ca}")
            A(f"v_mfma_f32_16x16x32_bf16 v[{Db}:{Db+3}], v[{QF+4*n}:{QF+4*n+3}], v[{s0+12+4*n}:{s0+12+4*n+3}], {cb}")

    def softmax():
        for t in range(4):
            d = D + 4 * t
            A(f"v_add_f32_dpp v{S+t}, v{d+1}, v{d} row_ror:8 row_mask:0xf bank_mask:0x3")
            A(f"v_add_f32_dpp v{S+t}, v{d}, v{d+1} row_ror:8 row_mask:0xf bank_mask:0xc")
        k.rnd2(S, S + 1, vT0)
        k.rnd2(S + 2, S + 3, vT1)
        for t in range(4):
            A(f"v_mul_f32 v{S+t}, {SCALE}, v{S+t}")
        k.rnd2(S, S + 1, vT0)
        k.rnd2(S + 2, S + 3, vT1)
        A(f"v_max3_f32 v{vT0}, v{vM}, v{S}, v{S+1}")
        A(f"v_max3_f32 v{vT0}, v{vT0}, v{S+2}, v{S+3}")
        A(f"v_sub_f32 v{vAl}, v{vM}, v{vT0}")
        for t in range(4):
            A(f"v_sub_f32 v{S+t}, v{S+t}, v{vT0}")
        A(f"v_mul_f32 v{vAl}, {LOG2E}, v{vAl}")
        for t in range(4):
            A(f"v_mul_f32 v{S+t}, {LOG2E}, v{S+t}")
        A(f"v_exp_f32 v{vAl}, v{vAl}")
        for t in range(4):
            A(f"v_exp_f32 v{S+t}, v{S+t}")
        A(f"v_mov_b32 v{vM}, v{vT0}")
        A(f"v_fma_f32 v{vLs}, v{vLs}, v{vAl}, v{S}")
        for i in range(12):
            k.pkmul(ACC + 2 * i, vAl)
        for t in range(1, 4):
            A(f"v_add_f32 v{vLs}, v{vLs}, v{S+t}")

    def v_tile(u):
        s0 = SL + 24 * u
        items = [(s0 + 12 * half + 4 * n + d, ACC + 8 * n + 2 * d, S + 2 * (u - 2) + half)
                 for half in range(2) for n in range(3) for d in range(4)]
        pend = []
        for it in items:
            t = k.unpack(it[0])
            pend.append((it[1], t, it[2]))
            if len(pend) > 2:
                a, tt, m = pend.pop(0)
                k.pkfma(a, tt, m)
        for a, tt, m in pend:
            k.pkfma(a, tt, m)

    def flush():
        A(f"v_mov_b32 v{vT0}, v{vM}")
        k.butterfly("v_max_f32", [vT0], 3)
        A(f"v_sub_f32 v{vAl}, v{vM}, v{vT0}")
        A(f"v_mul_f32 v{vAl}, {LOG2E}, v{vAl}")
        A(f"v_exp_f32 v{vAl}, v{vAl}")
        A(f"s_mul_i32 s{sT0}, s{sW}, 5")
        A(f"s_add_u32 s{sT0}, s{sT0}, s{sSlot}")
        A(f"s_lshl_b32 s{sT0}, s{sT0}, 10")
        A(f"v_mul_f32 v{vLs}, v{vLs}, v{vAl}")
        for i in range(12):
            k.pkmul(ACC + 2 * i, vAl)
        k.butterfly("v_add_f32", [vLs] + list(range(ACC, ACC + 24)), 3)
        A(f"v_lshrrev_b32 v{vT1}, 3, v{vL}")
        A(f"v_lshl_add_u32 v{vT1}, v{vT1}, 5, s{sT0}")
        A(f"v_mov_b32 v{S}, v{vT0}")
        A(f"v_mov_b32 v{S+1}, v{vLs}")
        A(f"v_mov_b32 v{S+2}, s{sPairSt}")
        A(f"v_mov_b32 v{S+3}, 0")
        k.set_exec(0x0101010101010101)
        for n in range(3):
            A(f"ds_write_b128 v{vT1}, v[{ACC+8*n}:{ACC+8*n+3}] offset:{L_REC+256*n}")
            A(f"ds_write_b128 v{vT1}, v[{ACC+8*n+4}:{ACC+8*n+7}] offset:{L_REC+256*n+16}")
        k.set_exec(1)
        A(f"ds_write_b128 v{vT1}, v[{S}:{S+3}] offset:{L_REC+768}")
        k.set_exec(-1)
        A(f"s_add_u32 s{sSlot}, s{sSlot}, 1")

    def reset_state():
        A(f"v_mov_b32 v{vM}, {NEGBIG}")
        A(f"v_mov_b32 v{vLs}, 0")
        for i in range(24):
            A(f"v_mov_b32 v{ACC+i}, 0")

    def load_q():
        A(f"s_mul_i32 s{sT0}, s{sPairCur}, 384")
        A(f"v_add_u32 v{vT0}, s{sT0}, v{vQa}")
        for n in range(3):
            A(f"ds_read_b128 v[{QF+4*n}:{QF+4*n+3}], v{vT0} offset:{L_QB+128*n}")
        A(f"s_mov_b32 s{sPairSt}, s{sPairCur}")

    A("s_cmp_ge_u32 s2, 256")
    A(f"s_cbranch_scc1 {k.lab('end')}")
    stamp(0)
    load_kernargs(k)
    A(f"v_and_b32 v{vL}, 63, v0")
    A(f"v_lshrrev_b32 v{vT0}, 6, v0")
    A(f"s_mov_b32 s{k.sMsk}, 0xffff0000")
    A(f"v_readfirstlane_b32 s{sW}, v{vT0}")
    A(f"s_lshr_b32 s{sH}, s2, 3")
    A(f"s_and_b32 s{sJ}, s2, 7")
    A(f"v_and_b32 v{vT0}, 7, v{vL}")
    A(f"v_lshrrev_b32 v{vT1}, 3, v{vL}")
    A(f"v_mul_u32_u24 v{vKoff}, 384, v{vT0}")
    A(f"v_lshl_add_u32 v{vKoff}, v{vT1}, 4, v{vKoff}")
    C("q fragment LDS address: 32 g + 16 (l&1)")
    A(f"v_lshrrev_b32 v{vQa}, 4, v{vL}")
    A(f"v_lshlrev_b32 v{vQa}, 5, v{vQa}")
    A(f"v_and_b32 v{vT1}, 1, v{vL}")
    A(f"v_lshl_add_u32 v{vQa}, v{vT1}, 4, v{vQa}")
    A(f"v_mov_b32 v{vOne}, 1")
    A(f"s_lshl_b32 s{sT0}, s{sH}, 7")
    A(f"s_add_u32 s{sT0}, s{sT0}, {W_QCNT}")
    A(f"v_mov_b32 v{vCa}, s{sT0}")
    C("q partial address: thread t<192: b = t/48, c4 = t%48 -> h*32768 + b*1024 + c4*16 (+ j*4096)")
    A(f"v_min_u32 v{vT0}, 191, v0")
    A(f"v_mul_u32_u24 v{vT1}, 1366, v{vT0}")
    A(f"v_lshrrev_b32 v{vT1}, 16, v{vT1}")
    A(f"v_mul_u32_u24 v{vAl}, 48, v{vT1}")
    A(f"v_sub_u32 v{vAl}, v{vT0}, v{vAl}")
    A(f"v_lshlrev_b32 v{vM}, 10, v{vT1}")
    A(f"v_lshl_add_u32 v{vM}, v{vAl}, 4, v{vM}")
    A(f"s_lshl_b32 s{sT0}, s{sH}, 15")
    A(f"s_add_u32 s{sT0}, s{sT0}, {W_QP}")
    A(f"v_add_u32 v{vM}, s{sT0}, v{vM}")
    A(f"v_lshlrev_b32 v{vLs}, 3, v{vT0}")
    C("static start")
    A(f"s_lshr_b32 s{sPairCur}, s{sJ}, 1")
    A(f"s_mul_i32 s{sHoff}, s{sH}, 3145728")
    A(f"s_mul_i32 s{sNxtOff}, s{sPairCur}, 100663296")
    A(f"s_add_u32 s{sNxtOff}, s{sNxtOff}, s{sHoff}")
    A(f"s_and_b32 s{sT0}, s{sJ}, 1")
    A(f"s_lshl_b32 s{sT0}, s{sT0}, 2")
    A(f"s_add_u32 s{sT0}, s{sT0}, s{sW}")
    A(f"s_mul_i32 s{sT0}, s{sT0}, {NS*12288}")
    A(f"s_add_u32 s{sNxtOff}, s{sNxtOff}, s{sT0}")
    A(f"s_add_u32 s{sOff}, s{sNxtOff}, 6144")
    A(f"s_mov_b32 s{sRem}, {NS}")
    A(f"s_mov_b32 s{sSlot}, 0")
    A("s_waitcnt lgkmcnt(0)")
    for j in range(8):
        if j:
            A(f"v_add_u32 v{vM}, 4096, v{vM}")
        A(f"global_load_dwordx4 v[{MG+4*j}:{MG+4*j+3}], v{vM}, s[{sWS}:{sWS+1}]")
    k.srd(rK, sKp, 402653184)
    k.srd(rV, sVp, 402653184)
    for u in range(4):
        tile_loads(u)
    A(f"s_mov_b32 s{sCurOff}, s{sNxtOff}")
    C("init LDS records: zero data, header M = -big")
    for i in range(4):
        A(f"v_mov_b32 v{ACC+i}, 0")
    A(f"v_lshlrev_b32 v{vT0}, 4, v0")
    for i in range(5):
        A(f"ds_write_b128 v{vT0}, v[{ACC}:{ACC+3}] offset:{L_REC+4096*i}")
    A("s_waitcnt lgkmcnt(0)")
    A("s_barrier")
    A(f"v_mov_b32 v{vT1}, {NEGBIG}")
    A(f"v_lshlrev_b32 v{vT0}, 10, v{vL}")
    k.set_exec(0xfffff)
    A(f"ds_write_b32 v{vT0}, v{vT1} offset:{L_REC+768}")
    k.set_exec(-1)
    C("q = bf16(sum of 8 partials)")
    A("s_waitcnt vmcnt(24)")
    for j in range(1, 8):
        A(f"v_pk_add_f32 v[{MG}:{MG+1}], v[{MG}:{MG+1}], v[{MG+4*j}:{MG+4*j+1}]")
        A(f"v_pk_add_f32 v[{MG+2}:{MG+3}], v[{MG+2}:{MG+3}], v[{MG+4*j+2}:{MG+4*j+3}]")
    A(f"v_cvt_pk_bf16_f32 v{MG+4}, v{MG}, v{MG+1}")
    A(f"v_cvt_pk_bf16_f32 v{MG+5}, v{MG+2}, v{MG+3}")
    A(f"ds_write_b64 v{vLs}, v[{MG+4}:{MG+5}] offset:{L_QB}")
    A("s_waitcnt lgkmcnt(0)")
    A("s_barrier")
    load_q()
    reset_state()
    A("s_waitcnt lgkmcnt(0)")
    stamp(1)
    LB("loop")
    A("s_waitcnt vmcnt(18)")
    A(f"s_cmp_lg_u32 s{sPairCur}, s{sPairSt}")
    A(f"s_cbranch_scc1 {k.lab('switch')}")
    LB("swret")
    k_tile(0)
    A(f"s_sub_u32 s{sRem}, s{sRem}, 1")
    A(f"s_cmp_gt_i32 s{sRem}, 1")
    A(f"s_cbranch_scc0 {k.lab('dyn')}")
    A(f"s_add_u32 s{sNxtOff}, s{sCurOff}, 12288")
    LB("dynret")
    A(f"s_add_u32 s{sOff}, s{sNxtOff}, 6144")
    tile_loads(0)
    A("s_waitcnt vmcnt(18)")
    k_tile(1)
    tile_loads(1)
    A("s_nop 1")
    softmax()
    A("s_waitcnt vmcnt(18)")
    v_tile(2)
    tile_loads(2)
    A("s_waitcnt vmcnt(18)")
    v_tile(3)
    tile_loads(3)
    A(f"s_mov_b32 s{sCurOff}, s{sNxtOff}")
    A(f"s_branch {k.lab('loop')}")
    LB("dyn")
    C("sRem <= 1: next unit static (sRem==1) or claimed; issue the following claim")
    A(f"s_add_u32 s{sNxtOff}, s{sCurOff}, 12288")
    A(f"s_cmp_eq_u32 s{sRem}, 1")
    A(f"s_cbranch_scc1 {k.lab('claim')}")
    A(f"v_readfirstlane_b32 s{sT0}, v{vClaim}")
    A("s_nop 3")
    A(f"s_cmp_ge_u32 s{sT0}, {NPOOL}")
    A(f"s_cbranch_scc1 {k.lab('last')}")
    A(f"s_lshr_b32 s{sPairN}, s{sT0}, {LDP}")
    A(f"s_and_b32 s{sT0}, s{sT0}, {DP-1}")
    A(f"s_add_u32 s{sT0}, s{sT0}, {256-DP}")
    A(f"s_mul_i32 s{sT0}, s{sT0}, 12288")
    A(f"s_mul_i32 s{sNxtOff}, s{sPairN}, 100663296")
    A(f"s_add_u32 s{sNxtOff}, s{sNxtOff}, s{sHoff}")
    A(f"s_add_u32 s{sNxtOff}, s{sNxtOff}, s{sT0}")
    A(f"s_mov_b32 s{sPairCur}, s{sPairN}")
    LB("claim")
    k.set_exec(1)
    A(f"global_atomic_add v{vClaim}, v{vCa}, v{vOne}, s[{sWS}:{sWS+1}] sc0")
    k.set_exec(-1)
    A(f"s_branch {k.lab('dynret')}")
    LB("switch")
    flush()
    A("s_waitcnt lgkmcnt(0)")
    load_q()
    reset_state()
    A("s_waitcnt lgkmcnt(0)")
    A(f"s_branch {k.lab('swret')}")
    LB("last")
    stamp(2)
    A("s_waitcnt vmcnt(12)")
    k_tile(1)
    A("s_nop 7")
    softmax()
    A("s_waitcnt vmcnt(6)")
    v_tile(2)
    A("s_waitcnt vmcnt(0)")
    v_tile(3)
    stamp(3)
    flush()
    A("s_waitcnt lgkmcnt(0)")
    A("s_barrier")
    stamp(4)
    C("==== WG merge: wave w handles pair w ====")
    A(f"v_min_u32 v{vT0}, 19, v{vL}")
    A(f"v_lshlrev_b32 v{vT0}, 10, v{vT0}")
    A(f"ds_read_b128 v[{S}:{S+3}], v{vT0} offset:{L_REC+768}")
    A(f"v_min_u32 v{vT1}, 47, v{vL}")
    A(f"v_lshlrev_b32 v{vT1}, 4, v{vT1}")
    for i in range(20):
        A(f"ds_read_b128 v[{MG+4*i}:{MG+4*i+3}], v{vT1} offset:{L_REC+1024*i}")
    A("s_waitcnt lgkmcnt(15)")
    A("s_waitcnt lgkmcnt(0)")
    A(f"v_cmp_eq_u32 vcc, s{sW}, v{S+2}")
    A(f"v_cmp_gt_u32 s[{sT2}:{sT3}], 20, v{vL}")
    A(f"s_and_b64 vcc, vcc, s[{sT2}:{sT3}]")
    A(f"v_mov_b32 v{vM}, {NEGBIG}")
    A("s_nop 1")
    A(f"v_cndmask_b32 v{vM}, v{vM}, v{S}, vcc")
    k.wave_allreduce("v_max_f32", vM)
    A(f"v_sub_f32 v{vAl}, v{S}, v{vM}")
    A(f"v_mul_f32 v{vAl}, {LOG2E}, v{vAl}")
    A(f"v_exp_f32 v{vAl}, v{vAl}")
    A("s_nop 0")
    A(f"v_cndmask_b32 v{vAl}, 0, v{vAl}, vcc")
    A(f"v_mul_f32 v{vLs}, v{vAl}, v{S+1}")
    sWt = 56
    for i in range(20):
        A(f"v_readlane_b32 s{sWt+i}, v{vAl}, {i}")
    k.wave_allreduce("v_add_f32", vLs)
    for i in range(4):
        A(f"v_mov_b32 v{ACC+i}, 0")
    for i in range(20):
        k.pkfma(ACC, MG + 4 * i, sWt + i, pre="s")
        k.pkfma(ACC + 2, MG + 4 * i + 2, sWt + i, pre="s")
    C("lane 48 carries the header")
    A(f"v_cmp_eq_u32 vcc, 48, v{vL}")
    A("s_nop 1")
    A(f"v_cndmask_b32 v{ACC}, v{ACC}, v{vM}, vcc")
    A(f"v_cndmask_b32 v{ACC+1}, v{ACC+1}, v{vLs}, vcc")
    A(f"s_lshl_b32 s{sT0}, s{sH}, 2")
    A(f"s_add_u32 s{sT0}, s{sT0}, s{sW}")
    A(f"s_lshl_b32 s{sT0}, s{sT0}, 3")
    A(f"s_add_u32 s{sT0}, s{sT0}, s{sJ}")
    A(f"s_lshl_b32 s{sT0}, s{sT0}, 10")
    A(f"s_add_u32 s{sT0}, s{sT0}, {W_REC}")
    A(f"v_lshl_add_u32 v{vT0}, v{vL}, 4, s{sT0}")
    k.set_exec((1 << 49) - 1)
    A(f"global_store_dwordx4 v{vT0}, v[{ACC}:{ACC+3}], s[{sWS}:{sWS+1}]")
    k.set_exec(-1)
    if stamps:
        stamp(5)
        A(f"s_getreg_b32 s{sT2}, hwreg(HW_REG_XCC_ID)")
        A(f"s_lshl_b32 s{sT1}, s2, 2")
        A(f"s_add_u32 s{sT1}, s{sT1}, s{sW}")
        A(f"s_lshl_b32 s{sT1}, s{sT1}, 5")
        A(f"s_add_u32 s{sT1}, s{sT1}, {W_STAMP}")
        for i in range(6):
            A(f"v_mov_b32 v{MG+i}, s{sTs+i}")
        A(f"v_mov_b32 v{MG+6}, s{sT2}")
        A(f"v_mov_b32 v{MG+7}, 0x12345678")
        A(f"v_mov_b32 v{vT0}, s{sT1}")
        k.set_exec(1)
        A(f"global_store_dwordx4 v{vT0}, v[{MG}:{MG+3}], s[{sWS}:{sWS+1}]")
        A(f"global_store_dwordx4 v{vT0}, v[{MG+4}:{MG+7}], s[{sWS}:{sWS+1}] offset:16")
    LB("end")
    A("s_endpgm")
    return k, (512, 256), L_TOTAL


def build_k3():
    k = K("outp_kernel")
    A, LB, C = k.A, k.LB, k.C
    sT0, sT1, sT2, sT3 = k.sT
    sW, sRB, sCB, sOff, sAcc = 3, 4, 5, 6, 7
    rW = 44
    vL, vT0, vT1, vOff, vB, vC4, vA, vOne = range(1, 9)
    k.TP = 10
    H = 14
    R = 30
    WR = 62
    ACC = 86
    OV = 118
    FX = 142
    L_O = 0
    L_Y = 3072
    L_F = 7168
    NWG = 400
    A(f"s_cmp_ge_u32 s2, {NWG}")
    A(f"s_cbranch_scc1 {k.lab('end')}")
    load_kernargs(k)
    A(f"v_and_b32 v{vL}, 63, v0")
    A(f"v_lshrrev_b32 v{vT0}, 6, v0")
    A(f"s_mov_b32 s{k.sMsk}, 0xffff0000")
    A(f"v_readfirstlane_b32 s{sW}, v{vT0}")
    C("rb = wg / 10, cb = wg % 10")
    A(f"s_mul_i32 s{sRB}, s2, 6554")
    A(f"s_lshr_b32 s{sRB}, s{sRB}, 16")
    A(f"s_mul_i32 s{sT0}, s{sRB}, 10")
    A(f"s_sub_u32 s{sCB}, s2, s{sT0}")
    A(f"v_and_b32 v{vT0}, 7, v{vL}")
    A(f"v_lshrrev_b32 v{vT1}, 3, v{vL}")
    A(f"v_mul_u32_u24 v{vOff}, 1280, v{vT0}")
    A(f"v_lshl_add_u32 v{vOff}, v{vT1}, 4, v{vOff}")
    C("weight rows (rb&31)*192 + 48 w + 8 t + r, cols cb*64")
    A(f"s_and_b32 s{sT0}, s{sRB}, 31")
    A(f"s_mul_i32 s{sOff}, s{sT0}, 192")
    A(f"s_mul_i32 s{sT1}, s{sW}, 48")
    A(f"s_add_u32 s{sOff}, s{sOff}, s{sT1}")
    A(f"s_mul_i32 s{sOff}, s{sOff}, 1280")
    A(f"s_lshl_b32 s{sT1}, s{sCB}, 7")
    A(f"s_add_u32 s{sOff}, s{sOff}, s{sT1}")
    C("thread t<192: b = t/48, c4 = t%48")
    A(f"v_min_u32 v{vT0}, 191, v0")
    A(f"v_mul_u32_u24 v{vB}, 1366, v{vT0}")
    A(f"v_lshrrev_b32 v{vB}, 16, v{vB}")
    A(f"v_mul_u32_u24 v{vC4}, 48, v{vB}")
    A(f"v_sub_u32 v{vC4}, v{vT0}, v{vC4}")
    A(f"v_mov_b32 v{vOne}, 1")
    A("s_waitcnt lgkmcnt(0)")
    A(f"s_cmp_ge_u32 s{sRB}, 32")
    A(f"s_cselect_b32 s{rW}, s{sW2p}, s{sWOp}")
    A(f"s_cselect_b32 s{rW+1}, s{sW2p+1}, s{sWOp+1}")
    A(f"s_mov_b32 s{rW+2}, 1966080")
    A(f"s_cselect_b32 s{rW+2}, s{rW+2}, 7864320")
    A(f"s_mov_b32 s{rW+3}, 0x20000")
    A(f"s_cselect_b32 s{sAcc}, {W_ACCB}, {W_ACCA}")
    A(f"s_cbranch_scc1 {k.lab('ffn_ld')}")
    C("attention: records REC[(h*4+b)][j]")
    A(f"s_lshl_b32 s{sT0}, s{sRB}, 15")
    A(f"s_add_u32 s{sT0}, s{sT0}, {W_REC}")
    A(f"v_lshl_add_u32 v{vT0}, v{vB}, 13, s{sT0}")
    A(f"v_lshl_add_u32 v{vT1}, v{vC4}, 4, v{vT0}")
    for j in range(8):
        if j == 4:
            A(f"v_add_u32 v{vT0}, 4096, v{vT0}")
            A(f"v_add_u32 v{vT1}, 4096, v{vT1}")
        A(f"global_load_dwordx2 v[{H+2*j}:{H+2*j+1}], v{vT0}, s[{sWS}:{sWS+1}] offset:{1024*(j%4)+768}")
        A(f"global_load_dwordx4 v[{R+4*j}:{R+4*j+3}], v{vT1}, s[{sWS}:{sWS+1}] offset:{1024*(j%4)}")
    A(f"s_branch {k.lab('wld')}")
    LB("ffn_ld")
    C("ffn: f = 192 (rb-32) + 4 c4 ..+3 ; head h' = 4 (rb-32) + c4/12 ; idx = 4 (c4 % 12)")
    A(f"v_mul_u32_u24 v{vT0}, 43, v{vC4}")
    A(f"v_lshrrev_b32 v{vT0}, 9, v{vT0}")
    A(f"v_mul_u32_u24 v{vT1}, 12, v{vT0}")
    A(f"v_sub_u32 v{vT1}, v{vC4}, v{vT1}")
    A(f"s_sub_u32 s{sT0}, s{sRB}, 32")
    A(f"s_lshl_b32 s{sT1}, s{sT0}, 17")
    A(f"s_add_u32 s{sT1}, s{sT1}, {W_QP + 768}")
    A(f"v_lshl_add_u32 v{vT0}, v{vT0}, 15, s{sT1}")
    A(f"v_lshl_add_u32 v{vT0}, v{vB}, 10, v{vT0}")
    A(f"v_lshl_add_u32 v{vT0}, v{vT1}, 4, v{vT0}")
    for j in range(8):
        if j:
            A(f"v_add_u32 v{vT0}, 4096, v{vT0}")
        A(f"global_load_dwordx4 v[{R+4*j}:{R+4*j+3}], v{vT0}, s[{sWS}:{sWS+1}]")
    A(f"s_mul_i32 s{sT0}, s{sT0}, 384")
    A(f"v_lshl_add_u32 v{vT1}, v{vC4}, 3, s{sT0}")
    A(f"global_load_dwordx2 v[{H}:{H+1}], v{vT1}, s[{sB1p}:{sB1p+1}]")
    LB("wld")
    for t in range(6):
        A(f"buffer_load_dwordx4 v[{WR+4*t}:{WR+4*t+3}], v{vOff}, s[{rW}:{rW+3}], s{sOff} offen nt")
        if t < 5:
            A(f"s_add_u32 s{sOff}, s{sOff}, {8*1280}")
    C("x / b2 for the finaliser: thread t: b = t>>6, col = cb*64 + (t&63)")
    A(f"s_mul_i32 s{sT0}, s{sW}, 640")
    A(f"s_lshl_b32 s{sT1}, s{sCB}, 6")
    A(f"s_add_u32 s{sT0}, s{sT0}, s{sT1}")
    A(f"v_add_lshl_u32 v{vA}, v{vL}, s{sT0}, 1")
    A(f"v_add_lshl_u32 v{vT0}, v{vL}, s{sT1}, 1")
    A(f"global_load_ushort v{FX}, v{vA}, s[{sX}:{sX+1}]")
    A(f"global_load_ushort v{FX+1}, v{vT0}, s[{sB2p}:{sB2p+1}]")
    for i in range(32):
        A(f"v_mov_b32 v{ACC+i}, 0")
    A("s_waitcnt vmcnt(8)")
    A(f"s_cmp_ge_u32 s{sRB}, 32")
    A(f"s_cbranch_scc1 {k.lab('ffn_vec')}")
    C("combine records")
    M, Lt = k.TP, k.TP + 1
    A(f"v_max3_f32 v{M}, v{H}, v{H+2}, v{H+4}")
    A(f"v_max3_f32 v{M}, v{M}, v{H+6}, v{H+8}")
    A(f"v_max3_f32 v{M}, v{M}, v{H+10}, v{H+12}")
    A(f"v_max_f32 v{M}, v{M}, v{H+14}")
    for j in range(8):
        A(f"v_sub_f32 v{H+2*j}, v{H+2*j}, v{M}")
    for j in range(8):
        A(f"v_mul_f32 v{H+2*j}, {LOG2E}, v{H+2*j}")
    for j in range(8):
        A(f"v_exp_f32 v{H+2*j}, v{H+2*j}")
    A("s_nop 0")
    A(f"v_mul_f32 v{Lt}, v{H}, v{H+1}")
    for j in range(1, 8):
        A(f"v_fmac_f32 v{Lt}, v{H+2*j}, v{H+2*j+1}")
    k.pkmul(R, H)
    k.pkmul(R + 2, H)
    for j in range(1, 8):
        k.pkfma(R, R + 4 * j, H + 2 * j)
        k.pkfma(R + 2, R + 4 * j + 2, H + 2 * j)
    A(f"v_rcp_f32 v{M}, v{Lt}")
    A("s_nop 0")
    for i in range(4):
        A(f"v_mul_f32 v{R+4}, v{R+i}, v{M}")
        A(f"v_fma_f32 v{R+5}, -v{R+4}, v{Lt}, v{R+i}")
        A(f"v_fma_f32 v{R+i}, v{R+5}, v{M}, v{R+4}")
    k.rnd2(R, R + 1, R + 4)
    k.rnd2(R + 2, R + 3, R + 4)
    A(f"s_branch {k.lab('vec_done')}")
    LB("ffn_vec")
    for j in range(1, 8):
        A(f"v_pk_add_f32 v[{R}:{R+1}], v[{R}:{R+1}], v[{R+4*j}:{R+4*j+1}]")
        A(f"v_pk_add_f32 v[{R+2}:{R+3}], v[{R+2}:{R+3}], v[{R+4*j+2}:{R+4*j+3}]")
    k.rnd2(R, R + 1, R + 4)
    k.rnd2(R + 2, R + 3, R + 4)
    A(f"v_lshlrev_b32 v{R+4}, 16, v{H}")
    A(f"v_and_b32 v{R+5}, s{k.sMsk}, v{H}")
    A(f"v_lshlrev_b32 v{R+6}, 16, v{H+1}")
    A(f"v_and_b32 v{R+7}, s{k.sMsk}, v{H+1}")
    for i in range(4):
        A(f"v_add_f32 v{R+i}, v{R+i}, v{R+4+i}")
    k.rnd2(R, R + 1, R + 4)
    k.rnd2(R + 2, R + 3, R + 4)
    for i in range(4):
        A(f"v_cmp_gt_f32 vcc, v{R+i}, 0")
        A("s_nop 1")
        A(f"v_cndmask_b32 v{R+i}, 0, v{R+i}, vcc")
    for i in range(4):
        A(f"v_mul_f32 v{R+i}, v{R+i}, v{R+i}")
    k.rnd2(R, R + 1, R + 4)
    k.rnd2(R + 2, R + 3, R + 4)
    LB("vec_done")
    C("LDS o[d][b]: d = 4 c4 + i -> byte 64 c4 + 16 i + 4 b (threads >= 192 duplicate thread 191)")
    A(f"v_lshlrev_b32 v{vT0}, 6, v{vC4}")
    A(f"v_lshl_add_u32 v{vT0}, v{vB}, 2, v{vT0}")
    for i in range(4):
        A(f"ds_write_b32 v{vT0}, v{R+i} offset:{L_O+16*i}")
    A(f"s_mul_i32 s{sT0}, s{sW}, 768")
    A(f"v_and_b32 v{vT0}, 7, v{vL}")
    A(f"v_lshl_add_u32 v{vT0}, v{vT0}, 4, s{sT0}")
    A("s_waitcnt lgkmcnt(0)")
    A("s_barrier")
    for t in range(6):
        A(f"ds_read_b128 v[{OV+4*t}:{OV+4*t+3}], v{vT0} offset:{L_O+128*t}")
    for t in range(6):
        A(f"s_waitcnt vmcnt({7-t}) lgkmcnt({5-t})")
        for d in range(4):
            tt = k.unpack(WR + 4 * t + d)
            for b in range(4):
                k.pkfma(ACC + 8 * b + 2 * d, tt, OV + 4 * t + b)
    k.butterfly("v_add_f32", range(ACC, ACC + 32), 3)
    C("Y[w][b][8e..8e+8]")
    A(f"s_lshl_b32 s{sT0}, s{sW}, 10")
    A(f"v_lshrrev_b32 v{vT0}, 3, v{vL}")
    A(f"v_lshl_add_u32 v{vT0}, v{vT0}, 5, s{sT0}")
    k.set_exec(0x0101010101010101)
    for b in range(4):
        A(f"ds_write_b128 v{vT0}, v[{ACC+8*b}:{ACC+8*b+3}] offset:{L_Y+256*b}")
        A(f"ds_write_b128 v{vT0}, v[{ACC+8*b+4}:{ACC+8*b+7}] offset:{L_Y+256*b+16}")
    k.set_exec(-1)
    A(f"v_lshlrev_b32 v{vT0}, 2, v0")
    A(f"v_lshl_add_u32 v{vT1}, v{vA}, 1, s{sAcc}")
    A("s_waitcnt lgkmcnt(0)")
    A("s_barrier")
    for i in range(4):
        A(f"ds_read_b32 v{R+i}, v{vT0} offset:{L_Y+1024*i}")
    A("s_waitcnt lgkmcnt(0)")
    A(f"v_add_f32 v{R}, v{R}, v{R+1}")
    A(f"v_add_f32 v{R+2}, v{R+2}, v{R+3}")
    A(f"v_add_f32 v{R}, v{R}, v{R+2}")
    A(f"global_atomic_add_f32 v{vT1}, v{R}, s[{sWS}:{sWS+1}]")
    A(f"v_mov_b32 v{vT0}, {L_F}")
    A("s_waitcnt vmcnt(0)")
    A("s_barrier")
    A(f"s_cmp_eq_u32 s{sW}, 0")
    A(f"s_cbranch_scc0 {k.lab('nocnt')}")
    A(f"s_lshl_b32 s{sT0}, s{sCB}, 7")
    A(f"s_add_u32 s{sT0}, s{sT0}, {W_FCNT}")
    A(f"v_mov_b32 v{vT1}, s{sT0}")
    k.set_exec(1)
    A(f"global_atomic_add v{R}, v{vT1}, v{vOne}, s[{sWS}:{sWS+1}] sc0")
    A("s_waitcnt vmcnt(0)")
    A(f"ds_write_b32 v{vT0}, v{R}")
    k.set_exec(-1)
    A("s_waitcnt lgkmcnt(0)")
    LB("nocnt")
    A("s_barrier")
    A(f"ds_read_b32 v{R}, v{vT0}")
    A("s_waitcnt lgkmcnt(0)")
    A(f"v_readfirstlane_b32 s{sT0}, v{R}")
    A("s_nop 3")
    A(f"s_cmp_eq_u32 s{sT0}, 39")
    A(f"s_cbranch_scc0 {k.lab('end')}")
    C("finalise 4 x 64 outputs")
    A(f"v_lshlrev_b32 v{vT1}, 1, v{vA}")
    A(f"global_load_dword v{R}, v{vT1}, s[{sWS}:{sWS+1}] sc0 sc1")
    A(f"v_add_u32 v{vT1}, {W_ACCB}, v{vT1}")
    A(f"global_load_dword v{R+1}, v{vT1}, s[{sWS}:{sWS+1}] sc0 sc1")
    A(f"v_lshlrev_b32 v{FX}, 16, v{FX}")
    A(f"v_lshlrev_b32 v{FX+1}, 16, v{FX+1}")
    A("s_waitcnt vmcnt(0)")
    k.rnd2(R, R + 1, R + 4)
    A(f"v_add_f32 v{R}, v{FX}, v{R}")
    A(f"v_add_f32 v{R+1}, v{R+1}, v{FX+1}")
    k.rnd2(R, R + 1, R + 4)
    A(f"v_add_f32 v{R}, v{R}, v{R+1}")
    A(f"v_cvt_pk_bf16_f32 v{R}, v{R}, v{R}")
    A(f"global_store_short v{vA}, v{R}, s[{sOUT}:{sOUT+1}]")
    LB("end")
    A("s_endpgm")
    return k, (144, 144), L_F + 64


def build(stamps=False, DP=32):
    k1, r1, l1 = build_k1()
    k2, r2, l2 = build_k2(stamps, DP)
    k3, r3, l3 = build_k3()
    txt = HEADER
    txt += f"; @launch kernel=proj_kernel grid=(256,1,1) block=(256,1,1) lds={l1}\n"
    txt += f"; @launch kernel=attn_kernel grid=(256,1,1) block=(256,1,1) lds={l2}\n"
    txt += f"; @launch kernel=outp_kernel grid=(400,1,1) block=(256,1,1) lds={l3}\n"
    txt += '.amdgcn_target "amdgcn-amd-amdhsa--gfx950"\n.text\n'
    txt += k1.text() + k2.text() + k3.text()
    txt += '.section .rodata,"a"\n'
    txt += k1.desc(*r1) + k2.desc(*r2) + k3.desc(*r3)
    return txt


if __name__ == "__main__":
    out = sys.argv[1] if len(sys.argv) > 1 else f"cdna_kernels/{NAME}.s"
    stamps = len(sys.argv) > 2 and sys.argv[2] == "stamps"
    DP = int(sys.argv[3]) if len(sys.argv) > 3 else 32
    open(out, "w").write(build(stamps, DP))
    print("wrote", out)
```

```python
import sys
from gen_v1 import HEADER, NAME
from gen_v2 import *


def build_main(stamps=False, DP=64, NPRE=2):
    k = K("main_kernel")
    A, LB, C = k.A, k.LB, k.C
    sT0, sT1, sT2, sT3 = k.sT
    NS = (512 - DP) // 8
    LDP = DP.bit_length() - 1
    NPOOL = 4 * DP
    sW, sH, sJ = 3, 4, 5
    sRem, sStat, sNxt = 6, 7, 12
    sPairCur, sPairSt, sSlot, sHoff = 13, 14, 42, 43
    rK, rV = 44, 48
    sPair = [52, 53]
    sRet = 54
    sWt = 56
    sTm = 76
    rW = 80
    sOff = 84
    sTs = 96
    L_QB = 0
    L_SYNC = 1536
    L_REC = 2048
    L_XN = L_REC + 20480
    L_TOTAL = L_XN + 5120
    boff = [0, 128, 256, 3072, 3200, 3328]

    def stamp(i):
        if stamps:
            A(f"s_memrealtime s[{sTm}:{sTm+1}]")
            A("s_waitcnt lgkmcnt(0)")
            A(f"s_mov_b32 s{sTs+i}, s{sTm}")

    def write_stamps(tmp, vA):
        if stamps:
            A(f"s_getreg_b32 s{sT2}, hwreg(HW_REG_XCC_ID)")
            A(f"s_lshl_b32 s{sT1}, s2, 3")
            A(f"s_add_u32 s{sT1}, s{sT1}, s{sW}")
            A(f"s_lshl_b32 s{sT1}, s{sT1}, 5")
            A(f"s_add_u32 s{sT1}, s{sT1}, {W_STAMP}")
            for i in range(6):
                A(f"v_mov_b32 v{tmp+i}, s{sTs+i}")
            A(f"v_mov_b32 v{tmp+6}, s{sT2}")
            A(f"v_mov_b32 v{tmp+7}, 0x12345678")
            A(f"v_mov_b32 v{vA}, s{sT1}")
            k.set_exec(1)
            A(f"global_store_dwordx4 v{vA}, v[{tmp}:{tmp+3}], s[{sWS}:{sWS+1}]")
            A(f"global_store_dwordx4 v{vA}, v[{tmp+4}:{tmp+7}], s[{sWS}:{sWS+1}] offset:16")
            k.set_exec(-1)

    vL, vT0, vT1 = 1, 3, 4
    A("s_cmp_ge_u32 s2, 256")
    A(f"s_cbranch_scc1 {k.lab('end')}")
    stamp(0)
    load_kernargs(k)
    A(f"v_and_b32 v{vL}, 63, v0")
    A(f"v_lshrrev_b32 v{vT0}, 6, v0")
    A(f"s_mov_b32 s{k.sMsk}, 0xffff0000")
    A(f"v_readfirstlane_b32 s{sW}, v{vT0}")
    A(f"s_lshr_b32 s{sH}, s2, 3")
    A(f"s_and_b32 s{sJ}, s2, 7")
    A(f"s_cmp_ge_u32 s{sW}, 4")
    A(f"s_cbranch_scc1 {k.lab('stream')}")
    C("================= service waves (0..3) =================")
    vOff, vXa, vXb, vOne_s = 2, 5, 6, 7
    a = 8
    k.TP = 16
    k.ntp = 2
    XR = 20
    XC = 40
    X = 44
    ACC = 84
    WR = 116
    E = 156
    QL = 164
    A("s_setprio 3")
    A(f"v_and_b32 v{vT0}, 7, v{vL}")
    A(f"v_lshrrev_b32 v{vT1}, 3, v{vL}")
    A(f"s_cmp_eq_u32 s{sW}, 3")
    A(f"s_movk_i32 s{sT0}, 3072")
    A(f"s_cselect_b32 s{sT0}, s{sT0}, 12288")
    A(f"v_mul_lo_u32 v{vOff}, v{vT0}, s{sT0}")
    A(f"v_lshl_add_u32 v{vOff}, v{vT1}, 4, v{vOff}")
    A(f"s_mul_i32 s{sOff}, s{sJ}, 80")
    A(f"s_mul_i32 s{sOff}, s{sOff}, s{sT0}")
    A(f"s_lshl_b32 s{sT3}, s{sT0}, 3")
    A(f"s_mul_i32 s{sT1}, s{sH}, 384")
    A(f"s_lshl_b32 s{sT2}, s{sW}, 7")
    A(f"s_add_u32 s{sT1}, s{sT1}, s{sT2}")
    A(f"s_mul_i32 s{sT2}, s{sH}, 96")
    A(f"s_cmp_eq_u32 s{sW}, 3")
    A(f"s_cselect_b32 s{sT1}, s{sT2}, s{sT1}")
    A(f"s_add_u32 s{sOff}, s{sOff}, s{sT1}")
    C("x addresses: b = l>>4, i = l&15")
    A(f"v_lshrrev_b32 v{vT0}, 4, v{vL}")
    A(f"v_mul_u32_u24 v{vT0}, 1280, v{vT0}")
    A(f"v_and_b32 v{vT1}, 15, v{vL}")
    A(f"v_lshl_add_u32 v{vXa}, v{vT1}, 4, v{vT0}")
    A(f"v_min_u32 v{vT1}, 9, v{vT1}")
    A(f"v_lshl_add_u32 v{vXb}, v{vT1}, 4, v{vT0}")
    A(f"s_mul_i32 s{sT2}, s{sJ}, 160")
    A(f"v_add_u32 v{vXb}, s{sT2}, v{vXb}")
    A(f"v_mov_b32 v{vOne_s}, 1")
    A("s_waitcnt lgkmcnt(0)")
    for m in range(5):
        A(f"global_load_dwordx4 v[{XR+4*m}:{XR+4*m+3}], v{vXa}, s[{sX}:{sX+1}] offset:{256*m}")
    A(f"global_load_dwordx4 v[{XC}:{XC+3}], v{vXb}, s[{sX}:{sX+1}]")
    A(f"s_cmp_eq_u32 s{sW}, 3")
    A(f"s_cselect_b32 s{rW}, s{sW1p}, s{sWQp}")
    A(f"s_cselect_b32 s{rW+1}, s{sW1p+1}, s{sWQp+1}")
    A(f"s_mov_b32 s{rW+2}, 1966080")
    A(f"s_cselect_b32 s{rW+2}, s{rW+2}, 7864320")
    A(f"s_mov_b32 s{rW+3}, 0x20000")
    for t in range(10):
        A(f"buffer_load_dwordx4 v[{WR+4*t}:{WR+4*t+3}], v{vOff}, s[{rW}:{rW+3}], s{sOff} offen nt")
        if t < 9:
            A(f"s_add_u32 s{sOff}, s{sOff}, s{sT3}")
    for i in range(32):
        A(f"v_mov_b32 v{ACC+i}, 0")
    C("LDS sync counter = 0, then barrier 1 releases the stream waves")
    A(f"v_mov_b32 v{vT0}, {L_SYNC}")
    A(f"ds_write_b32 v{vT0}, v{ACC}")
    A("s_waitcnt lgkmcnt(0)")
    A("s_barrier")
    C("LDS records: zero data (each wave its own 5 records), header M = -big")
    A(f"s_mul_i32 s{sT0}, s{sW}, 5120")
    A(f"v_lshl_add_u32 v{vT0}, v{vL}, 4, s{sT0}")
    for i in range(5):
        A(f"ds_write_b128 v{vT0}, v[{ACC}:{ACC+3}] offset:{L_REC+1024*i}")
    A(f"v_mov_b32 v{vT1}, {NEGBIG}")
    A(f"v_lshl_add_u32 v{vT0}, v{vL}, 10, s{sT0}")
    k.set_exec(0x1f)
    A(f"ds_write_b32 v{vT0}, v{vT1} offset:{L_REC+768}")
    k.set_exec(-1)
    C("---- LayerNorm statistics, 16 lanes per batch ----")
    A("s_waitcnt vmcnt(10)")
    stamp(1)
    for i in range(20):
        A(f"v_lshlrev_b32 v{X+2*i}, 16, v{XR+i}")
        A(f"v_and_b32 v{X+2*i+1}, s{k.sMsk}, v{XR+i}")
    A(f"v_pk_add_f32 v[{a}:{a+1}], v[{X}:{X+1}], v[{X+2}:{X+3}]")
    A(f"v_pk_add_f32 v[{a+2}:{a+3}], v[{X+4}:{X+5}], v[{X+6}:{X+7}]")
    for i in range(4, 20):
        d = a + 2 * (i & 1)
        A(f"v_pk_add_f32 v[{d}:{d+1}], v[{d}:{d+1}], v[{X+2*i}:{X+2*i+1}]")
    A(f"v_pk_add_f32 v[{a}:{a+1}], v[{a}:{a+1}], v[{a+2}:{a+3}]")
    A(f"v_add_f32 v{a}, v{a}, v{a+1}")
    k.butterfly("v_add_f32", [a], 4)
    A(f"v_mul_f32 v{a}, {-1.0/640.0!r}, v{a}")
    for i in range(20):
        A(f"v_pk_add_f32 v[{X+2*i}:{X+2*i+1}], v[{X+2*i}:{X+2*i+1}], v[{a}:{a+1}] op_sel_hi:[1,0]")
    A(f"v_pk_mul_f32 v[{a+2}:{a+3}], v[{X}:{X+1}], v[{X}:{X+1}]")
    A(f"v_pk_mul_f32 v[{a+4}:{a+5}], v[{X+2}:{X+3}], v[{X+2}:{X+3}]")
    for i in range(2, 20):
        d = a + 2 + 2 * (i & 1)
        A(f"v_pk_fma_f32 v[{d}:{d+1}], v[{X+2*i}:{X+2*i+1}], v[{X+2*i}:{X+2*i+1}], v[{d}:{d+1}]")
    A(f"v_pk_add_f32 v[{a+2}:{a+3}], v[{a+2}:{a+3}], v[{a+4}:{a+5}]")
    A(f"v_add_f32 v{a+2}, v{a+2}, v{a+3}")
    k.butterfly("v_add_f32", [a + 2], 4)
    A(f"v_mul_f32 v{a+2}, {1.0/640.0!r}, v{a+2}")
    k.rnd2(a, a + 2, a + 1)
    A(f"v_add_f32 v{a+2}, 0x3727c5ac, v{a+2}")
    k.rnd1(a + 2, a + 1)
    A(f"v_sqrt_f32 v{a+2}, v{a+2}")
    for i in range(4):
        A(f"v_lshlrev_b32 v{E+2*i}, 16, v{XC+i}")
        A(f"v_and_b32 v{E+2*i+1}, s{k.sMsk}, v{XC+i}")
    k.rnd1(a + 2, a + 1)
    A(f"v_rcp_f32 v{a+3}, v{a+2}")
    for i in range(8):
        A(f"v_add_f32 v{E+i}, v{E+i}, v{a}")
    for i in range(0, 8, 2):
        k.rnd2(E + i, E + i + 1, a + 1)
    for i in range(8):
        A(f"v_mul_f32 v{a+4}, v{E+i}, v{a+3}")
        A(f"v_fma_f32 v{a+5}, -v{a+4}, v{a+2}, v{E+i}")
        A(f"v_fma_f32 v{E+i}, v{a+5}, v{a+3}, v{a+4}")
    for i in range(0, 8, 2):
        k.rnd2(E + i, E + i + 1, a + 1)
    C("private xn[k_local][b]: byte w*1280 + (8i+e)*16 + 4b")
    A(f"s_mul_i32 s{sT0}, s{sW}, 1280")
    A(f"v_and_b32 v{vT1}, 15, v{vL}")
    A(f"v_min_u32 v{vT1}, 9, v{vT1}")
    A(f"v_lshl_add_u32 v{vT1}, v{vT1}, 7, s{sT0}")
    A(f"v_lshrrev_b32 v{vT0}, 4, v{vL}")
    A(f"v_lshl_add_u32 v{vT1}, v{vT0}, 2, v{vT1}")
    for i in range(8):
        A(f"ds_write_b32 v{vT1}, v{E+i} offset:{L_XN+16*i}")
    A(f"v_and_b32 v{vT0}, 7, v{vL}")
    A(f"v_lshl_add_u32 v{vT0}, v{vT0}, 4, s{sT0}")
    A("s_waitcnt lgkmcnt(0)")
    XN = X
    for t in range(10):
        A(f"ds_read_b128 v[{XN+4*t}:{XN+4*t+3}], v{vT0} offset:{L_XN+128*t}")
    for t in range(10):
        A(f"s_waitcnt vmcnt({9-t}) lgkmcnt({9-t})")
        for d in range(4):
            tt = k.unpack(WR + 4 * t + d)
            for b in range(4):
                k.pkfma(ACC + 8 * b + 2 * d, tt, XN + 4 * t + b)
    k.butterfly("v_add_f32", range(ACC, ACC + 32), 3)
    A(f"s_lshl_b32 s{sT0}, s2, 12")
    A(f"s_lshl_b32 s{sT1}, s{sW}, 8")
    A(f"s_add_u32 s{sT0}, s{sT0}, s{sT1}")
    A(f"s_add_u32 s{sT0}, s{sT0}, {W_QP}")
    A(f"v_lshrrev_b32 v{vT0}, 3, v{vL}")
    A(f"v_lshl_add_u32 v{vT0}, v{vT0}, 5, s{sT0}")
    k.set_exec(0x0101010101010101)
    for b in range(4):
        A(f"global_store_dwordx4 v{vT0}, v[{ACC+8*b}:{ACC+8*b+3}], s[{sWS}:{sWS+1}] offset:{1024*b} sc0 sc1")
        A(f"global_store_dwordx4 v{vT0}, v[{ACC+8*b+4}:{ACC+8*b+7}], s[{sWS}:{sWS+1}] offset:{1024*b+16} sc0 sc1")
    k.set_exec(-1)
    stamp(2)
    C("zero duties: queue counter of this octet (j == 0, wave 0)")
    for i in range(4):
        A(f"v_mov_b32 v{a+i}, 0")
    A(f"s_or_b32 s{sT0}, s{sJ}, s{sW}")
    A(f"s_cmp_eq_u32 s{sT0}, 0")
    A(f"s_cbranch_scc0 {k.lab('noq')}")
    A(f"s_lshl_b32 s{sT0}, s{sH}, 7")
    A(f"s_add_u32 s{sT0}, s{sT0}, {W_QCNT}")
    A(f"v_mov_b32 v{vT0}, s{sT0}")
    k.set_exec(1)
    A(f"global_store_dword v{vT0}, v{a}, s[{sWS}:{sWS+1}] sc0 sc1")
    k.set_exec(-1)
    LB("noq")
    A(f"v_mov_b32 v{vT0}, {L_SYNC}")
    A("s_waitcnt vmcnt(0)")
    k.set_exec(1)
    A(f"ds_add_rtn_u32 v{vT1}, v{vT0}, v{vOne_s}")
    A("s_waitcnt lgkmcnt(0)")
    A(f"v_readfirstlane_b32 s{sT0}, v{vT1}")
    A(f"v_mov_b32 v{vT0}, s2")
    A("s_nop 2")
    A(f"s_cmp_eq_u32 s{sT0}, 3")
    A(f"s_cbranch_scc0 {k.lab('noflag')}")
    A(f"global_store_byte v{vT0}, v{vOne_s}, s[{sDBG}:{sDBG+1}] sc0 sc1")
    LB("noflag")
    k.set_exec(-1)
    stamp(3)
    C("accumulator / final counters zero (consumed by the next launch): WGs 8..13")
    A(f"s_sub_u32 s{sT0}, s2, 8")
    A(f"s_cmp_ge_u32 s{sT0}, 6")
    A(f"s_cbranch_scc1 {k.lab('nozero')}")
    A(f"s_cmp_eq_u32 s{sT0}, 5")
    A(f"s_cselect_b32 s{sT0}, {W_FCNT >> 12}, s{sT0}")
    A(f"s_lshl_b32 s{sT0}, s{sT0}, 12")
    A(f"v_lshl_add_u32 v{vT0}, v0, 4, s{sT0}")
    A(f"global_store_dwordx4 v{vT0}, v[{a}:{a+3}], s[{sWS}:{sWS+1}]")
    LB("nozero")
    C("poll the octet's 8 flag bytes")
    A(f"s_lshl_b32 s{sT0}, s{sH}, 3")
    A(f"v_mov_b32 v{vT0}, s{sT0}")
    A(f"v_min_u32 v{vT1}, 47, v{vL}")
    A(f"s_lshl_b32 s{sT0}, s{sH}, 15")
    A(f"s_lshl_b32 s{sT1}, s{sW}, 10")
    A(f"s_add_u32 s{sT0}, s{sT0}, s{sT1}")
    A(f"s_add_u32 s{sT0}, s{sT0}, {W_QP}")
    A(f"v_lshl_add_u32 v{vXa}, v{vT1}, 4, s{sT0}")
    A(f"s_mul_i32 s{sT1}, s{sW}, 384")
    A(f"v_lshl_add_u32 v{vXb}, v{vT1}, 3, s{sT1}")
    A(f"s_mov_b32 s{sOff}, 0x100000")
    LB("poll")
    k.set_exec(1)
    A(f"global_load_dwordx2 v[{a+4}:{a+5}], v{vT0}, s[{sDBG}:{sDBG+1}] sc0 sc1")
    k.set_exec(-1)
    A("s_waitcnt vmcnt(0)")
    A(f"v_readfirstlane_b32 s{sT0}, v{a+4}")
    A(f"v_readfirstlane_b32 s{sT1}, v{a+5}")
    A("s_nop 3")
    A(f"s_and_b32 s{sT0}, s{sT0}, s{sT1}")
    A(f"s_cmp_eq_u32 s{sT0}, 0x01010101")
    A(f"s_cbranch_scc1 {k.lab('polled')}")
    A(f"s_sub_u32 s{sOff}, s{sOff}, 1")
    A(f"s_cmp_lg_u32 s{sOff}, 0")
    A(f"s_cbranch_scc1 {k.lab('poll')}")
    LB("polled")
    stamp(4)
    for j in range(8):
        if j:
            A(f"v_add_u32 v{vXa}, 4096, v{vXa}")
        A(f"global_load_dwordx4 v[{QL+4*j}:{QL+4*j+3}], v{vXa}, s[{sWS}:{sWS+1}] sc0 sc1")
    A("s_waitcnt vmcnt(0)")
    for j in range(1, 8):
        A(f"v_pk_add_f32 v[{QL}:{QL+1}], v[{QL}:{QL+1}], v[{QL+4*j}:{QL+4*j+1}]")
        A(f"v_pk_add_f32 v[{QL+2}:{QL+3}], v[{QL+2}:{QL+3}], v[{QL+4*j+2}:{QL+4*j+3}]")
    A(f"v_cvt_pk_bf16_f32 v{QL+4}, v{QL}, v{QL+1}")
    A(f"v_cvt_pk_bf16_f32 v{QL+5}, v{QL+2}, v{QL+3}")
    A(f"ds_write_b64 v{vXb}, v[{QL+4}:{QL+5}] offset:{L_QB}")
    A("s_waitcnt lgkmcnt(0)")
    A("s_barrier")
    stamp(5)
    write_stamps(QL, vT0)
    A("s_endpgm")
    LB("stream")
    C("================= stream waves (4..7) =================")
    vKoff, vOne, vM, vLs, vAl, vQa, vCa = 2, 6, 7, 8, 9, 10, 11
    vClaim = [5, 0]
    S = 12
    k.TP = 16
    k.ntp = 4
    D = 16
    QF = 24
    ACC = 36
    SL = 60
    MG = 60
    sWs = 85

    def kreg(x):
        return SL + 48 * x

    def vreg(x):
        return SL + 48 * x + 24

    def loads(base, srd, so):
        for j in range(6):
            r = base + 4 * j
            A(f"buffer_load_dwordx4 v[{r}:{r+3}], v{vKoff}, s[{srd}:{srd+3}], s{so} offen offset:{boff[j]} nt")

    def k_tile(x):
        s0 = kreg(x)
        Da, Db = D, D + 4
        for n in range(3):
            ca = "0" if n == 0 else f"v[{Da}:{Da+3}]"
            cb = "0" if n == 0 else f"v[{Db}:{Db+3}]"
            A(f"v_mfma_f32_16x16x32_bf16 v[{Da}:{Da+3}], v[{QF+4*n}:{QF+4*n+3}], v[{s0+4*n}:{s0+4*n+3}], {ca}")
            A(f"v_mfma_f32_16x16x32_bf16 v[{Db}:{Db+3}], v[{QF+4*n}:{QF+4*n+3}], v[{s0+12+4*n}:{s0+12+4*n+3}], {cb}")

    def softmax():
        for t in range(2):
            d = D + 4 * t
            A(f"v_add_f32_dpp v{S+t}, v{d+1}, v{d} row_ror:8 row_mask:0xf bank_mask:0x3")
            A(f"v_add_f32_dpp v{S+t}, v{d}, v{d+1} row_ror:8 row_mask:0xf bank_mask:0xc")
        k.rnd2(S, S + 1, vT0)
        for t in range(2):
            A(f"v_mul_f32 v{S+t}, {SCALE}, v{S+t}")
        k.rnd2(S, S + 1, vT0)
        A(f"v_max3_f32 v{vT0}, v{vM}, v{S}, v{S+1}")
        A(f"v_sub_f32 v{vAl}, v{vM}, v{vT0}")
        for t in range(2):
            A(f"v_sub_f32 v{S+t}, v{S+t}, v{vT0}")
        A(f"v_mul_f32 v{vAl}, {LOG2E}, v{vAl}")
        for t in range(2):
            A(f"v_mul_f32 v{S+t}, {LOG2E}, v{S+t}")
        A(f"v_exp_f32 v{vAl}, v{vAl}")
        for t in range(2):
            A(f"v_exp_f32 v{S+t}, v{S+t}")
        A(f"v_mov_b32 v{vM}, v{vT0}")
        A(f"v_fma_f32 v{vLs}, v{vLs}, v{vAl}, v{S}")
        for i in range(12):
            k.pkmul(ACC + 2 * i, vAl)
        A(f"v_add_f32 v{vLs}, v{vLs}, v{S+1}")

    def v_tile(x):
        s0 = vreg(x)
        items = [(s0 + 12 * half + 4 * n + d, ACC + 8 * n + 2 * d, S + half)
                 for half in range(2) for n in range(3) for d in range(4)]
        pend = []
        for it in items:
            t = k.unpack(it[0])
            pend.append((it[1], t, it[2]))
            if len(pend) > 2:
                ac, tt, m = pend.pop(0)
                k.pkfma(ac, tt, m)
        for ac, tt, m in pend:
            k.pkfma(ac, tt, m)

    def flush():
        A(f"v_mov_b32 v{vT0}, v{vM}")
        k.butterfly("v_max_f32", [vT0], 3)
        A(f"v_sub_f32 v{vAl}, v{vM}, v{vT0}")
        A(f"v_mul_f32 v{vAl}, {LOG2E}, v{vAl}")
        A(f"v_exp_f32 v{vAl}, v{vAl}")
        A(f"s_mul_i32 s{sT0}, s{sWs}, 5")
        A(f"s_add_u32 s{sT0}, s{sT0}, s{sSlot}")
        A(f"s_lshl_b32 s{sT0}, s{sT0}, 10")
        A(f"v_mul_f32 v{vLs}, v{vLs}, v{vAl}")
        for i in range(12):
            k.pkmul(ACC + 2 * i, vAl)
        k.butterfly("v_add_f32", [vLs] + list(range(ACC, ACC + 24)), 3)
        A(f"v_lshrrev_b32 v{vT1}, 3, v{vL}")
        A(f"v_lshl_add_u32 v{vT1}, v{vT1}, 5, s{sT0}")
        A(f"v_mov_b32 v{S}, v{vT0}")
        A(f"v_mov_b32 v{S+1}, v{vLs}")
        A(f"v_mov_b32 v{S+2}, s{sPairSt}")
        A(f"v_mov_b32 v{S+3}, 0")
        k.set_exec(0x0101010101010101)
        for n in range(3):
            A(f"ds_write_b128 v{vT1}, v[{ACC+8*n}:{ACC+8*n+3}] offset:{L_REC+256*n}")
            A(f"ds_write_b128 v{vT1}, v[{ACC+8*n+4}:{ACC+8*n+7}] offset:{L_REC+256*n+16}")
        k.set_exec(1)
        A(f"ds_write_b128 v{vT1}, v[{S}:{S+3}] offset:{L_REC+768}")
        k.set_exec(-1)
        A(f"s_add_u32 s{sSlot}, s{sSlot}, 1")

    def reset_state():
        A(f"v_mov_b32 v{vM}, {NEGBIG}")
        A(f"v_mov_b32 v{vLs}, 0")
        for i in range(24):
            A(f"v_mov_b32 v{ACC+i}, 0")

    def load_q():
        A(f"s_mul_i32 s{sT0}, s{sPairCur}, 384")
        A(f"v_add_u32 v{vT0}, s{sT0}, v{vQa}")
        for n in range(3):
            A(f"ds_read_b128 v[{QF+4*n}:{QF+4*n+3}], v{vT0} offset:{L_QB+128*n}")
        A(f"s_mov_b32 s{sPairSt}, s{sPairCur}")

    uid = [0]

    def check_pair(x):
        uid[0] += 1
        A(f"s_cmp_eq_u32 s{sPair[x]}, s{sPairSt}")
        A(f"s_cbranch_scc1 {k.lab(f'same{uid[0]}')}")
        A(f"s_mov_b32 s{sPairCur}, s{sPair[x]}")
        A(f"s_call_b64 s[{sRet}:{sRet+1}], {k.lab('switch')}")
        LB(f"same{uid[0]}")

    A(f"s_sub_u32 s{sWs}, s{sW}, 4")
    A(f"v_and_b32 v{vT0}, 7, v{vL}")
    A(f"v_lshrrev_b32 v{vT1}, 3, v{vL}")
    A(f"v_mul_u32_u24 v{vKoff}, 384, v{vT0}")
    A(f"v_lshl_add_u32 v{vKoff}, v{vT1}, 4, v{vKoff}")
    A(f"v_lshrrev_b32 v{vQa}, 4, v{vL}")
    A(f"v_lshlrev_b32 v{vQa}, 5, v{vQa}")
    A(f"v_and_b32 v{vT1}, 1, v{vL}")
    A(f"v_lshl_add_u32 v{vQa}, v{vT1}, 4, v{vQa}")
    A(f"v_mov_b32 v{vOne}, 1")
    A(f"s_lshl_b32 s{sT0}, s{sH}, 7")
    A(f"s_add_u32 s{sT0}, s{sT0}, {W_QCNT}")
    A(f"v_mov_b32 v{vCa}, s{sT0}")
    A(f"s_lshr_b32 s{sPairCur}, s{sJ}, 1")
    A(f"s_mov_b32 s{sPair[0]}, s{sPairCur}")
    A(f"s_mov_b32 s{sPair[1]}, s{sPairCur}")
    A(f"s_mul_i32 s{sHoff}, s{sH}, 3145728")
    A(f"s_mul_i32 s{sStat}, s{sPairCur}, 100663296")
    A(f"s_add_u32 s{sStat}, s{sStat}, s{sHoff}")
    A(f"s_and_b32 s{sT0}, s{sJ}, 1")
    A(f"s_lshl_b32 s{sT0}, s{sT0}, 2")
    A(f"s_add_u32 s{sT0}, s{sT0}, s{sWs}")
    A(f"s_mul_i32 s{sT0}, s{sT0}, {NS*6144}")
    A(f"s_add_u32 s{sStat}, s{sStat}, s{sT0}")
    A(f"s_mov_b32 s{sRem}, {NS - 2 - NPRE}")
    A(f"s_mov_b32 s{sSlot}, 0")
    A("s_waitcnt lgkmcnt(0)")
    k.srd(rK, sKp, 402653184)
    k.srd(rV, sVp, 402653184)
    A("s_barrier")
    order = [2 + i for i in range(NPRE)] + [0, 1]
    for x in order:
        loads(kreg(x), rK, sStat)
        loads(vreg(x), rV, sStat)
        A(f"s_add_u32 s{sStat}, s{sStat}, 6144")
    reset_state()
    stamp(1)
    A("s_barrier")
    load_q()
    A("s_waitcnt lgkmcnt(0)")
    stamp(2)
    for i in range(NPRE):
        rem = 12 * (NPRE + 2 - i)
        A(f"s_waitcnt vmcnt({rem-6})")
        k_tile(2 + i)
        A("s_nop 7")
        softmax()
        A(f"s_waitcnt vmcnt({rem-12})")
        v_tile(2 + i)
    LB("loop")
    for x in range(2):
        A("s_waitcnt vmcnt(18)")
        check_pair(x)
        k_tile(x)
        A(f"s_sub_u32 s{sRem}, s{sRem}, 1")
        A(f"s_cmp_gt_i32 s{sRem}, 1")
        A(f"s_cbranch_scc0 {k.lab(f'dyn{x}')}")
        A(f"s_mov_b32 s{sNxt}, s{sStat}")
        A(f"s_add_u32 s{sStat}, s{sStat}, 6144")
        LB(f"dynret{x}")
        loads(kreg(x), rK, sNxt)
        softmax()
        A("s_waitcnt vmcnt(18)")
        v_tile(x)
        loads(vreg(x), rV, sNxt)
    A(f"s_branch {k.lab('loop')}")
    for x in range(2):
        LB(f"dyn{x}")
        C("sRem (after decrement) <= 1: static if >= 0 else claimed; issue a claim for two steps ahead")
        A(f"s_mov_b32 s{sNxt}, s{sStat}")
        A(f"s_add_u32 s{sStat}, s{sStat}, 6144")
        A(f"s_cmp_ge_i32 s{sRem}, 0")
        A(f"s_cbranch_scc1 {k.lab(f'claim{x}')}")
        A(f"v_readfirstlane_b32 s{sT0}, v{vClaim[x]}")
        A("s_nop 3")
        A(f"s_cmp_ge_u32 s{sT0}, {NPOOL}")
        A(f"s_cbranch_scc1 {k.lab(f'last{x}')}")
        A(f"s_lshr_b32 s{sPair[x]}, s{sT0}, {LDP}")
        A(f"s_and_b32 s{sT0}, s{sT0}, {DP-1}")
        A(f"s_add_u32 s{sT0}, s{sT0}, {512-DP}")
        A(f"s_mul_i32 s{sT0}, s{sT0}, 6144")
        A(f"s_mul_i32 s{sNxt}, s{sPair[x]}, 100663296")
        A(f"s_add_u32 s{sNxt}, s{sNxt}, s{sHoff}")
        A(f"s_add_u32 s{sNxt}, s{sNxt}, s{sT0}")
        LB(f"claim{x}")
        k.set_exec(1)
        A(f"global_atomic_add v{vClaim[x]}, v{vCa}, v{vOne}, s[{sWS}:{sWS+1}] sc0")
        k.set_exec(-1)
        A(f"s_branch {k.lab(f'dynret{x}')}")
    LB("switch")
    flush()
    A("s_waitcnt lgkmcnt(0)")
    load_q()
    reset_state()
    A("s_waitcnt lgkmcnt(0)")
    A(f"s_setpc_b64 s[{sRet}:{sRet+1}]")
    for x in range(2):
        y = 1 - x
        LB(f"last{x}")
        stamp(3)
        A("s_nop 3")
        softmax()
        A("s_waitcnt vmcnt(12)")
        v_tile(x)
        A("s_waitcnt vmcnt(6)")
        check_pair(y)
        k_tile(y)
        A("s_nop 7")
        softmax()
        A("s_waitcnt vmcnt(0)")
        v_tile(y)
        if x == 0:
            A(f"s_branch {k.lab('fin')}")
    LB("fin")
    flush()
    A("s_waitcnt lgkmcnt(0)")
    A("s_barrier")
    stamp(4)
    C("==== WG merge: stream wave w handles pair w ====")
    A(f"v_min_u32 v{vT0}, 19, v{vL}")
    A(f"v_lshlrev_b32 v{vT0}, 10, v{vT0}")
    A(f"ds_read_b128 v[{S}:{S+3}], v{vT0} offset:{L_REC+768}")
    A(f"v_min_u32 v{vT1}, 47, v{vL}")
    A(f"v_lshlrev_b32 v{vT1}, 4, v{vT1}")
    for i in range(20):
        A(f"ds_read_b128 v[{MG+4*i}:{MG+4*i+3}], v{vT1} offset:{L_REC+1024*i}")
    A("s_waitcnt lgkmcnt(0)")
    A(f"v_cmp_eq_u32 vcc, s{sWs}, v{S+2}")
    A(f"v_cmp_gt_u32 s[{sT2}:{sT3}], 20, v{vL}")
    A(f"s_and_b64 vcc, vcc, s[{sT2}:{sT3}]")
    A(f"v_mov_b32 v{vM}, {NEGBIG}")
    A("s_nop 1")
    A(f"v_cndmask_b32 v{vM}, v{vM}, v{S}, vcc")
    k.wave_allreduce("v_max_f32", vM)
    A(f"v_sub_f32 v{vAl}, v{S}, v{vM}")
    A(f"v_mul_f32 v{vAl}, {LOG2E}, v{vAl}")
    A(f"v_exp_f32 v{vAl}, v{vAl}")
    A("s_nop 0")
    A(f"v_cndmask_b32 v{vAl}, 0, v{vAl}, vcc")
    A(f"v_mul_f32 v{vLs}, v{vAl}, v{S+1}")
    for i in range(20):
        A(f"v_readlane_b32 s{sWt+i}, v{vAl}, {i}")
    k.wave_allreduce("v_add_f32", vLs)
    for i in range(4):
        A(f"v_mov_b32 v{ACC+i}, 0")
    for i in range(20):
        k.pkfma(ACC, MG + 4 * i, sWt + i, pre="s")
        k.pkfma(ACC + 2, MG + 4 * i + 2, sWt + i, pre="s")
    A(f"v_cmp_eq_u32 vcc, 48, v{vL}")
    A("s_nop 1")
    A(f"v_cndmask_b32 v{ACC}, v{ACC}, v{vM}, vcc")
    A(f"v_cndmask_b32 v{ACC+1}, v{ACC+1}, v{vLs}, vcc")
    A(f"s_lshl_b32 s{sT0}, s{sH}, 2")
    A(f"s_add_u32 s{sT0}, s{sT0}, s{sWs}")
    A(f"s_lshl_b32 s{sT0}, s{sT0}, 3")
    A(f"s_add_u32 s{sT0}, s{sT0}, s{sJ}")
    A(f"s_lshl_b32 s{sT0}, s{sT0}, 10")
    A(f"s_add_u32 s{sT0}, s{sT0}, {W_REC}")
    A(f"v_lshl_add_u32 v{vT0}, v{vL}, 4, s{sT0}")
    k.set_exec((1 << 49) - 1)
    A(f"global_store_dwordx4 v{vT0}, v[{ACC}:{ACC+3}], s[{sWS}:{sWS+1}]")
    k.set_exec(-1)
    stamp(5)
    write_stamps(MG, vT1)
    LB("end")
    A("s_endpgm")
    return k, (256, 256), L_TOTAL


def build(stamps=False, DP=64, NPRE=2):
    k2, r2, l2 = build_main(stamps, DP, NPRE)
    k3, r3, l3 = build_k3()
    txt = HEADER
    txt += f"; @launch kernel=main_kernel grid=(256,1,1) block=(512,1,1) lds={l2}\n"
    txt += f"; @launch kernel=outp_kernel grid=(400,1,1) block=(256,1,1) lds={l3}\n"
    txt += '.amdgcn_target "amdgcn-amd-amdhsa--gfx950"\n.text\n'
    txt += k2.text() + k3.text()
    txt += '.section .rodata,"a"\n'
    txt += k2.desc(*r2) + k3.desc(*r3)
    return txt


if __name__ == "__main__":
    out = sys.argv[1] if len(sys.argv) > 1 else f"cdna_kernels/{NAME}.s"
    stamps = len(sys.argv) > 2 and sys.argv[2] == "stamps"
    DP = int(sys.argv[3]) if len(sys.argv) > 3 else 64
    NPRE = int(sys.argv[4]) if len(sys.argv) > 4 else 2
    open(out, "w").write(build(stamps, DP, NPRE))
    print("wrote", out)
```

```python
import sys
from gen_v1 import HEADER, NAME
from gen_v2 import K, load_kernargs, SCALE, LOG2E, NEGBIG
from gen_v2 import sX, sKp, sVp, sWQp, sWOp, sW1p, sB1p, sW2p, sB2p, sOUT, sDBG, sWS

W_GEN = 0x0
W_QCNT = 0x8000
W_RH = 0x10000
W_QC = 0x40000
W_RC = 0x80000
W_QP = 0x100000
W_REC = 0x200000
W_YA = 0x300000
W_YB = 0x400000
W_STAMP = 0x1000000
SPIN = 0x80000


def build_main(stamps=False, DP=64, NPRE=2, mimic=True):
    k = K(f"{NAME}_kernel")
    k.lab = lambda s: f"L_{s}"
    k.LB = lambda s: k.L.append(f"L_{s}:")
    A, LB, C = k.A, k.LB, k.C
    sT0, sT1, sT2, sT3 = k.sT
    NS = (512 - DP) // 8
    LDP = DP.bit_length() - 1
    NPOOL = 4 * DP
    sW, sH, sJ = 3, 4, 5
    sRem, sStat, sNxt = 6, 7, 12
    sPairCur, sPairSt, sSlot, sHoff = 13, 14, 42, 43
    rK, rV = 44, 48
    sPair = [52, 53]
    sRet = 54
    sWt = 56
    sTm = 76
    sTag = 78
    sSpin = 79
    rW = 80
    sOff = 84
    sWs = 85
    sTs = 96
    L_QB = 0
    L_SYNC = 1536
    L_HB = 1600
    L_OB = 2176
    L_REC = 4096
    L_XN = L_REC + 20480
    L_TOTAL = L_XN + 5120
    boff = [0, 128, 256, 3072, 3200, 3328]

    def stamp(i):
        if stamps:
            A(f"s_memrealtime s[{sTm}:{sTm+1}]")
            A("s_waitcnt lgkmcnt(0)")
            A(f"s_mov_b32 s{sTs+i}, s{sTm}")

    def write_stamps(tmp, vA):
        if stamps:
            A(f"s_getreg_b32 s{sT2}, hwreg(HW_REG_XCC_ID)")
            A(f"s_lshl_b32 s{sT1}, s2, 3")
            A(f"s_add_u32 s{sT1}, s{sT1}, s{sW}")
            A(f"s_lshl_b32 s{sT1}, s{sT1}, 5")
            A(f"s_add_u32 s{sT1}, s{sT1}, {W_STAMP}")
            for i in range(6):
                A(f"v_mov_b32 v{tmp+i}, s{sTs+i}")
            A(f"v_mov_b32 v{tmp+6}, s{sT2}")
            A(f"v_mov_b32 v{tmp+7}, 0x12345678")
            A(f"v_mov_b32 v{vA}, s{sT1}")
            k.set_exec(1)
            A(f"global_store_dwordx4 v{vA}, v[{tmp}:{tmp+3}], s[{sWS}:{sWS+1}]")
            A(f"global_store_dwordx4 v{vA}, v[{tmp+4}:{tmp+7}], s[{sWS}:{sWS+1}] offset:16")
            k.set_exec(-1)

    def xor3(d, a, b, c):
        A(f"v_bitop3_b32 v{d}, {a}, {b}, {c} bitop3:0x96")

    def make_check(d, g):
        xor3(d, f"v{g}", f"v{g+1}", f"v{g+2}")
        xor3(d, f"v{d}", f"v{g+3}", f"s{sTag}")

    def spin_tail(loop, done_fallthrough=True, sleep=None):
        if sleep is not None:
            A(f"s_sleep {sleep}")
        A(f"s_sub_u32 s{sSpin}, s{sSpin}, 1")
        A(f"s_cmp_lg_u32 s{sSpin}, 0")
        A(f"s_cbranch_scc1 L_{loop}")

    vL, vT0, vT1 = 1, 3, 4
    A("s_cmp_ge_u32 s2, 256")
    A("s_cbranch_scc1 L_end")
    stamp(0)
    load_kernargs(k)
    A(f"v_and_b32 v{vL}, 63, v0")
    A(f"v_lshrrev_b32 v{vT0}, 6, v0")
    A(f"s_mov_b32 s{k.sMsk}, 0xffff0000")
    A(f"v_readfirstlane_b32 s{sW}, v{vT0}")
    A(f"s_lshr_b32 s{sH}, s2, 3")
    A(f"s_and_b32 s{sJ}, s2, 7")
    A(f"s_cmp_ge_u32 s{sW}, 4")
    A("s_cbranch_scc1 L_stream")
    C("================= service waves (0..3) =================")
    vOff, vXa, vXb, vOne_s = 2, 5, 6, 7
    a = 8
    k.TP = 16
    k.ntp = 2
    XR = 20
    XC = 40
    X = 44
    ACC = 84
    WR = 116
    E = 156
    QL = 164
    QK = 196
    B1R = 204
    FXR = 206
    A("s_setprio 3")
    A(f"v_lshrrev_b32 v{vT0}, 3, v{vL}")
    A(f"v_and_b32 v{vT1}, 7, v{vL}")
    A(f"s_cmp_eq_u32 s{sW}, 3")
    A(f"s_movk_i32 s{sT0}, 3072")
    A(f"s_cselect_b32 s{sT0}, s{sT0}, 12288")
    A(f"v_mul_lo_u32 v{vOff}, v{vT0}, s{sT0}")
    A(f"v_lshl_add_u32 v{vOff}, v{vT1}, 4, v{vOff}")
    A(f"s_mul_i32 s{sOff}, s{sJ}, 80")
    A(f"s_mul_i32 s{sOff}, s{sOff}, s{sT0}")
    A(f"s_lshl_b32 s{sT3}, s{sT0}, 3")
    A(f"s_mul_i32 s{sT1}, s{sH}, 384")
    A(f"s_lshl_b32 s{sT2}, s{sW}, 7")
    A(f"s_add_u32 s{sT1}, s{sT1}, s{sT2}")
    A(f"s_mul_i32 s{sT2}, s{sH}, 96")
    A(f"s_cmp_eq_u32 s{sW}, 3")
    A(f"s_cselect_b32 s{sT1}, s{sT2}, s{sT1}")
    A(f"s_add_u32 s{sOff}, s{sOff}, s{sT1}")
    A(f"v_lshrrev_b32 v{vT0}, 4, v{vL}")
    A(f"v_mul_u32_u24 v{vT0}, 1280, v{vT0}")
    A(f"v_and_b32 v{vT1}, 15, v{vL}")
    A(f"v_lshl_add_u32 v{vXa}, v{vT1}, 4, v{vT0}")
    A(f"v_min_u32 v{vT1}, 9, v{vT1}")
    A(f"v_lshl_add_u32 v{vXb}, v{vT1}, 4, v{vT0}")
    A(f"s_mul_i32 s{sT1}, s{sJ}, 160")
    A(f"v_add_u32 v{vXb}, s{sT1}, v{vXb}")
    A(f"v_mov_b32 v{vOne_s}, 1")
    C("b1 address: lane 48+i -> b1[48h + 4i], clamp")
    A(f"v_subrev_u32 v{a}, 48, v{vL}")
    A(f"v_min_u32 v{a}, 11, v{a}")
    A(f"v_lshl_add_u32 v{a}, v{a}, 3, s{sT2}")
    for i in range(32):
        A(f"v_mov_b32 v{ACC+i}, 0")
    A(f"v_mov_b32 v{vT0}, {L_SYNC}")
    A(f"ds_write_b32 v{vT0}, v{ACC}")
    A("s_waitcnt lgkmcnt(0)")
    A(f"s_load_dword s{sTag}, s[{sWS}:{sWS+1}], {W_GEN}")
    for m in range(5):
        A(f"global_load_dwordx4 v[{XR+4*m}:{XR+4*m+3}], v{vXa}, s[{sX}:{sX+1}] offset:{256*m}")
    A(f"global_load_dwordx4 v[{XC}:{XC+3}], v{vXb}, s[{sX}:{sX+1}]")
    A(f"s_cmp_eq_u32 s{sW}, 3")
    A(f"s_cselect_b32 s{rW}, s{sW1p}, s{sWQp}")
    A(f"s_cselect_b32 s{rW+1}, s{sW1p+1}, s{sWQp+1}")
    A(f"s_mov_b32 s{rW+2}, 1966080")
    A(f"s_cselect_b32 s{rW+2}, s{rW+2}, 7864320")
    A(f"s_mov_b32 s{rW+3}, 0x20000")
    for t in range(10):
        A(f"buffer_load_dwordx4 v[{WR+4*t}:{WR+4*t+3}], v{vOff}, s[{rW}:{rW+3}], s{sOff} offen nt")
        if t < 9:
            A(f"s_add_u32 s{sOff}, s{sOff}, s{sT3}")
    A(f"global_load_dwordx2 v[{B1R}:{B1R+1}], v{a}, s[{sB1p}:{sB1p+1}]")
    C("queue counter of this octet = 0 (all lanes/waves of WG j==0 write the same word; others write a dummy word)")
    A(f"s_lshl_b32 s{sT0}, s{sH}, 7")
    A(f"s_lshl_b32 s{sT1}, s{sJ}, 2")
    A(f"s_add_u32 s{sT0}, s{sT0}, s{sT1}")
    A(f"s_add_u32 s{sT0}, s{sT0}, {W_QCNT}")
    A(f"v_mov_b32 v{vT0}, s{sT0}")
    A(f"s_or_b32 s{sT0}, s{sJ}, s{sW}")
    A(f"s_cmp_eq_u32 s{sT0}, 0")
    A("s_cbranch_scc0 L_noq")
    k.set_exec(1)
    A(f"global_store_dword v{vT0}, v{ACC}, s[{sWS}:{sWS+1}] sc0 sc1")
    k.set_exec(-1)
    LB("noq")
    C("barrier 1 releases the stream waves")
    A("s_barrier")
    A(f"s_mul_i32 s{sT0}, s{sW}, 5120")
    A(f"v_lshl_add_u32 v{vT0}, v{vL}, 4, s{sT0}")
    for i in range(5):
        A(f"ds_write_b128 v{vT0}, v[{ACC}:{ACC+3}] offset:{L_REC+1024*i}")
    A(f"v_mov_b32 v{vT1}, {NEGBIG}")
    A(f"v_lshl_add_u32 v{vT0}, v{vL}, 10, s{sT0}")
    k.set_exec(0x1f)
    A(f"ds_write_b32 v{vT0}, v{vT1} offset:{L_REC+768}")
    k.set_exec(-1)
    C("---- LayerNorm statistics, 16 lanes per batch ----")
    A("s_waitcnt vmcnt(11)")
    for i in range(20):
        A(f"v_lshlrev_b32 v{X+2*i}, 16, v{XR+i}")
        A(f"v_and_b32 v{X+2*i+1}, s{k.sMsk}, v{XR+i}")
    A(f"v_pk_add_f32 v[{a}:{a+1}], v[{X}:{X+1}], v[{X+2}:{X+3}]")
    A(f"v_pk_add_f32 v[{a+2}:{a+3}], v[{X+4}:{X+5}], v[{X+6}:{X+7}]")
    for i in range(4, 20):
        d = a + 2 * (i & 1)
        A(f"v_pk_add_f32 v[{d}:{d+1}], v[{d}:{d+1}], v[{X+2*i}:{X+2*i+1}]")
    A(f"v_pk_add_f32 v[{a}:{a+1}], v[{a}:{a+1}], v[{a+2}:{a+3}]")
    A(f"v_add_f32 v{a}, v{a}, v{a+1}")
    k.butterfly("v_add_f32", [a], 4)
    A(f"v_mul_f32 v{a}, {-1.0/640.0!r}, v{a}")
    for i in range(20):
        A(f"v_pk_add_f32 v[{X+2*i}:{X+2*i+1}], v[{X+2*i}:{X+2*i+1}], v[{a}:{a+1}] op_sel_hi:[1,0]")
    A(f"v_pk_mul_f32 v[{a+2}:{a+3}], v[{X}:{X+1}], v[{X}:{X+1}]")
    A(f"v_pk_mul_f32 v[{a+4}:{a+5}], v[{X+2}:{X+3}], v[{X+2}:{X+3}]")
    for i in range(2, 20):
        d = a + 2 + 2 * (i & 1)
        A(f"v_pk_fma_f32 v[{d}:{d+1}], v[{X+2*i}:{X+2*i+1}], v[{X+2*i}:{X+2*i+1}], v[{d}:{d+1}]")
    A(f"v_pk_add_f32 v[{a+2}:{a+3}], v[{a+2}:{a+3}], v[{a+4}:{a+5}]")
    A(f"v_add_f32 v{a+2}, v{a+2}, v{a+3}")
    k.butterfly("v_add_f32", [a + 2], 4)
    A(f"v_mul_f32 v{a+2}, {1.0/640.0!r}, v{a+2}")
    k.rnd2(a, a + 2, a + 1)
    A(f"v_add_f32 v{a+2}, 0x3727c5ac, v{a+2}")
    k.rnd1(a + 2, a + 1)
    A(f"v_sqrt_f32 v{a+2}, v{a+2}")
    for i in range(4):
        A(f"v_lshlrev_b32 v{E+2*i}, 16, v{XC+i}")
        A(f"v_and_b32 v{E+2*i+1}, s{k.sMsk}, v{XC+i}")
    k.rnd1(a + 2, a + 1)
    A(f"v_rcp_f32 v{a+3}, v{a+2}")
    for i in range(8):
        A(f"v_add_f32 v{E+i}, v{E+i}, v{a}")
    for i in range(0, 8, 2):
        k.rnd2(E + i, E + i + 1, a + 1)
    for i in range(8):
        A(f"v_mul_f32 v{a+4}, v{E+i}, v{a+3}")
        A(f"v_fma_f32 v{a+5}, -v{a+4}, v{a+2}, v{E+i}")
        A(f"v_fma_f32 v{E+i}, v{a+5}, v{a+3}, v{a+4}")
    for i in range(0, 8, 2):
        k.rnd2(E + i, E + i + 1, a + 1)
    A(f"s_mul_i32 s{sT0}, s{sW}, 1280")
    A(f"v_and_b32 v{vT1}, 15, v{vL}")
    A(f"v_min_u32 v{vT1}, 9, v{vT1}")
    A(f"v_lshl_add_u32 v{vT1}, v{vT1}, 7, s{sT0}")
    A(f"v_lshrrev_b32 v{vT0}, 4, v{vL}")
    A(f"v_lshl_add_u32 v{vT1}, v{vT0}, 2, v{vT1}")
    for i in range(8):
        A(f"ds_write_b32 v{vT1}, v{E+i} offset:{L_XN+16*i}")
    A(f"v_lshrrev_b32 v{vT0}, 3, v{vL}")
    A(f"v_lshl_add_u32 v{vT0}, v{vT0}, 4, s{sT0}")
    A("s_waitcnt lgkmcnt(0)")
    A(f"s_add_u32 s{sTag}, s{sTag}, 1")
    XN = X
    for t in range(10):
        A(f"ds_read_b128 v[{XN+4*t}:{XN+4*t+3}], v{vT0} offset:{L_XN+128*t}")
    C("granule index 16w + 2e + half, row b = l>>4")
    A(f"v_and_b32 v{vT0}, 7, v{vL}")
    A(f"v_bfe_u32 v{vT1}, v{vL}, 3, 1")
    A(f"v_lshl_add_u32 v{vT0}, v{vT0}, 1, v{vT1}")
    A(f"s_lshl_b32 s{sT0}, s{sW}, 4")
    A(f"v_add_u32 v{vT0}, s{sT0}, v{vT0}")
    A(f"v_lshrrev_b32 v{vT1}, 4, v{vL}")
    A(f"v_lshl_add_u32 v{vT0}, v{vT1}, 6, v{vT0}")
    A(f"s_lshl_b32 s{sT0}, s2, 12")
    A(f"s_add_u32 s{sT0}, s{sT0}, {W_QP}")
    A(f"s_lshl_b32 s{sT1}, s2, 10")
    A(f"s_add_u32 s{sT1}, s{sT1}, {W_QC}")
    A(f"v_lshl_add_u32 v{vXa}, v{vT0}, 4, s{sT0}")
    A(f"v_lshl_add_u32 v{vXb}, v{vT0}, 2, s{sT1}")
    stamp(1)
    for t in range(10):
        A(f"s_waitcnt vmcnt({10-t if t < 9 else 0}) lgkmcnt({9-t})")
        for d in range(4):
            tt = k.unpack(WR + 4 * t + d)
            for b in range(4):
                k.pkfma(ACC + 8 * b + 2 * d, tt, XN + 4 * t + b)
    C("reduce-scatter over lane bits 5,4,3")
    A("s_nop 1")
    for i in range(16):
        A(f"v_permlane32_swap_b32 v{ACC+i}, v{ACC+16+i}")
    for i in range(16):
        A(f"v_add_f32 v{ACC+i}, v{ACC+i}, v{ACC+16+i}")
    A("s_nop 1")
    for i in range(8):
        A(f"v_permlane16_swap_b32 v{ACC+i}, v{ACC+8+i}")
    for i in range(8):
        A(f"v_add_f32 v{ACC+i}, v{ACC+i}, v{ACC+8+i}")
    A("s_nop 1")
    for i in range(4):
        A(f"v_add_f32_dpp v{E+i}, v{ACC+i}, v{ACC+i} row_ror:8 row_mask:0xf bank_mask:0x3")
        A(f"v_add_f32_dpp v{E+i}, v{ACC+4+i}, v{ACC+4+i} row_ror:8 row_mask:0xf bank_mask:0xc")
    A(f"global_store_dwordx4 v{vXa}, v[{E}:{E+3}], s[{sWS}:{sWS+1}] sc0 sc1")
    make_check(E + 4, E)
    A(f"global_store_dword v{vXb}, v{E+4}, s[{sWS}:{sWS+1}] sc0 sc1")
    stamp(2)
    C("consumer addresses: row [h][j][b=w], lane l -> granule l")
    A(f"s_lshl_b32 s{sT0}, s{sH}, 15")
    A(f"s_lshl_b32 s{sT1}, s{sW}, 10")
    A(f"s_add_u32 s{sT0}, s{sT0}, s{sT1}")
    A(f"s_lshr_b32 s{sT1}, s{sT0}, 2")
    A(f"s_add_u32 s{sT0}, s{sT0}, {W_QP}")
    A(f"s_add_u32 s{sT1}, s{sT1}, {W_QC}")
    A(f"v_lshl_add_u32 v{vXa}, v{vL}, 4, s{sT0}")
    A(f"v_lshl_add_u32 v{vXb}, v{vL}, 2, s{sT1}")
    A(f"v_add_u32 v{a+6}, 4096, v{vXb}")
    A(f"s_mov_b32 s{sSpin}, {SPIN}")
    A(f"s_lshr_b32 s{sPairCur}, s{sJ}, 1")
    A(f"s_cmp_eq_u32 s{sPairCur}, s{sW}")
    A("s_cbranch_scc1 L_qpoll")
    C("non-home waves: let the stream go, poll later")
    A("s_waitcnt lgkmcnt(0)")
    A("s_barrier")
    A("s_setprio 0")
    A("s_sleep 64")
    LB("qpoll")
    A(f"v_mov_b32 v{vT0}, v{vXa}")
    for j in range(8):
        if j:
            A(f"v_add_u32 v{vT0}, 4096, v{vT0}")
        A(f"global_load_dwordx4 v[{QL+4*j}:{QL+4*j+3}], v{vT0}, s[{sWS}:{sWS+1}] sc0 sc1")
        va = vXb if j < 4 else a + 6
        A(f"global_load_dword v{QK+j}, v{va}, s[{sWS}:{sWS+1}] offset:{1024*(j%4)} sc0 sc1")

    def verify8():
        for j in range(8):
            A(f"s_waitcnt vmcnt({14-2*j})")
            xor3(a, f"v{QL+4*j}", f"v{QL+4*j+1}", f"v{QL+4*j+2}")
            xor3(a + 1, f"v{QL+4*j+3}", f"v{QK+j}", f"s{sTag}")
            if j == 0:
                A(f"v_xor_b32 v{a+2}, v{a}, v{a+1}")
            else:
                A(f"v_xor_b32 v{a}, v{a}, v{a+1}")
                A(f"v_or_b32 v{a+2}, v{a+2}, v{a}")
        A(f"v_cmp_ne_u32 vcc, 0, v{a+2}")
    verify8()
    A("s_cbranch_vccz L_qok")
    spin_tail("qpoll")
    LB("qok")
    for j in range(1, 8):
        A(f"v_pk_add_f32 v[{QL}:{QL+1}], v[{QL}:{QL+1}], v[{QL+4*j}:{QL+4*j+1}]")
        A(f"v_pk_add_f32 v[{QL+2}:{QL+3}], v[{QL+2}:{QL+3}], v[{QL+4*j+2}:{QL+4*j+3}]")
    A(f"v_cvt_pk_bf16_f32 v{QL+4}, v{QL}, v{QL+1}")
    A(f"v_cvt_pk_bf16_f32 v{QL+5}, v{QL+2}, v{QL+3}")
    A(f"s_mul_i32 s{sT1}, s{sW}, 384")
    A(f"v_lshl_add_u32 v{vT0}, v{vL}, 3, s{sT1}")
    k.set_exec((1 << 48) - 1)
    A(f"ds_write_b64 v{vT0}, v[{QL+4}:{QL+5}] offset:{L_QB}")
    k.set_exec(-1)
    A(f"s_cmp_eq_u32 s{sPairCur}, s{sW}")
    A("s_cbranch_scc0 L_nobar2")
    A("s_waitcnt lgkmcnt(0)")
    A("s_barrier")
    A("s_setprio 0")
    LB("nobar2")
    stamp(3)
    C("hid = bf16(relu(bf16(bf16(sum) + b1))^2) on lanes 48..59; lanes 60..63 write zeros")
    Hh = QL + 8
    A(f"v_lshlrev_b32 v{Hh}, 16, v{QL+4}")
    A(f"v_and_b32 v{Hh+1}, s{k.sMsk}, v{QL+4}")
    A(f"v_lshlrev_b32 v{Hh+2}, 16, v{QL+5}")
    A(f"v_and_b32 v{Hh+3}, s{k.sMsk}, v{QL+5}")
    A(f"v_lshlrev_b32 v{Hh+4}, 16, v{B1R}")
    A(f"v_and_b32 v{Hh+5}, s{k.sMsk}, v{B1R}")
    A(f"v_lshlrev_b32 v{Hh+6}, 16, v{B1R+1}")
    A(f"v_and_b32 v{Hh+7}, s{k.sMsk}, v{B1R+1}")
    for i in range(4):
        A(f"v_add_f32 v{Hh+i}, v{Hh+i}, v{Hh+4+i}")
    k.rnd2(Hh, Hh + 1, a)
    k.rnd2(Hh + 2, Hh + 3, a)
    for i in range(4):
        A(f"v_cmp_gt_f32 vcc, v{Hh+i}, 0")
        A("s_nop 1")
        A(f"v_cndmask_b32 v{Hh+i}, 0, v{Hh+i}, vcc")
    for i in range(4):
        A(f"v_mul_f32 v{Hh+i}, v{Hh+i}, v{Hh+i}")
    A(f"v_cvt_pk_bf16_f32 v{Hh+4}, v{Hh}, v{Hh+1}")
    A(f"v_cvt_pk_bf16_f32 v{Hh+5}, v{Hh+2}, v{Hh+3}")
    A(f"v_cmp_gt_u32 vcc, 60, v{vL}")
    A("s_nop 1")
    A(f"v_cndmask_b32 v{Hh+4}, 0, v{Hh+4}, vcc")
    A(f"v_cndmask_b32 v{Hh+5}, 0, v{Hh+5}, vcc")
    A(f"s_lshl_b32 s{sT1}, s{sW}, 7")
    A(f"v_lshl_add_u32 v{vT0}, v{vL}, 3, s{sT1}")
    k.set_exec(0xffff << 48)
    A(f"ds_write_b64 v{vT0}, v[{Hh+4}:{Hh+5}] offset:{L_HB-384}")
    k.set_exec(-1)
    A(f"v_mov_b32 v{vT1}, {L_SYNC}")
    A("s_waitcnt lgkmcnt(0)")
    k.set_exec(1)
    A(f"ds_add_u32 v{vT1}, v{vOne_s}")
    k.set_exec(-1)
    C("---- B fragments by 2-byte gathers.  column group cg = w (wave 0 also cg = 4) ----")
    G = 20
    FB = 116
    F2 = 212
    AF = 228
    DD = 8
    vG = vOff
    A(f"v_lshrrev_b32 v{vT0}, 4, v{vL}")
    A(f"v_mul_u32_u24 v{vG}, {8*1280}, v{vT0}")
    A(f"v_and_b32 v{vT0}, 15, v{vL}")
    A(f"v_lshl_add_u32 v{vG}, v{vT0}, 1, v{vG}")
    A(f"s_mul_i32 s{sT2}, s{sJ}, 160")
    A(f"s_lshl_b32 s{sT3}, s{sW}, 5")
    A(f"s_add_u32 s{sT2}, s{sT2}, s{sT3}")

    def gather(nkb, dst, grp, half_last):
        A(f"s_add_u32 s{sT0}, s{sOff}, {128*grp}")
        for kb in range(nkb):
            if half_last and kb == nkb - 1:
                for i in range(8):
                    A(f"v_mov_b32 v{G+8*kb+i}, 0")
                k.set_exec(0xffffffff)
            for i in range(8):
                if i % 3 == 0 and (i or kb):
                    step = 3840 if i else (32 - 6) * 1280
                    A(f"s_add_u32 s{sT0}, s{sT0}, {step}")
                A(f"buffer_load_ushort v{G+8*kb+i}, v{vG}, s[{rW}:{rW+3}], s{sT0} offen offset:{1280*(i%3)}")
            if half_last and kb == nkb - 1:
                k.set_exec(-1)
        A("s_waitcnt vmcnt(0)")
        for kb in range(nkb):
            for i in range(4):
                A(f"v_lshl_or_b32 v{dst+4*kb+i}, v{G+8*kb+2*i+1}, 16, v{G+8*kb+2*i}")

    k.srd(rW, sW2p, 1966080)
    A(f"s_mul_i32 s{sOff}, s{sH}, {48*1280}")
    A(f"s_add_u32 s{sOff}, s{sOff}, s{sT2}")
    gather(2, F2, 0, True)
    A(f"s_cmp_eq_u32 s{sW}, 0")
    A("s_cbranch_scc0 L_g1")
    gather(2, F2 + 8, 1, True)
    LB("g1")
    C("wait until all four hid rows are in LDS")
    A(f"s_mov_b32 s{sSpin}, {SPIN*16}")
    LB("rdy")
    A(f"ds_read_b32 v{vT0}, v{vT1}")
    A("s_waitcnt lgkmcnt(0)")
    A(f"v_readfirstlane_b32 s{sT0}, v{vT0}")
    A("s_nop 3")
    A(f"s_cmp_ge_u32 s{sT0}, 4")
    A("s_cbranch_scc1 L_rdyok")
    spin_tail("rdy", sleep=4)
    LB("rdyok")
    C("A fragment address: row (l&3), k offset 16*(l>>4) bytes")
    vAf = vXa
    vYa = vXb
    A(f"v_and_b32 v{vT0}, 3, v{vL}")
    A(f"v_lshrrev_b32 v{vT1}, 4, v{vL}")
    A(f"v_lshlrev_b32 v{vT1}, 4, v{vT1}")
    A(f"v_lshl_add_u32 v{vAf}, v{vT0}, 7, v{vT1}")
    for kb in range(2):
        A(f"ds_read_b128 v[{AF+4*kb}:{AF+4*kb+3}], v{vAf} offset:{L_HB+64*kb}")
    A(f"v_mul_u32_u24 v{vAf}, 384, v{vT0}")
    A(f"v_add_u32 v{vAf}, v{vAf}, v{vT1}")
    C("Y address: [j][n = 16cg + lane][h][2] x 16 B")
    A(f"s_mul_i32 s{sT0}, s{sJ}, 80")
    A(f"s_lshl_b32 s{sT1}, s{sW}, 4")
    A(f"s_add_u32 s{sT0}, s{sT0}, s{sT1}")
    A(f"s_lshl_b32 s{sT0}, s{sT0}, 10")
    A(f"s_lshl_b32 s{sT1}, s{sH}, 5")
    A(f"s_add_u32 s{sT0}, s{sT0}, s{sT1}")
    A(f"v_lshl_add_u32 v{vYa}, v{vL}, 10, s{sT0}")
    A("s_waitcnt lgkmcnt(0)")

    def proj_store(nkb, frag, fstride, ybase, tagl):
        for grp in range(2):
            if grp == 1:
                A(f"s_cmp_eq_u32 s{sW}, 0")
                A(f"s_cbranch_scc0 L_{tagl}")
            d = DD
            for kb in range(nkb):
                c = "0" if kb == 0 else f"v[{d}:{d+3}]"
                f = frag + grp * fstride + 4 * kb
                A(f"v_mfma_f32_16x16x32_bf16 v[{d}:{d+3}], v[{AF+4*kb}:{AF+4*kb+3}], v[{f}:{f+3}], {c}")
            A(f"v_add_u32 v{vT0}, {ybase + grp*65536}, v{vYa}")
            A("s_nop 6")
            o = G + 8 * grp
            A(f"v_mov_b32 v{o}, v{d}")
            A(f"v_mov_b32 v{o+1}, v{d+1}")
            xor3(o + 2, f"v{d}", f"v{d+1}", f"s{sTag}")
            A(f"v_mov_b32 v{o+4}, v{d+2}")
            A(f"v_mov_b32 v{o+5}, v{d+3}")
            xor3(o + 6, f"v{d+2}", f"v{d+3}", f"s{sTag}")
            k.set_exec(0xffff)
            A(f"global_store_dwordx4 v{vT0}, v[{o}:{o+3}], s[{sWS}:{sWS+1}] sc0 sc1")
            A(f"global_store_dwordx4 v{vT0}, v[{o+4}:{o+7}], s[{sWS}:{sWS+1}] offset:16 sc0 sc1")
            k.set_exec(-1)
        LB(tagl)
    proj_store(2, F2, 8, W_YB, "yb_done")
    A("s_waitcnt vmcnt(0)")
    C("wo fragments")
    k.srd(rW, sWOp, 7864320)
    A(f"s_mul_i32 s{sOff}, s{sH}, {192*1280}")
    A(f"s_add_u32 s{sOff}, s{sOff}, s{sT2}")
    gather(6, FB, 0, False)
    A(f"s_cmp_eq_u32 s{sW}, 0")
    A("s_cbranch_scc0 L_g2")
    gather(6, FB + 24, 1, False)
    LB("g2")
    C("---- finaliser tasks: n = 4h + w < 80 : column 80j + n ----")
    sFin = sWs
    vFa = vG
    vOa = 2 + 0
    A(f"s_lshl_b32 s{sFin}, s{sH}, 2")
    A(f"s_add_u32 s{sFin}, s{sFin}, s{sW}")
    A(f"s_mul_i32 s{sT0}, s{sJ}, 80")
    A(f"s_min_u32 s{sT1}, s{sFin}, 79")
    A(f"s_add_u32 s{sT0}, s{sT0}, s{sT1}")
    A(f"s_lshl_b32 s{sT1}, s{sT0}, 10")
    A(f"v_lshl_add_u32 v{vFa}, v{vL}, 4, s{sT1}")

    def ysum(ybase, tagl, sleep):
        A(f"v_add_u32 v{vT0}, {ybase}, v{vFa}")
        A(f"s_mov_b32 s{sSpin}, {SPIN}")
        LB(tagl)
        A(f"global_load_dwordx4 v[{G}:{G+3}], v{vT0}, s[{sWS}:{sWS+1}] sc0 sc1")
        A("s_waitcnt vmcnt(0)")
        xor3(G + 4, f"v{G}", f"v{G+1}", f"v{G+2}")
        A(f"v_cmp_ne_u32 vcc, s{sTag}, v{G+4}")
        A(f"s_cbranch_vccz L_{tagl}ok")
        spin_tail(tagl, sleep=sleep)
        LB(tagl + "ok")
        for c in ("row_ror:8", "row_ror:4", "row_ror:2"):
            A("s_nop 0")
            k.dpp("v_add_f32", G, c)
            k.dpp("v_add_f32", G + 1, c)
        for op in ("v_permlane16_swap_b32", "v_permlane32_swap_b32"):
            A(f"v_mov_b32 v{G+2}, v{G}")
            A(f"v_mov_b32 v{G+3}, v{G+1}")
            A("s_nop 0")
            A(f"{op} v{G}, v{G+2}")
            A(f"{op} v{G+1}, v{G+3}")
            A("s_nop 0")
            A(f"v_add_f32 v{G}, v{G}, v{G+2}")
            A(f"v_add_f32 v{G+1}, v{G+1}, v{G+3}")

    C("lane parity p handles batches 2p, 2p+1: out byte offset (2p*640 + col)*2")
    A(f"v_and_b32 v{vT1}, 1, v{vL}")
    A(f"v_mul_u32_u24 v{vT1}, 2560, v{vT1}")
    A(f"s_lshl_b32 s{sT0}, s{sT0}, 1")
    A(f"v_add_u32 v{FXR+5}, s{sT0}, v{vT1}")
    A(f"v_mov_b32 v{vT1}, s{sT0}")
    A(f"s_cmp_ge_u32 s{sFin}, 80")
    A("s_cbranch_scc1 L_nofin1")
    A(f"global_load_ushort v{FXR}, v{FXR+5}, s[{sX}:{sX+1}]")
    A(f"global_load_ushort v{FXR+1}, v{FXR+5}, s[{sX}:{sX+1}] offset:1280")
    A(f"global_load_ushort v{FXR+2}, v{vT1}, s[{sB2p}:{sB2p+1}]")
    ysum(W_YB, "ybp", 32)
    for i in range(3):
        A(f"v_lshlrev_b32 v{FXR+i}, 16, v{FXR+i}")
    k.rnd2(G, G + 1, G + 2)
    A(f"v_add_f32 v{FXR+3}, v{G}, v{FXR+2}")
    A(f"v_add_f32 v{FXR+4}, v{G+1}, v{FXR+2}")
    k.rnd2(FXR + 3, FXR + 4, G + 2)
    LB("nofin1")
    C("record addresses for batch w")
    vRh, vRd, vRc, vRc2 = G + 16, G + 17, G + 18, G + 19
    A(f"s_lshl_b32 s{sT0}, s{sH}, 2")
    A(f"s_add_u32 s{sT0}, s{sT0}, s{sW}")
    A(f"s_lshl_b32 s{sT1}, s{sT0}, 7")
    A(f"s_add_u32 s{sT1}, s{sT1}, {W_RH}")
    A(f"v_and_b32 v{vT0}, 7, v{vL}")
    A(f"v_lshl_add_u32 v{vRh}, v{vT0}, 4, s{sT1}")
    A(f"v_min_u32 v{vT0}, 47, v{vL}")
    A(f"s_lshl_b32 s{sT1}, s{sT0}, 13")
    A(f"s_add_u32 s{sT1}, s{sT1}, {W_REC}")
    A(f"v_lshl_add_u32 v{vRd}, v{vT0}, 4, s{sT1}")
    A(f"v_add_u32 v{vRc2}, 4096, v{vRd}")
    A(f"s_lshl_b32 s{sT1}, s{sT0}, 11")
    A(f"s_add_u32 s{sT1}, s{sT1}, {W_RC}")
    A(f"v_lshl_add_u32 v{vRc}, v{vT0}, 2, s{sT1}")
    A(f"s_mul_i32 s{sT1}, s{sW}, 384")
    A(f"v_lshl_add_u32 v{G+20}, v{vT0}, 3, s{sT1}")
    A(f"s_mov_b32 s{sSpin}, {SPIN}")
    A("s_setprio 3")
    A("s_barrier")
    stamp(4)
    HD = G + 24
    LB("hpoll")
    A(f"global_load_dwordx4 v[{HD}:{HD+3}], v{vRh}, s[{sWS}:{sWS+1}] sc0 sc1")
    A("s_waitcnt vmcnt(0)")
    xor3(HD + 4, f"v{HD}", f"v{HD+1}", f"v{HD+2}")
    A(f"v_cmp_ne_u32 vcc, s{sTag}, v{HD+4}")
    A("s_cbranch_vccz L_rpoll")
    spin_tail("hpoll", sleep=2)
    LB("rpoll")
    for j in range(8):
        va = vRd if j < 4 else vRc2
        A(f"global_load_dwordx4 v[{QL+4*j}:{QL+4*j+3}], v{va}, s[{sWS}:{sWS+1}] offset:{1024*(j%4)} sc0 sc1")
        A(f"global_load_dword v{QK+j}, v{vRc}, s[{sWS}:{sWS+1}] offset:{256*j} sc0 sc1")
    C("weights from the headers (recomputed on retry, harmless)")
    A(f"v_mov_b32 v{HD+4}, v{HD}")
    k.butterfly("v_max_f32", [HD + 4], 3)
    A(f"v_sub_f32 v{HD+5}, v{HD}, v{HD+4}")
    A(f"v_mul_f32 v{HD+5}, {LOG2E}, v{HD+5}")
    A(f"v_exp_f32 v{HD+5}, v{HD+5}")
    A("s_nop 0")
    A(f"v_mul_f32 v{HD+6}, v{HD+5}, v{HD+1}")
    k.butterfly("v_add_f32", [HD + 6], 3)
    A(f"v_rcp_f32 v{HD+7}, v{HD+6}")
    for j in range(8):
        A(f"v_readlane_b32 s{sWt+j}, v{HD+5}, {j}")
    verify8()
    A("s_cbranch_vccz L_rok")
    spin_tail("rpoll")
    LB("rok")
    O = HD + 8
    for i in range(4):
        A(f"v_mov_b32 v{O+i}, 0")
    for j in range(8):
        k.pkfma(O, QL + 4 * j, sWt + j, pre="s")
        k.pkfma(O + 2, QL + 4 * j + 2, sWt + j, pre="s")
    for i in range(4):
        A(f"v_mul_f32 v{O+4}, v{O+i}, v{HD+7}")
        A(f"v_fma_f32 v{O+5}, -v{O+4}, v{HD+6}, v{O+i}")
        A(f"v_fma_f32 v{O+i}, v{O+5}, v{HD+7}, v{O+4}")
    A(f"v_cvt_pk_bf16_f32 v{O+4}, v{O}, v{O+1}")
    A(f"v_cvt_pk_bf16_f32 v{O+5}, v{O+2}, v{O+3}")
    A(f"ds_write_b64 v{G+20}, v[{O+4}:{O+5}] offset:{L_OB}")
    A("s_waitcnt lgkmcnt(0)")
    A("s_barrier")
    for kb in range(6):
        A(f"ds_read_b128 v[{AF+4*kb}:{AF+4*kb+3}], v{vAf} offset:{L_OB+64*kb}")
    A("s_waitcnt lgkmcnt(0)")
    proj_store(6, FB, 24, W_YA, "ya_done")
    A(f"s_cmp_ge_u32 s{sFin}, 80")
    A("s_cbranch_scc1 L_svc_end")
    A("s_nop 1")
    ysum(W_YA, "yap", 1)
    k.rnd2(G, G + 1, G + 2)
    A(f"v_add_f32 v{G}, v{FXR}, v{G}")
    A(f"v_add_f32 v{G+1}, v{FXR+1}, v{G+1}")
    k.rnd2(G, G + 1, G + 2)
    A(f"v_add_f32 v{G}, v{G}, v{FXR+3}")
    A(f"v_add_f32 v{G+1}, v{G+1}, v{FXR+4}")
    A(f"v_cvt_pk_bf16_f32 v{G}, v{G}, v{G+1}")
    k.set_exec(3)
    A(f"global_store_short v{FXR+5}, v{G}, s[{sOUT}:{sOUT+1}]")
    A(f"global_store_short_d16_hi v{FXR+5}, v{G}, s[{sOUT}:{sOUT+1}] offset:1280")
    k.set_exec(-1)
    C("generation bump by (h=0, j=0, w=0)")
    A(f"s_or_b32 s{sT0}, s2, s{sW}")
    A(f"s_cmp_eq_u32 s{sT0}, 0")
    A("s_cbranch_scc0 L_svc_end")
    A(f"v_mov_b32 v{vT0}, {W_GEN}")
    A(f"v_mov_b32 v{vT1}, s{sTag}")
    k.set_exec(1)
    A(f"global_store_dword v{vT0}, v{vT1}, s[{sWS}:{sWS+1}] sc0 sc1")
    k.set_exec(-1)
    LB("svc_end")
    stamp(5)
    write_stamps(QL, vT0)
    A("s_endpgm")
    LB("stream")
    C("================= stream waves (4..7) =================")
    vKoff, vOne, vM, vLs, vAl, vQa, vCa = 2, 6, 7, 8, 9, 10, 11
    vClaim = [5, 0]
    S = 12
    k.TP = 16
    k.ntp = 4
    D = 16
    QF = 24
    ACC = 36
    SL = 60
    MG = 60

    def kreg(x):
        return SL + 48 * x

    def vreg(x):
        return SL + 48 * x + 24

    def loads(base, srd, so):
        for j in range(6):
            r = base + 4 * j
            A(f"buffer_load_dwordx4 v[{r}:{r+3}], v{vKoff}, s[{srd}:{srd+3}], s{so} offen offset:{boff[j]} nt")

    def k_tile(x):
        s0 = kreg(x)
        Da, Db = D, D + 4
        for n in range(3):
            ca = "0" if n == 0 else f"v[{Da}:{Da+3}]"
            cb = "0" if n == 0 else f"v[{Db}:{Db+3}]"
            A(f"v_mfma_f32_16x16x32_bf16 v[{Da}:{Da+3}], v[{QF+4*n}:{QF+4*n+3}], v[{s0+4*n}:{s0+4*n+3}], {ca}")
            A(f"v_mfma_f32_16x16x32_bf16 v[{Db}:{Db+3}], v[{QF+4*n}:{QF+4*n+3}], v[{s0+12+4*n}:{s0+12+4*n+3}], {cb}")

    def softmax():
        for t in range(2):
            d = D + 4 * t
            A(f"v_add_f32_dpp v{S+t}, v{d+1}, v{d} row_ror:8 row_mask:0xf bank_mask:0x3")
            A(f"v_add_f32_dpp v{S+t}, v{d}, v{d+1} row_ror:8 row_mask:0xf bank_mask:0xc")
        if mimic:
            k.rnd2(S, S + 1, vT0)
        for t in range(2):
            A(f"v_mul_f32 v{S+t}, {SCALE}, v{S+t}")
        if mimic:
            k.rnd2(S, S + 1, vT0)
        A(f"v_max3_f32 v{vT0}, v{vM}, v{S}, v{S+1}")
        A(f"v_sub_f32 v{vAl}, v{vM}, v{vT0}")
        for t in range(2):
            A(f"v_sub_f32 v{S+t}, v{S+t}, v{vT0}")
        A(f"v_mul_f32 v{vAl}, {LOG2E}, v{vAl}")
        for t in range(2):
            A(f"v_mul_f32 v{S+t}, {LOG2E}, v{S+t}")
        A(f"v_exp_f32 v{vAl}, v{vAl}")
        for t in range(2):
            A(f"v_exp_f32 v{S+t}, v{S+t}")
        A(f"v_mov_b32 v{vM}, v{vT0}")
        A(f"v_fma_f32 v{vLs}, v{vLs}, v{vAl}, v{S}")
        for i in range(12):
            k.pkmul(ACC + 2 * i, vAl)
        A(f"v_add_f32 v{vLs}, v{vLs}, v{S+1}")

    def v_tile(x):
        s0 = vreg(x)
        items = [(s0 + 12 * half + 4 * n + d, ACC + 8 * n + 2 * d, S + half)
                 for half in range(2) for n in range(3) for d in range(4)]
        pend = []
        for it in items:
            t = k.unpack(it[0])
            pend.append((it[1], t, it[2]))
            if len(pend) > 2:
                ac, tt, m = pend.pop(0)
                k.pkfma(ac, tt, m)
        for ac, tt, m in pend:
            k.pkfma(ac, tt, m)

    def flush():
        A(f"v_mov_b32 v{vT0}, v{vM}")
        k.butterfly("v_max_f32", [vT0], 3)
        A(f"v_sub_f32 v{vAl}, v{vM}, v{vT0}")
        A(f"v_mul_f32 v{vAl}, {LOG2E}, v{vAl}")
        A(f"v_exp_f32 v{vAl}, v{vAl}")
        A(f"s_mul_i32 s{sT0}, s{sWs}, 5")
        A(f"s_add_u32 s{sT0}, s{sT0}, s{sSlot}")
        A(f"s_lshl_b32 s{sT0}, s{sT0}, 10")
        A(f"v_mul_f32 v{vLs}, v{vLs}, v{vAl}")
        for i in range(12):
            k.pkmul(ACC + 2 * i, vAl)
        k.butterfly("v_add_f32", [vLs] + list(range(ACC, ACC + 24)), 3)
        A(f"v_lshrrev_b32 v{vT1}, 3, v{vL}")
        A(f"v_lshl_add_u32 v{vT1}, v{vT1}, 5, s{sT0}")
        A(f"v_mov_b32 v{S}, v{vT0}")
        A(f"v_mov_b32 v{S+1}, v{vLs}")
        A(f"v_mov_b32 v{S+2}, s{sPairSt}")
        A(f"v_mov_b32 v{S+3}, 0")
        k.set_exec(0x0101010101010101)
        for n in range(3):
            A(f"ds_write_b128 v{vT1}, v[{ACC+8*n}:{ACC+8*n+3}] offset:{L_REC+256*n}")
            A(f"ds_write_b128 v{vT1}, v[{ACC+8*n+4}:{ACC+8*n+7}] offset:{L_REC+256*n+16}")
        k.set_exec(1)
        A(f"ds_write_b128 v{vT1}, v[{S}:{S+3}] offset:{L_REC+768}")
        k.set_exec(-1)
        A(f"s_add_u32 s{sSlot}, s{sSlot}, 1")

    def reset_state():
        A(f"v_mov_b32 v{vM}, {NEGBIG}")
        A(f"v_mov_b32 v{vLs}, 0")
        for i in range(24):
            A(f"v_mov_b32 v{ACC+i}, 0")

    def load_q():
        A(f"s_mul_i32 s{sT0}, s{sPairCur}, 384")
        A(f"v_add_u32 v{vT0}, s{sT0}, v{vQa}")
        for n in range(3):
            A(f"ds_read_b128 v[{QF+4*n}:{QF+4*n+3}], v{vT0} offset:{L_QB+128*n}")
        A(f"s_mov_b32 s{sPairSt}, s{sPairCur}")

    uid = [0]

    def check_pair(x):
        uid[0] += 1
        A(f"s_cmp_eq_u32 s{sPair[x]}, s{sPairSt}")
        A(f"s_cbranch_scc1 L_same{uid[0]}")
        A(f"s_mov_b32 s{sPairCur}, s{sPair[x]}")
        A(f"s_call_b64 s[{sRet}:{sRet+1}], L_switch")
        LB(f"same{uid[0]}")

    A(f"s_sub_u32 s{sWs}, s{sW}, 4")
    A(f"v_and_b32 v{vT0}, 7, v{vL}")
    A(f"v_lshrrev_b32 v{vT1}, 3, v{vL}")
    A(f"v_mul_u32_u24 v{vKoff}, 384, v{vT0}")
    A(f"v_lshl_add_u32 v{vKoff}, v{vT1}, 4, v{vKoff}")
    A(f"v_lshrrev_b32 v{vQa}, 4, v{vL}")
    A(f"v_lshlrev_b32 v{vQa}, 5, v{vQa}")
    A(f"v_and_b32 v{vT1}, 1, v{vL}")
    A(f"v_lshl_add_u32 v{vQa}, v{vT1}, 4, v{vQa}")
    A(f"v_mov_b32 v{vOne}, 1")
    A(f"s_lshl_b32 s{sT0}, s{sH}, 7")
    A(f"s_add_u32 s{sT0}, s{sT0}, {W_QCNT}")
    A(f"v_mov_b32 v{vCa}, s{sT0}")
    A(f"s_lshr_b32 s{sPairCur}, s{sJ}, 1")
    A(f"s_mov_b32 s{sPair[0]}, s{sPairCur}")
    A(f"s_mov_b32 s{sPair[1]}, s{sPairCur}")
    A(f"s_mul_i32 s{sHoff}, s{sH}, 3145728")
    A(f"s_mul_i32 s{sStat}, s{sPairCur}, 100663296")
    A(f"s_add_u32 s{sStat}, s{sStat}, s{sHoff}")
    A(f"s_and_b32 s{sT0}, s{sJ}, 1")
    A(f"s_lshl_b32 s{sT0}, s{sT0}, 2")
    A(f"s_add_u32 s{sT0}, s{sT0}, s{sWs}")
    A(f"s_mul_i32 s{sT0}, s{sT0}, {NS*6144}")
    A(f"s_add_u32 s{sStat}, s{sStat}, s{sT0}")
    A(f"s_mov_b32 s{sRem}, {NS - 2 - NPRE}")
    A(f"s_mov_b32 s{sSlot}, 0")
    A("s_waitcnt lgkmcnt(0)")
    A(f"s_load_dword s{sTag}, s[{sWS}:{sWS+1}], {W_GEN}")
    k.srd(rK, sKp, 402653184)
    k.srd(rV, sVp, 402653184)
    A("s_barrier")
    order = [2 + i for i in range(NPRE)] + [0, 1]
    for x in order:
        loads(kreg(x), rK, sStat)
        loads(vreg(x), rV, sStat)
        A(f"s_add_u32 s{sStat}, s{sStat}, 6144")
    reset_state()
    A("s_waitcnt lgkmcnt(0)")
    A(f"s_add_u32 s{sTag}, s{sTag}, 1")
    stamp(1)
    A("s_barrier")
    load_q()
    A("s_waitcnt lgkmcnt(0)")
    stamp(2)
    for i in range(NPRE):
        rem = 12 * (NPRE + 2 - i)
        A(f"s_waitcnt vmcnt({rem-6})")
        k_tile(2 + i)
        A("s_nop 7")
        softmax()
        A(f"s_waitcnt vmcnt({rem-12})")
        v_tile(2 + i)
    LB("loop")
    for x in range(2):
        A("s_waitcnt vmcnt(18)")
        check_pair(x)
        k_tile(x)
        A(f"s_sub_u32 s{sRem}, s{sRem}, 1")
        A(f"s_cmp_gt_i32 s{sRem}, 1")
        A(f"s_cbranch_scc0 L_dyn{x}")
        A(f"s_mov_b32 s{sNxt}, s{sStat}")
        A(f"s_add_u32 s{sStat}, s{sStat}, 6144")
        LB(f"dynret{x}")
        loads(kreg(x), rK, sNxt)
        softmax()
        A("s_waitcnt vmcnt(18)")
        v_tile(x)
        loads(vreg(x), rV, sNxt)
    A("s_branch L_loop")
    for x in range(2):
        LB(f"dyn{x}")
        A(f"s_mov_b32 s{sNxt}, s{sStat}")
        A(f"s_add_u32 s{sStat}, s{sStat}, 6144")
        A(f"s_cmp_ge_i32 s{sRem}, 0")
        A(f"s_cbranch_scc1 L_claim{x}")
        A(f"v_readfirstlane_b32 s{sT0}, v{vClaim[x]}")
        A("s_nop 3")
        A(f"s_cmp_ge_u32 s{sT0}, {NPOOL}")
        A(f"s_cbranch_scc1 L_last{x}")
        A(f"s_lshr_b32 s{sPair[x]}, s{sT0}, {LDP}")
        A(f"s_and_b32 s{sT0}, s{sT0}, {DP-1}")
        A(f"s_add_u32 s{sT0}, s{sT0}, {512-DP}")
        A(f"s_mul_i32 s{sT0}, s{sT0}, 6144")
        A(f"s_mul_i32 s{sNxt}, s{sPair[x]}, 100663296")
        A(f"s_add_u32 s{sNxt}, s{sNxt}, s{sHoff}")
        A(f"s_add_u32 s{sNxt}, s{sNxt}, s{sT0}")
        LB(f"claim{x}")
        k.set_exec(1)
        A(f"global_atomic_add v{vClaim[x]}, v{vCa}, v{vOne}, s[{sWS}:{sWS+1}] sc0")
        k.set_exec(-1)
        A(f"s_branch L_dynret{x}")
    LB("switch")
    flush()
    A(f"v_mov_b32 v{vT1}, {L_SYNC}")
    A(f"s_mov_b32 s{sSpin}, {SPIN*16}")
    LB("swrdy")
    A(f"ds_read_b32 v{vT0}, v{vT1}")
    A("s_waitcnt lgkmcnt(0)")
    A(f"v_readfirstlane_b32 s{sT0}, v{vT0}")
    A("s_nop 3")
    A(f"s_cmp_ge_u32 s{sT0}, 4")
    A("s_cbranch_scc1 L_swok")
    spin_tail("swrdy", sleep=4)
    LB("swok")
    load_q()
    reset_state()
    A("s_waitcnt lgkmcnt(0)")
    A(f"s_setpc_b64 s[{sRet}:{sRet+1}]")
    for x in range(2):
        y = 1 - x
        LB(f"last{x}")
        stamp(3)
        A("s_nop 3")
        softmax()
        A("s_waitcnt vmcnt(12)")
        v_tile(x)
        A("s_waitcnt vmcnt(6)")
        check_pair(y)
        k_tile(y)
        A("s_nop 7")
        softmax()
        A("s_waitcnt vmcnt(0)")
        v_tile(y)
        if x == 0:
            A("s_branch L_fin")
    LB("fin")
    flush()
    C("addresses for the record stores (before the barrier)")
    vRa, vRb, vRhh = QF, QF + 1, QF + 2
    A(f"s_lshl_b32 s{sT0}, s{sH}, 2")
    A(f"s_add_u32 s{sT0}, s{sT0}, s{sWs}")
    A(f"s_lshl_b32 s{sT0}, s{sT0}, 3")
    A(f"s_add_u32 s{sT0}, s{sT0}, s{sJ}")
    A(f"s_lshl_b32 s{sT1}, s{sT0}, 10")
    A(f"s_add_u32 s{sT1}, s{sT1}, {W_REC}")
    A(f"v_lshl_add_u32 v{vRa}, v{vL}, 4, s{sT1}")
    A(f"s_lshl_b32 s{sT1}, s{sT0}, 8")
    A(f"s_add_u32 s{sT1}, s{sT1}, {W_RC}")
    A(f"v_lshl_add_u32 v{vRb}, v{vL}, 2, s{sT1}")
    A(f"s_lshl_b32 s{sT1}, s{sT0}, 4")
    A(f"s_add_u32 s{sT1}, s{sT1}, {W_RH}")
    A(f"v_mov_b32 v{vRhh}, s{sT1}")
    A(f"v_min_u32 v{vT0}, 19, v{vL}")
    A(f"v_lshlrev_b32 v{vT0}, 10, v{vT0}")
    A(f"v_min_u32 v{vT1}, 47, v{vL}")
    A(f"v_lshlrev_b32 v{vT1}, 4, v{vT1}")
    A("s_waitcnt lgkmcnt(0)")
    A("s_barrier")
    stamp(4)
    C("==== WG merge: stream wave w handles pair w ====")
    A(f"ds_read_b128 v[{S}:{S+3}], v{vT0} offset:{L_REC+768}")
    for i in range(14):
        A(f"ds_read_b128 v[{MG+4*i}:{MG+4*i+3}], v{vT1} offset:{L_REC+1024*i}")
    A("s_waitcnt lgkmcnt(14)")
    A(f"v_cmp_eq_u32 vcc, s{sWs}, v{S+2}")
    A(f"v_cmp_gt_u32 s[{sT2}:{sT3}], 20, v{vL}")
    A(f"s_and_b64 vcc, vcc, s[{sT2}:{sT3}]")
    A(f"v_mov_b32 v{vM}, {NEGBIG}")
    for i in range(14, 20):
        A(f"ds_read_b128 v[{MG+4*i}:{MG+4*i+3}], v{vT1} offset:{L_REC+1024*i}")
    A(f"v_cndmask_b32 v{vM}, v{vM}, v{S}, vcc")
    k.wave_allreduce("v_max_f32", vM)
    A(f"v_sub_f32 v{vAl}, v{S}, v{vM}")
    A(f"v_mul_f32 v{vAl}, {LOG2E}, v{vAl}")
    A(f"v_exp_f32 v{vAl}, v{vAl}")
    A("s_nop 0")
    A(f"v_cndmask_b32 v{vAl}, 0, v{vAl}, vcc")
    A(f"v_mul_f32 v{vLs}, v{vAl}, v{S+1}")
    for i in range(20):
        A(f"v_readlane_b32 s{sWt+i}, v{vAl}, {i}")
    for i in range(4):
        A(f"v_mov_b32 v{ACC+i}, 0")
    A("s_waitcnt lgkmcnt(0)")
    for i in range(20):
        k.pkfma(ACC, MG + 4 * i, sWt + i, pre="s")
        k.pkfma(ACC + 2, MG + 4 * i + 2, sWt + i, pre="s")
    k.set_exec((1 << 48) - 1)
    A(f"global_store_dwordx4 v{vRa}, v[{ACC}:{ACC+3}], s[{sWS}:{sWS+1}] sc0 sc1")
    make_check(ACC + 4, ACC)
    A(f"global_store_dword v{vRb}, v{ACC+4}, s[{sWS}:{sWS+1}] sc0 sc1")
    k.set_exec(-1)
    k.wave_allreduce("v_add_f32", vLs)
    A(f"v_mov_b32 v{ACC+8}, v{vM}")
    A(f"v_mov_b32 v{ACC+9}, v{vLs}")
    xor3(ACC + 10, f"v{vM}", f"v{vLs}", f"s{sTag}")
    k.set_exec(1)
    A(f"global_store_dwordx4 v{vRhh}, v[{ACC+8}:{ACC+11}], s[{sWS}:{sWS+1}] sc0 sc1")
    k.set_exec(-1)
    stamp(5)
    write_stamps(MG, vT1)
    LB("end")
    A("s_endpgm")
    return k, (256, 256), L_TOTAL


def build(stamps=False, **kw):
    k2, r2, l2 = build_main(stamps, **kw)
    txt = HEADER
    txt += f"; @launch grid=(256,1,1) block=(512,1,1) lds={l2}\n"
    txt += '.amdgcn_target "amdgcn-amd-amdhsa--gfx950"\n.text\n'
    txt += k2.text()
    txt += '.section .rodata,"a"\n'
    txt += k2.desc(*r2)
    return txt


if __name__ == "__main__":
    out = sys.argv[1] if len(sys.argv) > 1 else f"cdna_kernels/{NAME}.s"
    stamps = len(sys.argv) > 2 and sys.argv[2] == "stamps"
    kw = {}
    for a in sys.argv[3:]:
        n, v = a.split("=")
        kw[n] = int(v)
    open(out, "w").write(build(stamps, **kw))
    print("wrote", out)
```

```python
import sys
from gen_v1 import HEADER, NAME
from gen_v2 import K, load_kernargs, SCALE, LOG2E, NEGBIG
from gen_v2 import sX, sKp, sVp, sWQp, sWOp, sW1p, sB1p, sW2p, sB2p, sOUT, sDBG, sWS

W_GEN = 0x0
W_QCNT = 0x8000
W_RH = 0x500000
W_QC = 0x40000
W_RC = 0x80000
W_QP = 0x100000
W_REC = 0x200000
W_YA = 0x300000
W_YB = 0x400000
W_STAMP = 0x1000000
SPIN = 0x80000


def build_main(stamps=False, DP=64, NPRE=2, mimic=True, sys_scope=0, hstride=4, hsleep=2):
    SC = "sc0 sc1" if sys_scope else "sc1"
    k = K(f"{NAME}_kernel")
    k.lab = lambda s: f"L_{s}"
    k.LB = lambda s: k.L.append(f"L_{s}:")
    A, LB, C = k.A, k.LB, k.C
    sT0, sT1, sT2, sT3 = k.sT
    NS = (512 - DP) // 8
    LDP = DP.bit_length() - 1
    NPOOL = 4 * DP
    sW, sH, sJ = 3, 4, 5
    sRem, sStat, sNxt = 6, 7, 12
    sPairCur, sPairSt, sSlot, sHoff = 13, 14, 42, 43
    rK, rV = 44, 48
    sPair = [52, 53]
    sRet = 54
    sWt = 56
    sTm = 76
    sTag = 78
    sSpin = 79
    rW = 80
    sOff = 84
    sWs = 85
    sTs = 96
    L_QB = 0
    L_SYNC = 1536
    L_HB = 1600
    L_OB = 2176
    L_WT = 4096
    L_XN = L_WT
    L_REC = L_WT + 40960
    L_TOTAL = L_REC + 20480
    boff = [0, 128, 256, 3072, 3200, 3328]

    in_service = [True]

    def stamp(i, mode="stamps"):
        if stamps and (mode == stamps or (mode == "stamps" and (i == 0 or not in_service[0]))):
            A(f"s_memrealtime s[{sTm}:{sTm+1}]")
            A("s_waitcnt lgkmcnt(0)")
            A(f"s_mov_b32 s{sTs+i}, s{sTm}")

    def write_stamps(tmp, vA):
        if stamps:
            A(f"s_getreg_b32 s{sT2}, hwreg(HW_REG_XCC_ID)")
            A(f"s_lshl_b32 s{sT1}, s2, 3")
            A(f"s_add_u32 s{sT1}, s{sT1}, s{sW}")
            A(f"s_lshl_b32 s{sT1}, s{sT1}, 5")
            A(f"s_add_u32 s{sT1}, s{sT1}, {W_STAMP}")
            for i in range(6):
                A(f"v_mov_b32 v{tmp+i}, s{sTs+i}")
            A(f"v_mov_b32 v{tmp+6}, s{sT2}")
            A(f"v_mov_b32 v{tmp+7}, 0x12345678")
            A(f"v_mov_b32 v{vA}, s{sT1}")
            k.set_exec(1)
            A(f"global_store_dwordx4 v{vA}, v[{tmp}:{tmp+3}], s[{sWS}:{sWS+1}]")
            A(f"global_store_dwordx4 v{vA}, v[{tmp+4}:{tmp+7}], s[{sWS}:{sWS+1}] offset:16")
            k.set_exec(-1)

    def xor3(d, a, b, c):
        A(f"v_bitop3_b32 v{d}, {a}, {b}, {c} bitop3:0x96")

    def make_check(d, g):
        xor3(d, f"v{g}", f"v{g+1}", f"v{g+2}")
        xor3(d, f"v{d}", f"v{g+3}", f"s{sTag}")

    def spin_tail(loop, done_fallthrough=True, sleep=None):
        if sleep is not None:
            A(f"s_sleep {sleep}")
        A(f"s_sub_u32 s{sSpin}, s{sSpin}, 1")
        A(f"s_cmp_lg_u32 s{sSpin}, 0")
        A(f"s_cbranch_scc1 L_{loop}")

    vL, vT0, vT1 = 1, 3, 4
    A("s_cmp_ge_u32 s2, 256")
    A("s_cbranch_scc1 L_end")
    stamp(0)
    load_kernargs(k)
    A(f"v_and_b32 v{vL}, 63, v0")
    A(f"v_lshrrev_b32 v{vT0}, 6, v0")
    A(f"s_mov_b32 s{k.sMsk}, 0xffff0000")
    A(f"v_readfirstlane_b32 s{sW}, v{vT0}")
    A(f"s_lshr_b32 s{sH}, s2, 3")
    A(f"s_and_b32 s{sJ}, s2, 7")
    A(f"s_cmp_ge_u32 s{sW}, 4")
    A("s_cbranch_scc1 L_stream")
    C("================= service waves (0..3) =================")
    vOff, vXa, vXb, vOne_s = 2, 5, 6, 7
    a = 8
    k.TP = 16
    k.ntp = 2
    XR = 20
    XC = 40
    X = 44
    ACC = 84
    WR = 116
    E = 156
    QL = 164
    QK = 196
    B1R = 204
    FXR = 206
    A("s_setprio 3")
    A(f"v_lshrrev_b32 v{vT0}, 3, v{vL}")
    A(f"v_and_b32 v{vT1}, 7, v{vL}")
    A(f"s_cmp_eq_u32 s{sW}, 3")
    A(f"s_movk_i32 s{sT0}, 3072")
    A(f"s_cselect_b32 s{sT0}, s{sT0}, 12288")
    A(f"v_mul_lo_u32 v{vOff}, v{vT0}, s{sT0}")
    A(f"v_lshl_add_u32 v{vOff}, v{vT1}, 4, v{vOff}")
    A(f"s_mul_i32 s{sOff}, s{sJ}, 80")
    A(f"s_mul_i32 s{sOff}, s{sOff}, s{sT0}")
    A(f"s_lshl_b32 s{sT3}, s{sT0}, 3")
    A(f"s_mul_i32 s{sT1}, s{sH}, 384")
    A(f"s_lshl_b32 s{sT2}, s{sW}, 7")
    A(f"s_add_u32 s{sT1}, s{sT1}, s{sT2}")
    A(f"s_mul_i32 s{sT2}, s{sH}, 96")
    A(f"s_cmp_eq_u32 s{sW}, 3")
    A(f"s_cselect_b32 s{sT1}, s{sT2}, s{sT1}")
    A(f"s_add_u32 s{sOff}, s{sOff}, s{sT1}")
    A(f"v_lshrrev_b32 v{vT0}, 4, v{vL}")
    A(f"v_mul_u32_u24 v{vT0}, 1280, v{vT0}")
    A(f"v_and_b32 v{vT1}, 15, v{vL}")
    A(f"v_lshl_add_u32 v{vXa}, v{vT1}, 4, v{vT0}")
    A(f"v_min_u32 v{vT1}, 9, v{vT1}")
    A(f"v_lshl_add_u32 v{vXb}, v{vT1}, 4, v{vT0}")
    A(f"s_mul_i32 s{sT1}, s{sJ}, 160")
    A(f"v_add_u32 v{vXb}, s{sT1}, v{vXb}")
    A(f"v_mov_b32 v{vOne_s}, 1")
    C("b1 address: lane 48+i -> b1[48h + 4i], clamp")
    A(f"v_subrev_u32 v{a}, 48, v{vL}")
    A(f"v_min_u32 v{a}, 11, v{a}")
    A(f"v_lshl_add_u32 v{a}, v{a}, 3, s{sT2}")
    for i in range(32):
        A(f"v_mov_b32 v{ACC+i}, 0")
    A(f"v_mov_b32 v{vT0}, {L_SYNC}")
    A(f"ds_write_b32 v{vT0}, v{ACC}")
    A("s_waitcnt lgkmcnt(0)")
    A(f"s_load_dword s{sTag}, s[{sWS}:{sWS+1}], {W_GEN}")
    for m in range(5):
        A(f"global_load_dwordx4 v[{XR+4*m}:{XR+4*m+3}], v{vXa}, s[{sX}:{sX+1}] offset:{256*m}")
    A(f"global_load_dwordx4 v[{XC}:{XC+3}], v{vXb}, s[{sX}:{sX+1}]")
    A(f"s_cmp_eq_u32 s{sW}, 3")
    A(f"s_cselect_b32 s{rW}, s{sW1p}, s{sWQp}")
    A(f"s_cselect_b32 s{rW+1}, s{sW1p+1}, s{sWQp+1}")
    A(f"s_mov_b32 s{rW+2}, 1966080")
    A(f"s_cselect_b32 s{rW+2}, s{rW+2}, 7864320")
    A(f"s_mov_b32 s{rW+3}, 0x20000")
    for t in range(10):
        A(f"buffer_load_dwordx4 v[{WR+4*t}:{WR+4*t+3}], v{vOff}, s[{rW}:{rW+3}], s{sOff} offen nt")
        if t < 9:
            A(f"s_add_u32 s{sOff}, s{sOff}, s{sT3}")
    A(f"global_load_dwordx2 v[{B1R}:{B1R+1}], v{a}, s[{sB1p}:{sB1p+1}]")
    C("queue counter of this octet = 0 (all lanes/waves of WG j==0 write the same word; others write a dummy word)")
    A(f"s_lshl_b32 s{sT0}, s{sH}, 7")
    A(f"s_lshl_b32 s{sT1}, s{sJ}, 2")
    A(f"s_add_u32 s{sT0}, s{sT0}, s{sT1}")
    A(f"s_add_u32 s{sT0}, s{sT0}, {W_QCNT}")
    A(f"v_mov_b32 v{vT0}, s{sT0}")
    A(f"s_or_b32 s{sT0}, s{sJ}, s{sW}")
    A(f"s_cmp_eq_u32 s{sT0}, 0")
    A("s_cbranch_scc0 L_noq")
    k.set_exec(1)
    A(f"global_store_dword v{vT0}, v{ACC}, s[{sWS}:{sWS+1}] {SC}")
    k.set_exec(-1)
    LB("noq")
    C("barrier 1 releases the stream waves")
    A("s_barrier")
    A(f"s_mul_i32 s{sT0}, s{sW}, 5120")
    A(f"v_lshl_add_u32 v{vT0}, v{vL}, 4, s{sT0}")
    for i in range(5):
        A(f"ds_write_b128 v{vT0}, v[{ACC}:{ACC+3}] offset:{L_REC+1024*i}")
    A(f"v_mov_b32 v{vT1}, {NEGBIG}")
    A(f"v_lshl_add_u32 v{vT0}, v{vL}, 10, s{sT0}")
    k.set_exec(0x1f)
    A(f"ds_write_b32 v{vT0}, v{vT1} offset:{L_REC+768}")
    k.set_exec(-1)
    C("---- LayerNorm statistics, 16 lanes per batch ----")
    A("s_waitcnt vmcnt(11)")
    for i in range(20):
        A(f"v_lshlrev_b32 v{X+2*i}, 16, v{XR+i}")
        A(f"v_and_b32 v{X+2*i+1}, s{k.sMsk}, v{XR+i}")
    A(f"v_pk_add_f32 v[{a}:{a+1}], v[{X}:{X+1}], v[{X+2}:{X+3}]")
    A(f"v_pk_add_f32 v[{a+2}:{a+3}], v[{X+4}:{X+5}], v[{X+6}:{X+7}]")
    for i in range(4, 20):
        d = a + 2 * (i & 1)
        A(f"v_pk_add_f32 v[{d}:{d+1}], v[{d}:{d+1}], v[{X+2*i}:{X+2*i+1}]")
    A(f"v_pk_add_f32 v[{a}:{a+1}], v[{a}:{a+1}], v[{a+2}:{a+3}]")
    A(f"v_add_f32 v{a}, v{a}, v{a+1}")
    k.butterfly("v_add_f32", [a], 4)
    A(f"v_mul_f32 v{a}, {-1.0/640.0!r}, v{a}")
    for i in range(20):
        A(f"v_pk_add_f32 v[{X+2*i}:{X+2*i+1}], v[{X+2*i}:{X+2*i+1}], v[{a}:{a+1}] op_sel_hi:[1,0]")
    A(f"v_pk_mul_f32 v[{a+2}:{a+3}], v[{X}:{X+1}], v[{X}:{X+1}]")
    A(f"v_pk_mul_f32 v[{a+4}:{a+5}], v[{X+2}:{X+3}], v[{X+2}:{X+3}]")
    for i in range(2, 20):
        d = a + 2 + 2 * (i & 1)
        A(f"v_pk_fma_f32 v[{d}:{d+1}], v[{X+2*i}:{X+2*i+1}], v[{X+2*i}:{X+2*i+1}], v[{d}:{d+1}]")
    A(f"v_pk_add_f32 v[{a+2}:{a+3}], v[{a+2}:{a+3}], v[{a+4}:{a+5}]")
    A(f"v_add_f32 v{a+2}, v{a+2}, v{a+3}")
    k.butterfly("v_add_f32", [a + 2], 4)
    A(f"v_mul_f32 v{a+2}, {1.0/640.0!r}, v{a+2}")
    k.rnd2(a, a + 2, a + 1)
    A(f"v_add_f32 v{a+2}, 0x3727c5ac, v{a+2}")
    k.rnd1(a + 2, a + 1)
    A(f"v_sqrt_f32 v{a+2}, v{a+2}")
    for i in range(4):
        A(f"v_lshlrev_b32 v{E+2*i}, 16, v{XC+i}")
        A(f"v_and_b32 v{E+2*i+1}, s{k.sMsk}, v{XC+i}")
    k.rnd1(a + 2, a + 1)
    A(f"v_rcp_f32 v{a+3}, v{a+2}")
    for i in range(8):
        A(f"v_add_f32 v{E+i}, v{E+i}, v{a}")
    for i in range(0, 8, 2):
        k.rnd2(E + i, E + i + 1, a + 1)
    for i in range(8):
        A(f"v_mul_f32 v{a+4}, v{E+i}, v{a+3}")
        A(f"v_fma_f32 v{a+5}, -v{a+4}, v{a+2}, v{E+i}")
        A(f"v_fma_f32 v{E+i}, v{a+5}, v{a+3}, v{a+4}")
    for i in range(0, 8, 2):
        k.rnd2(E + i, E + i + 1, a + 1)
    A(f"s_mul_i32 s{sT0}, s{sW}, 1280")
    A(f"v_and_b32 v{vT1}, 15, v{vL}")
    A(f"v_min_u32 v{vT1}, 9, v{vT1}")
    A(f"v_lshl_add_u32 v{vT1}, v{vT1}, 7, s{sT0}")
    A(f"v_lshrrev_b32 v{vT0}, 4, v{vL}")
    A(f"v_lshl_add_u32 v{vT1}, v{vT0}, 2, v{vT1}")
    for i in range(8):
        A(f"ds_write_b32 v{vT1}, v{E+i} offset:{L_XN+16*i}")
    A(f"v_lshrrev_b32 v{vT0}, 3, v{vL}")
    A(f"v_lshl_add_u32 v{vT0}, v{vT0}, 4, s{sT0}")
    A("s_waitcnt lgkmcnt(0)")
    A(f"s_add_u32 s{sTag}, s{sTag}, 1")
    XN = X
    for t in range(10):
        A(f"ds_read_b128 v[{XN+4*t}:{XN+4*t+3}], v{vT0} offset:{L_XN+128*t}")
    C("granule index 16w + 2e + half, row b = l>>4")
    A(f"v_and_b32 v{vT0}, 7, v{vL}")
    A(f"v_bfe_u32 v{vT1}, v{vL}, 3, 1")
    A(f"v_lshl_add_u32 v{vT0}, v{vT0}, 1, v{vT1}")
    A(f"s_lshl_b32 s{sT0}, s{sW}, 4")
    A(f"v_add_u32 v{vT0}, s{sT0}, v{vT0}")
    A(f"v_lshrrev_b32 v{vT1}, 4, v{vL}")
    A(f"v_lshl_add_u32 v{vT0}, v{vT1}, 6, v{vT0}")
    A(f"s_lshl_b32 s{sT0}, s2, 12")
    A(f"s_add_u32 s{sT0}, s{sT0}, {W_QP}")
    A(f"s_lshl_b32 s{sT1}, s2, 10")
    A(f"s_add_u32 s{sT1}, s{sT1}, {W_QC}")
    A(f"v_lshl_add_u32 v{vXa}, v{vT0}, 4, s{sT0}")
    A(f"v_lshl_add_u32 v{vXb}, v{vT0}, 2, s{sT1}")
    stamp(1)
    for t in range(10):
        A(f"s_waitcnt vmcnt({10-t if t < 9 else 0}) lgkmcnt({9-t})")
        for d in range(4):
            tt = k.unpack(WR + 4 * t + d)
            for b in range(4):
                k.pkfma(ACC + 8 * b + 2 * d, tt, XN + 4 * t + b)
    C("reduce-scatter over lane bits 5,4,3")
    A("s_nop 1")
    for i in range(16):
        A(f"v_permlane32_swap_b32 v{ACC+i}, v{ACC+16+i}")
    for i in range(16):
        A(f"v_add_f32 v{ACC+i}, v{ACC+i}, v{ACC+16+i}")
    A("s_nop 1")
    for i in range(8):
        A(f"v_permlane16_swap_b32 v{ACC+i}, v{ACC+8+i}")
    for i in range(8):
        A(f"v_add_f32 v{ACC+i}, v{ACC+i}, v{ACC+8+i}")
    A("s_nop 1")
    for i in range(4):
        A(f"v_add_f32_dpp v{E+i}, v{ACC+i}, v{ACC+i} row_ror:8 row_mask:0xf bank_mask:0x3")
        A(f"v_add_f32_dpp v{E+i}, v{ACC+4+i}, v{ACC+4+i} row_ror:8 row_mask:0xf bank_mask:0xc")
    A(f"global_store_dwordx4 v{vXa}, v[{E}:{E+3}], s[{sWS}:{sWS+1}] {SC}")
    make_check(E + 4, E)
    A(f"global_store_dword v{vXb}, v{E+4}, s[{sWS}:{sWS+1}] {SC}")
    stamp(2)
    C("consumer addresses: row [h][j][b=w], lane l -> granule l")
    A(f"s_lshl_b32 s{sT0}, s{sH}, 15")
    A(f"s_lshl_b32 s{sT1}, s{sW}, 10")
    A(f"s_add_u32 s{sT0}, s{sT0}, s{sT1}")
    A(f"s_lshr_b32 s{sT1}, s{sT0}, 2")
    A(f"s_add_u32 s{sT0}, s{sT0}, {W_QP}")
    A(f"s_add_u32 s{sT1}, s{sT1}, {W_QC}")
    A(f"v_lshl_add_u32 v{vXa}, v{vL}, 4, s{sT0}")
    A(f"v_lshl_add_u32 v{vXb}, v{vL}, 2, s{sT1}")
    A(f"v_add_u32 v{a+6}, 4096, v{vXb}")
    A(f"s_mov_b32 s{sSpin}, {SPIN}")
    A(f"s_lshr_b32 s{sPairCur}, s{sJ}, 1")
    A(f"s_cmp_eq_u32 s{sPairCur}, s{sW}")
    A("s_cbranch_scc1 L_qpoll")
    C("non-home waves: let the stream go, poll later")
    A("s_waitcnt lgkmcnt(0)")
    A("s_barrier")
    A("s_setprio 0")
    A("s_sleep 64")
    LB("qpoll")
    A(f"v_mov_b32 v{vT0}, v{vXa}")
    for j in range(8):
        if j:
            A(f"v_add_u32 v{vT0}, 4096, v{vT0}")
        A(f"global_load_dwordx4 v[{QL+4*j}:{QL+4*j+3}], v{vT0}, s[{sWS}:{sWS+1}] {SC}")
        va = vXb if j < 4 else a + 6
        A(f"global_load_dword v{QK+j}, v{va}, s[{sWS}:{sWS+1}] offset:{1024*(j%4)} {SC}")

    def verify8():
        for j in range(8):
            A(f"s_waitcnt vmcnt({14-2*j})")
            xor3(a, f"v{QL+4*j}", f"v{QL+4*j+1}", f"v{QL+4*j+2}")
            xor3(a + 1, f"v{QL+4*j+3}", f"v{QK+j}", f"s{sTag}")
            if j == 0:
                A(f"v_xor_b32 v{a+2}, v{a}, v{a+1}")
            else:
                A(f"v_xor_b32 v{a}, v{a}, v{a+1}")
                A(f"v_or_b32 v{a+2}, v{a+2}, v{a}")
        A(f"v_cmp_ne_u32 vcc, 0, v{a+2}")
    verify8()
    A("s_cbranch_vccz L_qok")
    spin_tail("qpoll")
    LB("qok")
    for j in range(1, 8):
        A(f"v_pk_add_f32 v[{QL}:{QL+1}], v[{QL}:{QL+1}], v[{QL+4*j}:{QL+4*j+1}]")
        A(f"v_pk_add_f32 v[{QL+2}:{QL+3}], v[{QL+2}:{QL+3}], v[{QL+4*j+2}:{QL+4*j+3}]")
    A(f"v_cvt_pk_bf16_f32 v{QL+4}, v{QL}, v{QL+1}")
    A(f"v_cvt_pk_bf16_f32 v{QL+5}, v{QL+2}, v{QL+3}")
    A(f"s_mul_i32 s{sT1}, s{sW}, 384")
    A(f"v_lshl_add_u32 v{vT0}, v{vL}, 3, s{sT1}")
    k.set_exec((1 << 48) - 1)
    A(f"ds_write_b64 v{vT0}, v[{QL+4}:{QL+5}] offset:{L_QB}")
    k.set_exec(-1)
    A(f"s_cmp_eq_u32 s{sPairCur}, s{sW}")
    A("s_cbranch_scc0 L_nobar2")
    A("s_waitcnt lgkmcnt(0)")
    A("s_barrier")
    A("s_setprio 0")
    LB("nobar2")
    stamp(3)
    stamp(1, "svc")
    C("weight slices -> registers (then LDS): lane l' = min(l,59): row l'/10, chunk l'%10")
    G = 20
    FB = 116
    F2 = 212
    AF = 228
    DD = 8
    vG = vOff
    vWl = vXa
    A(f"v_min_u32 v{vWl}, 59, v{vL}")
    A(f"v_mul_u32_u24 v{vT0}, 205, v{vWl}")
    A(f"v_lshrrev_b32 v{vT0}, 11, v{vT0}")
    A(f"v_mul_u32_u24 v{vG}, {1280-160}, v{vT0}")
    A(f"v_lshl_add_u32 v{vG}, v{vWl}, 4, v{vG}")
    A(f"v_lshlrev_b32 v{vWl}, 4, v{vWl}")
    A(f"s_mul_i32 s{sT2}, s{sJ}, 160")
    k.srd(rW, sW2p, 1966080)
    A(f"s_lshl_b32 s{sT0}, s{sH}, 2")
    A(f"s_add_u32 s{sT0}, s{sT0}, s{sW}")
    A(f"s_mul_i32 s{sOff}, s{sT0}, {12*1280}")
    A(f"s_add_u32 s{sOff}, s{sOff}, s{sT2}")
    for i in range(2):
        A(f"buffer_load_dwordx4 v[{G+4*i}:{G+4*i+3}], v{vG}, s[{rW}:{rW+3}], s{sOff} offen nt")
        if i == 0:
            A(f"s_add_u32 s{sOff}, s{sOff}, {6*1280}")
    k.srd(rW, sWOp, 7864320)
    A(f"s_mul_i32 s{sOff}, s{sT0}, {48*1280}")
    A(f"s_add_u32 s{sOff}, s{sOff}, s{sT2}")
    for i in range(8):
        A(f"buffer_load_dwordx4 v[{G+8+4*i}:{G+8+4*i+3}], v{vG}, s[{rW}:{rW+3}], s{sOff} offen nt")
        if i < 7:
            A(f"s_add_u32 s{sOff}, s{sOff}, {6*1280}")
    C("hid = bf16(relu(bf16(bf16(sum) + b1))^2) on lanes 48..59; lanes 60..63 write zeros")
    Hh = QL + 8
    A(f"v_lshlrev_b32 v{Hh}, 16, v{QL+4}")
    A(f"v_and_b32 v{Hh+1}, s{k.sMsk}, v{QL+4}")
    A(f"v_lshlrev_b32 v{Hh+2}, 16, v{QL+5}")
    A(f"v_and_b32 v{Hh+3}, s{k.sMsk}, v{QL+5}")
    A(f"v_lshlrev_b32 v{Hh+4}, 16, v{B1R}")
    A(f"v_and_b32 v{Hh+5}, s{k.sMsk}, v{B1R}")
    A(f"v_lshlrev_b32 v{Hh+6}, 16, v{B1R+1}")
    A(f"v_and_b32 v{Hh+7}, s{k.sMsk}, v{B1R+1}")
    for i in range(4):
        A(f"v_add_f32 v{Hh+i}, v{Hh+i}, v{Hh+4+i}")
    k.rnd2(Hh, Hh + 1, a)
    k.rnd2(Hh + 2, Hh + 3, a)
    for i in range(4):
        A(f"v_cmp_gt_f32 vcc, v{Hh+i}, 0")
        A("s_nop 1")
        A(f"v_cndmask_b32 v{Hh+i}, 0, v{Hh+i}, vcc")
    for i in range(4):
        A(f"v_mul_f32 v{Hh+i}, v{Hh+i}, v{Hh+i}")
    A(f"v_cvt_pk_bf16_f32 v{Hh+4}, v{Hh}, v{Hh+1}")
    A(f"v_cvt_pk_bf16_f32 v{Hh+5}, v{Hh+2}, v{Hh+3}")
    A(f"v_cmp_gt_u32 vcc, 60, v{vL}")
    A("s_nop 1")
    A(f"v_cndmask_b32 v{Hh+4}, 0, v{Hh+4}, vcc")
    A(f"v_cndmask_b32 v{Hh+5}, 0, v{Hh+5}, vcc")
    A(f"s_lshl_b32 s{sT1}, s{sW}, 7")
    A(f"v_lshl_add_u32 v{vT0}, v{vL}, 3, s{sT1}")
    k.set_exec(0xffff << 48)
    A(f"ds_write_b64 v{vT0}, v[{Hh+4}:{Hh+5}] offset:{L_HB-384}")
    k.set_exec(-1)
    C("zero padding rows 240..255 (640 B per wave), stage the weight rows")
    for i in range(4):
        A(f"v_mov_b32 v{Hh+i}, 0")
    A(f"s_mul_i32 s{sT0}, s{sW}, 640")
    A(f"v_min_u32 v{vT0}, 39, v{vL}")
    A(f"v_lshl_add_u32 v{vT0}, v{vT0}, 4, s{sT0}")
    A(f"ds_write_b128 v{vT0}, v[{Hh}:{Hh+3}] offset:{L_WT+240*160}")
    A(f"s_mul_i32 s{sT0}, s{sW}, {12*160}")
    A(f"v_add_u32 v{vT0}, s{sT0}, v{vWl}")
    A(f"s_mul_i32 s{sT0}, s{sW}, {48*160}")
    A(f"v_add_u32 v{vWl}, s{sT0}, v{vWl}")
    for i in range(2):
        A(f"s_waitcnt vmcnt({9-i})")
        A(f"ds_write_b128 v{vT0}, v[{G+4*i}:{G+4*i+3}] offset:{L_WT+192*160+960*i}")
    for i in range(8):
        A(f"s_waitcnt vmcnt({7-i})")
        A(f"ds_write_b128 v{vWl}, v[{G+8+4*i}:{G+8+4*i+3}] offset:{L_WT+960*i}")
    A(f"v_mov_b32 v{vT1}, {L_SYNC}")
    A("s_waitcnt lgkmcnt(0)")
    k.set_exec(1)
    A(f"ds_add_u32 v{vT1}, v{vOne_s}")
    k.set_exec(-1)
    C("transpose-read address: (8g + r)*160 + c*8 + w*32")
    A(f"v_lshrrev_b32 v{vT0}, 4, v{vL}")
    A(f"v_lshlrev_b32 v{vT0}, 3, v{vT0}")
    A(f"v_bfe_u32 v{vG}, v{vL}, 2, 2")
    A(f"v_add_u32 v{vG}, v{vG}, v{vT0}")
    A(f"v_mul_u32_u24 v{vG}, 160, v{vG}")
    A(f"v_and_b32 v{vT0}, 3, v{vL}")
    A(f"v_lshl_add_u32 v{vG}, v{vT0}, 3, v{vG}")
    A(f"s_lshl_b32 s{sT0}, s{sW}, 5")
    A(f"s_add_u32 s{sT0}, s{sT0}, {L_WT}")
    A(f"v_add_u32 v{vG}, s{sT0}, v{vG}")

    def frags(nkb, dst, row0, grp):
        for kb in range(nkb):
            for hh in range(2):
                r = dst + 4 * kb + 2 * hh
                A(f"ds_read_b64_tr_b16 v[{r}:{r+1}], v{vG} offset:{(row0+32*kb+4*hh)*160 + 128*grp}")
    C("wait until all four hid rows are in LDS")
    A(f"s_mov_b32 s{sSpin}, {SPIN*16}")
    LB("rdy")
    A(f"ds_read_b32 v{vT0}, v{vT1}")
    A("s_waitcnt lgkmcnt(0)")
    A(f"v_readfirstlane_b32 s{sT0}, v{vT0}")
    A("s_nop 3")
    A(f"s_cmp_ge_u32 s{sT0}, 4")
    A("s_cbranch_scc1 L_rdyok")
    spin_tail("rdy", sleep=4)
    LB("rdyok")
    stamp(2, "svc")
    frags(2, F2, 192, 0)
    frags(6, FB, 0, 0)
    A(f"s_cmp_eq_u32 s{sW}, 0")
    A("s_cbranch_scc0 L_g1")
    frags(2, F2 + 8, 192, 1)
    frags(6, FB + 24, 0, 1)
    LB("g1")
    C("A fragment address: row (l&3), k offset 16*(l>>4) bytes")
    vAf = vXa
    vYa = vXb
    A(f"v_and_b32 v{vT0}, 3, v{vL}")
    A(f"v_lshrrev_b32 v{vT1}, 4, v{vL}")
    A(f"v_lshlrev_b32 v{vT1}, 4, v{vT1}")
    A(f"v_lshl_add_u32 v{vAf}, v{vT0}, 7, v{vT1}")
    for kb in range(2):
        A(f"ds_read_b128 v[{AF+4*kb}:{AF+4*kb+3}], v{vAf} offset:{L_HB+64*kb}")
    A(f"v_mul_u32_u24 v{vAf}, 384, v{vT0}")
    A(f"v_add_u32 v{vAf}, v{vAf}, v{vT1}")
    C("Y address: [j][n = 16cg + lane][h][2] x 16 B")
    A(f"s_mul_i32 s{sT0}, s{sJ}, 80")
    A(f"s_lshl_b32 s{sT1}, s{sW}, 4")
    A(f"s_add_u32 s{sT0}, s{sT0}, s{sT1}")
    A(f"s_lshl_b32 s{sT0}, s{sT0}, 10")
    A(f"s_lshl_b32 s{sT1}, s{sH}, 5")
    A(f"s_add_u32 s{sT0}, s{sT0}, s{sT1}")
    A(f"v_lshl_add_u32 v{vYa}, v{vL}, 10, s{sT0}")
    A("s_waitcnt lgkmcnt(0)")

    def proj_store(nkb, frag, fstride, ybase, tagl):
        for grp in range(2):
            if grp == 1:
                A(f"s_cmp_eq_u32 s{sW}, 0")
                A(f"s_cbranch_scc0 L_{tagl}")
            d = DD
            for kb in range(nkb):
                c = "0" if kb == 0 else f"v[{d}:{d+3}]"
                f = frag + grp * fstride + 4 * kb
                A(f"v_mfma_f32_16x16x32_bf16 v[{d}:{d+3}], v[{AF+4*kb}:{AF+4*kb+3}], v[{f}:{f+3}], {c}")
            A(f"v_add_u32 v{vT0}, {ybase + grp*65536}, v{vYa}")
            A("s_nop 6")
            o = G + 8 * grp
            A(f"v_mov_b32 v{o}, v{d}")
            A(f"v_mov_b32 v{o+1}, v{d+1}")
            xor3(o + 2, f"v{d}", f"v{d+1}", f"s{sTag}")
            A(f"v_mov_b32 v{o+4}, v{d+2}")
            A(f"v_mov_b32 v{o+5}, v{d+3}")
            xor3(o + 6, f"v{d+2}", f"v{d+3}", f"s{sTag}")
            k.set_exec(0xffff)
            A(f"global_store_dwordx4 v{vT0}, v[{o}:{o+3}], s[{sWS}:{sWS+1}] {SC}")
            A(f"global_store_dwordx4 v{vT0}, v[{o+4}:{o+7}], s[{sWS}:{sWS+1}] offset:16 {SC}")
            k.set_exec(-1)
        LB(tagl)
    proj_store(2, F2, 8, W_YB, "yb_done")
    A("s_waitcnt vmcnt(0)")
    stamp(3, "svc")
    LB("g2")
    stamp(4, "svc")
    C("---- finaliser tasks: n = 4h + w < 80 : column 80j + n ----")
    sFin = sWs
    vFa = vG
    vOa = 2 + 0
    A(f"s_lshl_b32 s{sFin}, s{sH}, 2")
    A(f"s_add_u32 s{sFin}, s{sFin}, s{sW}")
    A(f"s_mul_i32 s{sT0}, s{sJ}, 80")
    A(f"s_min_u32 s{sT1}, s{sFin}, 79")
    A(f"s_add_u32 s{sT0}, s{sT0}, s{sT1}")
    A(f"s_lshl_b32 s{sT1}, s{sT0}, 10")
    A(f"v_lshl_add_u32 v{vFa}, v{vL}, 4, s{sT1}")

    def ysum(ybase, tagl, sleep):
        A(f"v_add_u32 v{vT0}, {ybase}, v{vFa}")
        A(f"s_mov_b32 s{sSpin}, {SPIN}")
        LB(tagl)
        A(f"global_load_dwordx4 v[{G}:{G+3}], v{vT0}, s[{sWS}:{sWS+1}] {SC}")
        A("s_waitcnt vmcnt(0)")
        xor3(G + 4, f"v{G}", f"v{G+1}", f"v{G+2}")
        A(f"v_cmp_ne_u32 vcc, s{sTag}, v{G+4}")
        A(f"s_cbranch_vccz L_{tagl}ok")
        spin_tail(tagl, sleep=sleep)
        LB(tagl + "ok")
        for c in ("row_ror:8", "row_ror:4", "row_ror:2"):
            A("s_nop 0")
            k.dpp("v_add_f32", G, c)
            k.dpp("v_add_f32", G + 1, c)
        for op in ("v_permlane16_swap_b32", "v_permlane32_swap_b32"):
            A(f"v_mov_b32 v{G+2}, v{G}")
            A(f"v_mov_b32 v{G+3}, v{G+1}")
            A("s_nop 0")
            A(f"{op} v{G}, v{G+2}")
            A(f"{op} v{G+1}, v{G+3}")
            A("s_nop 0")
            A(f"v_add_f32 v{G}, v{G}, v{G+2}")
            A(f"v_add_f32 v{G+1}, v{G+1}, v{G+3}")

    C("lane parity p handles batches 2p, 2p+1: out byte offset (2p*640 + col)*2")
    A(f"v_and_b32 v{vT1}, 1, v{vL}")
    A(f"v_mul_u32_u24 v{vT1}, 2560, v{vT1}")
    A(f"s_lshl_b32 s{sT0}, s{sT0}, 1")
    A(f"v_add_u32 v{FXR+5}, s{sT0}, v{vT1}")
    A(f"v_mov_b32 v{vT1}, s{sT0}")
    A(f"s_cmp_ge_u32 s{sFin}, 80")
    A("s_cbranch_scc1 L_nofin1")
    A(f"global_load_ushort v{FXR}, v{FXR+5}, s[{sX}:{sX+1}]")
    A(f"global_load_ushort v{FXR+1}, v{FXR+5}, s[{sX}:{sX+1}] offset:1280")
    A(f"global_load_ushort v{FXR+2}, v{vT1}, s[{sB2p}:{sB2p+1}]")
    ysum(W_YB, "ybp", 32)
    for i in range(3):
        A(f"v_lshlrev_b32 v{FXR+i}, 16, v{FXR+i}")
    k.rnd2(G, G + 1, G + 2)
    A(f"v_add_f32 v{FXR+3}, v{G}, v{FXR+2}")
    A(f"v_add_f32 v{FXR+4}, v{G+1}, v{FXR+2}")
    k.rnd2(FXR + 3, FXR + 4, G + 2)
    LB("nofin1")
    stamp(5, "svc")
    C("record addresses for batch w")
    vRh, vRd, vRc, vRc2 = G + 16, G + 17, G + 18, G + 19
    A(f"s_lshl_b32 s{sT0}, s{sH}, 2")
    A(f"s_add_u32 s{sT0}, s{sT0}, s{sW}")
    A(f"s_lshl_b32 s{sT1}, s{sT0}, {3+hstride}")
    A(f"s_add_u32 s{sT1}, s{sT1}, {W_RH}")
    A(f"v_and_b32 v{vT0}, 7, v{vL}")
    A(f"v_lshl_add_u32 v{vRh}, v{vT0}, {hstride}, s{sT1}")
    A(f"v_min_u32 v{vT0}, 47, v{vL}")
    A(f"s_lshl_b32 s{sT1}, s{sT0}, 13")
    A(f"s_add_u32 s{sT1}, s{sT1}, {W_REC}")
    A(f"v_lshl_add_u32 v{vRd}, v{vT0}, 4, s{sT1}")
    A(f"v_add_u32 v{vRc2}, 4096, v{vRd}")
    A(f"s_lshl_b32 s{sT1}, s{sT0}, 11")
    A(f"s_add_u32 s{sT1}, s{sT1}, {W_RC}")
    A(f"v_lshl_add_u32 v{vRc}, v{vT0}, 2, s{sT1}")
    A(f"s_mul_i32 s{sT1}, s{sW}, 384")
    A(f"v_lshl_add_u32 v{G+20}, v{vT0}, 3, s{sT1}")
    A(f"s_mov_b32 s{sSpin}, {SPIN}")
    A("s_setprio 3")
    A("s_barrier")
    stamp(4)
    stamp(1, "epi")
    HD = G + 24
    LB("hpoll")
    A(f"global_load_dwordx4 v[{HD}:{HD+3}], v{vRh}, s[{sWS}:{sWS+1}] {SC}")
    A("s_waitcnt vmcnt(0)")
    xor3(HD + 4, f"v{HD}", f"v{HD+1}", f"v{HD+2}")
    A(f"v_cmp_ne_u32 vcc, s{sTag}, v{HD+4}")
    A("s_cbranch_vccz L_rpoll")
    spin_tail("hpoll", sleep=hsleep)
    LB("rpoll")
    stamp(2, "epi")
    for j in range(8):
        va = vRd if j < 4 else vRc2
        A(f"global_load_dwordx4 v[{QL+4*j}:{QL+4*j+3}], v{va}, s[{sWS}:{sWS+1}] offset:{1024*(j%4)} {SC}")
        A(f"global_load_dword v{QK+j}, v{vRc}, s[{sWS}:{sWS+1}] offset:{256*j} {SC}")
    C("weights from the headers (recomputed on retry, harmless)")
    A(f"v_mov_b32 v{HD+4}, v{HD}")
    k.butterfly("v_max_f32", [HD + 4], 3)
    A(f"v_sub_f32 v{HD+5}, v{HD}, v{HD+4}")
    A(f"v_mul_f32 v{HD+5}, {LOG2E}, v{HD+5}")
    A(f"v_exp_f32 v{HD+5}, v{HD+5}")
    A("s_nop 0")
    A(f"v_mul_f32 v{HD+6}, v{HD+5}, v{HD+1}")
    k.butterfly("v_add_f32", [HD + 6], 3)
    A(f"v_rcp_f32 v{HD+7}, v{HD+6}")
    for j in range(8):
        A(f"v_readlane_b32 s{sWt+j}, v{HD+5}, {j}")
    verify8()
    A("s_cbranch_vccz L_rok")
    spin_tail("rpoll")
    LB("rok")
    stamp(3, "epi")
    O = HD + 8
    for i in range(4):
        A(f"v_mov_b32 v{O+i}, 0")
    for j in range(8):
        k.pkfma(O, QL + 4 * j, sWt + j, pre="s")
        k.pkfma(O + 2, QL + 4 * j + 2, sWt + j, pre="s")
    for i in range(4):
        A(f"v_mul_f32 v{O+4}, v{O+i}, v{HD+7}")
        A(f"v_fma_f32 v{O+5}, -v{O+4}, v{HD+6}, v{O+i}")
        A(f"v_fma_f32 v{O+i}, v{O+5}, v{HD+7}, v{O+4}")
    A(f"v_cvt_pk_bf16_f32 v{O+4}, v{O}, v{O+1}")
    A(f"v_cvt_pk_bf16_f32 v{O+5}, v{O+2}, v{O+3}")
    A(f"ds_write_b64 v{G+20}, v[{O+4}:{O+5}] offset:{L_OB}")
    A("s_waitcnt lgkmcnt(0)")
    A("s_barrier")
    for kb in range(6):
        A(f"ds_read_b128 v[{AF+4*kb}:{AF+4*kb+3}], v{vAf} offset:{L_OB+64*kb}")
    A("s_waitcnt lgkmcnt(0)")
    proj_store(6, FB, 24, W_YA, "ya_done")
    stamp(4, "epi")
    A(f"s_cmp_ge_u32 s{sFin}, 80")
    A("s_cbranch_scc1 L_svc_end")
    A("s_nop 1")
    ysum(W_YA, "yap", 1)
    k.rnd2(G, G + 1, G + 2)
    A(f"v_add_f32 v{G}, v{FXR}, v{G}")
    A(f"v_add_f32 v{G+1}, v{FXR+1}, v{G+1}")
    k.rnd2(G, G + 1, G + 2)
    A(f"v_add_f32 v{G}, v{G}, v{FXR+3}")
    A(f"v_add_f32 v{G+1}, v{G+1}, v{FXR+4}")
    A(f"v_cvt_pk_bf16_f32 v{G}, v{G}, v{G+1}")
    k.set_exec(3)
    A(f"global_store_short v{FXR+5}, v{G}, s[{sOUT}:{sOUT+1}]")
    A(f"global_store_short_d16_hi v{FXR+5}, v{G}, s[{sOUT}:{sOUT+1}] offset:1280")
    k.set_exec(-1)
    C("generation bump by (h=0, j=0, w=0)")
    A(f"s_or_b32 s{sT0}, s2, s{sW}")
    A(f"s_cmp_eq_u32 s{sT0}, 0")
    A("s_cbranch_scc0 L_svc_end")
    A(f"v_mov_b32 v{vT0}, {W_GEN}")
    A(f"v_mov_b32 v{vT1}, s{sTag}")
    k.set_exec(1)
    A(f"global_store_dword v{vT0}, v{vT1}, s[{sWS}:{sWS+1}] {SC}")
    k.set_exec(-1)
    LB("svc_end")
    stamp(5)
    stamp(5, "epi")
    write_stamps(QL, vT0)
    A("s_endpgm")
    LB("stream")
    in_service[0] = False
    C("================= stream waves (4..7) =================")
    vKoff, vOne, vM, vLs, vAl, vQa, vCa = 2, 6, 7, 8, 9, 10, 11
    vClaim = [5, 0]
    S = 12
    k.TP = 16
    k.ntp = 4
    D = 16
    QF = 24
    ACC = 36
    SL = 60
    MG = 60

    def kreg(x):
        return SL + 48 * x

    def vreg(x):
        return SL + 48 * x + 24

    def loads(base, srd, so):
        for j in range(6):
            r = base + 4 * j
            A(f"buffer_load_dwordx4 v[{r}:{r+3}], v{vKoff}, s[{srd}:{srd+3}], s{so} offen offset:{boff[j]} nt")

    def k_tile(x):
        s0 = kreg(x)
        Da, Db = D, D + 4
        for n in range(3):
            ca = "0" if n == 0 else f"v[{Da}:{Da+3}]"
            cb = "0" if n == 0 else f"v[{Db}:{Db+3}]"
            A(f"v_mfma_f32_16x16x32_bf16 v[{Da}:{Da+3}], v[{QF+4*n}:{QF+4*n+3}], v[{s0+4*n}:{s0+4*n+3}], {ca}")
            A(f"v_mfma_f32_16x16x32_bf16 v[{Db}:{Db+3}], v[{QF+4*n}:{QF+4*n+3}], v[{s0+12+4*n}:{s0+12+4*n+3}], {cb}")

    def softmax():
        for t in range(2):
            d = D + 4 * t
            A(f"v_add_f32_dpp v{S+t}, v{d+1}, v{d} row_ror:8 row_mask:0xf bank_mask:0x3")
            A(f"v_add_f32_dpp v{S+t}, v{d}, v{d+1} row_ror:8 row_mask:0xf bank_mask:0xc")
        if mimic:
            k.rnd2(S, S + 1, vT0)
        for t in range(2):
            A(f"v_mul_f32 v{S+t}, {SCALE}, v{S+t}")
        if mimic:
            k.rnd2(S, S + 1, vT0)
        A(f"v_max3_f32 v{vT0}, v{vM}, v{S}, v{S+1}")
        A(f"v_sub_f32 v{vAl}, v{vM}, v{vT0}")
        for t in range(2):
            A(f"v_sub_f32 v{S+t}, v{S+t}, v{vT0}")
        A(f"v_mul_f32 v{vAl}, {LOG2E}, v{vAl}")
        for t in range(2):
            A(f"v_mul_f32 v{S+t}, {LOG2E}, v{S+t}")
        A(f"v_exp_f32 v{vAl}, v{vAl}")
        for t in range(2):
            A(f"v_exp_f32 v{S+t}, v{S+t}")
        A(f"v_mov_b32 v{vM}, v{vT0}")
        A(f"v_fma_f32 v{vLs}, v{vLs}, v{vAl}, v{S}")
        for i in range(12):
            k.pkmul(ACC + 2 * i, vAl)
        A(f"v_add_f32 v{vLs}, v{vLs}, v{S+1}")

    def v_tile(x):
        s0 = vreg(x)
        items = [(s0 + 12 * half + 4 * n + d, ACC + 8 * n + 2 * d, S + half)
                 for half in range(2) for n in range(3) for d in range(4)]
        pend = []
        for it in items:
            t = k.unpack(it[0])
            pend.append((it[1], t, it[2]))
            if len(pend) > 2:
                ac, tt, m = pend.pop(0)
                k.pkfma(ac, tt, m)
        for ac, tt, m in pend:
            k.pkfma(ac, tt, m)

    def flush():
        A(f"v_mov_b32 v{vT0}, v{vM}")
        k.butterfly("v_max_f32", [vT0], 3)
        A(f"v_sub_f32 v{vAl}, v{vM}, v{vT0}")
        A(f"v_mul_f32 v{vAl}, {LOG2E}, v{vAl}")
        A(f"v_exp_f32 v{vAl}, v{vAl}")
        A(f"s_mul_i32 s{sT0}, s{sWs}, 5")
        A(f"s_add_u32 s{sT0}, s{sT0}, s{sSlot}")
        A(f"s_lshl_b32 s{sT0}, s{sT0}, 10")
        A(f"v_mul_f32 v{vLs}, v{vLs}, v{vAl}")
        for i in range(12):
            k.pkmul(ACC + 2 * i, vAl)
        k.butterfly("v_add_f32", [vLs] + list(range(ACC, ACC + 24)), 3)
        A(f"v_lshrrev_b32 v{vT1}, 3, v{vL}")
        A(f"v_lshl_add_u32 v{vT1}, v{vT1}, 5, s{sT0}")
        A(f"v_mov_b32 v{S}, v{vT0}")
        A(f"v_mov_b32 v{S+1}, v{vLs}")
        A(f"v_mov_b32 v{S+2}, s{sPairSt}")
        A(f"v_mov_b32 v{S+3}, 0")
        k.set_exec(0x0101010101010101)
        for n in range(3):
            A(f"ds_write_b128 v{vT1}, v[{ACC+8*n}:{ACC+8*n+3}] offset:{L_REC+256*n}")
            A(f"ds_write_b128 v{vT1}, v[{ACC+8*n+4}:{ACC+8*n+7}] offset:{L_REC+256*n+16}")
        k.set_exec(1)
        A(f"ds_write_b128 v{vT1}, v[{S}:{S+3}] offset:{L_REC+768}")
        k.set_exec(-1)
        A(f"s_add_u32 s{sSlot}, s{sSlot}, 1")

    def reset_state():
        A(f"v_mov_b32 v{vM}, {NEGBIG}")
        A(f"v_mov_b32 v{vLs}, 0")
        for i in range(24):
            A(f"v_mov_b32 v{ACC+i}, 0")

    def load_q():
        A(f"s_mul_i32 s{sT0}, s{sPairCur}, 384")
        A(f"v_add_u32 v{vT0}, s{sT0}, v{vQa}")
        for n in range(3):
            A(f"ds_read_b128 v[{QF+4*n}:{QF+4*n+3}], v{vT0} offset:{L_QB+128*n}")
        A(f"s_mov_b32 s{sPairSt}, s{sPairCur}")

    uid = [0]

    def check_pair(x):
        uid[0] += 1
        A(f"s_cmp_eq_u32 s{sPair[x]}, s{sPairSt}")
        A(f"s_cbranch_scc1 L_same{uid[0]}")
        A(f"s_mov_b32 s{sPairCur}, s{sPair[x]}")
        A(f"s_call_b64 s[{sRet}:{sRet+1}], L_switch")
        LB(f"same{uid[0]}")

    A(f"s_sub_u32 s{sWs}, s{sW}, 4")
    A(f"v_and_b32 v{vT0}, 7, v{vL}")
    A(f"v_lshrrev_b32 v{vT1}, 3, v{vL}")
    A(f"v_mul_u32_u24 v{vKoff}, 384, v{vT0}")
    A(f"v_lshl_add_u32 v{vKoff}, v{vT1}, 4, v{vKoff}")
    A(f"v_lshrrev_b32 v{vQa}, 4, v{vL}")
    A(f"v_lshlrev_b32 v{vQa}, 5, v{vQa}")
    A(f"v_and_b32 v{vT1}, 1, v{vL}")
    A(f"v_lshl_add_u32 v{vQa}, v{vT1}, 4, v{vQa}")
    A(f"v_mov_b32 v{vOne}, 1")
    A(f"s_lshl_b32 s{sT0}, s{sH}, 7")
    A(f"s_add_u32 s{sT0}, s{sT0}, {W_QCNT}")
    A(f"v_mov_b32 v{vCa}, s{sT0}")
    A(f"s_lshr_b32 s{sPairCur}, s{sJ}, 1")
    A(f"s_mov_b32 s{sPair[0]}, s{sPairCur}")
    A(f"s_mov_b32 s{sPair[1]}, s{sPairCur}")
    A(f"s_mul_i32 s{sHoff}, s{sH}, 3145728")
    A(f"s_mul_i32 s{sStat}, s{sPairCur}, 100663296")
    A(f"s_add_u32 s{sStat}, s{sStat}, s{sHoff}")
    A(f"s_and_b32 s{sT0}, s{sJ}, 1")
    A(f"s_lshl_b32 s{sT0}, s{sT0}, 2")
    A(f"s_add_u32 s{sT0}, s{sT0}, s{sWs}")
    A(f"s_mul_i32 s{sT0}, s{sT0}, {NS*6144}")
    A(f"s_add_u32 s{sStat}, s{sStat}, s{sT0}")
    A(f"s_mov_b32 s{sRem}, {NS - 2 - NPRE}")
    A(f"s_mov_b32 s{sSlot}, 0")
    A("s_waitcnt lgkmcnt(0)")
    A(f"s_load_dword s{sTag}, s[{sWS}:{sWS+1}], {W_GEN}")
    k.srd(rK, sKp, 402653184)
    k.srd(rV, sVp, 402653184)
    A("s_barrier")
    order = [2 + i for i in range(NPRE)] + [0, 1]
    for x in order:
        loads(kreg(x), rK, sStat)
        loads(vreg(x), rV, sStat)
        A(f"s_add_u32 s{sStat}, s{sStat}, 6144")
    reset_state()
    A("s_waitcnt lgkmcnt(0)")
    A(f"s_add_u32 s{sTag}, s{sTag}, 1")
    stamp(1)
    A("s_barrier")
    load_q()
    A("s_waitcnt lgkmcnt(0)")
    stamp(2)
    for i in range(NPRE):
        rem = 12 * (NPRE + 2 - i)
        A(f"s_waitcnt vmcnt({rem-6})")
        k_tile(2 + i)
        A("s_nop 7")
        softmax()
        A(f"s_waitcnt vmcnt({rem-12})")
        v_tile(2 + i)
    LB("loop")
    for x in range(2):
        A("s_waitcnt vmcnt(18)")
        check_pair(x)
        k_tile(x)
        A(f"s_sub_u32 s{sRem}, s{sRem}, 1")
        A(f"s_cmp_gt_i32 s{sRem}, 1")
        A(f"s_cbranch_scc0 L_dyn{x}")
        A(f"s_mov_b32 s{sNxt}, s{sStat}")
        A(f"s_add_u32 s{sStat}, s{sStat}, 6144")
        LB(f"dynret{x}")
        loads(kreg(x), rK, sNxt)
        softmax()
        A("s_waitcnt vmcnt(18)")
        v_tile(x)
        loads(vreg(x), rV, sNxt)
    A("s_branch L_loop")
    for x in range(2):
        LB(f"dyn{x}")
        A(f"s_mov_b32 s{sNxt}, s{sStat}")
        A(f"s_add_u32 s{sStat}, s{sStat}, 6144")
        A(f"s_cmp_ge_i32 s{sRem}, 0")
        A(f"s_cbranch_scc1 L_claim{x}")
        A(f"v_readfirstlane_b32 s{sT0}, v{vClaim[x]}")
        A("s_nop 3")
        A(f"s_cmp_ge_u32 s{sT0}, {NPOOL}")
        A(f"s_cbranch_scc1 L_last{x}")
        A(f"s_lshr_b32 s{sPair[x]}, s{sT0}, {LDP}")
        A(f"s_and_b32 s{sT0}, s{sT0}, {DP-1}")
        A(f"s_add_u32 s{sT0}, s{sT0}, {512-DP}")
        A(f"s_mul_i32 s{sT0}, s{sT0}, 6144")
        A(f"s_mul_i32 s{sNxt}, s{sPair[x]}, 100663296")
        A(f"s_add_u32 s{sNxt}, s{sNxt}, s{sHoff}")
        A(f"s_add_u32 s{sNxt}, s{sNxt}, s{sT0}")
        LB(f"claim{x}")
        k.set_exec(1)
        A(f"global_atomic_add v{vClaim[x]}, v{vCa}, v{vOne}, s[{sWS}:{sWS+1}] sc0")
        k.set_exec(-1)
        A(f"s_branch L_dynret{x}")
    LB("switch")
    flush()
    A(f"v_mov_b32 v{vT1}, {L_SYNC}")
    A(f"s_mov_b32 s{sSpin}, {SPIN*16}")
    LB("swrdy")
    A(f"ds_read_b32 v{vT0}, v{vT1}")
    A("s_waitcnt lgkmcnt(0)")
    A(f"v_readfirstlane_b32 s{sT0}, v{vT0}")
    A("s_nop 3")
    A(f"s_cmp_ge_u32 s{sT0}, 4")
    A("s_cbranch_scc1 L_swok")
    spin_tail("swrdy", sleep=4)
    LB("swok")
    load_q()
    reset_state()
    A("s_waitcnt lgkmcnt(0)")
    A(f"s_setpc_b64 s[{sRet}:{sRet+1}]")
    for x in range(2):
        y = 1 - x
        LB(f"last{x}")
        stamp(3)
        A("s_nop 3")
        softmax()
        A("s_waitcnt vmcnt(12)")
        v_tile(x)
        A("s_waitcnt vmcnt(6)")
        check_pair(y)
        k_tile(y)
        A("s_nop 7")
        softmax()
        A("s_waitcnt vmcnt(0)")
        v_tile(y)
        if x == 0:
            A("s_branch L_fin")
    LB("fin")
    flush()
    C("addresses for the record stores (before the barrier)")
    vRa, vRb, vRhh = QF, QF + 1, QF + 2
    A(f"s_lshl_b32 s{sT0}, s{sH}, 2")
    A(f"s_add_u32 s{sT0}, s{sT0}, s{sWs}")
    A(f"s_lshl_b32 s{sT0}, s{sT0}, 3")
    A(f"s_add_u32 s{sT0}, s{sT0}, s{sJ}")
    A(f"s_lshl_b32 s{sT1}, s{sT0}, 10")
    A(f"s_add_u32 s{sT1}, s{sT1}, {W_REC}")
    A(f"v_lshl_add_u32 v{vRa}, v{vL}, 4, s{sT1}")
    A(f"s_lshl_b32 s{sT1}, s{sT0}, 8")
    A(f"s_add_u32 s{sT1}, s{sT1}, {W_RC}")
    A(f"v_lshl_add_u32 v{vRb}, v{vL}, 2, s{sT1}")
    A(f"s_lshl_b32 s{sT1}, s{sT0}, {hstride}")
    A(f"s_add_u32 s{sT1}, s{sT1}, {W_RH}")
    A(f"v_lshl_add_u32 v{vRhh}, v{vL}, 4, s{sT1}")
    A(f"v_min_u32 v{vT0}, 19, v{vL}")
    A(f"v_lshlrev_b32 v{vT0}, 10, v{vT0}")
    A(f"v_min_u32 v{vT1}, 47, v{vL}")
    A(f"v_lshlrev_b32 v{vT1}, 4, v{vT1}")
    A("s_waitcnt lgkmcnt(0)")
    A("s_barrier")
    stamp(4)
    C("==== WG merge: stream wave w handles pair w ====")
    A(f"ds_read_b128 v[{S}:{S+3}], v{vT0} offset:{L_REC+768}")
    for i in range(14):
        A(f"ds_read_b128 v[{MG+4*i}:{MG+4*i+3}], v{vT1} offset:{L_REC+1024*i}")
    A("s_waitcnt lgkmcnt(14)")
    A(f"v_cmp_eq_u32 vcc, s{sWs}, v{S+2}")
    A(f"v_cmp_gt_u32 s[{sT2}:{sT3}], 20, v{vL}")
    A(f"s_and_b64 vcc, vcc, s[{sT2}:{sT3}]")
    A(f"v_mov_b32 v{vM}, {NEGBIG}")
    for i in range(14, 20):
        A(f"ds_read_b128 v[{MG+4*i}:{MG+4*i+3}], v{vT1} offset:{L_REC+1024*i}")
    A(f"v_cndmask_b32 v{vM}, v{vM}, v{S}, vcc")
    k.wave_allreduce("v_max_f32", vM)
    A(f"v_sub_f32 v{vAl}, v{S}, v{vM}")
    A(f"v_mul_f32 v{vAl}, {LOG2E}, v{vAl}")
    A(f"v_exp_f32 v{vAl}, v{vAl}")
    A("s_nop 0")
    A(f"v_cndmask_b32 v{vAl}, 0, v{vAl}, vcc")
    A(f"v_mul_f32 v{vLs}, v{vAl}, v{S+1}")
    for i in range(20):
        A(f"v_readlane_b32 s{sWt+i}, v{vAl}, {i}")
    for i in range(4):
        A(f"v_mov_b32 v{ACC+i}, 0")
    A("s_waitcnt lgkmcnt(0)")
    for i in range(20):
        k.pkfma(ACC, MG + 4 * i, sWt + i, pre="s")
        k.pkfma(ACC + 2, MG + 4 * i + 2, sWt + i, pre="s")
    k.set_exec((1 << 48) - 1)
    A(f"global_store_dwordx4 v{vRa}, v[{ACC}:{ACC+3}], s[{sWS}:{sWS+1}] {SC}")
    make_check(ACC + 4, ACC)
    A(f"global_store_dword v{vRb}, v{ACC+4}, s[{sWS}:{sWS+1}] {SC}")
    k.set_exec(-1)
    k.wave_allreduce("v_add_f32", vLs)
    A(f"v_mov_b32 v{ACC+8}, v{vM}")
    A(f"v_mov_b32 v{ACC+9}, v{vLs}")
    xor3(ACC + 10, f"v{vM}", f"v{vLs}", f"s{sTag}")
    k.set_exec((1 << (1 << (hstride - 4))) - 1)
    A(f"global_store_dwordx4 v{vRhh}, v[{ACC+8}:{ACC+11}], s[{sWS}:{sWS+1}] {SC}")
    k.set_exec(-1)
    stamp(5)
    write_stamps(MG, vT1)
    LB("end")
    A("s_endpgm")
    return k, (256, 256), L_TOTAL


def build(stamps=False, **kw):
    k2, r2, l2 = build_main(stamps, **kw)
    txt = HEADER
    txt += f"; @launch grid=(256,1,1) block=(512,1,1) lds={l2}\n"
    txt += '.amdgcn_target "amdgcn-amd-amdhsa--gfx950"\n.text\n'
    txt += k2.text()
    txt += '.section .rodata,"a"\n'
    txt += k2.desc(*r2)
    return txt


if __name__ == "__main__":
    out = sys.argv[1] if len(sys.argv) > 1 else f"cdna_kernels/{NAME}.s"
    stamps = sys.argv[2] if len(sys.argv) > 2 and sys.argv[2] != "-" else False
    kw = {}
    for a in sys.argv[3:]:
        n, v = a.split("=")
        kw[n] = int(v)
    open(out, "w").write(build(stamps, **kw))
    print("wrote", out)
```

```python
import sys
from gen_v1 import HEADER, NAME
from gen_v2 import K, load_kernargs, SCALE, LOG2E, NEGBIG
from gen_v2 import sX, sKp, sVp, sWQp, sWOp, sW1p, sB1p, sW2p, sB2p, sOUT, sDBG, sWS

W_GEN = 0x0
W_QCNT = 0x1000
W_RH = 0x4000
W_FR = 0x20000
W_YA = 0x40000
W_REC = 0x100000
W_QC = 0x200000
W_YB = 0x240000
W_QP = 0x300000
W_STAMP = 0x1000000
SPIN = 0x80000


def build_main(stamps=False, DP=64, NPRE=2, mimic=1, hsleep=1, qsleep=0, nmiss=2):
    SC = "sc1"
    k = K(f"{NAME}_kernel")
    k.lab = lambda s: f"L_{s}"
    k.LB = lambda s: k.L.append(f"L_{s}:")
    A, LB, C = k.A, k.LB, k.C
    sT0, sT1, sT2, sT3 = k.sT
    NS = (512 - DP) // 8
    LDP = DP.bit_length() - 1
    NPOOL = 4 * DP
    sW, sH, sJ = 3, 4, 5
    sRem, sStat, sNxt = 6, 7, 12
    sPairCur, sPairSt, sSlot, sHoff = 13, 14, 42, 43
    rK, rV = 44, 48
    sPair = [52, 53]
    sRet = 54
    sWt = 56
    sTm = 76
    sTag = 78
    sSpin = 79
    rW = 80
    sOff = 84
    sWs = 85
    sM1, sM0 = 86, 88
    sTs = 96
    L_QH = 0
    L_SYNC = 2048
    L_RHD = 2112
    L_OB = 2560
    L_REC = 4096
    L_XN = L_REC + 20480
    L_WT = 32768
    L_TOTAL = L_WT + 65536
    boff = [0, 128, 256, 3072, 3200, 3328]
    in_service = [True]

    def stamp(i, mode="stamps"):
        if stamps and (mode == stamps or (mode == "stamps" and (i == 0 or not in_service[0]))):
            A(f"s_memrealtime s[{sTm}:{sTm+1}]")
            A("s_waitcnt lgkmcnt(0)")
            A(f"s_mov_b32 s{sTs+i}, s{sTm}")

    def write_stamps(tmp, vA):
        if stamps:
            A(f"s_getreg_b32 s{sT2}, hwreg(HW_REG_XCC_ID)")
            A(f"s_lshl_b32 s{sT1}, s2, 3")
            A(f"s_add_u32 s{sT1}, s{sT1}, s{sW}")
            A(f"s_lshl_b32 s{sT1}, s{sT1}, 5")
            A(f"s_add_u32 s{sT1}, s{sT1}, {W_STAMP}")
            for i in range(6):
                A(f"v_mov_b32 v{tmp+i}, s{sTs+i}")
            A(f"v_mov_b32 v{tmp+6}, s{sT2}")
            A(f"v_mov_b32 v{tmp+7}, 0x12345678")
            A(f"v_mov_b32 v{vA}, s{sT1}")
            k.set_exec(1)
            A(f"global_store_dwordx4 v{vA}, v[{tmp}:{tmp+3}], s[{sWS}:{sWS+1}]")
            A(f"global_store_dwordx4 v{vA}, v[{tmp+4}:{tmp+7}], s[{sWS}:{sWS+1}] offset:16")
            k.set_exec(-1)

    def xor3(d, a, b, c):
        A(f"v_bitop3_b32 v{d}, {a}, {b}, {c} bitop3:0x96")

    def spin_tail(loop, sleep=None):
        if sleep:
            A(f"s_sleep {sleep}")
        A(f"s_sub_u32 s{sSpin}, s{sSpin}, 1")
        A(f"s_cmp_lg_u32 s{sSpin}, 0")
        A(f"s_cbranch_scc1 L_{loop}")

    def lds_wait4(tagl, vA, vD):
        A(f"v_mov_b32 v{vA}, {L_SYNC}")
        A(f"s_mov_b32 s{sSpin}, {SPIN*16}")
        LB(tagl)
        A(f"ds_read_b32 v{vD}, v{vA}")
        A("s_waitcnt lgkmcnt(0)")
        A(f"v_readfirstlane_b32 s{sT0}, v{vD}")
        A("s_nop 3")
        A(f"s_cmp_ge_u32 s{sT0}, 4")
        A(f"s_cbranch_scc1 L_{tagl}ok")
        spin_tail(tagl, sleep=4)
        LB(tagl + "ok")

    vL, vT0, vT1 = 1, 3, 4
    A("s_cmp_ge_u32 s2, 256")
    A("s_cbranch_scc1 L_end")
    stamp(0)
    load_kernargs(k)
    A(f"v_and_b32 v{vL}, 63, v0")
    A(f"v_lshrrev_b32 v{vT0}, 6, v0")
    A(f"s_mov_b32 s{k.sMsk}, 0xffff0000")
    A(f"v_readfirstlane_b32 s{sW}, v{vT0}")
    A(f"s_lshr_b32 s{sH}, s2, 3")
    A(f"s_and_b32 s{sJ}, s2, 7")
    A(f"s_cmp_ge_u32 s{sW}, 4")
    A("s_cbranch_scc1 L_stream")
    C("================= service waves (0..3) =================")
    vOff, vXa, vXb, vOne_s = 2, 5, 6, 7
    a = 8
    k.TP = 16
    k.ntp = 2
    XR = 20
    XC = 40
    X = 44
    ACC = 84
    WR = 116
    E = 156
    QL = 164
    QK = 196
    B1R = 204
    FXR = 206
    A("s_setprio 3")
    A(f"v_lshrrev_b32 v{vT0}, 3, v{vL}")
    A(f"v_and_b32 v{vT1}, 7, v{vL}")
    A(f"s_cmp_eq_u32 s{sW}, 3")
    A(f"s_movk_i32 s{sT0}, 3072")
    A(f"s_cselect_b32 s{sT0}, s{sT0}, 12288")
    A(f"v_mul_lo_u32 v{vOff}, v{vT0}, s{sT0}")
    A(f"v_lshl_add_u32 v{vOff}, v{vT1}, 4, v{vOff}")
    A(f"s_mul_i32 s{sOff}, s{sJ}, 80")
    A(f"s_mul_i32 s{sOff}, s{sOff}, s{sT0}")
    A(f"s_lshl_b32 s{sT3}, s{sT0}, 3")
    A(f"s_mul_i32 s{sT1}, s{sH}, 384")
    A(f"s_lshl_b32 s{sT2}, s{sW}, 7")
    A(f"s_add_u32 s{sT1}, s{sT1}, s{sT2}")
    A(f"s_min_u32 s{sT2}, s{sH}, 23")
    A(f"s_lshl_b32 s{sT2}, s{sT2}, 7")
    A(f"s_cmp_eq_u32 s{sW}, 3")
    A(f"s_cselect_b32 s{sT1}, s{sT2}, s{sT1}")
    A(f"s_add_u32 s{sOff}, s{sOff}, s{sT1}")
    A(f"v_lshrrev_b32 v{vT0}, 4, v{vL}")
    A(f"v_mul_u32_u24 v{vT0}, 1280, v{vT0}")
    A(f"v_and_b32 v{vT1}, 15, v{vL}")
    A(f"v_lshl_add_u32 v{vXa}, v{vT1}, 4, v{vT0}")
    A(f"v_lshl_add_u32 v{a}, v{vT1}, 3, s{sT2}")
    A(f"v_min_u32 v{vT1}, 9, v{vT1}")
    A(f"v_lshl_add_u32 v{vXb}, v{vT1}, 4, v{vT0}")
    A(f"s_mul_i32 s{sT1}, s{sJ}, 160")
    A(f"v_add_u32 v{vXb}, s{sT1}, v{vXb}")
    A(f"v_mov_b32 v{vOne_s}, 1")
    for i in range(32):
        A(f"v_mov_b32 v{ACC+i}, 0")
    A(f"v_mov_b32 v{vT0}, {L_SYNC}")
    A(f"ds_write_b32 v{vT0}, v{ACC}")
    A(f"s_cmp_lt_u32 s{sH}, 24")
    A(f"s_cselect_b32 s{rW+2}, 1966080, 0")
    A("s_waitcnt lgkmcnt(0)")
    A(f"s_load_dword s{sTag}, s[{sWS}:{sWS+1}], {W_GEN}")
    for m in range(5):
        A(f"global_load_dwordx4 v[{XR+4*m}:{XR+4*m+3}], v{vXa}, s[{sX}:{sX+1}] offset:{256*m}")
    A(f"global_load_dwordx4 v[{XC}:{XC+3}], v{vXb}, s[{sX}:{sX+1}]")
    A(f"s_cmp_eq_u32 s{sW}, 3")
    A(f"s_cselect_b32 s{rW}, s{sW1p}, s{sWQp}")
    A(f"s_cselect_b32 s{rW+1}, s{sW1p+1}, s{sWQp+1}")
    A(f"s_cselect_b32 s{rW+2}, s{rW+2}, 7864320")
    A(f"s_mov_b32 s{rW+3}, 0x20000")
    for t in range(10):
        A(f"buffer_load_dwordx4 v[{WR+4*t}:{WR+4*t+3}], v{vOff}, s[{rW}:{rW+3}], s{sOff} offen nt")
        if t < 9:
            A(f"s_add_u32 s{sOff}, s{sOff}, s{sT3}")
    A(f"global_load_dwordx2 v[{B1R}:{B1R+1}], v{a}, s[{sB1p}:{sB1p+1}]")
    C("queue counter of this octet = 0 (j == 0, wave 0)")
    A(f"s_lshl_b32 s{sT0}, s{sH}, 7")
    A(f"s_add_u32 s{sT0}, s{sT0}, {W_QCNT}")
    A(f"v_mov_b32 v{vT0}, s{sT0}")
    A(f"s_or_b32 s{sT0}, s{sJ}, s{sW}")
    A(f"s_cmp_eq_u32 s{sT0}, 0")
    A("s_cbranch_scc0 L_noq")
    k.set_exec(1)
    A(f"global_store_dword v{vT0}, v{ACC}, s[{sWS}:{sWS+1}] {SC}")
    k.set_exec(-1)
    LB("noq")
    C("barrier 1 releases the stream waves")
    A("s_barrier")
    A(f"s_mul_i32 s{sT0}, s{sW}, 5120")
    A(f"v_lshl_add_u32 v{vT0}, v{vL}, 4, s{sT0}")
    for i in range(5):
        A(f"ds_write_b128 v{vT0}, v[{ACC}:{ACC+3}] offset:{L_REC+1024*i}")
    A(f"v_mov_b32 v{E}, {NEGBIG}")
    for i in range(1, 4):
        A(f"v_mov_b32 v{E+i}, 0")
    A(f"v_min_u32 v{vT0}, 19, v{vL}")
    A(f"v_lshlrev_b32 v{vT0}, 4, v{vT0}")
    A(f"ds_write_b128 v{vT0}, v[{E}:{E+3}] offset:{L_RHD}")
    C("---- LayerNorm statistics, 16 lanes per batch ----")
    A("s_waitcnt vmcnt(11)")
    for i in range(20):
        A(f"v_lshlrev_b32 v{X+2*i}, 16, v{XR+i}")
        A(f"v_and_b32 v{X+2*i+1}, s{k.sMsk}, v{XR+i}")
    A(f"v_pk_add_f32 v[{a}:{a+1}], v[{X}:{X+1}], v[{X+2}:{X+3}]")
    A(f"v_pk_add_f32 v[{a+2}:{a+3}], v[{X+4}:{X+5}], v[{X+6}:{X+7}]")
    for i in range(4, 20):
        d = a + 2 * (i & 1)
        A(f"v_pk_add_f32 v[{d}:{d+1}], v[{d}:{d+1}], v[{X+2*i}:{X+2*i+1}]")
    A(f"v_pk_add_f32 v[{a}:{a+1}], v[{a}:{a+1}], v[{a+2}:{a+3}]")
    A(f"v_add_f32 v{a}, v{a}, v{a+1}")
    k.butterfly("v_add_f32", [a], 4)
    A(f"v_mul_f32 v{a}, {-1.0/640.0!r}, v{a}")
    for i in range(20):
        A(f"v_pk_add_f32 v[{X+2*i}:{X+2*i+1}], v[{X+2*i}:{X+2*i+1}], v[{a}:{a+1}] op_sel_hi:[1,0]")
    A(f"v_pk_mul_f32 v[{a+2}:{a+3}], v[{X}:{X+1}], v[{X}:{X+1}]")
    A(f"v_pk_mul_f32 v[{a+4}:{a+5}], v[{X+2}:{X+3}], v[{X+2}:{X+3}]")
    for i in range(2, 20):
        d = a + 2 + 2 * (i & 1)
        A(f"v_pk_fma_f32 v[{d}:{d+1}], v[{X+2*i}:{X+2*i+1}], v[{X+2*i}:{X+2*i+1}], v[{d}:{d+1}]")
    A(f"v_pk_add_f32 v[{a+2}:{a+3}], v[{a+2}:{a+3}], v[{a+4}:{a+5}]")
    A(f"v_add_f32 v{a+2}, v{a+2}, v{a+3}")
    k.butterfly("v_add_f32", [a + 2], 4)
    A(f"v_mul_f32 v{a+2}, {1.0/640.0!r}, v{a+2}")
    k.rnd2(a, a + 2, a + 1)
    A(f"v_add_f32 v{a+2}, 0x3727c5ac, v{a+2}")
    k.rnd1(a + 2, a + 1)
    A(f"v_sqrt_f32 v{a+2}, v{a+2}")
    A("s_waitcnt lgkmcnt(0)")
    for i in range(4):
        A(f"v_lshlrev_b32 v{E+2*i}, 16, v{XC+i}")
        A(f"v_and_b32 v{E+2*i+1}, s{k.sMsk}, v{XC+i}")
    k.rnd1(a + 2, a + 1)
    A(f"v_rcp_f32 v{a+3}, v{a+2}")
    for i in range(8):
        A(f"v_add_f32 v{E+i}, v{E+i}, v{a}")
    for i in range(0, 8, 2):
        k.rnd2(E + i, E + i + 1, a + 1)
    for i in range(8):
        A(f"v_mul_f32 v{a+4}, v{E+i}, v{a+3}")
        A(f"v_fma_f32 v{a+5}, -v{a+4}, v{a+2}, v{E+i}")
        A(f"v_fma_f32 v{E+i}, v{a+5}, v{a+3}, v{a+4}")
    for i in range(0, 8, 2):
        k.rnd2(E + i, E + i + 1, a + 1)
    A(f"s_mul_i32 s{sT0}, s{sW}, 1280")
    A(f"v_and_b32 v{vT1}, 15, v{vL}")
    A(f"v_min_u32 v{vT1}, 9, v{vT1}")
    A(f"v_lshl_add_u32 v{vT1}, v{vT1}, 7, s{sT0}")
    A(f"v_lshrrev_b32 v{vT0}, 4, v{vL}")
    A(f"v_lshl_add_u32 v{vT1}, v{vT0}, 2, v{vT1}")
    for i in range(8):
        A(f"ds_write_b32 v{vT1}, v{E+i} offset:{L_XN+16*i}")
    A(f"v_lshrrev_b32 v{vT0}, 3, v{vL}")
    A(f"v_lshl_add_u32 v{vT0}, v{vT0}, 4, s{sT0}")
    A(f"s_add_u32 s{sTag}, s{sTag}, 1")
    XN = X
    for t in range(10):
        A(f"ds_read_b128 v[{XN+4*t}:{XN+4*t+3}], v{vT0} offset:{L_XN+128*t}")
    C("granule index 16w + 2e + half, row b = l>>4")
    A(f"v_and_b32 v{vT0}, 7, v{vL}")
    A(f"v_bfe_u32 v{vT1}, v{vL}, 3, 1")
    A(f"v_lshl_add_u32 v{vT0}, v{vT0}, 1, v{vT1}")
    A(f"s_lshl_b32 s{sT0}, s{sW}, 4")
    A(f"v_add_u32 v{vT0}, s{sT0}, v{vT0}")
    A(f"v_lshrrev_b32 v{vT1}, 4, v{vL}")
    A(f"v_lshl_add_u32 v{vT0}, v{vT1}, 6, v{vT0}")
    A(f"s_lshl_b32 s{sT0}, s2, 12")
    A(f"s_add_u32 s{sT0}, s{sT0}, {W_QP}")
    A(f"s_lshl_b32 s{sT1}, s2, 10")
    A(f"s_add_u32 s{sT1}, s{sT1}, {W_QC}")
    A(f"v_lshl_add_u32 v{vXa}, v{vT0}, 4, s{sT0}")
    A(f"v_lshl_add_u32 v{vXb}, v{vT0}, 2, s{sT1}")
    stamp(1)
    for t in range(10):
        A(f"s_waitcnt vmcnt({10-t if t < 9 else 0}) lgkmcnt({9-t})")
        for d in range(4):
            tt = k.unpack(WR + 4 * t + d)
            for b in range(4):
                k.pkfma(ACC + 8 * b + 2 * d, tt, XN + 4 * t + b)
    C("reduce-scatter over lane bits 5,4,3")
    A("s_nop 1")
    for i in range(16):
        A(f"v_permlane32_swap_b32 v{ACC+i}, v{ACC+16+i}")
    for i in range(16):
        A(f"v_add_f32 v{ACC+i}, v{ACC+i}, v{ACC+16+i}")
    A("s_nop 1")
    for i in range(8):
        A(f"v_permlane16_swap_b32 v{ACC+i}, v{ACC+8+i}")
    for i in range(8):
        A(f"v_add_f32 v{ACC+i}, v{ACC+i}, v{ACC+8+i}")
    A("s_nop 1")
    for i in range(4):
        A(f"v_add_f32_dpp v{E+i}, v{ACC+i}, v{ACC+i} row_ror:8 row_mask:0xf bank_mask:0x3")
        A(f"v_add_f32_dpp v{E+i}, v{ACC+4+i}, v{ACC+4+i} row_ror:8 row_mask:0xf bank_mask:0xc")
    A(f"global_store_dwordx4 v{vXa}, v[{E}:{E+3}], s[{sWS}:{sWS+1}] {SC}")
    xor3(E + 4, f"v{E}", f"v{E+1}", f"v{E+2}")
    xor3(E + 4, f"v{E+4}", f"v{E+3}", f"s{sTag}")
    A(f"global_store_dword v{vXb}, v{E+4}, s[{sWS}:{sWS+1}] {SC}")
    stamp(2)
    C("addresses: final row FR[h*4+w], LDS row w")
    vFr, vQl = a + 6, a + 7
    A(f"s_lshl_b32 s{sT0}, s{sH}, 2")
    A(f"s_add_u32 s{sT0}, s{sT0}, s{sW}")
    A(f"s_lshl_b32 s{sT0}, s{sT0}, 10")
    A(f"s_add_u32 s{sT0}, s{sT0}, {W_FR}")
    A(f"v_lshl_add_u32 v{vFr}, v{vL}, 4, s{sT0}")
    A(f"s_lshl_b32 s{sT1}, s{sW}, 9")
    A(f"v_lshl_add_u32 v{vQl}, v{vL}, 3, s{sT1}")
    A(f"s_mov_b32 s{sSpin}, {SPIN}")
    A(f"s_lshr_b32 s{sPairCur}, s{sJ}, 1")
    A(f"s_cmp_eq_u32 s{sPairCur}, s{sW}")
    A("s_cbranch_scc0 L_nonhome")
    C("---- home wave: gather the 8 partial rows ----")
    A(f"s_lshl_b32 s{sT0}, s{sH}, 15")
    A(f"s_lshl_b32 s{sT1}, s{sW}, 10")
    A(f"s_add_u32 s{sT0}, s{sT0}, s{sT1}")
    A(f"s_lshr_b32 s{sT1}, s{sT0}, 2")
    A(f"s_add_u32 s{sT0}, s{sT0}, {W_QP}")
    A(f"s_add_u32 s{sT1}, s{sT1}, {W_QC}")
    A(f"v_lshl_add_u32 v{vXa}, v{vL}, 4, s{sT0}")
    A(f"v_lshl_add_u32 v{vXb}, v{vL}, 2, s{sT1}")
    A(f"v_add_u32 v{vT1}, 4096, v{vXb}")
    if qsleep:
        A(f"s_sleep {qsleep}")
    LB("qpoll")
    A(f"v_mov_b32 v{vT0}, v{vXa}")
    for j in range(8):
        if j:
            A(f"v_add_u32 v{vT0}, 4096, v{vT0}")
        A(f"global_load_dwordx4 v[{QL+4*j}:{QL+4*j+3}], v{vT0}, s[{sWS}:{sWS+1}] {SC}")
        va = vXb if j < 4 else vT1
        A(f"global_load_dword v{QK+j}, v{va}, s[{sWS}:{sWS+1}] offset:{1024*(j%4)} {SC}")
    for j in range(8):
        A(f"s_waitcnt vmcnt({14-2*j})")
        xor3(a, f"v{QL+4*j}", f"v{QL+4*j+1}", f"v{QL+4*j+2}")
        xor3(a + 1, f"v{QL+4*j+3}", f"v{QK+j}", f"s{sTag}")
        if j == 0:
            A(f"v_xor_b32 v{a+2}, v{a}, v{a+1}")
        else:
            A(f"v_xor_b32 v{a}, v{a}, v{a+1}")
            A(f"v_or_b32 v{a+2}, v{a+2}, v{a}")
    A(f"v_cmp_ne_u32 vcc, 0, v{a+2}")
    A("s_cbranch_vccz L_qok")
    spin_tail("qpoll")
    LB("qok")
    for j in range(1, 8):
        A(f"v_pk_add_f32 v[{QL}:{QL+1}], v[{QL}:{QL+1}], v[{QL+4*j}:{QL+4*j+1}]")
        A(f"v_pk_add_f32 v[{QL+2}:{QL+3}], v[{QL+2}:{QL+3}], v[{QL+4*j+2}:{QL+4*j+3}]")
    A(f"v_cvt_pk_bf16_f32 v{QL+4}, v{QL}, v{QL+1}")
    A(f"v_cvt_pk_bf16_f32 v{QL+5}, v{QL+2}, v{QL+3}")
    A(f"ds_write_b64 v{vQl}, v[{QL+4}:{QL+5}] offset:{L_QH}")
    stamp(3)
    if stamps == "stamps":
        A(f"s_sub_u32 s{sTs+1}, {SPIN}, s{sSpin}")
        A(f"s_mul_i32 s{sTs+1}, s{sTs+1}, 100")
        A(f"s_add_u32 s{sTs+1}, s{sTs+1}, s{sTs}")
    A("s_waitcnt lgkmcnt(0)")
    A("s_barrier")
    A("s_setprio 0")
    C("hid = bf16(relu(bf16(bf16(sum) + b1))^2) on lanes 48..63")
    Hh = QL + 8
    A(f"v_lshlrev_b32 v{Hh}, 16, v{QL+4}")
    A(f"v_and_b32 v{Hh+1}, s{k.sMsk}, v{QL+4}")
    A(f"v_lshlrev_b32 v{Hh+2}, 16, v{QL+5}")
    A(f"v_and_b32 v{Hh+3}, s{k.sMsk}, v{QL+5}")
    A(f"v_lshlrev_b32 v{Hh+4}, 16, v{B1R}")
    A(f"v_and_b32 v{Hh+5}, s{k.sMsk}, v{B1R}")
    A(f"v_lshlrev_b32 v{Hh+6}, 16, v{B1R+1}")
    A(f"v_and_b32 v{Hh+7}, s{k.sMsk}, v{B1R+1}")
    for i in range(4):
        A(f"v_add_f32 v{Hh+i}, v{Hh+i}, v{Hh+4+i}")
    k.rnd2(Hh, Hh + 1, a)
    k.rnd2(Hh + 2, Hh + 3, a)
    for i in range(4):
        A(f"v_cmp_gt_f32 vcc, v{Hh+i}, 0")
        A("s_nop 1")
        A(f"v_cndmask_b32 v{Hh+i}, 0, v{Hh+i}, vcc")
    for i in range(4):
        A(f"v_mul_f32 v{Hh+i}, v{Hh+i}, v{Hh+i}")
    k.set_exec(0xffff << 48)
    A(f"v_cvt_pk_bf16_f32 v{QL+4}, v{Hh}, v{Hh+1}")
    A(f"v_cvt_pk_bf16_f32 v{QL+5}, v{Hh+2}, v{Hh+3}")
    A(f"ds_write_b64 v{vQl}, v[{QL+4}:{QL+5}] offset:{L_QH}")
    k.set_exec(-1)
    xor3(QL + 6, f"v{QL+4}", f"v{QL+5}", f"s{sTag}")
    A(f"s_bitcmp1_b32 s{sJ}, 0")
    A("s_cbranch_scc1 L_rowdone")
    A(f"global_store_dwordx4 v{vFr}, v[{QL+4}:{QL+7}], s[{sWS}:{sWS+1}] {SC}")
    A("s_branch L_rowdone")
    C("---- other waves: fetch the finished row later ----")
    LB("nonhome")
    A("s_waitcnt lgkmcnt(0)")
    A("s_barrier")
    A("s_setprio 0")
    A("s_sleep 40")
    LB("fpoll")
    A(f"global_load_dwordx4 v[{QL+4}:{QL+7}], v{vFr}, s[{sWS}:{sWS+1}] {SC}")
    A("s_waitcnt vmcnt(0)")
    xor3(a, f"v{QL+4}", f"v{QL+5}", f"v{QL+6}")
    A(f"v_cmp_ne_u32 vcc, s{sTag}, v{a}")
    A("s_cbranch_vccz L_fok")
    spin_tail("fpoll", sleep=32)
    LB("fok")
    A(f"ds_write_b64 v{vQl}, v[{QL+4}:{QL+5}] offset:{L_QH}")
    stamp(3)
    LB("rowdone")
    stamp(1, "svc")
    C("weight lines -> registers -> LDS image [256 rows][128 B]; pass 1 only for j < 2")
    G = 20
    FB = 116
    F2 = 212
    AF = 228
    DD = 8
    vG = vOff
    rW2 = 44
    A(f"v_lshrrev_b32 v{vT0}, 3, v{vL}")
    A(f"v_mul_u32_u24 v{vG}, {1280-128}, v{vT0}")
    A(f"v_lshl_add_u32 v{vG}, v{vL}, 4, v{vG}")
    k.srd(rW, sWOp, 7864320)
    k.srd(rW2, sW2p, 1966080)
    A(f"s_lshl_b32 s{sT0}, s{sH}, 2")
    A(f"s_add_u32 s{sT0}, s{sT0}, s{sW}")
    A(f"s_lshl_b32 s{sT2}, s{sJ}, 7")
    A(f"s_mul_i32 s{sOff}, s{sT0}, {48*1280}")
    A(f"s_add_u32 s{sOff}, s{sOff}, s{sT2}")
    A(f"s_mul_i32 s{sT3}, s{sT0}, {16*1280}")
    A(f"s_add_u32 s{sT3}, s{sT3}, s{sT2}")
    A(f"s_mul_i32 s{sT0}, s{sW}, {48*128}")
    A(f"s_add_u32 s{sT0}, s{sT0}, {L_WT}")
    A(f"v_lshl_add_u32 v{vXa}, v{vL}, 4, s{sT0}")
    A(f"s_lshl_b32 s{sT0}, s{sW}, 11")
    A(f"s_add_u32 s{sT0}, s{sT0}, {L_WT + 192*128}")
    A(f"v_lshl_add_u32 v{vXb}, v{vL}, 4, s{sT0}")
    for p in range(2):
        if p == 1:
            A(f"s_cmp_lt_u32 s{sJ}, 2")
            A("s_cbranch_scc0 L_wl_done")
        for i in range(6):
            A(f"s_add_u32 s{sT0}, s{sOff}, {8*1280*i}")
            A(f"buffer_load_dwordx4 v[{G+4*i}:{G+4*i+3}], v{vG}, s[{rW}:{rW+3}], s{sT0} offen offset:{1024*p} nt")
        for i in range(2):
            A(f"s_add_u32 s{sT0}, s{sT3}, {8*1280*i}")
            A(f"buffer_load_dwordx4 v[{G+24+4*i}:{G+24+4*i+3}], v{vG}, s[{rW2}:{rW2+3}], s{sT0} offen offset:{1024*p} nt")
        for i in range(6):
            A(f"s_waitcnt vmcnt({7-i})")
            A(f"ds_write_b128 v{vXa}, v[{G+4*i}:{G+4*i+3}] offset:{32768*p+1024*i}")
        for i in range(2):
            A(f"s_waitcnt vmcnt({1-i})")
            A(f"ds_write_b128 v{vXb}, v[{G+24+4*i}:{G+24+4*i+3}] offset:{32768*p+1024*i}")
        A("s_waitcnt lgkmcnt(0)")
    LB("wl_done")
    A(f"v_mov_b32 v{vT1}, {L_SYNC}")
    k.set_exec(1)
    A(f"ds_add_u32 v{vT1}, v{vOne_s}")
    k.set_exec(-1)
    C("transpose-read address: (8g + r)*128 + c*8 + w*32")
    A(f"v_lshrrev_b32 v{vT0}, 4, v{vL}")
    A(f"v_lshlrev_b32 v{vT0}, 3, v{vT0}")
    A(f"v_bfe_u32 v{vG}, v{vL}, 2, 2")
    A(f"v_add_lshl_u32 v{vG}, v{vG}, v{vT0}, 7")
    A(f"v_and_b32 v{vT0}, 3, v{vL}")
    A(f"v_lshl_add_u32 v{vG}, v{vT0}, 3, v{vG}")
    A(f"s_lshl_b32 s{sT0}, s{sW}, 5")
    A(f"s_add_u32 s{sT0}, s{sT0}, {L_WT}")
    A(f"v_add_u32 v{vG}, s{sT0}, v{vG}")
    lds_wait4("rdy", vT1, vT0)
    stamp(2, "svc")

    def frags(nkb, dst, row0, p):
        for kb in range(nkb):
            for hh in range(2):
                r = dst + 4 * kb + 2 * hh
                A(f"ds_read_b64_tr_b16 v[{r}:{r+1}], v{vG} offset:{(row0+32*kb+4*hh)*128 + 32768*p}")
    frags(2, F2, 192, 0)
    frags(6, FB, 0, 0)
    A(f"s_cmp_lt_u32 s{sJ}, 2")
    A("s_cbranch_scc0 L_g1")
    frags(2, F2 + 8, 192, 1)
    frags(6, FB + 24, 0, 1)
    LB("g1")
    C("A fragment address: row (l&3), k offset 16*(l>>4) bytes")
    vAf = vXa
    vYa = vXb
    A(f"v_and_b32 v{vT0}, 3, v{vL}")
    A(f"v_lshrrev_b32 v{vT1}, 4, v{vL}")
    A(f"v_lshlrev_b32 v{vT1}, 4, v{vT1}")
    A(f"v_lshl_add_u32 v{vAf}, v{vT0}, 9, v{vT1}")
    for kb in range(2):
        A(f"ds_read_b128 v[{AF+4*kb}:{AF+4*kb+3}], v{vAf} offset:{L_QH+384+64*kb}")
    A(f"v_mul_u32_u24 v{vAf}, 384, v{vT0}")
    A(f"v_add_u32 v{vAf}, v{vAf}, v{vT1}")
    C("Y address: [n = 64j + 16w + (l&15)][h][half = (l>>4)&1] x 16 B")
    A(f"s_lshl_b32 s{sT0}, s{sJ}, 6")
    A(f"s_lshl_b32 s{sT1}, s{sW}, 4")
    A(f"s_add_u32 s{sT0}, s{sT0}, s{sT1}")
    A(f"s_lshl_b32 s{sT0}, s{sT0}, 10")
    A(f"s_lshl_b32 s{sT1}, s{sH}, 5")
    A(f"s_add_u32 s{sT0}, s{sT0}, s{sT1}")
    A(f"v_and_b32 v{vT0}, 15, v{vL}")
    A(f"v_lshl_add_u32 v{vYa}, v{vT0}, 10, s{sT0}")
    A(f"v_and_b32 v{vT0}, 16, v{vL}")
    A(f"v_add_u32 v{vYa}, v{vYa}, v{vT0}")
    A(f"s_mov_b32 s{sM1}, 0xffff0000")
    A(f"s_mov_b32 s{sM1+1}, 0xffff0000")
    A("s_waitcnt lgkmcnt(0)")

    def proj_store(nkb, frag, fstride, ybase, tagl):
        for p in range(2):
            if p == 1:
                A(f"s_cmp_lt_u32 s{sJ}, 2")
                A(f"s_cbranch_scc0 L_{tagl}")
            d = DD
            for kb in range(nkb):
                c = "0" if kb == 0 else f"v[{d}:{d+3}]"
                f = frag + p * fstride + 4 * kb
                A(f"v_mfma_f32_16x16x32_bf16 v[{d}:{d+3}], v[{AF+4*kb}:{AF+4*kb+3}], v[{f}:{f+3}], {c}")
            A(f"v_add_u32 v{vT0}, {ybase + p*512*1024}, v{vYa}")
            k.set_exec(0xffffffff)
            A("s_nop 4")
            o = G + 4 * p
            A(f"v_cndmask_b32 v{o}, v{d}, v{d+2}, s[{sM1}:{sM1+1}]")
            A(f"v_cndmask_b32 v{o+1}, v{d+1}, v{d+3}, s[{sM1}:{sM1+1}]")
            xor3(o + 2, f"v{o}", f"v{o+1}", f"s{sTag}")
            A(f"global_store_dwordx4 v{vT0}, v[{o}:{o+3}], s[{sWS}:{sWS+1}] {SC}")
            k.set_exec(-1)
        LB(tagl)
    A(f"s_cmp_lt_u32 s{sH}, 24")
    A("s_cbranch_scc0 L_yb_done")
    proj_store(2, F2, 8, W_YB, "yb_done")
    stamp(3, "svc")
    C("---- finaliser task: nl = 4h + w ; column 64j + nl (nl < 64) or 512 + 64j + nl - 64 (j < 2) ----")
    sFin = sWs
    vFa = vG
    A(f"s_lshl_b32 s{sT0}, s{sH}, 2")
    A(f"s_add_u32 s{sT0}, s{sT0}, s{sW}")
    A(f"s_cmp_lt_u32 s{sJ}, 2")
    A(f"s_cselect_b32 s{sT1}, 128, 64")
    A(f"s_cmp_lt_u32 s{sT0}, s{sT1}")
    A(f"s_cselect_b32 s{sFin}, 1, 0")
    A(f"s_cselect_b32 s{sT0}, s{sT0}, 0")
    A(f"s_cmp_ge_u32 s{sT0}, 64")
    A(f"s_cselect_b32 s{sT1}, 448, 0")
    A(f"s_add_u32 s{sT0}, s{sT0}, s{sT1}")
    A(f"s_lshl_b32 s{sT1}, s{sJ}, 6")
    A(f"s_add_u32 s{sT0}, s{sT0}, s{sT1}")
    A(f"s_lshl_b32 s{sT1}, s{sT0}, 10")
    A(f"v_lshl_add_u32 v{vFa}, v{vL}, 4, s{sT1}")
    A(f"v_and_b32 v{vT1}, 1, v{vL}")
    A(f"v_mul_u32_u24 v{vT1}, 2560, v{vT1}")
    A(f"s_lshl_b32 s{sT0}, s{sT0}, 1")
    A(f"v_add_u32 v{FXR+5}, s{sT0}, v{vT1}")
    A(f"v_mov_b32 v{vT1}, s{sT0}")
    Yv = G + 8

    def ysum(ybase, tagl, sleep, lanes):
        A(f"v_add_u32 v{vT0}, {ybase}, v{vFa}")
        A(f"s_mov_b32 s{sSpin}, {SPIN}")
        if lanes < 64:
            A(f"v_mov_b32 v{Yv}, 0")
            A(f"v_mov_b32 v{Yv+1}, 0")
            k.set_exec((1 << lanes) - 1)
        LB(tagl)
        A(f"global_load_dwordx4 v[{Yv}:{Yv+3}], v{vT0}, s[{sWS}:{sWS+1}] {SC}")
        A("s_waitcnt vmcnt(0)")
        xor3(Yv + 4, f"v{Yv}", f"v{Yv+1}", f"v{Yv+2}")
        A(f"v_cmp_ne_u32 vcc, s{sTag}, v{Yv+4}")
        A(f"s_cbranch_vccz L_{tagl}ok")
        spin_tail(tagl, sleep=sleep)
        LB(tagl + "ok")
        if lanes < 64:
            k.set_exec(-1)
        for c in ("row_ror:8", "row_ror:4", "row_ror:2"):
            A("s_nop 0")
            k.dpp("v_add_f32", Yv, c)
            k.dpp("v_add_f32", Yv + 1, c)
        for op in ("v_permlane16_swap_b32", "v_permlane32_swap_b32"):
            A(f"v_mov_b32 v{Yv+2}, v{Yv}")
            A(f"v_mov_b32 v{Yv+3}, v{Yv+1}")
            A("s_nop 0")
            A(f"{op} v{Yv}, v{Yv+2}")
            A(f"{op} v{Yv+1}, v{Yv+3}")
            A("s_nop 0")
            A(f"v_add_f32 v{Yv}, v{Yv}, v{Yv+2}")
            A(f"v_add_f32 v{Yv+1}, v{Yv+1}, v{Yv+3}")

    A(f"s_cmp_eq_u32 s{sFin}, 0")
    A("s_cbranch_scc1 L_nofin1")
    A(f"global_load_ushort v{FXR}, v{FXR+5}, s[{sX}:{sX+1}]")
    A(f"global_load_ushort v{FXR+1}, v{FXR+5}, s[{sX}:{sX+1}] offset:1280")
    A(f"global_load_ushort v{FXR+2}, v{vT1}, s[{sB2p}:{sB2p+1}]")
    A("s_sleep 127")
    A("s_sleep 127")
    ysum(W_YB, "ybp", 100, 48)
    for i in range(3):
        A(f"v_lshlrev_b32 v{FXR+i}, 16, v{FXR+i}")
    k.rnd2(Yv, Yv + 1, Yv + 2)
    A(f"v_add_f32 v{FXR+3}, v{Yv}, v{FXR+2}")
    A(f"v_add_f32 v{FXR+4}, v{Yv+1}, v{FXR+2}")
    k.rnd2(FXR + 3, FXR + 4, Yv + 2)
    LB("nofin1")
    stamp(5, "svc")
    C("record addresses for batch w")
    vRh, vRd, vRd2, vOl = G + 16, G + 17, G + 18, G + 19
    sLoad, sOk, sHv = 6, 7, 12
    A(f"s_lshl_b32 s{sT0}, s{sH}, 2")
    A(f"s_add_u32 s{sT0}, s{sT0}, s{sW}")
    A(f"s_lshl_b32 s{sT1}, s{sT0}, 7")
    A(f"s_add_u32 s{sT1}, s{sT1}, {W_RH}")
    A(f"v_and_b32 v{vT0}, 7, v{vL}")
    A(f"v_lshl_add_u32 v{vRh}, v{vT0}, 4, s{sT1}")
    A(f"s_lshl_b32 s{sT1}, s{sT0}, 13")
    A(f"s_add_u32 s{sT1}, s{sT1}, {W_REC}")
    A(f"v_lshl_add_u32 v{vRd}, v{vL}, 4, s{sT1}")
    A(f"v_add_u32 v{vRd2}, 4096, v{vRd}")
    A(f"s_mul_i32 s{sT1}, s{sW}, 384")
    A(f"v_lshl_add_u32 v{vOl}, v{vL}, 1, s{sT1}")
    A(f"s_mov_b32 s{sSpin}, {SPIN}")
    A(f"s_mov_b32 s{sLoad}, 0")
    A(f"s_mov_b32 s{sOk}, 0")
    A("s_setprio 3")
    A("s_barrier")
    stamp(4)
    stamp(1, "epi")
    HD = G + 24
    LB("rpoll")
    A(f"global_load_dwordx4 v[{HD}:{HD+3}], v{vRh}, s[{sWS}:{sWS+1}] {SC}")
    for j in range(8):
        va = vRd if j < 4 else vRd2
        A(f"s_bitcmp1_b32 s{sLoad}, {j}")
        A(f"s_cbranch_scc0 L_rs{j}")
        A(f"global_load_dwordx4 v[{QL+4*j}:{QL+4*j+3}], v{va}, s[{sWS}:{sWS+1}] offset:{1024*(j%4)} {SC}")
        LB(f"rs{j}")
    A("s_waitcnt vmcnt(0)")
    xor3(HD + 4, f"v{HD}", f"v{HD+1}", f"v{HD+2}")
    A(f"v_cmp_eq_u32 vcc, s{sTag}, v{HD+4}")
    A(f"s_and_b32 s{sHv}, vcc_lo, 0xff")
    for j in range(8):
        A(f"s_bitcmp1_b32 s{sLoad}, {j}")
        A(f"s_cbranch_scc0 L_rv{j}")
        xor3(a, f"v{QL+4*j}", f"v{QL+4*j+1}", f"v{QL+4*j+2}")
        A(f"v_xor_b32 v{a}, v{a}, v{QL+4*j+3}")
        A(f"v_cmp_ne_u32 vcc, s{sTag}, v{a}")
        A(f"s_cbranch_vccnz L_rv{j}")
        A(f"s_bitset1_b32 s{sOk}, {j}")
        LB(f"rv{j}")
    A(f"s_and_b32 s{sT0}, s{sOk}, s{sHv}")
    A(f"s_cmp_eq_u32 s{sT0}, 0xff")
    A("s_cbranch_scc1 L_rok")
    A(f"s_bcnt1_i32_b32 s{sT0}, s{sHv}")
    A(f"s_cmp_ge_u32 s{sT0}, {8-nmiss}")
    A(f"s_cselect_b32 s{sLoad}, 0xff, s{sHv}")
    A(f"s_andn2_b32 s{sLoad}, s{sLoad}, s{sOk}")
    spin_tail("rpoll", sleep=hsleep)
    LB("rok")
    stamp(3, "epi")
    A(f"v_mov_b32 v{HD+4}, v{HD}")
    k.butterfly("v_max_f32", [HD + 4], 3)
    A(f"v_sub_f32 v{HD+5}, v{HD}, v{HD+4}")
    A(f"v_mul_f32 v{HD+5}, {LOG2E}, v{HD+5}")
    A(f"v_exp_f32 v{HD+5}, v{HD+5}")
    A("s_nop 0")
    A(f"v_mul_f32 v{HD+6}, v{HD+5}, v{HD+1}")
    for j in range(8):
        A(f"v_readlane_b32 s{sWt+j}, v{HD+5}, {j}")
    k.dpp("v_add_f32", HD + 6, "quad_perm:[1,0,3,2]")
    O = HD + 8
    A(f"v_pk_mul_f32 v[{O}:{O+1}], v[{QL}:{QL+1}], s[{sWt}:{sWt+1}] op_sel_hi:[1,0]")
    A(f"v_mul_f32 v{O+2}, s{sWt}, v{QL+2}")
    k.dpp("v_add_f32", HD + 6, "quad_perm:[2,3,0,1]")
    for j in range(1, 8):
        k.pkfma(O, QL + 4 * j, sWt + j, pre="s")
        A(f"v_fmac_f32 v{O+2}, s{sWt+j}, v{QL+4*j+2}")
        if j == 1:
            k.dpp("v_add_f32", HD + 6, "row_half_mirror")
        if j == 2:
            A(f"v_rcp_f32 v{HD+7}, v{HD+6}")
    for i in range(3):
        A(f"v_mul_f32 v{O+4+i}, v{O+i}, v{HD+7}")
    for i in range(3):
        A(f"v_fma_f32 v{O+i}, -v{O+4+i}, v{HD+6}, v{O+i}")
    for i in range(3):
        A(f"v_fma_f32 v{O+i}, v{O+i}, v{HD+7}, v{O+4+i}")
    A(f"v_cvt_pk_bf16_f32 v{O+4}, v{O}, v{O+1}")
    A(f"v_cvt_pk_bf16_f32 v{O+5}, v{O+2}, v{O+2}")
    A(f"ds_write_b16 v{vOl}, v{O+4} offset:{L_OB}")
    A(f"ds_write_b16_d16_hi v{vOl}, v{O+4} offset:{L_OB+128}")
    A(f"ds_write_b16 v{vOl}, v{O+5} offset:{L_OB+256}")
    A("s_waitcnt lgkmcnt(0)")
    A("s_barrier")
    for kb in range(6):
        A(f"ds_read_b128 v[{AF+4*kb}:{AF+4*kb+3}], v{vAf} offset:{L_OB+64*kb}")
    A("s_waitcnt lgkmcnt(0)")
    proj_store(6, FB, 24, W_YA, "ya_done")
    stamp(4, "epi")
    A(f"s_cmp_eq_u32 s{sFin}, 0")
    A("s_cbranch_scc1 L_svc_end")
    ysum(W_YA, "yap", 1, 64)
    k.rnd2(Yv, Yv + 1, Yv + 2)
    A(f"v_add_f32 v{Yv}, v{FXR}, v{Yv}")
    A(f"v_add_f32 v{Yv+1}, v{FXR+1}, v{Yv+1}")
    k.rnd2(Yv, Yv + 1, Yv + 2)
    A(f"v_add_f32 v{Yv}, v{Yv}, v{FXR+3}")
    A(f"v_add_f32 v{Yv+1}, v{Yv+1}, v{FXR+4}")
    A(f"v_cvt_pk_bf16_f32 v{Yv}, v{Yv}, v{Yv+1}")
    k.set_exec(3)
    A(f"global_store_short v{FXR+5}, v{Yv}, s[{sOUT}:{sOUT+1}]")
    A(f"global_store_short_d16_hi v{FXR+5}, v{Yv}, s[{sOUT}:{sOUT+1}] offset:1280")
    k.set_exec(-1)
    C("generation bump by (h=0, j=0, w=0)")
    A(f"s_or_b32 s{sT0}, s2, s{sW}")
    A(f"s_cmp_eq_u32 s{sT0}, 0")
    A("s_cbranch_scc0 L_svc_end")
    A(f"v_mov_b32 v{vT0}, {W_GEN}")
    A(f"v_mov_b32 v{vT1}, s{sTag}")
    k.set_exec(1)
    A(f"global_store_dword v{vT0}, v{vT1}, s[{sWS}:{sWS+1}] {SC}")
    k.set_exec(-1)
    LB("svc_end")
    stamp(5)
    stamp(5, "epi")
    write_stamps(QL, vT0)
    A("s_endpgm")
    LB("stream")
    in_service[0] = False
    C("================= stream waves (4..7) =================")
    vKoff, vOne, vM, vLs, vAl, vQa, vCa = 2, 6, 7, 8, 9, 10, 11
    vClaim = [5, 0]
    S = 12
    k.TP = 16
    k.ntp = 4
    D = 16
    QF = 24
    ACC = 36
    SL = 60
    MG = 60

    def kreg(x):
        return SL + 48 * x

    def vreg(x):
        return SL + 48 * x + 24

    def loads(base, srd, so):
        for j in range(6):
            r = base + 4 * j
            A(f"buffer_load_dwordx4 v[{r}:{r+3}], v{vKoff}, s[{srd}:{srd+3}], s{so} offen offset:{boff[j]} nt")

    def k_tile(x):
        s0 = kreg(x)
        Da, Db = D, D + 4
        for n in range(3):
            ca = "0" if n == 0 else f"v[{Da}:{Da+3}]"
            cb = "0" if n == 0 else f"v[{Db}:{Db+3}]"
            A(f"v_mfma_f32_16x16x32_bf16 v[{Da}:{Da+3}], v[{QF+4*n}:{QF+4*n+3}], v[{s0+4*n}:{s0+4*n+3}], {ca}")
            A(f"v_mfma_f32_16x16x32_bf16 v[{Db}:{Db+3}], v[{QF+4*n}:{QF+4*n+3}], v[{s0+12+4*n}:{s0+12+4*n+3}], {cb}")

    def softmax():
        for t in range(2):
            d = D + 4 * t
            A(f"v_add_f32_dpp v{S+t}, v{d+1}, v{d} row_ror:8 row_mask:0xf bank_mask:0x3")
            A(f"v_add_f32_dpp v{S+t}, v{d}, v{d+1} row_ror:8 row_mask:0xf bank_mask:0xc")
        if mimic:
            k.rnd2(S, S + 1, vT0)
        for t in range(2):
            A(f"v_mul_f32 v{S+t}, {SCALE}, v{S+t}")
        if mimic:
            k.rnd2(S, S + 1, vT0)
        A(f"v_max3_f32 v{vT0}, v{vM}, v{S}, v{S+1}")
        A(f"v_sub_f32 v{vAl}, v{vM}, v{vT0}")
        for t in range(2):
            A(f"v_sub_f32 v{S+t}, v{S+t}, v{vT0}")
        A(f"v_mul_f32 v{vAl}, {LOG2E}, v{vAl}")
        for t in range(2):
            A(f"v_mul_f32 v{S+t}, {LOG2E}, v{S+t}")
        A(f"v_exp_f32 v{vAl}, v{vAl}")
        for t in range(2):
            A(f"v_exp_f32 v{S+t}, v{S+t}")
        A(f"v_mov_b32 v{vM}, v{vT0}")
        A(f"v_fma_f32 v{vLs}, v{vLs}, v{vAl}, v{S}")
        for i in range(12):
            k.pkmul(ACC + 2 * i, vAl)
        A(f"v_add_f32 v{vLs}, v{vLs}, v{S+1}")

    def v_tile(x):
        s0 = vreg(x)
        items = [(s0 + 12 * half + 4 * n + d, ACC + 8 * n + 2 * d, S + half)
                 for half in range(2) for n in range(3) for d in range(4)]
        pend = []
        for it in items:
            t = k.unpack(it[0])
            pend.append((it[1], t, it[2]))
            if len(pend) > 2:
                ac, tt, m = pend.pop(0)
                k.pkfma(ac, tt, m)
        for ac, tt, m in pend:
            k.pkfma(ac, tt, m)

    def flush():
        A(f"v_mov_b32 v{vT0}, v{vM}")
        k.butterfly("v_max_f32", [vT0], 3)
        A(f"v_sub_f32 v{vAl}, v{vM}, v{vT0}")
        A(f"v_mul_f32 v{vAl}, {LOG2E}, v{vAl}")
        A(f"v_exp_f32 v{vAl}, v{vAl}")
        A(f"s_mul_i32 s{sT0}, s{sWs}, 5")
        A(f"s_add_u32 s{sT0}, s{sT0}, s{sSlot}")
        A(f"s_lshl_b32 s{sT1}, s{sT0}, 10")
        A(f"v_mul_f32 v{vLs}, v{vLs}, v{vAl}")
        for i in range(12):
            k.pkmul(ACC + 2 * i, vAl)
        k.dpp("v_add_f32", vLs, "quad_perm:[1,0,3,2]")
        for n in range(3):
            for c in range(4):
                x, y = ACC + 8 * n + c, ACC + 8 * n + c + 4
                A(f"v_add_f32_dpp v{x}, v{x}, v{x} row_half_mirror row_mask:0xf bank_mask:0x5")
                A(f"v_add_f32_dpp v{x}, v{y}, v{y} row_half_mirror row_mask:0xf bank_mask:0xa")
        k.dpp("v_add_f32", vLs, "quad_perm:[2,3,0,1]")
        for n in range(3):
            for c in range(2):
                x, y = ACC + 8 * n + c, ACC + 8 * n + c + 2
                A(f"v_cndmask_b32 v{x+4}, v{y}, v{x}, s[{sM1}:{sM1+1}]")
                A(f"v_cndmask_b32 v{x}, v{x}, v{y}, s[{sM1}:{sM1+1}]")
        k.dpp("v_add_f32", vLs, "row_half_mirror")
        for n in range(3):
            for c in range(2):
                x = ACC + 8 * n + c
                A(f"v_add_f32_dpp v{x}, v{x+4}, v{x} quad_perm:[2,3,0,1] row_mask:0xf bank_mask:0xf")
        for n in range(3):
            x, y = ACC + 8 * n, ACC + 8 * n + 1
            A(f"v_cndmask_b32 v{x+4}, v{y}, v{x}, s[{sM0}:{sM0+1}]")
            A(f"v_cndmask_b32 v{x}, v{x}, v{y}, s[{sM0}:{sM0+1}]")
        A(f"v_lshl_add_u32 v{vT1}, v{vL}, 4, s{sT1}")
        A(f"s_lshl_b32 s{sT0}, s{sT0}, 4")
        for n in range(3):
            x = ACC + 8 * n
            A(f"v_add_f32_dpp v{D+n}, v{x+4}, v{x} quad_perm:[1,0,3,2] row_mask:0xf bank_mask:0xf")
        A(f"v_mov_b32 v{S}, v{vT0}")
        A(f"v_mov_b32 v{S+1}, v{vLs}")
        A(f"v_mov_b32 v{S+2}, s{sPairSt}")
        A(f"v_mov_b32 v{vT0}, s{sT0}")
        A(f"ds_write_b128 v{vT1}, v[{D}:{D+3}] offset:{L_REC}")
        k.set_exec(1)
        A(f"ds_write_b128 v{vT0}, v[{S}:{S+3}] offset:{L_RHD}")
        k.set_exec(-1)
        A(f"s_add_u32 s{sSlot}, s{sSlot}, 1")

    def reset_state():
        A(f"v_mov_b32 v{vM}, {NEGBIG}")
        A(f"v_mov_b32 v{vLs}, 0")
        for i in range(24):
            A(f"v_mov_b32 v{ACC+i}, 0")

    def load_q():
        A(f"s_lshl_b32 s{sT0}, s{sPairCur}, 9")
        A(f"v_add_u32 v{vT0}, s{sT0}, v{vQa}")
        for n in range(3):
            A(f"ds_read_b128 v[{QF+4*n}:{QF+4*n+3}], v{vT0} offset:{L_QH+128*n}")
        A(f"s_mov_b32 s{sPairSt}, s{sPairCur}")

    uid = [0]

    def check_pair(x):
        uid[0] += 1
        A(f"s_cmp_eq_u32 s{sPair[x]}, s{sPairSt}")
        A(f"s_cbranch_scc1 L_same{uid[0]}")
        A(f"s_mov_b32 s{sPairCur}, s{sPair[x]}")
        A(f"s_call_b64 s[{sRet}:{sRet+1}], L_switch")
        LB(f"same{uid[0]}")

    A(f"s_sub_u32 s{sWs}, s{sW}, 4")
    A(f"v_and_b32 v{vT0}, 7, v{vL}")
    A(f"v_lshrrev_b32 v{vT1}, 3, v{vL}")
    A(f"v_mul_u32_u24 v{vKoff}, 384, v{vT0}")
    A(f"v_lshl_add_u32 v{vKoff}, v{vT1}, 4, v{vKoff}")
    A(f"s_lshr_b32 s{sPairCur}, s{sJ}, 1")
    A(f"s_mul_i32 s{sHoff}, s{sH}, 3145728")
    A(f"s_mul_i32 s{sStat}, s{sPairCur}, 100663296")
    A(f"s_add_u32 s{sStat}, s{sStat}, s{sHoff}")
    A(f"s_and_b32 s{sT0}, s{sJ}, 1")
    A(f"s_lshl_b32 s{sT0}, s{sT0}, 2")
    A(f"s_add_u32 s{sT0}, s{sT0}, s{sWs}")
    A(f"s_mul_i32 s{sT0}, s{sT0}, {NS*6144}")
    A(f"s_add_u32 s{sStat}, s{sStat}, s{sT0}")
    A("s_waitcnt lgkmcnt(0)")
    A(f"s_load_dword s{sTag}, s[{sWS}:{sWS+1}], {W_GEN}")
    k.srd(rK, sKp, 402653184)
    k.srd(rV, sVp, 402653184)
    A("s_barrier")
    order = [2 + i for i in range(NPRE)] + [0, 1]
    for x in order:
        loads(kreg(x), rK, sStat)
        loads(vreg(x), rV, sStat)
        A(f"s_add_u32 s{sStat}, s{sStat}, 6144")
    A(f"v_lshrrev_b32 v{vQa}, 4, v{vL}")
    A(f"v_lshlrev_b32 v{vQa}, 5, v{vQa}")
    A(f"v_and_b32 v{vT1}, 1, v{vL}")
    A(f"v_lshl_add_u32 v{vQa}, v{vT1}, 4, v{vQa}")
    A(f"v_mov_b32 v{vOne}, 1")
    A(f"s_lshl_b32 s{sT0}, s{sH}, 7")
    A(f"s_add_u32 s{sT0}, s{sT0}, {W_QCNT}")
    A(f"v_mov_b32 v{vCa}, s{sT0}")
    A(f"s_mov_b32 s{sPair[0]}, s{sPairCur}")
    A(f"s_mov_b32 s{sPair[1]}, s{sPairCur}")
    A(f"s_mov_b32 s{sRem}, {NS - 2 - NPRE}")
    A(f"s_mov_b32 s{sSlot}, 0")
    A(f"s_mov_b32 s{sM1}, 0xcccccccc")
    A(f"s_mov_b32 s{sM1+1}, 0xcccccccc")
    A(f"s_mov_b32 s{sM0}, 0xaaaaaaaa")
    A(f"s_mov_b32 s{sM0+1}, 0xaaaaaaaa")
    reset_state()
    A("s_waitcnt lgkmcnt(0)")
    A(f"s_add_u32 s{sTag}, s{sTag}, 1")
    stamp(1)
    A("s_barrier")
    load_q()
    A("s_waitcnt lgkmcnt(0)")
    stamp(2)
    for i in range(NPRE):
        rem = 12 * (NPRE + 2 - i)
        A(f"s_waitcnt vmcnt({rem-6})")
        k_tile(2 + i)
        A("s_nop 7")
        softmax()
        A(f"s_waitcnt vmcnt({rem-12})")
        v_tile(2 + i)
    LB("loop")
    for x in range(2):
        A("s_waitcnt vmcnt(18)")
        check_pair(x)
        k_tile(x)
        A(f"s_sub_u32 s{sRem}, s{sRem}, 1")
        A(f"s_cmp_gt_i32 s{sRem}, 1")
        A(f"s_cbranch_scc0 L_dyn{x}")
        A(f"s_mov_b32 s{sNxt}, s{sStat}")
        A(f"s_add_u32 s{sStat}, s{sStat}, 6144")
        LB(f"dynret{x}")
        loads(kreg(x), rK, sNxt)
        softmax()
        A("s_waitcnt vmcnt(18)")
        v_tile(x)
        loads(vreg(x), rV, sNxt)
    A("s_branch L_loop")
    for x in range(2):
        LB(f"dyn{x}")
        A(f"s_mov_b32 s{sNxt}, s{sStat}")
        A(f"s_add_u32 s{sStat}, s{sStat}, 6144")
        A(f"s_cmp_ge_i32 s{sRem}, 0")
        A(f"s_cbranch_scc1 L_claim{x}")
        A(f"v_readfirstlane_b32 s{sT0}, v{vClaim[x]}")
        A("s_nop 3")
        A(f"s_cmp_ge_u32 s{sT0}, {NPOOL}")
        A(f"s_cbranch_scc1 L_last{x}")
        A(f"s_lshr_b32 s{sPair[x]}, s{sT0}, {LDP}")
        A(f"s_and_b32 s{sT0}, s{sT0}, {DP-1}")
        A(f"s_add_u32 s{sT0}, s{sT0}, {512-DP}")
        A(f"s_mul_i32 s{sT0}, s{sT0}, 6144")
        A(f"s_mul_i32 s{sNxt}, s{sPair[x]}, 100663296")
        A(f"s_add_u32 s{sNxt}, s{sNxt}, s{sHoff}")
        A(f"s_add_u32 s{sNxt}, s{sNxt}, s{sT0}")
        LB(f"claim{x}")
        k.set_exec(1)
        A(f"global_atomic_add v{vClaim[x]}, v{vCa}, v{vOne}, s[{sWS}:{sWS+1}] sc0")
        k.set_exec(-1)
        A(f"s_branch L_dynret{x}")
    LB("switch")
    flush()
    lds_wait4("swrdy", vT1, vT0)
    load_q()
    reset_state()
    A("s_waitcnt lgkmcnt(0)")
    A(f"s_setpc_b64 s[{sRet}:{sRet+1}]")
    for x in range(2):
        y = 1 - x
        LB(f"last{x}")
        stamp(3)
        A("s_nop 3")
        softmax()
        A("s_waitcnt vmcnt(12)")
        v_tile(x)
        A("s_waitcnt vmcnt(6)")
        check_pair(y)
        k_tile(y)
        A("s_nop 7")
        softmax()
        A("s_waitcnt vmcnt(0)")
        v_tile(y)
        if x == 0:
            A("s_branch L_fin")
    LB("fin")
    flush()
    vRa, vRhh = QF, QF + 2
    A(f"s_lshl_b32 s{sT0}, s{sH}, 2")
    A(f"s_add_u32 s{sT0}, s{sT0}, s{sWs}")
    A(f"s_lshl_b32 s{sT0}, s{sT0}, 3")
    A(f"s_add_u32 s{sT0}, s{sT0}, s{sJ}")
    A(f"s_lshl_b32 s{sT1}, s{sT0}, 10")
    A(f"s_add_u32 s{sT1}, s{sT1}, {W_REC}")
    A(f"v_lshl_add_u32 v{vRa}, v{vL}, 4, s{sT1}")
    A(f"s_lshl_b32 s{sT1}, s{sT0}, 4")
    A(f"s_add_u32 s{sT1}, s{sT1}, {W_RH}")
    A(f"v_mov_b32 v{vRhh}, s{sT1}")
    A(f"v_min_u32 v{vT0}, 19, v{vL}")
    A(f"v_lshlrev_b32 v{vT0}, 4, v{vT0}")
    A(f"v_lshlrev_b32 v{vT1}, 4, v{vL}")
    A(f"v_cmp_gt_u32 s[{sM0}:{sM0+1}], 20, v{vL}")
    A(f"v_mov_b32 v{vM}, {NEGBIG}")
    A("s_waitcnt lgkmcnt(0)")
    A("s_barrier")
    stamp(4)
    C("==== WG merge: stream wave w handles pair w ====")
    A(f"ds_read_b128 v[{S}:{S+3}], v{vT0} offset:{L_RHD}")
    for i in range(14):
        A(f"ds_read_b128 v[{MG+4*i}:{MG+4*i+3}], v{vT1} offset:{L_REC+1024*i}")
    A("s_waitcnt lgkmcnt(14)")
    A(f"v_cmp_eq_u32 vcc, s{sWs}, v{S+2}")
    A(f"s_and_b64 vcc, vcc, s[{sM0}:{sM0+1}]")
    for i in range(14, 20):
        A(f"ds_read_b128 v[{MG+4*i}:{MG+4*i+3}], v{vT1} offset:{L_REC+1024*i}")
    A(f"v_cndmask_b32 v{vM}, v{vM}, v{S}, vcc")
    C("records live in lanes 0..19: reduce rows 0,1 only")
    k.butterfly("v_max_f32", [vM], 4)
    A("s_nop 0")
    A(f"v_readlane_b32 s{sT0}, v{vM}, 0")
    A(f"v_readlane_b32 s{sT1}, v{vM}, 16")
    A("s_nop 0")
    A(f"v_mov_b32 v{vM}, s{sT0}")
    A(f"v_max_f32 v{vM}, s{sT1}, v{vM}")
    A(f"v_sub_f32 v{vAl}, v{S}, v{vM}")
    A(f"v_mul_f32 v{vAl}, {LOG2E}, v{vAl}")
    A(f"v_exp_f32 v{vAl}, v{vAl}")
    A("s_nop 0")
    A(f"v_cndmask_b32 v{vAl}, 0, v{vAl}, vcc")
    A(f"v_mul_f32 v{vLs}, v{vAl}, v{S+1}")
    ctr = ["quad_perm:[1,0,3,2]", "quad_perm:[2,3,0,1]", "row_half_mirror", "row_mirror"]
    for i in range(20):
        A(f"v_readlane_b32 s{sWt+i}, v{vAl}, {i}")
        if i % 4 == 2 and i // 4 < 4:
            k.dpp("v_add_f32", vLs, ctr[i // 4])
    A(f"v_readlane_b32 s{sT0}, v{vLs}, 0")
    A(f"v_readlane_b32 s{sT1}, v{vLs}, 16")
    A("s_waitcnt lgkmcnt(0)")
    A(f"v_pk_mul_f32 v[{ACC}:{ACC+1}], v[{MG}:{MG+1}], s[{sWt}:{sWt+1}] op_sel_hi:[1,0]")
    A(f"v_mul_f32 v{ACC+2}, s{sWt}, v{MG+2}")
    A(f"v_mov_b32 v{ACC+9}, s{sT0}")
    A(f"v_add_f32 v{ACC+9}, s{sT1}, v{ACC+9}")
    A(f"v_mov_b32 v{ACC+8}, v{vM}")
    xor3(ACC + 10, f"v{vM}", f"v{ACC+9}", f"s{sTag}")
    for i in range(1, 20):
        k.pkfma(ACC, MG + 4 * i, sWt + i, pre="s")
        A(f"v_fmac_f32 v{ACC+2}, s{sWt+i}, v{MG+4*i+2}")
    xor3(ACC + 3, f"v{ACC}", f"v{ACC+1}", f"v{ACC+2}")
    A(f"v_xor_b32 v{ACC+3}, s{sTag}, v{ACC+3}")
    A(f"global_store_dwordx4 v{vRa}, v[{ACC}:{ACC+3}], s[{sWS}:{sWS+1}] {SC}")
    k.set_exec(1)
    A(f"global_store_dwordx4 v{vRhh}, v[{ACC+8}:{ACC+11}], s[{sWS}:{sWS+1}] {SC}")
    k.set_exec(-1)
    stamp(5)
    write_stamps(MG, vT1)
    LB("end")
    A("s_endpgm")
    return k, (256, 256), L_TOTAL


def build(stamps=False, **kw):
    k2, r2, l2 = build_main(stamps, **kw)
    txt = HEADER
    txt += f"; @launch grid=(256,1,1) block=(512,1,1) lds={l2}\n"
    txt += '.amdgcn_target "amdgcn-amd-amdhsa--gfx950"\n.text\n'
    txt += k2.text()
    txt += '.section .rodata,"a"\n'
    txt += k2.desc(*r2)
    return txt


if __name__ == "__main__":
    out = sys.argv[1] if len(sys.argv) > 1 else f"cdna_kernels/{NAME}.s"
    stamps = sys.argv[2] if len(sys.argv) > 2 and sys.argv[2] != "-" else False
    kw = {}
    for a in sys.argv[3:]:
        n, v = a.split("=")
        kw[n] = int(v)
    open(out, "w").write(build(stamps, **kw))
    print("wrote", out)
```

```python
import sys
from gen_v1 import HEADER, NAME
from gen_v2 import K, load_kernargs, SCALE, LOG2E, NEGBIG
from gen_v2 import sX, sKp, sVp, sWQp, sWOp, sW1p, sB1p, sW2p, sB2p, sOUT, sDBG, sWS

W_GEN = 0x0
W_QCNT = 0x1000
W_RH = 0xE0000
W_FR = 0x20000
W_YA = 0x40000
W_REC = 0x100000
W_QC = 0x200000
W_YB = 0x240000
W_QP = 0x300000
W_STAMP = 0x1000000
SPIN = 0x80000


def build_main(stamps=False, DP=64, NPRE=2, mimic=1, hsleep=1, qsleep=0, nmiss=2, pre1=0, pre2=0, noq=0, stop=0, ysleep=1):
    SC = "sc1"
    k = K(f"{NAME}_kernel")
    k.lab = lambda s: f"L_{s}"
    k.LB = lambda s: k.L.append(f"L_{s}:")
    A, LB, C = k.A, k.LB, k.C
    sT0, sT1, sT2, sT3 = k.sT
    NS = (512 - DP) // 8
    LDP = DP.bit_length() - 1
    NPOOL = 4 * DP
    sW, sH, sJ = 3, 4, 5
    sRem, sStat, sNxt = 6, 7, 12
    sPairCur, sPairSt, sSlot, sHoff = 13, 14, 42, 43
    rK, rV = 44, 48
    sPair = [52, 53]
    sRet = 54
    sWt = 56
    sTm = 76
    sTag = 78
    sSpin = 79
    rW = 80
    sOff = 84
    sWs = 85
    sM1, sM0 = 86, 88
    sTs = 96
    L_QH = 0
    L_SYNC = 2048
    L_RHD = 2112
    L_OB = 2560
    L_REC = 4096
    L_XN = L_REC + 20480
    L_WT = 32768
    L_TOTAL = L_WT + 65536
    boff = [0, 128, 256, 3072, 3200, 3328]
    in_service = [True]

    def stamp(i, mode="stamps"):
        if stamps and (mode == stamps or (mode == "stamps" and (i == 0 or not in_service[0]))):
            A(f"s_memrealtime s[{sTm}:{sTm+1}]")
            A("s_waitcnt lgkmcnt(0)")
            A(f"s_mov_b32 s{sTs+i}, s{sTm}")

    def write_stamps(tmp, vA):
        if stamps:
            A(f"s_getreg_b32 s{sT2}, hwreg(HW_REG_XCC_ID)")
            A(f"s_lshl_b32 s{sT1}, s2, 3")
            A(f"s_add_u32 s{sT1}, s{sT1}, s{sW}")
            A(f"s_lshl_b32 s{sT1}, s{sT1}, 5")
            A(f"s_add_u32 s{sT1}, s{sT1}, {W_STAMP}")
            for i in range(6):
                A(f"v_mov_b32 v{tmp+i}, s{sTs+i}")
            A(f"v_mov_b32 v{tmp+6}, s{sT2}")
            A(f"v_mov_b32 v{tmp+7}, 0x12345678")
            A(f"v_mov_b32 v{vA}, s{sT1}")
            k.set_exec(1)
            A(f"global_store_dwordx4 v{vA}, v[{tmp}:{tmp+3}], s[{sWS}:{sWS+1}]")
            A(f"global_store_dwordx4 v{vA}, v[{tmp+4}:{tmp+7}], s[{sWS}:{sWS+1}] offset:16")
            k.set_exec(-1)

    def xor3(d, a, b, c):
        A(f"v_bitop3_b32 v{d}, {a}, {b}, {c} bitop3:0x96")

    def spin_tail(loop, sleep=None):
        if sleep:
            A(f"s_sleep {sleep}")
        A(f"s_sub_u32 s{sSpin}, s{sSpin}, 1")
        A(f"s_cmp_lg_u32 s{sSpin}, 0")
        A(f"s_cbranch_scc1 L_{loop}")

    def lds_wait4(tagl, vA, vD):
        A(f"v_mov_b32 v{vA}, {L_SYNC}")
        A(f"s_mov_b32 s{sSpin}, {SPIN*16}")
        LB(tagl)
        A(f"ds_read_b32 v{vD}, v{vA}")
        A("s_waitcnt lgkmcnt(0)")
        A(f"v_readfirstlane_b32 s{sT0}, v{vD}")
        A("s_nop 3")
        A(f"s_cmp_ge_u32 s{sT0}, 4")
        A(f"s_cbranch_scc1 L_{tagl}ok")
        spin_tail(tagl, sleep=4)
        LB(tagl + "ok")

    vL, vT0, vT1 = 1, 3, 4
    A("s_cmp_ge_u32 s2, 256")
    A("s_cbranch_scc1 L_end")
    stamp(0)
    load_kernargs(k)
    A(f"v_and_b32 v{vL}, 63, v0")
    A(f"v_lshrrev_b32 v{vT0}, 6, v0")
    A(f"s_mov_b32 s{k.sMsk}, 0xffff0000")
    A(f"v_readfirstlane_b32 s{sW}, v{vT0}")
    A(f"s_lshr_b32 s{sH}, s2, 3")
    A(f"s_and_b32 s{sJ}, s2, 7")
    A(f"s_cmp_ge_u32 s{sW}, 4")
    A("s_cbranch_scc1 L_stream")
    C("================= service waves (0..3) =================")
    vOff, vXa, vXb, vOne_s = 2, 5, 6, 7
    a = 8
    k.TP = 16
    k.ntp = 2
    XR = 20
    XC = 40
    X = 44
    ACC = 84
    WR = 116
    E = 156
    QL = 164
    QK = 196
    B1R = 204
    FXR = 206
    A("s_setprio 3")
    A(f"v_lshrrev_b32 v{vT0}, 3, v{vL}")
    A(f"v_and_b32 v{vT1}, 7, v{vL}")
    A(f"s_cmp_eq_u32 s{sW}, 3")
    A(f"s_movk_i32 s{sT0}, 3072")
    A(f"s_cselect_b32 s{sT0}, s{sT0}, 12288")
    A(f"v_mul_lo_u32 v{vOff}, v{vT0}, s{sT0}")
    A(f"v_lshl_add_u32 v{vOff}, v{vT1}, 4, v{vOff}")
    A(f"s_mul_i32 s{sOff}, s{sJ}, 80")
    A(f"s_mul_i32 s{sOff}, s{sOff}, s{sT0}")
    A(f"s_lshl_b32 s{sT3}, s{sT0}, 3")
    A(f"s_mul_i32 s{sT1}, s{sH}, 384")
    A(f"s_lshl_b32 s{sT2}, s{sW}, 7")
    A(f"s_add_u32 s{sT1}, s{sT1}, s{sT2}")
    A(f"s_min_u32 s{sT2}, s{sH}, 23")
    A(f"s_lshl_b32 s{sT2}, s{sT2}, 7")
    A(f"s_cmp_eq_u32 s{sW}, 3")
    A(f"s_cselect_b32 s{sT1}, s{sT2}, s{sT1}")
    A(f"s_add_u32 s{sOff}, s{sOff}, s{sT1}")
    A(f"v_lshrrev_b32 v{vT0}, 4, v{vL}")
    A(f"v_mul_u32_u24 v{vT0}, 1280, v{vT0}")
    A(f"v_and_b32 v{vT1}, 15, v{vL}")
    A(f"v_lshl_add_u32 v{vXa}, v{vT1}, 4, v{vT0}")
    A(f"v_lshl_add_u32 v{a}, v{vT1}, 3, s{sT2}")
    A(f"v_min_u32 v{vT1}, 9, v{vT1}")
    A(f"v_lshl_add_u32 v{vXb}, v{vT1}, 4, v{vT0}")
    A(f"s_mul_i32 s{sT1}, s{sJ}, 160")
    A(f"v_add_u32 v{vXb}, s{sT1}, v{vXb}")
    A(f"v_mov_b32 v{vOne_s}, 1")
    for i in range(32):
        A(f"v_mov_b32 v{ACC+i}, 0")
    A(f"v_mov_b32 v{vT0}, {L_SYNC}")
    if stop:
        A(f"v_mov_b32 v{vT1}, 4")
        A(f"ds_write_b32 v{vT0}, v{vT1}")
    else:
        A(f"ds_write_b32 v{vT0}, v{ACC}")
    A(f"s_cmp_lt_u32 s{sH}, 24")
    A(f"s_cselect_b32 s{rW+2}, 1966080, 0")
    A("s_waitcnt lgkmcnt(0)")
    A(f"s_load_dword s{sTag}, s[{sWS}:{sWS+1}], {W_GEN}")
    for m in range(5):
        A(f"global_load_dwordx4 v[{XR+4*m}:{XR+4*m+3}], v{vXa}, s[{sX}:{sX+1}] offset:{256*m}")
    A(f"global_load_dwordx4 v[{XC}:{XC+3}], v{vXb}, s[{sX}:{sX+1}]")
    A(f"s_cmp_eq_u32 s{sW}, 3")
    A(f"s_cselect_b32 s{rW}, s{sW1p}, s{sWQp}")
    A(f"s_cselect_b32 s{rW+1}, s{sW1p+1}, s{sWQp+1}")
    A(f"s_cselect_b32 s{rW+2}, s{rW+2}, 7864320")
    A(f"s_mov_b32 s{rW+3}, 0x20000")
    for t in range(10):
        if stop != 1:
            A(f"buffer_load_dwordx4 v[{WR+4*t}:{WR+4*t+3}], v{vOff}, s[{rW}:{rW+3}], s{sOff} offen nt")
        if t < 9:
            A(f"s_add_u32 s{sOff}, s{sOff}, s{sT3}")
    A(f"global_load_dwordx2 v[{B1R}:{B1R+1}], v{a}, s[{sB1p}:{sB1p+1}]")
    if pre1:
        C("touch the hand-off lines this workgroup will write (brings them on-die)")
        A(f"s_lshl_b32 s{sT0}, s2, 12")
        A(f"s_lshl_b32 s{sT1}, s{sW}, 10")
        A(f"s_add_u32 s{sT0}, s{sT0}, s{sT1}")
        A(f"s_lshr_b32 s{sT1}, s{sT0}, 2")
        A(f"s_add_u32 s{sT0}, s{sT0}, {W_QP}")
        A(f"s_add_u32 s{sT1}, s{sT1}, {W_QC}")
        A(f"v_lshl_add_u32 v{vT0}, v{vL}, 4, s{sT0}")
        A(f"v_lshl_add_u32 v{vT1}, v{vL}, 2, s{sT1}")
        A(f"global_load_dwordx4 v[{QL}:{QL+3}], v{vT0}, s[{sWS}:{sWS+1}] {SC}")
        A(f"global_load_dword v{QL+4}, v{vT1}, s[{sWS}:{sWS+1}] {SC}")
    C("queue counter of this octet = 0 (j == 0, wave 0)")
    A(f"s_lshl_b32 s{sT0}, s{sH}, 7")
    A(f"s_add_u32 s{sT0}, s{sT0}, {W_QCNT}")
    A(f"v_mov_b32 v{vT0}, s{sT0}")
    A(f"s_or_b32 s{sT0}, s{sJ}, s{sW}")
    A(f"s_cmp_eq_u32 s{sT0}, 0")
    A("s_cbranch_scc0 L_noq")
    k.set_exec(1)
    A(f"global_store_dword v{vT0}, v{ACC}, s[{sWS}:{sWS+1}] {SC}")
    k.set_exec(-1)
    LB("noq")
    C("barrier 1 releases the stream waves")
    A("s_barrier")
    if noq:
        A("s_barrier")
    A(f"s_mul_i32 s{sT0}, s{sW}, 5120")
    A(f"v_lshl_add_u32 v{vT0}, v{vL}, 4, s{sT0}")
    for i in range(5):
        A(f"ds_write_b128 v{vT0}, v[{ACC}:{ACC+3}] offset:{L_REC+1024*i}")
    A(f"v_mov_b32 v{E}, {NEGBIG}")
    for i in range(1, 4):
        A(f"v_mov_b32 v{E+i}, 0")
    A(f"v_min_u32 v{vT0}, 19, v{vL}")
    A(f"v_lshlrev_b32 v{vT0}, 4, v{vT0}")
    A(f"ds_write_b128 v{vT0}, v[{E}:{E+3}] offset:{L_RHD}")
    if stop == 1:
        A("s_waitcnt vmcnt(0) lgkmcnt(0)")
        A("s_branch L_svc_end")
    C("---- LayerNorm statistics, 16 lanes per batch ----")
    A(f"s_waitcnt vmcnt({11 + 2*pre1})")
    stamp(1, "pro")
    for i in range(20):
        A(f"v_lshlrev_b32 v{X+2*i}, 16, v{XR+i}")
        A(f"v_and_b32 v{X+2*i+1}, s{k.sMsk}, v{XR+i}")
    A(f"v_pk_add_f32 v[{a}:{a+1}], v[{X}:{X+1}], v[{X+2}:{X+3}]")
    A(f"v_pk_add_f32 v[{a+2}:{a+3}], v[{X+4}:{X+5}], v[{X+6}:{X+7}]")
    for i in range(4, 20):
        d = a + 2 * (i & 1)
        A(f"v_pk_add_f32 v[{d}:{d+1}], v[{d}:{d+1}], v[{X+2*i}:{X+2*i+1}]")
    A(f"v_pk_add_f32 v[{a}:{a+1}], v[{a}:{a+1}], v[{a+2}:{a+3}]")
    A(f"v_add_f32 v{a}, v{a}, v{a+1}")
    k.butterfly("v_add_f32", [a], 4)
    A(f"v_mul_f32 v{a}, {-1.0/640.0!r}, v{a}")
    for i in range(20):
        A(f"v_pk_add_f32 v[{X+2*i}:{X+2*i+1}], v[{X+2*i}:{X+2*i+1}], v[{a}:{a+1}] op_sel_hi:[1,0]")
    A(f"v_pk_mul_f32 v[{a+2}:{a+3}], v[{X}:{X+1}], v[{X}:{X+1}]")
    A(f"v_pk_mul_f32 v[{a+4}:{a+5}], v[{X+2}:{X+3}], v[{X+2}:{X+3}]")
    for i in range(2, 20):
        d = a + 2 + 2 * (i & 1)
        A(f"v_pk_fma_f32 v[{d}:{d+1}], v[{X+2*i}:{X+2*i+1}], v[{X+2*i}:{X+2*i+1}], v[{d}:{d+1}]")
    A(f"v_pk_add_f32 v[{a+2}:{a+3}], v[{a+2}:{a+3}], v[{a+4}:{a+5}]")
    A(f"v_add_f32 v{a+2}, v{a+2}, v{a+3}")
    k.butterfly("v_add_f32", [a + 2], 4)
    A(f"v_mul_f32 v{a+2}, {1.0/640.0!r}, v{a+2}")
    k.rnd2(a, a + 2, a + 1)
    A(f"v_add_f32 v{a+2}, 0x3727c5ac, v{a+2}")
    k.rnd1(a + 2, a + 1)
    A(f"v_sqrt_f32 v{a+2}, v{a+2}")
    A("s_waitcnt lgkmcnt(0)")
    for i in range(4):
        A(f"v_lshlrev_b32 v{E+2*i}, 16, v{XC+i}")
        A(f"v_and_b32 v{E+2*i+1}, s{k.sMsk}, v{XC+i}")
    k.rnd1(a + 2, a + 1)
    A(f"v_rcp_f32 v{a+3}, v{a+2}")
    for i in range(8):
        A(f"v_add_f32 v{E+i}, v{E+i}, v{a}")
    for i in range(0, 8, 2):
        k.rnd2(E + i, E + i + 1, a + 1)
    for i in range(8):
        A(f"v_mul_f32 v{a+4}, v{E+i}, v{a+3}")
        A(f"v_fma_f32 v{a+5}, -v{a+4}, v{a+2}, v{E+i}")
        A(f"v_fma_f32 v{E+i}, v{a+5}, v{a+3}, v{a+4}")
    for i in range(0, 8, 2):
        k.rnd2(E + i, E + i + 1, a + 1)
    A(f"s_mul_i32 s{sT0}, s{sW}, 1280")
    A(f"v_and_b32 v{vT1}, 15, v{vL}")
    A(f"v_min_u32 v{vT1}, 9, v{vT1}")
    A(f"v_lshl_add_u32 v{vT1}, v{vT1}, 7, s{sT0}")
    A(f"v_lshrrev_b32 v{vT0}, 4, v{vL}")
    A(f"v_lshl_add_u32 v{vT1}, v{vT0}, 2, v{vT1}")
    for i in range(8):
        A(f"ds_write_b32 v{vT1}, v{E+i} offset:{L_XN+16*i}")
    A(f"v_lshrrev_b32 v{vT0}, 3, v{vL}")
    A(f"v_lshl_add_u32 v{vT0}, v{vT0}, 4, s{sT0}")
    A(f"s_add_u32 s{sTag}, s{sTag}, 1")
    XN = X
    for t in range(10):
        A(f"ds_read_b128 v[{XN+4*t}:{XN+4*t+3}], v{vT0} offset:{L_XN+128*t}")
    C("granule index 16w + 2e + half, row b = l>>4")
    A(f"v_and_b32 v{vT0}, 7, v{vL}")
    A(f"v_bfe_u32 v{vT1}, v{vL}, 3, 1")
    A(f"v_lshl_add_u32 v{vT0}, v{vT0}, 1, v{vT1}")
    A(f"s_lshl_b32 s{sT0}, s{sW}, 4")
    A(f"v_add_u32 v{vT0}, s{sT0}, v{vT0}")
    A(f"v_lshrrev_b32 v{vT1}, 4, v{vL}")
    A(f"v_lshl_add_u32 v{vT0}, v{vT1}, 6, v{vT0}")
    A(f"s_lshl_b32 s{sT0}, s2, 12")
    A(f"s_add_u32 s{sT0}, s{sT0}, {W_QP}")
    A(f"s_lshl_b32 s{sT1}, s2, 10")
    A(f"s_lshl_b32 s{sT2}, s{sW}, 8")
    A(f"s_add_u32 s{sT1}, s{sT1}, s{sT2}")
    A(f"s_add_u32 s{sT1}, s{sT1}, {W_QC}")
    A(f"v_lshl_add_u32 v{vXa}, v{vT0}, 4, s{sT0}")
    A(f"v_lshl_add_u32 v{vXb}, v{vL}, 2, s{sT1}")
    stamp(1)
    stamp(2, "pro")
    for t in range(10):
        A(f"s_waitcnt vmcnt({10-t+2*pre1 if t < 9 else 0}) lgkmcnt({9-t})")
        if t == 0:
            stamp(3, "pro")
        if t == 9:
            stamp(4, "pro")
        for d in range(4):
            tt = k.unpack(WR + 4 * t + d)
            for b in range(4):
                k.pkfma(ACC + 8 * b + 2 * d, tt, XN + 4 * t + b)
    C("reduce-scatter over lane bits 5,4,3")
    A("s_nop 1")
    for i in range(16):
        A(f"v_permlane32_swap_b32 v{ACC+i}, v{ACC+16+i}")
    for i in range(16):
        A(f"v_add_f32 v{ACC+i}, v{ACC+i}, v{ACC+16+i}")
    A("s_nop 1")
    for i in range(8):
        A(f"v_permlane16_swap_b32 v{ACC+i}, v{ACC+8+i}")
    for i in range(8):
        A(f"v_add_f32 v{ACC+i}, v{ACC+i}, v{ACC+8+i}")
    A("s_nop 1")
    for i in range(4):
        A(f"v_add_f32_dpp v{E+i}, v{ACC+i}, v{ACC+i} row_ror:8 row_mask:0xf bank_mask:0x3")
        A(f"v_add_f32_dpp v{E+i}, v{ACC+4+i}, v{ACC+4+i} row_ror:8 row_mask:0xf bank_mask:0xc")
    A(f"global_store_dwordx4 v{vXa}, v[{E}:{E+3}], s[{sWS}:{sWS+1}] {SC}")
    xor3(E + 4, f"v{E}", f"v{E+1}", f"v{E+2}")
    xor3(E + 4, f"v{E+4}", f"v{E+3}", f"s{sTag}")
    A(f"global_store_dword v{vXb}, v{E+4}, s[{sWS}:{sWS+1}] {SC}")
    stamp(2)
    stamp(5, "pro")
    if stop == 2:
        A("s_waitcnt vmcnt(0) lgkmcnt(0)")
        A("s_branch L_svc_end")
    C("addresses: final row FR[h*4+w], LDS row w")
    vFr, vQl = a + 6, a + 7
    A(f"s_lshl_b32 s{sT0}, s{sH}, 2")
    A(f"s_add_u32 s{sT0}, s{sT0}, s{sW}")
    A(f"s_lshl_b32 s{sT0}, s{sT0}, 10")
    A(f"s_add_u32 s{sT0}, s{sT0}, {W_FR}")
    A(f"v_lshl_add_u32 v{vFr}, v{vL}, 4, s{sT0}")
    A(f"s_lshl_b32 s{sT1}, s{sW}, 9")
    A(f"v_lshl_add_u32 v{vQl}, v{vL}, 3, s{sT1}")
    A(f"s_mov_b32 s{sSpin}, {SPIN}")
    A(f"s_lshr_b32 s{sPairCur}, s{sJ}, 1")
    A(f"s_cmp_eq_u32 s{sPairCur}, s{sW}")
    A("s_cbranch_scc0 L_nonhome")
    C("---- home wave: gather the 8 partial rows ----")
    A(f"s_lshl_b32 s{sT0}, s{sH}, 15")
    A(f"s_lshl_b32 s{sT1}, s{sW}, 10")
    A(f"s_add_u32 s{sT0}, s{sT0}, s{sT1}")
    A(f"s_add_u32 s{sT0}, s{sT0}, {W_QP}")
    A(f"v_lshl_add_u32 v{vXa}, v{vL}, 4, s{sT0}")
    C("check of granule l: [wg][w' = l>>4][16 b + 8 (l&1) + ((l&15)>>1)]")
    A(f"s_lshl_b32 s{sT1}, s{sH}, 13")
    A(f"s_lshl_b32 s{sT2}, s{sW}, 6")
    A(f"s_add_u32 s{sT1}, s{sT1}, s{sT2}")
    A(f"s_add_u32 s{sT1}, s{sT1}, {W_QC}")
    A(f"v_lshrrev_b32 v{vT0}, 4, v{vL}")
    A(f"v_lshl_add_u32 v{vXb}, v{vT0}, 8, s{sT1}")
    A(f"v_and_b32 v{vT0}, 1, v{vL}")
    A(f"v_lshl_add_u32 v{vXb}, v{vT0}, 5, v{vXb}")
    A(f"v_bfe_u32 v{vT0}, v{vL}, 1, 3")
    A(f"v_lshl_add_u32 v{vXb}, v{vT0}, 2, v{vXb}")
    A(f"v_add_u32 v{vT1}, 4096, v{vXb}")
    if qsleep:
        A(f"s_sleep {qsleep}")
    LB("qpoll")
    A(f"v_mov_b32 v{vT0}, v{vXa}")
    for j in range(8):
        if j:
            A(f"v_add_u32 v{vT0}, 4096, v{vT0}")
        A(f"global_load_dwordx4 v[{QL+4*j}:{QL+4*j+3}], v{vT0}, s[{sWS}:{sWS+1}] {SC}")
        va = vXb if j < 4 else vT1
        A(f"global_load_dword v{QK+j}, v{va}, s[{sWS}:{sWS+1}] offset:{1024*(j%4)} {SC}")
    for j in range(8):
        A(f"s_waitcnt vmcnt({14-2*j})")
        xor3(a, f"v{QL+4*j}", f"v{QL+4*j+1}", f"v{QL+4*j+2}")
        xor3(a + 1, f"v{QL+4*j+3}", f"v{QK+j}", f"s{sTag}")
        if j == 0:
            A(f"v_xor_b32 v{a+2}, v{a}, v{a+1}")
        else:
            A(f"v_xor_b32 v{a}, v{a}, v{a+1}")
            A(f"v_or_b32 v{a+2}, v{a+2}, v{a}")
    A(f"v_cmp_ne_u32 vcc, 0, v{a+2}")
    A("s_cbranch_vccz L_qok")
    spin_tail("qpoll")
    LB("qok")
    for j in range(1, 8):
        A(f"v_pk_add_f32 v[{QL}:{QL+1}], v[{QL}:{QL+1}], v[{QL+4*j}:{QL+4*j+1}]")
        A(f"v_pk_add_f32 v[{QL+2}:{QL+3}], v[{QL+2}:{QL+3}], v[{QL+4*j+2}:{QL+4*j+3}]")
    A(f"v_cvt_pk_bf16_f32 v{QL+4}, v{QL}, v{QL+1}")
    A(f"v_cvt_pk_bf16_f32 v{QL+5}, v{QL+2}, v{QL+3}")
    A(f"ds_write_b64 v{vQl}, v[{QL+4}:{QL+5}] offset:{L_QH}")
    stamp(3)
    if stamps == "stamps":
        A(f"s_sub_u32 s{sTs+1}, {SPIN}, s{sSpin}")
        A(f"s_mul_i32 s{sTs+1}, s{sTs+1}, 100")
        A(f"s_add_u32 s{sTs+1}, s{sTs+1}, s{sTs}")
    A("s_waitcnt lgkmcnt(0)")
    if not noq:
        A("s_barrier")
    A("s_setprio 0")
    C("hid = bf16(relu(bf16(bf16(sum) + b1))^2) on lanes 48..63")
    Hh = QL + 8
    A(f"v_lshlrev_b32 v{Hh}, 16, v{QL+4}")
    A(f"v_and_b32 v{Hh+1}, s{k.sMsk}, v{QL+4}")
    A(f"v_lshlrev_b32 v{Hh+2}, 16, v{QL+5}")
    A(f"v_and_b32 v{Hh+3}, s{k.sMsk}, v{QL+5}")
    A(f"v_lshlrev_b32 v{Hh+4}, 16, v{B1R}")
    A(f"v_and_b32 v{Hh+5}, s{k.sMsk}, v{B1R}")
    A(f"v_lshlrev_b32 v{Hh+6}, 16, v{B1R+1}")
    A(f"v_and_b32 v{Hh+7}, s{k.sMsk}, v{B1R+1}")
    for i in range(4):
        A(f"v_add_f32 v{Hh+i}, v{Hh+i}, v{Hh+4+i}")
    k.rnd2(Hh, Hh + 1, a)
    k.rnd2(Hh + 2, Hh + 3, a)
    for i in range(4):
        A(f"v_cmp_gt_f32 vcc, v{Hh+i}, 0")
        A("s_nop 1")
        A(f"v_cndmask_b32 v{Hh+i}, 0, v{Hh+i}, vcc")
    for i in range(4):
        A(f"v_mul_f32 v{Hh+i}, v{Hh+i}, v{Hh+i}")
    k.set_exec(0xffff << 48)
    A(f"v_cvt_pk_bf16_f32 v{QL+4}, v{Hh}, v{Hh+1}")
    A(f"v_cvt_pk_bf16_f32 v{QL+5}, v{Hh+2}, v{Hh+3}")
    A(f"ds_write_b64 v{vQl}, v[{QL+4}:{QL+5}] offset:{L_QH}")
    k.set_exec(-1)
    xor3(QL + 6, f"v{QL+4}", f"v{QL+5}", f"s{sTag}")
    A(f"s_bitcmp1_b32 s{sJ}, 0")
    A("s_cbranch_scc1 L_rowdone")
    A(f"global_store_dwordx4 v{vFr}, v[{QL+4}:{QL+7}], s[{sWS}:{sWS+1}] {SC}")
    A("s_branch L_rowdone")
    C("---- other waves: fetch the finished row later ----")
    LB("nonhome")
    A("s_waitcnt lgkmcnt(0)")
    if not noq:
        A("s_barrier")
    A("s_setprio 0")
    A("s_sleep 40")
    LB("fpoll")
    A(f"global_load_dwordx4 v[{QL+4}:{QL+7}], v{vFr}, s[{sWS}:{sWS+1}] {SC}")
    A("s_waitcnt vmcnt(0)")
    xor3(a, f"v{QL+4}", f"v{QL+5}", f"v{QL+6}")
    A(f"v_cmp_ne_u32 vcc, s{sTag}, v{a}")
    A("s_cbranch_vccz L_fok")
    spin_tail("fpoll", sleep=32)
    LB("fok")
    A(f"ds_write_b64 v{vQl}, v[{QL+4}:{QL+5}] offset:{L_QH}")
    stamp(3)
    LB("rowdone")
    stamp(1, "svc")
    if stop == 3:
        A("s_waitcnt vmcnt(0) lgkmcnt(0)")
        A("s_branch L_svc_end")
    C("weight lines -> registers -> LDS image [256 rows][128 B]; pass 1 only for j < 2")
    G = 20
    FB = 116
    F2 = 212
    AF = 228
    DD = 8
    vG = vOff
    rW2 = 44
    A(f"v_lshrrev_b32 v{vT0}, 3, v{vL}")
    A(f"v_mul_u32_u24 v{vG}, {1280-128}, v{vT0}")
    A(f"v_lshl_add_u32 v{vG}, v{vL}, 4, v{vG}")
    k.srd(rW, sWOp, 7864320)
    k.srd(rW2, sW2p, 1966080)
    A(f"s_lshl_b32 s{sT0}, s{sH}, 2")
    A(f"s_add_u32 s{sT0}, s{sT0}, s{sW}")
    A(f"s_lshl_b32 s{sT2}, s{sJ}, 7")
    A(f"s_mul_i32 s{sOff}, s{sT0}, {48*1280}")
    A(f"s_add_u32 s{sOff}, s{sOff}, s{sT2}")
    A(f"s_mul_i32 s{sT3}, s{sT0}, {16*1280}")
    A(f"s_add_u32 s{sT3}, s{sT3}, s{sT2}")
    A(f"s_mul_i32 s{sT0}, s{sW}, {48*128}")
    A(f"s_add_u32 s{sT0}, s{sT0}, {L_WT}")
    A(f"v_lshl_add_u32 v{vXa}, v{vL}, 4, s{sT0}")
    A(f"s_lshl_b32 s{sT0}, s{sW}, 11")
    A(f"s_add_u32 s{sT0}, s{sT0}, {L_WT + 192*128}")
    A(f"v_lshl_add_u32 v{vXb}, v{vL}, 4, s{sT0}")
    for p in range(2):
        if p == 1:
            A(f"s_cmp_lt_u32 s{sJ}, 2")
            A("s_cbranch_scc0 L_wl_done")
        for i in range(6):
            A(f"s_add_u32 s{sT0}, s{sOff}, {8*1280*i}")
            A(f"buffer_load_dwordx4 v[{G+4*i}:{G+4*i+3}], v{vG}, s[{rW}:{rW+3}], s{sT0} offen offset:{1024*p} nt")
        for i in range(2):
            A(f"s_add_u32 s{sT0}, s{sT3}, {8*1280*i}")
            A(f"buffer_load_dwordx4 v[{G+24+4*i}:{G+24+4*i+3}], v{vG}, s[{rW2}:{rW2+3}], s{sT0} offen offset:{1024*p} nt")
        for i in range(6):
            A(f"s_waitcnt vmcnt({7-i})")
            A(f"ds_write_b128 v{vXa}, v[{G+4*i}:{G+4*i+3}] offset:{32768*p+1024*i}")
        for i in range(2):
            A(f"s_waitcnt vmcnt({1-i})")
            A(f"ds_write_b128 v{vXb}, v[{G+24+4*i}:{G+24+4*i+3}] offset:{32768*p+1024*i}")
        A("s_waitcnt lgkmcnt(0)")
    LB("wl_done")
    A(f"v_mov_b32 v{vT1}, {L_SYNC}")
    k.set_exec(1)
    A(f"ds_add_u32 v{vT1}, v{vOne_s}")
    k.set_exec(-1)
    C("transpose-read address: (8g + r)*128 + c*8 + w*32")
    A(f"v_lshrrev_b32 v{vT0}, 4, v{vL}")
    A(f"v_lshlrev_b32 v{vT0}, 3, v{vT0}")
    A(f"v_bfe_u32 v{vG}, v{vL}, 2, 2")
    A(f"v_add_lshl_u32 v{vG}, v{vG}, v{vT0}, 7")
    A(f"v_and_b32 v{vT0}, 3, v{vL}")
    A(f"v_lshl_add_u32 v{vG}, v{vT0}, 3, v{vG}")
    A(f"s_lshl_b32 s{sT0}, s{sW}, 5")
    A(f"s_add_u32 s{sT0}, s{sT0}, {L_WT}")
    A(f"v_add_u32 v{vG}, s{sT0}, v{vG}")
    lds_wait4("rdy", vT1, vT0)
    stamp(2, "svc")
    if stop == 4:
        A("s_waitcnt vmcnt(0) lgkmcnt(0)")
        A("s_branch L_svc_end")

    def frags(nkb, dst, row0, p):
        for kb in range(nkb):
            for hh in range(2):
                r = dst + 4 * kb + 2 * hh
                A(f"ds_read_b64_tr_b16 v[{r}:{r+1}], v{vG} offset:{(row0+32*kb+4*hh)*128 + 32768*p}")
    frags(2, F2, 192, 0)
    frags(6, FB, 0, 0)
    A(f"s_cmp_lt_u32 s{sJ}, 2")
    A("s_cbranch_scc0 L_g1")
    frags(2, F2 + 8, 192, 1)
    frags(6, FB + 24, 0, 1)
    LB("g1")
    C("A fragment address: row (l&3), k offset 16*(l>>4) bytes")
    vAf = vXa
    vYa = vXb
    A(f"v_and_b32 v{vT0}, 3, v{vL}")
    A(f"v_lshrrev_b32 v{vT1}, 4, v{vL}")
    A(f"v_lshlrev_b32 v{vT1}, 4, v{vT1}")
    A(f"v_lshl_add_u32 v{vAf}, v{vT0}, 9, v{vT1}")
    for kb in range(2):
        A(f"ds_read_b128 v[{AF+4*kb}:{AF+4*kb+3}], v{vAf} offset:{L_QH+384+64*kb}")
    A(f"v_mul_u32_u24 v{vAf}, 384, v{vT0}")
    A(f"v_add_u32 v{vAf}, v{vAf}, v{vT1}")
    C("Y address: [group = 4j + w][h][half][n] x 16 B : lanes 0..31 contiguous")
    A(f"s_lshl_b32 s{sT0}, s{sJ}, 2")
    A(f"s_add_u32 s{sT0}, s{sT0}, s{sW}")
    A(f"s_lshl_b32 s{sT0}, s{sT0}, 14")
    A(f"s_lshl_b32 s{sT1}, s{sH}, 9")
    A(f"s_add_u32 s{sT0}, s{sT0}, s{sT1}")
    A(f"v_lshl_add_u32 v{vYa}, v{vL}, 4, s{sT0}")
    A(f"s_mov_b32 s{sM1}, 0xffff0000")
    A(f"s_mov_b32 s{sM1+1}, 0xffff0000")
    A("s_waitcnt lgkmcnt(0)")

    def proj_store(nkb, frag, fstride, ybase, tagl):
        for p in range(2):
            if p == 1:
                A(f"s_cmp_lt_u32 s{sJ}, 2")
                A(f"s_cbranch_scc0 L_{tagl}")
            d = DD
            for kb in range(nkb):
                c = "0" if kb == 0 else f"v[{d}:{d+3}]"
                f = frag + p * fstride + 4 * kb
                A(f"v_mfma_f32_16x16x32_bf16 v[{d}:{d+3}], v[{AF+4*kb}:{AF+4*kb+3}], v[{f}:{f+3}], {c}")
            A(f"v_add_u32 v{vT0}, {ybase + p*512*1024}, v{vYa}")
            k.set_exec(0xffffffff)
            A("s_nop 4")
            o = G + 4 * p
            A(f"v_cndmask_b32 v{o}, v{d}, v{d+2}, s[{sM1}:{sM1+1}]")
            A(f"v_cndmask_b32 v{o+1}, v{d+1}, v{d+3}, s[{sM1}:{sM1+1}]")
            xor3(o + 2, f"v{o}", f"v{o+1}", f"s{sTag}")
            A(f"global_store_dwordx4 v{vT0}, v[{o}:{o+3}], s[{sWS}:{sWS+1}] {SC}")
            k.set_exec(-1)
        LB(tagl)
    A(f"s_cmp_lt_u32 s{sH}, 24")
    A("s_cbranch_scc0 L_yb_done")
    proj_store(2, F2, 8, W_YB, "yb_done")
    stamp(3, "svc")
    if stop == 5:
        A("s_waitcnt vmcnt(0) lgkmcnt(0)")
        A("s_branch L_svc_end")
    C("---- finaliser task (h < 2, or h < 4 when j < 2): group 4(j + 8(h>>1)) + w, half h&1 ----")
    sFin = sWs
    vFa = vG
    A(f"s_cmp_lt_u32 s{sJ}, 2")
    A(f"s_cselect_b32 s{sT1}, 4, 2")
    A(f"s_cmp_lt_u32 s{sH}, s{sT1}")
    A(f"s_cselect_b32 s{sFin}, 1, 0")
    A(f"s_cselect_b32 s{sT2}, s{sH}, 0")
    A(f"s_lshr_b32 s{sT0}, s{sT2}, 1")
    A(f"s_lshl_b32 s{sT0}, s{sT0}, 3")
    A(f"s_add_u32 s{sT0}, s{sT0}, s{sJ}")
    A(f"s_lshl_b32 s{sT0}, s{sT0}, 2")
    A(f"s_add_u32 s{sT0}, s{sT0}, s{sW}")
    A(f"s_and_b32 s{sT2}, s{sT2}, 1")
    A(f"s_lshl_b32 s{sT1}, s{sT0}, 14")
    A(f"s_lshl_b32 s{sT3}, s{sT2}, 8")
    A(f"s_add_u32 s{sT1}, s{sT1}, s{sT3}")
    A(f"v_lshrrev_b32 v{vT0}, 4, v{vL}")
    A(f"v_lshl_add_u32 v{vFa}, v{vT0}, 9, s{sT1}")
    A(f"v_and_b32 v{vT0}, 15, v{vL}")
    A(f"v_lshl_add_u32 v{vFa}, v{vT0}, 4, v{vFa}")
    A(f"s_lshl_b32 s{sT0}, s{sT0}, 5")
    A(f"v_lshl_add_u32 v{vT1}, v{vT0}, 1, s{sT0}")
    A(f"s_mul_i32 s{sT2}, s{sT2}, 2560")
    A(f"v_add_u32 v{FXR+5}, s{sT2}, v{vT1}")
    Yv = G + 40
    Ya = G + 8

    def ysum(ybase, tagl, sleep, nld):
        for i in range((nld + 1) // 2):
            A(f"v_add_u32 v{Ya+i}, {ybase + 4096*i}, v{vFa}")
        A(f"s_mov_b32 s{sSpin}, {SPIN}")
        LB(tagl)
        for i in range(nld):
            A(f"global_load_dwordx4 v[{Yv+4*i}:{Yv+4*i+3}], v{Ya+i//2}, s[{sWS}:{sWS+1}] offset:{2048*(i%2)} {SC}")
        for i in range(nld):
            A(f"s_waitcnt vmcnt({nld-1-i})")
            xor3(a, f"v{Yv+4*i}", f"v{Yv+4*i+1}", f"v{Yv+4*i+2}")
            if i == 0:
                A(f"v_xor_b32 v{a+1}, s{sTag}, v{a}")
            else:
                A(f"v_xor_b32 v{a}, s{sTag}, v{a}")
                A(f"v_or_b32 v{a+1}, v{a+1}, v{a}")
                A(f"v_pk_add_f32 v[{Yv}:{Yv+1}], v[{Yv}:{Yv+1}], v[{Yv+4*i}:{Yv+4*i+1}]")
        A(f"v_cmp_ne_u32 vcc, 0, v{a+1}")
        A(f"s_cbranch_vccz L_{tagl}ok")
        spin_tail(tagl, sleep=sleep)
        LB(tagl + "ok")
        for op in ("v_permlane16_swap_b32", "v_permlane32_swap_b32"):
            A(f"v_mov_b32 v{Yv+2}, v{Yv}")
            A(f"v_mov_b32 v{Yv+3}, v{Yv+1}")
            A("s_nop 0")
            A(f"{op} v{Yv}, v{Yv+2}")
            A(f"{op} v{Yv+1}, v{Yv+3}")
            A("s_nop 0")
            A(f"v_pk_add_f32 v[{Yv}:{Yv+1}], v[{Yv}:{Yv+1}], v[{Yv+2}:{Yv+3}]")

    A(f"s_cmp_eq_u32 s{sFin}, 0")
    A("s_cbranch_scc1 L_nofin1")
    A(f"global_load_ushort v{FXR}, v{FXR+5}, s[{sX}:{sX+1}]")
    A(f"global_load_ushort v{FXR+1}, v{FXR+5}, s[{sX}:{sX+1}] offset:1280")
    A(f"global_load_ushort v{FXR+2}, v{vT1}, s[{sB2p}:{sB2p+1}]")
    A("s_sleep 127")
    A("s_sleep 127")
    A("s_sleep 127")
    ysum(W_YB, "ybp", 127, 6)
    for i in range(3):
        A(f"v_lshlrev_b32 v{FXR+i}, 16, v{FXR+i}")
    k.rnd2(Yv, Yv + 1, Yv + 2)
    A(f"v_add_f32 v{FXR+3}, v{Yv}, v{FXR+2}")
    A(f"v_add_f32 v{FXR+4}, v{Yv+1}, v{FXR+2}")
    k.rnd2(FXR + 3, FXR + 4, Yv + 2)
    LB("nofin1")
    stamp(5, "svc")
    if stop == 6:
        A("s_waitcnt vmcnt(0) lgkmcnt(0)")
        A("s_branch L_svc_end")
    C("record addresses for batch w")
    vRh, vRd, vRd2, vOl = G + 16, G + 17, G + 18, G + 19
    sLoad, sOk, sHv = 6, 7, 12
    A(f"s_lshl_b32 s{sT0}, s{sH}, 2")
    A(f"s_add_u32 s{sT0}, s{sT0}, s{sW}")
    A(f"s_lshl_b32 s{sT1}, s{sT0}, 10")
    A(f"s_add_u32 s{sT1}, s{sT1}, {W_RH}")
    A(f"v_and_b32 v{vT0}, 7, v{vL}")
    A(f"v_lshl_add_u32 v{vRh}, v{vT0}, 7, s{sT1}")
    A(f"s_lshl_b32 s{sT1}, s{sT0}, 13")
    A(f"s_add_u32 s{sT1}, s{sT1}, {W_REC}")
    A(f"v_lshl_add_u32 v{vRd}, v{vL}, 4, s{sT1}")
    A(f"v_add_u32 v{vRd2}, 4096, v{vRd}")
    A(f"s_mul_i32 s{sT1}, s{sW}, 384")
    A(f"v_lshl_add_u32 v{vOl}, v{vL}, 1, s{sT1}")
    if pre2:
        A(f"s_lshl_b32 s{sT1}, s{sJ}, 10")
        A(f"v_add_u32 v{vT0}, s{sT1}, v{vRd}")
        A(f"global_load_dwordx4 v[{QL}:{QL+3}], v{vT0}, s[{sWS}:{sWS+1}] {SC}")
        A(f"v_add_u32 v{vT0}, {W_YA}, v{vYa}")
        k.set_exec(0xffffffff)
        A(f"global_load_dwordx4 v[{QL+8}:{QL+11}], v{vT0}, s[{sWS}:{sWS+1}] {SC}")
        k.set_exec(-1)
        A("s_waitcnt vmcnt(0)")
    A(f"s_mov_b32 s{sSpin}, {SPIN}")
    A(f"s_mov_b32 s{sLoad}, 0")
    A(f"s_mov_b32 s{sOk}, 0")
    A("s_setprio 3")
    A("s_barrier")
    stamp(4)
    stamp(1, "epi")
    HD = G + 24
    LB("rpoll")
    A(f"global_load_dwordx4 v[{HD}:{HD+3}], v{vRh}, s[{sWS}:{sWS+1}] {SC}")
    for j in range(8):
        va = vRd if j < 4 else vRd2
        A(f"s_bitcmp1_b32 s{sLoad}, {j}")
        A(f"s_cbranch_scc0 L_rs{j}")
        A(f"global_load_dwordx4 v[{QL+4*j}:{QL+4*j+3}], v{va}, s[{sWS}:{sWS+1}] offset:{1024*(j%4)} {SC}")
        LB(f"rs{j}")
    A("s_waitcnt vmcnt(0)")
    xor3(HD + 4, f"v{HD}", f"v{HD+1}", f"v{HD+2}")
    A(f"v_cmp_eq_u32 vcc, s{sTag}, v{HD+4}")
    A(f"s_and_b32 s{sHv}, vcc_lo, 0xff")
    for j in range(8):
        A(f"s_bitcmp1_b32 s{sLoad}, {j}")
        A(f"s_cbranch_scc0 L_rv{j}")
        xor3(a, f"v{QL+4*j}", f"v{QL+4*j+1}", f"v{QL+4*j+2}")
        A(f"v_xor_b32 v{a}, v{a}, v{QL+4*j+3}")
        A(f"v_cmp_ne_u32 vcc, s{sTag}, v{a}")
        A(f"s_cbranch_vccnz L_rv{j}")
        A(f"s_bitset1_b32 s{sOk}, {j}")
        LB(f"rv{j}")
    A(f"s_and_b32 s{sT0}, s{sOk}, s{sHv}")
    A(f"s_cmp_eq_u32 s{sT0}, 0xff")
    A("s_cbranch_scc1 L_rok")
    A(f"s_bcnt1_i32_b32 s{sT0}, s{sHv}")
    A(f"s_cmp_ge_u32 s{sT0}, {8-nmiss}")
    A(f"s_cselect_b32 s{sLoad}, 0xff, s{sHv}")
    A(f"s_andn2_b32 s{sLoad}, s{sLoad}, s{sOk}")
    spin_tail("rpoll", sleep=hsleep)
    LB("rok")
    stamp(3, "epi")
    A(f"v_mov_b32 v{HD+4}, v{HD}")
    k.butterfly("v_max_f32", [HD + 4], 3)
    A(f"v_sub_f32 v{HD+5}, v{HD}, v{HD+4}")
    A(f"v_mul_f32 v{HD+5}, {LOG2E}, v{HD+5}")
    A(f"v_exp_f32 v{HD+5}, v{HD+5}")
    A("s_nop 0")
    A(f"v_mul_f32 v{HD+6}, v{HD+5}, v{HD+1}")
    for j in range(8):
        A(f"v_readlane_b32 s{sWt+j}, v{HD+5}, {j}")
    k.dpp("v_add_f32", HD + 6, "quad_perm:[1,0,3,2]")
    O = HD + 8
    A(f"v_pk_mul_f32 v[{O}:{O+1}], v[{QL}:{QL+1}], s[{sWt}:{sWt+1}] op_sel_hi:[1,0]")
    A(f"v_mul_f32 v{O+2}, s{sWt}, v{QL+2}")
    k.dpp("v_add_f32", HD + 6, "quad_perm:[2,3,0,1]")
    for j in range(1, 8):
        k.pkfma(O, QL + 4 * j, sWt + j, pre="s")
        A(f"v_fmac_f32 v{O+2}, s{sWt+j}, v{QL+4*j+2}")
        if j == 1:
            k.dpp("v_add_f32", HD + 6, "row_half_mirror")
        if j == 2:
            A(f"v_rcp_f32 v{HD+7}, v{HD+6}")
    for i in range(3):
        A(f"v_mul_f32 v{O+4+i}, v{O+i}, v{HD+7}")
    for i in range(3):
        A(f"v_fma_f32 v{O+i}, -v{O+4+i}, v{HD+6}, v{O+i}")
    for i in range(3):
        A(f"v_fma_f32 v{O+i}, v{O+i}, v{HD+7}, v{O+4+i}")
    A(f"v_cvt_pk_bf16_f32 v{O+4}, v{O}, v{O+1}")
    A(f"v_cvt_pk_bf16_f32 v{O+5}, v{O+2}, v{O+2}")
    A(f"ds_write_b16 v{vOl}, v{O+4} offset:{L_OB}")
    A(f"ds_write_b16_d16_hi v{vOl}, v{O+4} offset:{L_OB+128}")
    A(f"ds_write_b16 v{vOl}, v{O+5} offset:{L_OB+256}")
    A("s_waitcnt lgkmcnt(0)")
    A("s_barrier")
    for kb in range(6):
        A(f"ds_read_b128 v[{AF+4*kb}:{AF+4*kb+3}], v{vAf} offset:{L_OB+64*kb}")
    A("s_waitcnt lgkmcnt(0)")
    proj_store(6, FB, 24, W_YA, "ya_done")
    stamp(4, "epi")
    A(f"s_cmp_eq_u32 s{sFin}, 0")
    A("s_cbranch_scc1 L_svc_end")
    ysum(W_YA, "yap", ysleep, 8)
    k.rnd2(Yv, Yv + 1, Yv + 2)
    A(f"v_add_f32 v{Yv}, v{FXR}, v{Yv}")
    A(f"v_add_f32 v{Yv+1}, v{FXR+1}, v{Yv+1}")
    k.rnd2(Yv, Yv + 1, Yv + 2)
    A(f"v_add_f32 v{Yv}, v{Yv}, v{FXR+3}")
    A(f"v_add_f32 v{Yv+1}, v{Yv+1}, v{FXR+4}")
    A(f"v_cvt_pk_bf16_f32 v{Yv}, v{Yv}, v{Yv+1}")
    k.set_exec(0xffff)
    A(f"global_store_short v{FXR+5}, v{Yv}, s[{sOUT}:{sOUT+1}]")
    A(f"global_store_short_d16_hi v{FXR+5}, v{Yv}, s[{sOUT}:{sOUT+1}] offset:1280")
    k.set_exec(-1)
    C("generation bump by (h=0, j=0, w=0)")
    A(f"s_or_b32 s{sT0}, s2, s{sW}")
    A(f"s_cmp_eq_u32 s{sT0}, 0")
    A("s_cbranch_scc0 L_svc_end")
    A(f"v_mov_b32 v{vT0}, {W_GEN}")
    A(f"v_mov_b32 v{vT1}, s{sTag}")
    k.set_exec(1)
    A(f"global_store_dword v{vT0}, v{vT1}, s[{sWS}:{sWS+1}] {SC}")
    k.set_exec(-1)
    LB("svc_end")
    stamp(5)
    stamp(5, "epi")
    write_stamps(QL, vT0)
    A("s_endpgm")
    LB("stream")
    in_service[0] = False
    C("================= stream waves (4..7) =================")
    vKoff, vOne, vM, vLs, vAl, vQa, vCa = 2, 6, 7, 8, 9, 10, 11
    vClaim = [5, 0]
    S = 12
    k.TP = 16
    k.ntp = 4
    D = 16
    QF = 24
    ACC = 36
    SL = 60
    MG = 60

    def kreg(x):
        return SL + 48 * x

    def vreg(x):
        return SL + 48 * x + 24

    def loads(base, srd, so):
        for j in range(6):
            r = base + 4 * j
            A(f"buffer_load_dwordx4 v[{r}:{r+3}], v{vKoff}, s[{srd}:{srd+3}], s{so} offen offset:{boff[j]} nt")

    def k_tile(x):
        s0 = kreg(x)
        Da, Db = D, D + 4
        for n in range(3):
            ca = "0" if n == 0 else f"v[{Da}:{Da+3}]"
            cb = "0" if n == 0 else f"v[{Db}:{Db+3}]"
            A(f"v_mfma_f32_16x16x32_bf16 v[{Da}:{Da+3}], v[{QF+4*n}:{QF+4*n+3}], v[{s0+4*n}:{s0+4*n+3}], {ca}")
            A(f"v_mfma_f32_16x16x32_bf16 v[{Db}:{Db+3}], v[{QF+4*n}:{QF+4*n+3}], v[{s0+12+4*n}:{s0+12+4*n+3}], {cb}")

    def softmax():
        for t in range(2):
            d = D + 4 * t
            A(f"v_add_f32_dpp v{S+t}, v{d+1}, v{d} row_ror:8 row_mask:0xf bank_mask:0x3")
            A(f"v_add_f32_dpp v{S+t}, v{d}, v{d+1} row_ror:8 row_mask:0xf bank_mask:0xc")
        if mimic:
            k.rnd2(S, S + 1, vT0)
        for t in range(2):
            A(f"v_mul_f32 v{S+t}, {SCALE}, v{S+t}")
        if mimic:
            k.rnd2(S, S + 1, vT0)
        A(f"v_max3_f32 v{vT0}, v{vM}, v{S}, v{S+1}")
        A(f"v_sub_f32 v{vAl}, v{vM}, v{vT0}")
        for t in range(2):
            A(f"v_sub_f32 v{S+t}, v{S+t}, v{vT0}")
        A(f"v_mul_f32 v{vAl}, {LOG2E}, v{vAl}")
        for t in range(2):
            A(f"v_mul_f32 v{S+t}, {LOG2E}, v{S+t}")
        A(f"v_exp_f32 v{vAl}, v{vAl}")
        for t in range(2):
            A(f"v_exp_f32 v{S+t}, v{S+t}")
        A(f"v_mov_b32 v{vM}, v{vT0}")
        A(f"v_fma_f32 v{vLs}, v{vLs}, v{vAl}, v{S}")
        for i in range(12):
            k.pkmul(ACC + 2 * i, vAl)
        A(f"v_add_f32 v{vLs}, v{vLs}, v{S+1}")

    def v_tile(x):
        s0 = vreg(x)
        items = [(s0 + 12 * half + 4 * n + d, ACC + 8 * n + 2 * d, S + half)
                 for half in range(2) for n in range(3) for d in range(4)]
        pend = []
        for it in items:
            t = k.unpack(it[0])
            pend.append((it[1], t, it[2]))
            if len(pend) > 2:
                ac, tt, m = pend.pop(0)
                k.pkfma(ac, tt, m)
        for ac, tt, m in pend:
            k.pkfma(ac, tt, m)

    def flush():
        A(f"v_mov_b32 v{vT0}, v{vM}")
        k.butterfly("v_max_f32", [vT0], 3)
        A(f"v_sub_f32 v{vAl}, v{vM}, v{vT0}")
        A(f"v_mul_f32 v{vAl}, {LOG2E}, v{vAl}")
        A(f"v_exp_f32 v{vAl}, v{vAl}")
        A(f"s_mul_i32 s{sT0}, s{sWs}, 5")
        A(f"s_add_u32 s{sT0}, s{sT0}, s{sSlot}")
        A(f"s_lshl_b32 s{sT1}, s{sT0}, 10")
        A(f"v_mul_f32 v{vLs}, v{vLs}, v{vAl}")
        for i in range(12):
            k.pkmul(ACC + 2 * i, vAl)
        k.dpp("v_add_f32", vLs, "quad_perm:[1,0,3,2]")
        for n in range(3):
            for c in range(4):
                x, y = ACC + 8 * n + c, ACC + 8 * n + c + 4
                A(f"v_add_f32_dpp v{x}, v{x}, v{x} row_half_mirror row_mask:0xf bank_mask:0x5")
                A(f"v_add_f32_dpp v{x}, v{y}, v{y} row_half_mirror row_mask:0xf bank_mask:0xa")
        k.dpp("v_add_f32", vLs, "quad_perm:[2,3,0,1]")
        for n in range(3):
            for c in range(2):
                x, y = ACC + 8 * n + c, ACC + 8 * n + c + 2
                A(f"v_cndmask_b32 v{x+4}, v{y}, v{x}, s[{sM1}:{sM1+1}]")
                A(f"v_cndmask_b32 v{x}, v{x}, v{y}, s[{sM1}:{sM1+1}]")
        k.dpp("v_add_f32", vLs, "row_half_mirror")
        for n in range(3):
            for c in range(2):
                x = ACC + 8 * n + c
                A(f"v_add_f32_dpp v{x}, v{x+4}, v{x} quad_perm:[2,3,0,1] row_mask:0xf bank_mask:0xf")
        for n in range(3):
            x, y = ACC + 8 * n, ACC + 8 * n + 1
            A(f"v_cndmask_b32 v{x+4}, v{y}, v{x}, s[{sM0}:{sM0+1}]")
            A(f"v_cndmask_b32 v{x}, v{x}, v{y}, s[{sM0}:{sM0+1}]")
        A(f"v_lshl_add_u32 v{vT1}, v{vL}, 4, s{sT1}")
        A(f"s_lshl_b32 s{sT0}, s{sT0}, 4")
        for n in range(3):
            x = ACC + 8 * n
            A(f"v_add_f32_dpp v{D+n}, v{x+4}, v{x} quad_perm:[1,0,3,2] row_mask:0xf bank_mask:0xf")
        A(f"v_mov_b32 v{S}, v{vT0}")
        A(f"v_mov_b32 v{S+1}, v{vLs}")
        A(f"v_mov_b32 v{S+2}, s{sPairSt}")
        A(f"v_mov_b32 v{vT0}, s{sT0}")
        A(f"ds_write_b128 v{vT1}, v[{D}:{D+3}] offset:{L_REC}")
        k.set_exec(1)
        A(f"ds_write_b128 v{vT0}, v[{S}:{S+3}] offset:{L_RHD}")
        k.set_exec(-1)
        A(f"s_add_u32 s{sSlot}, s{sSlot}, 1")

    def reset_state():
        A(f"v_mov_b32 v{vM}, {NEGBIG}")
        A(f"v_mov_b32 v{vLs}, 0")
        for i in range(24):
            A(f"v_mov_b32 v{ACC+i}, 0")

    def load_q():
        A(f"s_lshl_b32 s{sT0}, s{sPairCur}, 9")
        A(f"v_add_u32 v{vT0}, s{sT0}, v{vQa}")
        for n in range(3):
            A(f"ds_read_b128 v[{QF+4*n}:{QF+4*n+3}], v{vT0} offset:{L_QH+128*n}")
        A(f"s_mov_b32 s{sPairSt}, s{sPairCur}")

    uid = [0]

    def check_pair(x):
        uid[0] += 1
        A(f"s_cmp_eq_u32 s{sPair[x]}, s{sPairSt}")
        A(f"s_cbranch_scc1 L_same{uid[0]}")
        A(f"s_mov_b32 s{sPairCur}, s{sPair[x]}")
        A(f"s_call_b64 s[{sRet}:{sRet+1}], L_switch")
        LB(f"same{uid[0]}")

    A(f"s_sub_u32 s{sWs}, s{sW}, 4")
    A(f"v_and_b32 v{vT0}, 7, v{vL}")
    A(f"v_lshrrev_b32 v{vT1}, 3, v{vL}")
    A(f"v_mul_u32_u24 v{vKoff}, 384, v{vT0}")
    A(f"v_lshl_add_u32 v{vKoff}, v{vT1}, 4, v{vKoff}")
    A(f"s_lshr_b32 s{sPairCur}, s{sJ}, 1")
    A(f"s_mul_i32 s{sHoff}, s{sH}, 3145728")
    A(f"s_mul_i32 s{sStat}, s{sPairCur}, 100663296")
    A(f"s_add_u32 s{sStat}, s{sStat}, s{sHoff}")
    A(f"s_and_b32 s{sT0}, s{sJ}, 1")
    A(f"s_lshl_b32 s{sT0}, s{sT0}, 2")
    A(f"s_add_u32 s{sT0}, s{sT0}, s{sWs}")
    A(f"s_mul_i32 s{sT0}, s{sT0}, {NS*6144}")
    A(f"s_add_u32 s{sStat}, s{sStat}, s{sT0}")
    A("s_waitcnt lgkmcnt(0)")
    A(f"s_load_dword s{sTag}, s[{sWS}:{sWS+1}], {W_GEN}")
    k.srd(rK, sKp, 402653184)
    k.srd(rV, sVp, 402653184)
    A("s_barrier")
    if noq:
        A("s_barrier")
    order = [2 + i for i in range(NPRE)] + [0, 1]
    for x in order:
        loads(kreg(x), rK, sStat)
        loads(vreg(x), rV, sStat)
        A(f"s_add_u32 s{sStat}, s{sStat}, 6144")
    A(f"v_lshrrev_b32 v{vQa}, 4, v{vL}")
    A(f"v_lshlrev_b32 v{vQa}, 5, v{vQa}")
    A(f"v_and_b32 v{vT1}, 1, v{vL}")
    A(f"v_lshl_add_u32 v{vQa}, v{vT1}, 4, v{vQa}")
    A(f"v_mov_b32 v{vOne}, 1")
    A(f"s_lshl_b32 s{sT0}, s{sH}, 7")
    A(f"s_add_u32 s{sT0}, s{sT0}, {W_QCNT}")
    A(f"v_mov_b32 v{vCa}, s{sT0}")
    A(f"s_mov_b32 s{sPair[0]}, s{sPairCur}")
    A(f"s_mov_b32 s{sPair[1]}, s{sPairCur}")
    A(f"s_mov_b32 s{sRem}, {NS - 2 - NPRE}")
    A(f"s_mov_b32 s{sSlot}, 0")
    A(f"s_mov_b32 s{sM1}, 0xcccccccc")
    A(f"s_mov_b32 s{sM1+1}, 0xcccccccc")
    A(f"s_mov_b32 s{sM0}, 0xaaaaaaaa")
    A(f"s_mov_b32 s{sM0+1}, 0xaaaaaaaa")
    reset_state()
    A("s_waitcnt lgkmcnt(0)")
    A(f"s_add_u32 s{sTag}, s{sTag}, 1")
    stamp(1)
    if not noq:
        A("s_barrier")
    load_q()
    A("s_waitcnt lgkmcnt(0)")
    stamp(2)
    for i in range(NPRE):
        rem = 12 * (NPRE + 2 - i)
        A(f"s_waitcnt vmcnt({rem-6})")
        k_tile(2 + i)
        A("s_nop 7")
        softmax()
        A(f"s_waitcnt vmcnt({rem-12})")
        v_tile(2 + i)
    LB("loop")
    for x in range(2):
        A("s_waitcnt vmcnt(18)")
        check_pair(x)
        k_tile(x)
        A(f"s_sub_u32 s{sRem}, s{sRem}, 1")
        A(f"s_cmp_gt_i32 s{sRem}, 1")
        A(f"s_cbranch_scc0 L_dyn{x}")
        A(f"s_mov_b32 s{sNxt}, s{sStat}")
        A(f"s_add_u32 s{sStat}, s{sStat}, 6144")
        LB(f"dynret{x}")
        loads(kreg(x), rK, sNxt)
        softmax()
        A("s_waitcnt vmcnt(18)")
        v_tile(x)
        loads(vreg(x), rV, sNxt)
    A("s_branch L_loop")
    for x in range(2):
        LB(f"dyn{x}")
        A(f"s_mov_b32 s{sNxt}, s{sStat}")
        A(f"s_add_u32 s{sStat}, s{sStat}, 6144")
        A(f"s_cmp_ge_i32 s{sRem}, 0")
        A(f"s_cbranch_scc1 L_claim{x}")
        A(f"v_readfirstlane_b32 s{sT0}, v{vClaim[x]}")
        A("s_nop 3")
        A(f"s_cmp_ge_u32 s{sT0}, {NPOOL}")
        A(f"s_cbranch_scc1 L_last{x}")
        A(f"s_lshr_b32 s{sPair[x]}, s{sT0}, {LDP}")
        A(f"s_and_b32 s{sT0}, s{sT0}, {DP-1}")
        A(f"s_add_u32 s{sT0}, s{sT0}, {512-DP}")
        A(f"s_mul_i32 s{sT0}, s{sT0}, 6144")
        A(f"s_mul_i32 s{sNxt}, s{sPair[x]}, 100663296")
        A(f"s_add_u32 s{sNxt}, s{sNxt}, s{sHoff}")
        A(f"s_add_u32 s{sNxt}, s{sNxt}, s{sT0}")
        LB(f"claim{x}")
        k.set_exec(1)
        A(f"global_atomic_add v{vClaim[x]}, v{vCa}, v{vOne}, s[{sWS}:{sWS+1}] sc0")
        k.set_exec(-1)
        A(f"s_branch L_dynret{x}")
    LB("switch")
    flush()
    lds_wait4("swrdy", vT1, vT0)
    load_q()
    reset_state()
    A("s_waitcnt lgkmcnt(0)")
    A(f"s_setpc_b64 s[{sRet}:{sRet+1}]")
    for x in range(2):
        y = 1 - x
        LB(f"last{x}")
        stamp(3)
        A("s_nop 3")
        softmax()
        A("s_waitcnt vmcnt(12)")
        v_tile(x)
        A("s_waitcnt vmcnt(6)")
        check_pair(y)
        k_tile(y)
        A("s_nop 7")
        softmax()
        A("s_waitcnt vmcnt(0)")
        v_tile(y)
        if x == 0:
            A("s_branch L_fin")
    LB("fin")
    flush()
    vRa, vRhh = QF, QF + 2
    A(f"s_lshl_b32 s{sT0}, s{sH}, 2")
    A(f"s_add_u32 s{sT0}, s{sT0}, s{sWs}")
    A(f"s_lshl_b32 s{sT0}, s{sT0}, 3")
    A(f"s_add_u32 s{sT0}, s{sT0}, s{sJ}")
    A(f"s_lshl_b32 s{sT1}, s{sT0}, 10")
    A(f"s_add_u32 s{sT1}, s{sT1}, {W_REC}")
    A(f"v_lshl_add_u32 v{vRa}, v{vL}, 4, s{sT1}")
    A(f"s_lshl_b32 s{sT1}, s{sT0}, 7")
    A(f"s_add_u32 s{sT1}, s{sT1}, {W_RH}")
    A(f"v_lshl_add_u32 v{vRhh}, v{vL}, 4, s{sT1}")
    A(f"v_min_u32 v{vT0}, 19, v{vL}")
    A(f"v_lshlrev_b32 v{vT0}, 4, v{vT0}")
    A(f"v_lshlrev_b32 v{vT1}, 4, v{vL}")
    A(f"v_cmp_gt_u32 s[{sM0}:{sM0+1}], 20, v{vL}")
    A(f"v_mov_b32 v{vM}, {NEGBIG}")
    A("s_waitcnt lgkmcnt(0)")
    A("s_barrier")
    stamp(4)
    C("==== WG merge: stream wave w handles pair w ====")
    A(f"ds_read_b128 v[{S}:{S+3}], v{vT0} offset:{L_RHD}")
    for i in range(14):
        A(f"ds_read_b128 v[{MG+4*i}:{MG+4*i+3}], v{vT1} offset:{L_REC+1024*i}")
    A("s_waitcnt lgkmcnt(14)")
    A(f"v_cmp_eq_u32 vcc, s{sWs}, v{S+2}")
    A(f"s_and_b64 vcc, vcc, s[{sM0}:{sM0+1}]")
    for i in range(14, 20):
        A(f"ds_read_b128 v[{MG+4*i}:{MG+4*i+3}], v{vT1} offset:{L_REC+1024*i}")
    A(f"v_cndmask_b32 v{vM}, v{vM}, v{S}, vcc")
    C("records live in lanes 0..19: reduce rows 0,1 only")
    k.butterfly("v_max_f32", [vM], 4)
    A("s_nop 0")
    A(f"v_readlane_b32 s{sT0}, v{vM}, 0")
    A(f"v_readlane_b32 s{sT1}, v{vM}, 16")
    A("s_nop 0")
    A(f"v_mov_b32 v{vM}, s{sT0}")
    A(f"v_max_f32 v{vM}, s{sT1}, v{vM}")
    A(f"v_sub_f32 v{vAl}, v{S}, v{vM}")
    A(f"v_mul_f32 v{vAl}, {LOG2E}, v{vAl}")
    A(f"v_exp_f32 v{vAl}, v{vAl}")
    A("s_nop 0")
    A(f"v_cndmask_b32 v{vAl}, 0, v{vAl}, vcc")
    A(f"v_mul_f32 v{vLs}, v{vAl}, v{S+1}")
    ctr = ["quad_perm:[1,0,3,2]", "quad_perm:[2,3,0,1]", "row_half_mirror", "row_mirror"]
    for i in range(20):
        A(f"v_readlane_b32 s{sWt+i}, v{vAl}, {i}")
        if i % 4 == 2 and i // 4 < 4:
            k.dpp("v_add_f32", vLs, ctr[i // 4])
    A(f"v_readlane_b32 s{sT0}, v{vLs}, 0")
    A(f"v_readlane_b32 s{sT1}, v{vLs}, 16")
    A("s_waitcnt lgkmcnt(0)")
    A(f"v_pk_mul_f32 v[{ACC}:{ACC+1}], v[{MG}:{MG+1}], s[{sWt}:{sWt+1}] op_sel_hi:[1,0]")
    A(f"v_mul_f32 v{ACC+2}, s{sWt}, v{MG+2}")
    A(f"v_mov_b32 v{ACC+9}, s{sT0}")
    A(f"v_add_f32 v{ACC+9}, s{sT1}, v{ACC+9}")
    A(f"v_mov_b32 v{ACC+8}, v{vM}")
    xor3(ACC + 10, f"v{vM}", f"v{ACC+9}", f"s{sTag}")
    for i in range(1, 20):
        k.pkfma(ACC, MG + 4 * i, sWt + i, pre="s")
        A(f"v_fmac_f32 v{ACC+2}, s{sWt+i}, v{MG+4*i+2}")
    xor3(ACC + 3, f"v{ACC}", f"v{ACC+1}", f"v{ACC+2}")
    A(f"v_xor_b32 v{ACC+3}, s{sTag}, v{ACC+3}")
    A(f"global_store_dwordx4 v{vRa}, v[{ACC}:{ACC+3}], s[{sWS}:{sWS+1}] {SC}")
    k.set_exec(0xff)
    A(f"global_store_dwordx4 v{vRhh}, v[{ACC+8}:{ACC+11}], s[{sWS}:{sWS+1}] {SC}")
    k.set_exec(-1)
    stamp(5)
    write_stamps(MG, vT1)
    LB("end")
    A("s_endpgm")
    return k, (256, 256), L_TOTAL


def build(stamps=False, **kw):
    k2, r2, l2 = build_main(stamps, **kw)
    txt = HEADER
    txt += f"; @launch grid=(256,1,1) block=(512,1,1) lds={l2}\n"
    txt += '.amdgcn_target "amdgcn-amd-amdhsa--gfx950"\n.text\n'
    txt += k2.text()
    txt += '.section .rodata,"a"\n'
    txt += k2.desc(*r2)
    return txt


if __name__ == "__main__":
    out = sys.argv[1] if len(sys.argv) > 1 else f"cdna_kernels/{NAME}.s"
    stamps = sys.argv[2] if len(sys.argv) > 2 and sys.argv[2] != "-" else False
    kw = {}
    for a in sys.argv[3:]:
        n, v = a.split("=")
        kw[n] = int(v)
    open(out, "w").write(build(stamps, **kw))
    print("wrote", out)
```

```python
import sys
from gen_v1 import HEADER, NAME
from gen_v2 import K, load_kernargs, SCALE, LOG2E, NEGBIG
from gen_v2 import sX, sKp, sVp, sWQp, sWOp, sW1p, sB1p, sW2p, sB2p, sOUT, sDBG, sWS

W_GEN = 0x0
W_QCNT = 0x800000
W_RH = 0xE0000
W_FR = 0x20000
W_YA = 0x40000
W_REC = 0x100000
W_QC = 0x200000
W_YB = 0x240000
W_QP = 0x300000
W_STAMP = 0x1000000
SPIN = 0x80000


def build_main(stamps=False, DP=64, NPRE=2, mimic=1, hsleep=1, qsleep=0, nmiss=2, pre1=0, pre2=0, noq=0, stop=0, ysleep=1, qstride=4352, stnt=0, ldnt=0, fsleep=40):
    SCS = "sc1 nt" if stnt else "sc1"
    SCL = "sc1 nt" if ldnt else "sc1"
    SC = "sc1"
    k = K(f"{NAME}_kernel")
    k.lab = lambda s: f"L_{s}"
    k.LB = lambda s: k.L.append(f"L_{s}:")
    A, LB, C = k.A, k.LB, k.C
    sT0, sT1, sT2, sT3 = k.sT
    NS = (512 - DP) // 8
    LDP = DP.bit_length() - 1
    NPOOL = 4 * DP
    sW, sH, sJ = 3, 4, 5
    sRem, sStat, sNxt = 6, 7, 12
    sPairCur, sPairSt, sSlot, sHoff = 13, 14, 42, 43
    rK, rV = 44, 48
    sPair = [52, 53]
    sRet = 54
    sWt = 56
    sTm = 76
    sTag = 78
    sSpin = 79
    rW = 80
    sOff = 84
    sWs = 85
    sM1, sM0 = 86, 88
    sTs = 96
    L_QH = 0
    L_SYNC = 2048
    L_RHD = 2112
    L_OB = 2560
    L_REC = 4096
    L_XN = L_REC + 20480
    L_WT = 32768
    L_TOTAL = L_WT + 65536
    boff = [0, 128, 256, 3072, 3200, 3328]
    in_service = [True]

    def stamp(i, mode="stamps"):
        if stamps and (mode == stamps or (mode == "stamps" and (i == 0 or not in_service[0]))):
            A(f"s_memrealtime s[{sTm}:{sTm+1}]")
            A("s_waitcnt lgkmcnt(0)")
            A(f"s_mov_b32 s{sTs+i}, s{sTm}")

    def write_stamps(tmp, vA):
        if stamps:
            A(f"s_getreg_b32 s{sT2}, hwreg(HW_REG_XCC_ID)")
            A(f"s_lshl_b32 s{sT1}, s2, 3")
            A(f"s_add_u32 s{sT1}, s{sT1}, s{sW}")
            A(f"s_lshl_b32 s{sT1}, s{sT1}, 5")
            A(f"s_add_u32 s{sT1}, s{sT1}, {W_STAMP}")
            for i in range(6):
                A(f"v_mov_b32 v{tmp+i}, s{sTs+i}")
            A(f"v_mov_b32 v{tmp+6}, s{sT2}")
            A(f"v_mov_b32 v{tmp+7}, 0x12345678")
            A(f"v_mov_b32 v{vA}, s{sT1}")
            k.set_exec(1)
            A(f"global_store_dwordx4 v{vA}, v[{tmp}:{tmp+3}], s[{sWS}:{sWS+1}]")
            A(f"global_store_dwordx4 v{vA}, v[{tmp+4}:{tmp+7}], s[{sWS}:{sWS+1}] offset:16")
            k.set_exec(-1)

    def xor3(d, a, b, c):
        A(f"v_bitop3_b32 v{d}, {a}, {b}, {c} bitop3:0x96")

    def spin_tail(loop, sleep=None):
        if sleep:
            A(f"s_sleep {sleep}")
        A(f"s_sub_u32 s{sSpin}, s{sSpin}, 1")
        A(f"s_cmp_lg_u32 s{sSpin}, 0")
        A(f"s_cbranch_scc1 L_{loop}")

    def lds_wait4(tagl, vA, vD):
        A(f"v_mov_b32 v{vA}, {L_SYNC}")
        A(f"s_mov_b32 s{sSpin}, {SPIN*16}")
        LB(tagl)
        A(f"ds_read_b32 v{vD}, v{vA}")
        A("s_waitcnt lgkmcnt(0)")
        A(f"v_readfirstlane_b32 s{sT0}, v{vD}")
        A("s_nop 3")
        A(f"s_cmp_ge_u32 s{sT0}, 4")
        A(f"s_cbranch_scc1 L_{tagl}ok")
        spin_tail(tagl, sleep=4)
        LB(tagl + "ok")

    vL, vT0, vT1 = 1, 3, 4
    A("s_cmp_ge_u32 s2, 256")
    A("s_cbranch_scc1 L_end")
    stamp(0)
    load_kernargs(k)
    A(f"v_and_b32 v{vL}, 63, v0")
    A(f"v_lshrrev_b32 v{vT0}, 6, v0")
    A(f"s_mov_b32 s{k.sMsk}, 0xffff0000")
    A(f"v_readfirstlane_b32 s{sW}, v{vT0}")
    A(f"s_lshr_b32 s{sH}, s2, 3")
    A(f"s_and_b32 s{sJ}, s2, 7")
    A(f"s_cmp_ge_u32 s{sW}, 4")
    A("s_cbranch_scc1 L_stream")
    C("================= service waves (0..3) =================")
    vOff, vXa, vXb, vOne_s = 2, 5, 6, 7
    a = 8
    k.TP = 16
    k.ntp = 2
    XR = 20
    XC = 40
    X = 44
    ACC = 84
    WR = 116
    E = 156
    QL = 164
    QK = 196
    B1R = 204
    FXR = 206
    A("s_setprio 3")
    A(f"v_lshrrev_b32 v{vT0}, 3, v{vL}")
    A(f"v_and_b32 v{vT1}, 7, v{vL}")
    A(f"s_cmp_eq_u32 s{sW}, 3")
    A(f"s_movk_i32 s{sT0}, 3072")
    A(f"s_cselect_b32 s{sT0}, s{sT0}, 12288")
    A(f"v_mul_lo_u32 v{vOff}, v{vT0}, s{sT0}")
    A(f"v_lshl_add_u32 v{vOff}, v{vT1}, 4, v{vOff}")
    A(f"s_mul_i32 s{sOff}, s{sJ}, 80")
    A(f"s_mul_i32 s{sOff}, s{sOff}, s{sT0}")
    A(f"s_lshl_b32 s{sT3}, s{sT0}, 3")
    A(f"s_mul_i32 s{sT1}, s{sH}, 384")
    A(f"s_lshl_b32 s{sT2}, s{sW}, 7")
    A(f"s_add_u32 s{sT1}, s{sT1}, s{sT2}")
    A(f"s_min_u32 s{sT2}, s{sH}, 23")
    A(f"s_lshl_b32 s{sT2}, s{sT2}, 7")
    A(f"s_cmp_eq_u32 s{sW}, 3")
    A(f"s_cselect_b32 s{sT1}, s{sT2}, s{sT1}")
    A(f"s_add_u32 s{sOff}, s{sOff}, s{sT1}")
    A(f"v_lshrrev_b32 v{vT0}, 4, v{vL}")
    A(f"v_mul_u32_u24 v{vT0}, 1280, v{vT0}")
    A(f"v_and_b32 v{vT1}, 15, v{vL}")
    A(f"v_lshl_add_u32 v{vXa}, v{vT1}, 4, v{vT0}")
    A(f"v_lshl_add_u32 v{a}, v{vT1}, 3, s{sT2}")
    A(f"v_min_u32 v{vT1}, 9, v{vT1}")
    A(f"v_lshl_add_u32 v{vXb}, v{vT1}, 4, v{vT0}")
    A(f"s_mul_i32 s{sT1}, s{sJ}, 160")
    A(f"v_add_u32 v{vXb}, s{sT1}, v{vXb}")
    A(f"v_mov_b32 v{vOne_s}, 1")
    for i in range(32):
        A(f"v_mov_b32 v{ACC+i}, 0")
    A(f"v_mov_b32 v{vT0}, {L_SYNC}")
    if stop:
        A(f"v_mov_b32 v{vT1}, 4")
        A(f"ds_write_b32 v{vT0}, v{vT1}")
    else:
        A(f"ds_write_b32 v{vT0}, v{ACC}")
    A(f"s_cmp_lt_u32 s{sH}, 24")
    A(f"s_cselect_b32 s{rW+2}, 1966080, 0")
    A("s_waitcnt lgkmcnt(0)")
    A(f"s_load_dword s{sTag}, s[{sWS}:{sWS+1}], {W_GEN}")
    for m in range(5):
        A(f"global_load_dwordx4 v[{XR+4*m}:{XR+4*m+3}], v{vXa}, s[{sX}:{sX+1}] offset:{256*m}")
    A(f"global_load_dwordx4 v[{XC}:{XC+3}], v{vXb}, s[{sX}:{sX+1}]")
    A(f"s_cmp_eq_u32 s{sW}, 3")
    A(f"s_cselect_b32 s{rW}, s{sW1p}, s{sWQp}")
    A(f"s_cselect_b32 s{rW+1}, s{sW1p+1}, s{sWQp+1}")
    A(f"s_cselect_b32 s{rW+2}, s{rW+2}, 7864320")
    A(f"s_mov_b32 s{rW+3}, 0x20000")
    for t in range(10):
        if stop != 1:
            A(f"buffer_load_dwordx4 v[{WR+4*t}:{WR+4*t+3}], v{vOff}, s[{rW}:{rW+3}], s{sOff} offen nt")
        if t < 9:
            A(f"s_add_u32 s{sOff}, s{sOff}, s{sT3}")
    A(f"global_load_dwordx2 v[{B1R}:{B1R+1}], v{a}, s[{sB1p}:{sB1p+1}]")
    if pre1:
        C("touch the hand-off lines this workgroup will write (brings them on-die)")
        A(f"s_lshl_b32 s{sT0}, s2, 12")
        A(f"s_lshl_b32 s{sT1}, s{sW}, 10")
        A(f"s_add_u32 s{sT0}, s{sT0}, s{sT1}")
        A(f"s_lshr_b32 s{sT1}, s{sT0}, 2")
        A(f"s_add_u32 s{sT0}, s{sT0}, {W_QP}")
        A(f"s_add_u32 s{sT1}, s{sT1}, {W_QC}")
        A(f"v_lshl_add_u32 v{vT0}, v{vL}, 4, s{sT0}")
        A(f"v_lshl_add_u32 v{vT1}, v{vL}, 2, s{sT1}")
        A(f"global_load_dwordx4 v[{QL}:{QL+3}], v{vT0}, s[{sWS}:{sWS+1}] {SC}")
        A(f"global_load_dword v{QL+4}, v{vT1}, s[{sWS}:{sWS+1}] {SC}")
    C("queue counter of this octet = 0 (j == 0, wave 0)")
    A(f"s_mul_i32 s{sT0}, s{sH}, {qstride}")
    A(f"s_add_u32 s{sT0}, s{sT0}, {W_QCNT}")
    A(f"v_mov_b32 v{vT0}, s{sT0}")
    A(f"s_or_b32 s{sT0}, s{sJ}, s{sW}")
    A(f"s_cmp_eq_u32 s{sT0}, 0")
    A("s_cbranch_scc0 L_noq")
    k.set_exec(1)
    A(f"global_store_dword v{vT0}, v{ACC}, s[{sWS}:{sWS+1}] {SC}")
    k.set_exec(-1)
    LB("noq")
    C("barrier 1 releases the stream waves")
    A("s_barrier")
    if noq:
        A("s_barrier")
    A(f"s_mul_i32 s{sT0}, s{sW}, 5120")
    A(f"v_lshl_add_u32 v{vT0}, v{vL}, 4, s{sT0}")
    for i in range(5):
        A(f"ds_write_b128 v{vT0}, v[{ACC}:{ACC+3}] offset:{L_REC+1024*i}")
    A(f"v_mov_b32 v{E}, {NEGBIG}")
    for i in range(1, 4):
        A(f"v_mov_b32 v{E+i}, 0")
    A(f"v_min_u32 v{vT0}, 19, v{vL}")
    A(f"v_lshlrev_b32 v{vT0}, 4, v{vT0}")
    A(f"ds_write_b128 v{vT0}, v[{E}:{E+3}] offset:{L_RHD}")
    if stop == 1:
        A("s_waitcnt vmcnt(0) lgkmcnt(0)")
        A("s_branch L_svc_end")
    C("---- LayerNorm statistics, 16 lanes per batch ----")
    A(f"s_waitcnt vmcnt({11 + 2*pre1})")
    stamp(1, "pro")
    for i in range(20):
        A(f"v_lshlrev_b32 v{X+2*i}, 16, v{XR+i}")
        A(f"v_and_b32 v{X+2*i+1}, s{k.sMsk}, v{XR+i}")
    A(f"v_pk_add_f32 v[{a}:{a+1}], v[{X}:{X+1}], v[{X+2}:{X+3}]")
    A(f"v_pk_add_f32 v[{a+2}:{a+3}], v[{X+4}:{X+5}], v[{X+6}:{X+7}]")
    for i in range(4, 20):
        d = a + 2 * (i & 1)
        A(f"v_pk_add_f32 v[{d}:{d+1}], v[{d}:{d+1}], v[{X+2*i}:{X+2*i+1}]")
    A(f"v_pk_add_f32 v[{a}:{a+1}], v[{a}:{a+1}], v[{a+2}:{a+3}]")
    A(f"v_add_f32 v{a}, v{a}, v{a+1}")
    k.butterfly("v_add_f32", [a], 4)
    A(f"v_mul_f32 v{a}, {-1.0/640.0!r}, v{a}")
    for i in range(20):
        A(f"v_pk_add_f32 v[{X+2*i}:{X+2*i+1}], v[{X+2*i}:{X+2*i+1}], v[{a}:{a+1}] op_sel_hi:[1,0]")
    A(f"v_pk_mul_f32 v[{a+2}:{a+3}], v[{X}:{X+1}], v[{X}:{X+1}]")
    A(f"v_pk_mul_f32 v[{a+4}:{a+5}], v[{X+2}:{X+3}], v[{X+2}:{X+3}]")
    for i in range(2, 20):
        d = a + 2 + 2 * (i & 1)
        A(f"v_pk_fma_f32 v[{d}:{d+1}], v[{X+2*i}:{X+2*i+1}], v[{X+2*i}:{X+2*i+1}], v[{d}:{d+1}]")
    A(f"v_pk_add_f32 v[{a+2}:{a+3}], v[{a+2}:{a+3}], v[{a+4}:{a+5}]")
    A(f"v_add_f32 v{a+2}, v{a+2}, v{a+3}")
    k.butterfly("v_add_f32", [a + 2], 4)
    A(f"v_mul_f32 v{a+2}, {1.0/640.0!r}, v{a+2}")
    k.rnd2(a, a + 2, a + 1)
    A(f"v_add_f32 v{a+2}, 0x3727c5ac, v{a+2}")
    k.rnd1(a + 2, a + 1)
    A(f"v_sqrt_f32 v{a+2}, v{a+2}")
    A("s_waitcnt lgkmcnt(0)")
    for i in range(4):
        A(f"v_lshlrev_b32 v{E+2*i}, 16, v{XC+i}")
        A(f"v_and_b32 v{E+2*i+1}, s{k.sMsk}, v{XC+i}")
    k.rnd1(a + 2, a + 1)
    A(f"v_rcp_f32 v{a+3}, v{a+2}")
    for i in range(8):
        A(f"v_add_f32 v{E+i}, v{E+i}, v{a}")
    for i in range(0, 8, 2):
        k.rnd2(E + i, E + i + 1, a + 1)
    for i in range(8):
        A(f"v_mul_f32 v{a+4}, v{E+i}, v{a+3}")
        A(f"v_fma_f32 v{a+5}, -v{a+4}, v{a+2}, v{E+i}")
        A(f"v_fma_f32 v{E+i}, v{a+5}, v{a+3}, v{a+4}")
    for i in range(0, 8, 2):
        k.rnd2(E + i, E + i + 1, a + 1)
    A(f"s_mul_i32 s{sT0}, s{sW}, 1280")
    A(f"v_and_b32 v{vT1}, 15, v{vL}")
    A(f"v_min_u32 v{vT1}, 9, v{vT1}")
    A(f"v_lshl_add_u32 v{vT1}, v{vT1}, 7, s{sT0}")
    A(f"v_lshrrev_b32 v{vT0}, 4, v{vL}")
    A(f"v_lshl_add_u32 v{vT1}, v{vT0}, 2, v{vT1}")
    for i in range(8):
        A(f"ds_write_b32 v{vT1}, v{E+i} offset:{L_XN+16*i}")
    A(f"v_lshrrev_b32 v{vT0}, 3, v{vL}")
    A(f"v_lshl_add_u32 v{vT0}, v{vT0}, 4, s{sT0}")
    A(f"s_add_u32 s{sTag}, s{sTag}, 1")
    XN = X
    for t in range(10):
        A(f"ds_read_b128 v[{XN+4*t}:{XN+4*t+3}], v{vT0} offset:{L_XN+128*t}")
    C("granule index 16w + 2e + half, row b = l>>4")
    A(f"v_and_b32 v{vT0}, 7, v{vL}")
    A(f"v_bfe_u32 v{vT1}, v{vL}, 3, 1")
    A(f"v_lshl_add_u32 v{vT0}, v{vT0}, 1, v{vT1}")
    A(f"s_lshl_b32 s{sT0}, s{sW}, 4")
    A(f"v_add_u32 v{vT0}, s{sT0}, v{vT0}")
    A(f"v_lshrrev_b32 v{vT1}, 4, v{vL}")
    A(f"v_lshl_add_u32 v{vT0}, v{vT1}, 6, v{vT0}")
    A(f"s_lshl_b32 s{sT0}, s2, 12")
    A(f"s_add_u32 s{sT0}, s{sT0}, {W_QP}")
    A(f"s_lshl_b32 s{sT1}, s2, 10")
    A(f"s_lshl_b32 s{sT2}, s{sW}, 8")
    A(f"s_add_u32 s{sT1}, s{sT1}, s{sT2}")
    A(f"s_add_u32 s{sT1}, s{sT1}, {W_QC}")
    A(f"v_lshl_add_u32 v{vXa}, v{vT0}, 4, s{sT0}")
    A(f"v_lshl_add_u32 v{vXb}, v{vL}, 2, s{sT1}")
    stamp(1)
    stamp(2, "pro")
    for t in range(10):
        A(f"s_waitcnt vmcnt({10-t+2*pre1 if t < 9 else 0}) lgkmcnt({9-t})")
        if t == 0:
            stamp(3, "pro")
        if t == 9:
            stamp(4, "pro")
        for d in range(4):
            tt = k.unpack(WR + 4 * t + d)
            for b in range(4):
                k.pkfma(ACC + 8 * b + 2 * d, tt, XN + 4 * t + b)
    C("reduce-scatter over lane bits 5,4,3")
    A("s_nop 1")
    for i in range(16):
        A(f"v_permlane32_swap_b32 v{ACC+i}, v{ACC+16+i}")
    for i in range(16):
        A(f"v_add_f32 v{ACC+i}, v{ACC+i}, v{ACC+16+i}")
    A("s_nop 1")
    for i in range(8):
        A(f"v_permlane16_swap_b32 v{ACC+i}, v{ACC+8+i}")
    for i in range(8):
        A(f"v_add_f32 v{ACC+i}, v{ACC+i}, v{ACC+8+i}")
    A("s_nop 1")
    for i in range(4):
        A(f"v_add_f32_dpp v{E+i}, v{ACC+i}, v{ACC+i} row_ror:8 row_mask:0xf bank_mask:0x3")
        A(f"v_add_f32_dpp v{E+i}, v{ACC+4+i}, v{ACC+4+i} row_ror:8 row_mask:0xf bank_mask:0xc")
    A(f"global_store_dwordx4 v{vXa}, v[{E}:{E+3}], s[{sWS}:{sWS+1}] {SCS}")
    xor3(E + 4, f"v{E}", f"v{E+1}", f"v{E+2}")
    xor3(E + 4, f"v{E+4}", f"v{E+3}", f"s{sTag}")
    A(f"global_store_dword v{vXb}, v{E+4}, s[{sWS}:{sWS+1}] {SCS}")
    stamp(2)
    stamp(5, "pro")
    if stop == 2:
        A("s_waitcnt vmcnt(0) lgkmcnt(0)")
        A("s_branch L_svc_end")
    C("addresses: final row FR[h*4+w], LDS row w")
    vFr, vQl = a + 6, a + 7
    A(f"s_lshl_b32 s{sT0}, s{sH}, 2")
    A(f"s_add_u32 s{sT0}, s{sT0}, s{sW}")
    A(f"s_lshl_b32 s{sT0}, s{sT0}, 10")
    A(f"s_add_u32 s{sT0}, s{sT0}, {W_FR}")
    A(f"v_lshl_add_u32 v{vFr}, v{vL}, 4, s{sT0}")
    A(f"s_lshl_b32 s{sT1}, s{sW}, 9")
    A(f"v_lshl_add_u32 v{vQl}, v{vL}, 3, s{sT1}")
    A(f"s_mov_b32 s{sSpin}, {SPIN}")
    A(f"s_lshr_b32 s{sPairCur}, s{sJ}, 1")
    A(f"s_cmp_eq_u32 s{sPairCur}, s{sW}")
    A("s_cbranch_scc0 L_nonhome")
    C("---- home wave: gather the 8 partial rows ----")
    A(f"s_lshl_b32 s{sT0}, s{sH}, 15")
    A(f"s_lshl_b32 s{sT1}, s{sW}, 10")
    A(f"s_add_u32 s{sT0}, s{sT0}, s{sT1}")
    A(f"s_add_u32 s{sT0}, s{sT0}, {W_QP}")
    A(f"v_lshl_add_u32 v{vXa}, v{vL}, 4, s{sT0}")
    C("check of granule l: [wg][w' = l>>4][16 b + 8 (l&1) + ((l&15)>>1)]")
    A(f"s_lshl_b32 s{sT1}, s{sH}, 13")
    A(f"s_lshl_b32 s{sT2}, s{sW}, 6")
    A(f"s_add_u32 s{sT1}, s{sT1}, s{sT2}")
    A(f"s_add_u32 s{sT1}, s{sT1}, {W_QC}")
    A(f"v_lshrrev_b32 v{vT0}, 4, v{vL}")
    A(f"v_lshl_add_u32 v{vXb}, v{vT0}, 8, s{sT1}")
    A(f"v_and_b32 v{vT0}, 1, v{vL}")
    A(f"v_lshl_add_u32 v{vXb}, v{vT0}, 5, v{vXb}")
    A(f"v_bfe_u32 v{vT0}, v{vL}, 1, 3")
    A(f"v_lshl_add_u32 v{vXb}, v{vT0}, 2, v{vXb}")
    A(f"v_add_u32 v{vT1}, 4096, v{vXb}")
    if qsleep:
        A(f"s_sleep {qsleep}")
    LB("qpoll")
    A(f"v_mov_b32 v{vT0}, v{vXa}")
    for j in range(8):
        if j:
            A(f"v_add_u32 v{vT0}, 4096, v{vT0}")
        A(f"global_load_dwordx4 v[{QL+4*j}:{QL+4*j+3}], v{vT0}, s[{sWS}:{sWS+1}] {SCL}")
        va = vXb if j < 4 else vT1
        A(f"global_load_dword v{QK+j}, v{va}, s[{sWS}:{sWS+1}] offset:{1024*(j%4)} {SCL}")
    for j in range(8):
        A(f"s_waitcnt vmcnt({14-2*j})")
        xor3(a, f"v{QL+4*j}", f"v{QL+4*j+1}", f"v{QL+4*j+2}")
        xor3(a + 1, f"v{QL+4*j+3}", f"v{QK+j}", f"s{sTag}")
        if j == 0:
            A(f"v_xor_b32 v{a+2}, v{a}, v{a+1}")
        else:
            A(f"v_xor_b32 v{a}, v{a}, v{a+1}")
            A(f"v_or_b32 v{a+2}, v{a+2}, v{a}")
    A(f"v_cmp_ne_u32 vcc, 0, v{a+2}")
    A("s_cbranch_vccz L_qok")
    spin_tail("qpoll")
    LB("qok")
    for j in range(1, 8):
        A(f"v_pk_add_f32 v[{QL}:{QL+1}], v[{QL}:{QL+1}], v[{QL+4*j}:{QL+4*j+1}]")
        A(f"v_pk_add_f32 v[{QL+2}:{QL+3}], v[{QL+2}:{QL+3}], v[{QL+4*j+2}:{QL+4*j+3}]")
    A(f"v_cvt_pk_bf16_f32 v{QL+4}, v{QL}, v{QL+1}")
    A(f"v_cvt_pk_bf16_f32 v{QL+5}, v{QL+2}, v{QL+3}")
    A(f"ds_write_b64 v{vQl}, v[{QL+4}:{QL+5}] offset:{L_QH}")
    stamp(3)
    if stamps == "stamps":
        A(f"s_sub_u32 s{sTs+1}, {SPIN}, s{sSpin}")
        A(f"s_mul_i32 s{sTs+1}, s{sTs+1}, 100")
        A(f"s_add_u32 s{sTs+1}, s{sTs+1}, s{sTs}")
    A("s_waitcnt lgkmcnt(0)")
    if not noq:
        A("s_barrier")
    A("s_setprio 0")
    C("hid = bf16(relu(bf16(bf16(sum) + b1))^2) on lanes 48..63")
    Hh = QL + 8
    A(f"v_lshlrev_b32 v{Hh}, 16, v{QL+4}")
    A(f"v_and_b32 v{Hh+1}, s{k.sMsk}, v{QL+4}")
    A(f"v_lshlrev_b32 v{Hh+2}, 16, v{QL+5}")
    A(f"v_and_b32 v{Hh+3}, s{k.sMsk}, v{QL+5}")
    A(f"v_lshlrev_b32 v{Hh+4}, 16, v{B1R}")
    A(f"v_and_b32 v{Hh+5}, s{k.sMsk}, v{B1R}")
    A(f"v_lshlrev_b32 v{Hh+6}, 16, v{B1R+1}")
    A(f"v_and_b32 v{Hh+7}, s{k.sMsk}, v{B1R+1}")
    for i in range(4):
        A(f"v_add_f32 v{Hh+i}, v{Hh+i}, v{Hh+4+i}")
    k.rnd2(Hh, Hh + 1, a)
    k.rnd2(Hh + 2, Hh + 3, a)
    for i in range(4):
        A(f"v_cmp_gt_f32 vcc, v{Hh+i}, 0")
        A("s_nop 1")
        A(f"v_cndmask_b32 v{Hh+i}, 0, v{Hh+i}, vcc")
    for i in range(4):
        A(f"v_mul_f32 v{Hh+i}, v{Hh+i}, v{Hh+i}")
    k.set_exec(0xffff << 48)
    A(f"v_cvt_pk_bf16_f32 v{QL+4}, v{Hh}, v{Hh+1}")
    A(f"v_cvt_pk_bf16_f32 v{QL+5}, v{Hh+2}, v{Hh+3}")
    A(f"ds_write_b64 v{vQl}, v[{QL+4}:{QL+5}] offset:{L_QH}")
    k.set_exec(-1)
    xor3(QL + 6, f"v{QL+4}", f"v{QL+5}", f"s{sTag}")
    A(f"s_bitcmp1_b32 s{sJ}, 0")
    A("s_cbranch_scc1 L_rowdone")
    A(f"global_store_dwordx4 v{vFr}, v[{QL+4}:{QL+7}], s[{sWS}:{sWS+1}] {SCS}")
    A("s_branch L_rowdone")
    C("---- other waves: fetch the finished row later ----")
    LB("nonhome")
    A("s_waitcnt lgkmcnt(0)")
    if not noq:
        A("s_barrier")
    A("s_setprio 0")
    for i in range(fsleep // 100):
        A("s_sleep 100")
    A(f"s_sleep {fsleep % 100}")
    LB("fpoll")
    A(f"global_load_dwordx4 v[{QL+4}:{QL+7}], v{vFr}, s[{sWS}:{sWS+1}] {SCL}")
    A("s_waitcnt vmcnt(0)")
    xor3(a, f"v{QL+4}", f"v{QL+5}", f"v{QL+6}")
    A(f"v_cmp_ne_u32 vcc, s{sTag}, v{a}")
    A("s_cbranch_vccz L_fok")
    spin_tail("fpoll", sleep=32)
    LB("fok")
    A(f"ds_write_b64 v{vQl}, v[{QL+4}:{QL+5}] offset:{L_QH}")
    stamp(3)
    LB("rowdone")
    stamp(1, "svc")
    if stop == 3:
        A("s_waitcnt vmcnt(0) lgkmcnt(0)")
        A("s_branch L_svc_end")
    C("weight lines -> registers -> LDS image [256 rows][128 B]; pass 1 only for j < 2")
    G = 20
    FB = 116
    F2 = 212
    AF = 228
    DD = 8
    vG = vOff
    rW2 = 44
    A(f"v_lshrrev_b32 v{vT0}, 3, v{vL}")
    A(f"v_mul_u32_u24 v{vG}, {1280-128}, v{vT0}")
    A(f"v_lshl_add_u32 v{vG}, v{vL}, 4, v{vG}")
    k.srd(rW, sWOp, 7864320)
    k.srd(rW2, sW2p, 1966080)
    A(f"s_lshl_b32 s{sT0}, s{sH}, 2")
    A(f"s_add_u32 s{sT0}, s{sT0}, s{sW}")
    A(f"s_lshl_b32 s{sT2}, s{sJ}, 7")
    A(f"s_mul_i32 s{sOff}, s{sT0}, {48*1280}")
    A(f"s_add_u32 s{sOff}, s{sOff}, s{sT2}")
    A(f"s_mul_i32 s{sT3}, s{sT0}, {16*1280}")
    A(f"s_add_u32 s{sT3}, s{sT3}, s{sT2}")
    A(f"s_mul_i32 s{sT0}, s{sW}, {48*128}")
    A(f"s_add_u32 s{sT0}, s{sT0}, {L_WT}")
    A(f"v_lshl_add_u32 v{vXa}, v{vL}, 4, s{sT0}")
    A(f"s_lshl_b32 s{sT0}, s{sW}, 11")
    A(f"s_add_u32 s{sT0}, s{sT0}, {L_WT + 192*128}")
    A(f"v_lshl_add_u32 v{vXb}, v{vL}, 4, s{sT0}")
    for p in range(2):
        if p == 1:
            A(f"s_cmp_lt_u32 s{sJ}, 2")
            A("s_cbranch_scc0 L_wl_done")
        for i in range(6):
            A(f"s_add_u32 s{sT0}, s{sOff}, {8*1280*i}")
            A(f"buffer_load_dwordx4 v[{G+4*i}:{G+4*i+3}], v{vG}, s[{rW}:{rW+3}], s{sT0} offen offset:{1024*p} nt")
        for i in range(2):
            A(f"s_add_u32 s{sT0}, s{sT3}, {8*1280*i}")
            A(f"buffer_load_dwordx4 v[{G+24+4*i}:{G+24+4*i+3}], v{vG}, s[{rW2}:{rW2+3}], s{sT0} offen offset:{1024*p} nt")
        for i in range(6):
            A(f"s_waitcnt vmcnt({7-i})")
            A(f"ds_write_b128 v{vXa}, v[{G+4*i}:{G+4*i+3}] offset:{32768*p+1024*i}")
        for i in range(2):
            A(f"s_waitcnt vmcnt({1-i})")
            A(f"ds_write_b128 v{vXb}, v[{G+24+4*i}:{G+24+4*i+3}] offset:{32768*p+1024*i}")
        A("s_waitcnt lgkmcnt(0)")
    LB("wl_done")
    A(f"v_mov_b32 v{vT1}, {L_SYNC}")
    k.set_exec(1)
    A(f"ds_add_u32 v{vT1}, v{vOne_s}")
    k.set_exec(-1)
    C("transpose-read address: (8g + r)*128 + c*8 + w*32")
    A(f"v_lshrrev_b32 v{vT0}, 4, v{vL}")
    A(f"v_lshlrev_b32 v{vT0}, 3, v{vT0}")
    A(f"v_bfe_u32 v{vG}, v{vL}, 2, 2")
    A(f"v_add_lshl_u32 v{vG}, v{vG}, v{vT0}, 7")
    A(f"v_and_b32 v{vT0}, 3, v{vL}")
    A(f"v_lshl_add_u32 v{vG}, v{vT0}, 3, v{vG}")
    A(f"s_lshl_b32 s{sT0}, s{sW}, 5")
    A(f"s_add_u32 s{sT0}, s{sT0}, {L_WT}")
    A(f"v_add_u32 v{vG}, s{sT0}, v{vG}")
    lds_wait4("rdy", vT1, vT0)
    stamp(2, "svc")
    if stop == 4:
        A("s_waitcnt vmcnt(0) lgkmcnt(0)")
        A("s_branch L_svc_end")

    def frags(nkb, dst, row0, p):
        for kb in range(nkb):
            for hh in range(2):
                r = dst + 4 * kb + 2 * hh
                A(f"ds_read_b64_tr_b16 v[{r}:{r+1}], v{vG} offset:{(row0+32*kb+4*hh)*128 + 32768*p}")
    frags(2, F2, 192, 0)
    frags(6, FB, 0, 0)
    A(f"s_cmp_lt_u32 s{sJ}, 2")
    A("s_cbranch_scc0 L_g1")
    frags(2, F2 + 8, 192, 1)
    frags(6, FB + 24, 0, 1)
    LB("g1")
    C("A fragment address: row (l&3), k offset 16*(l>>4) bytes")
    vAf = vXa
    vYa = vXb
    A(f"v_and_b32 v{vT0}, 3, v{vL}")
    A(f"v_lshrrev_b32 v{vT1}, 4, v{vL}")
    A(f"v_lshlrev_b32 v{vT1}, 4, v{vT1}")
    A(f"v_lshl_add_u32 v{vAf}, v{vT0}, 9, v{vT1}")
    for kb in range(2):
        A(f"ds_read_b128 v[{AF+4*kb}:{AF+4*kb+3}], v{vAf} offset:{L_QH+384+64*kb}")
    A(f"v_mul_u32_u24 v{vAf}, 384, v{vT0}")
    A(f"v_add_u32 v{vAf}, v{vAf}, v{vT1}")
    C("Y address: [group = 4j + w][h][half][n] x 16 B : lanes 0..31 contiguous")
    A(f"s_lshl_b32 s{sT0}, s{sJ}, 2")
    A(f"s_add_u32 s{sT0}, s{sT0}, s{sW}")
    A(f"s_lshl_b32 s{sT0}, s{sT0}, 14")
    A(f"s_lshl_b32 s{sT1}, s{sH}, 9")
    A(f"s_add_u32 s{sT0}, s{sT0}, s{sT1}")
    A(f"v_lshl_add_u32 v{vYa}, v{vL}, 4, s{sT0}")
    A(f"s_mov_b32 s{sM1}, 0xffff0000")
    A(f"s_mov_b32 s{sM1+1}, 0xffff0000")
    A("s_waitcnt lgkmcnt(0)")

    CF = F2 + 0
    CI = 252
    cin = [CI, QK]
    C("FFN2 partial (zero for h >= 24 because the w2 rows read as zero... hid finite): initial accumulator")
    for p in range(2):
        if p == 1:
            A(f"s_cmp_lt_u32 s{sJ}, 2")
            A("s_cbranch_scc0 L_yb_done")
        for kb in range(2):
            c = "0" if kb == 0 else f"v[{cin[p]}:{cin[p]+3}]"
            f = F2 + p * 8 + 4 * kb
            A(f"v_mfma_f32_16x16x32_bf16 v[{cin[p]}:{cin[p]+3}], v[{AF+4*kb}:{AF+4*kb+3}], v[{f}:{f+3}], {c}")
    LB("yb_done")
    A(f"s_cmp_lt_u32 s{sH}, 24")
    A("s_cbranch_scc1 L_yb_keep")
    A("s_nop 7")
    for p in range(2):
        for i in range(4):
            A(f"v_mov_b32 v{cin[p]+i}, 0")
    LB("yb_keep")

    def proj_store(nkb, frag, fstride, ybase, tagl):
        for p in range(2):
            if p == 1:
                A(f"s_cmp_lt_u32 s{sJ}, 2")
                A(f"s_cbranch_scc0 L_{tagl}")
            d = cin[p]
            for kb in range(nkb):
                f = frag + p * fstride + 4 * kb
                A(f"v_mfma_f32_16x16x32_bf16 v[{d}:{d+3}], v[{AF+4*kb}:{AF+4*kb+3}], v[{f}:{f+3}], v[{d}:{d+3}]")
            A(f"v_add_u32 v{vT0}, {ybase + p*512*1024}, v{vYa}")
            k.set_exec(0xffffffff)
            A("s_nop 4")
            o = G + 4 * p
            A(f"v_cndmask_b32 v{o}, v{d}, v{d+2}, s[{sM1}:{sM1+1}]")
            A(f"v_cndmask_b32 v{o+1}, v{d+1}, v{d+3}, s[{sM1}:{sM1+1}]")
            xor3(o + 2, f"v{o}", f"v{o+1}", f"s{sTag}")
            A(f"global_store_dwordx4 v{vT0}, v[{o}:{o+3}], s[{sWS}:{sWS+1}] {SC}")
            k.set_exec(-1)
        LB(tagl)
    stamp(3, "svc")
    if stop == 5:
        A("s_waitcnt vmcnt(0) lgkmcnt(0)")
        A("s_branch L_svc_end")
    C("---- finaliser task (h < 2, or h < 4 when j < 2): group 4(j + 8(h>>1)) + w, half h&1 ----")
    sFin = sWs
    vFa = vG
    A(f"s_cmp_lt_u32 s{sJ}, 2")
    A(f"s_cselect_b32 s{sT1}, 4, 2")
    A(f"s_cmp_lt_u32 s{sH}, s{sT1}")
    A(f"s_cselect_b32 s{sFin}, 1, 0")
    A(f"s_cselect_b32 s{sT2}, s{sH}, 0")
    A(f"s_lshr_b32 s{sT0}, s{sT2}, 1")
    A(f"s_lshl_b32 s{sT0}, s{sT0}, 3")
    A(f"s_add_u32 s{sT0}, s{sT0}, s{sJ}")
    A(f"s_lshl_b32 s{sT0}, s{sT0}, 2")
    A(f"s_add_u32 s{sT0}, s{sT0}, s{sW}")
    A(f"s_and_b32 s{sT2}, s{sT2}, 1")
    A(f"s_lshl_b32 s{sT1}, s{sT0}, 14")
    A(f"s_lshl_b32 s{sT3}, s{sT2}, 8")
    A(f"s_add_u32 s{sT1}, s{sT1}, s{sT3}")
    A(f"v_lshrrev_b32 v{vT0}, 4, v{vL}")
    A(f"v_lshl_add_u32 v{vFa}, v{vT0}, 9, s{sT1}")
    A(f"v_and_b32 v{vT0}, 15, v{vL}")
    A(f"v_lshl_add_u32 v{vFa}, v{vT0}, 4, v{vFa}")
    A(f"s_lshl_b32 s{sT0}, s{sT0}, 5")
    A(f"v_lshl_add_u32 v{vT1}, v{vT0}, 1, s{sT0}")
    A(f"s_mul_i32 s{sT2}, s{sT2}, 2560")
    A(f"v_add_u32 v{FXR+5}, s{sT2}, v{vT1}")
    Yv = G + 40
    Ya = G + 8

    def ysum(ybase, tagl, sleep, nld):
        for i in range((nld + 1) // 2):
            A(f"v_add_u32 v{Ya+i}, {ybase + 4096*i}, v{vFa}")
        A(f"s_mov_b32 s{sSpin}, {SPIN}")
        LB(tagl)
        for i in range(nld):
            A(f"global_load_dwordx4 v[{Yv+4*i}:{Yv+4*i+3}], v{Ya+i//2}, s[{sWS}:{sWS+1}] offset:{2048*(i%2)} {SC}")
        for i in range(nld):
            A(f"s_waitcnt vmcnt({nld-1-i})")
            xor3(a, f"v{Yv+4*i}", f"v{Yv+4*i+1}", f"v{Yv+4*i+2}")
            if i == 0:
                A(f"v_xor_b32 v{a+1}, s{sTag}, v{a}")
            else:
                A(f"v_xor_b32 v{a}, s{sTag}, v{a}")
                A(f"v_or_b32 v{a+1}, v{a+1}, v{a}")
                A(f"v_pk_add_f32 v[{Yv}:{Yv+1}], v[{Yv}:{Yv+1}], v[{Yv+4*i}:{Yv+4*i+1}]")
        A(f"v_cmp_ne_u32 vcc, 0, v{a+1}")
        A(f"s_cbranch_vccz L_{tagl}ok")
        spin_tail(tagl, sleep=sleep)
        LB(tagl + "ok")
        for op in ("v_permlane16_swap_b32", "v_permlane32_swap_b32"):
            A(f"v_mov_b32 v{Yv+2}, v{Yv}")
            A(f"v_mov_b32 v{Yv+3}, v{Yv+1}")
            A("s_nop 0")
            A(f"{op} v{Yv}, v{Yv+2}")
            A(f"{op} v{Yv+1}, v{Yv+3}")
            A("s_nop 0")
            A(f"v_pk_add_f32 v[{Yv}:{Yv+1}], v[{Yv}:{Yv+1}], v[{Yv+2}:{Yv+3}]")

    A(f"s_cmp_eq_u32 s{sFin}, 0")
    A("s_cbranch_scc1 L_nofin1")
    A(f"global_load_ushort v{FXR}, v{FXR+5}, s[{sX}:{sX+1}]")
    A(f"global_load_ushort v{FXR+1}, v{FXR+5}, s[{sX}:{sX+1}] offset:1280")
    A(f"global_load_ushort v{FXR+2}, v{vT1}, s[{sB2p}:{sB2p+1}]")
    A("s_waitcnt vmcnt(0)")
    for i in range(3):
        A(f"v_lshlrev_b32 v{FXR+i}, 16, v{FXR+i}")
    A(f"v_add_f32 v{FXR}, v{FXR}, v{FXR+2}")
    A(f"v_add_f32 v{FXR+1}, v{FXR+1}, v{FXR+2}")
    LB("nofin1")
    stamp(5, "svc")
    if stop == 6:
        A("s_waitcnt vmcnt(0) lgkmcnt(0)")
        A("s_branch L_svc_end")
    C("record addresses for batch w")
    vRh, vRd, vRd2, vOl = G + 16, G + 17, G + 18, G + 19
    sLoad, sOk, sHv = 6, 7, 12
    A(f"s_lshl_b32 s{sT0}, s{sH}, 2")
    A(f"s_add_u32 s{sT0}, s{sT0}, s{sW}")
    A(f"s_lshl_b32 s{sT1}, s{sT0}, 10")
    A(f"s_add_u32 s{sT1}, s{sT1}, {W_RH}")
    A(f"v_and_b32 v{vT0}, 7, v{vL}")
    A(f"v_lshl_add_u32 v{vRh}, v{vT0}, 7, s{sT1}")
    A(f"s_lshl_b32 s{sT1}, s{sT0}, 13")
    A(f"s_add_u32 s{sT1}, s{sT1}, {W_REC}")
    A(f"v_lshl_add_u32 v{vRd}, v{vL}, 4, s{sT1}")
    A(f"v_add_u32 v{vRd2}, 4096, v{vRd}")
    A(f"s_mul_i32 s{sT1}, s{sW}, 384")
    A(f"v_lshl_add_u32 v{vOl}, v{vL}, 1, s{sT1}")
    if pre2:
        A(f"s_lshl_b32 s{sT1}, s{sJ}, 10")
        A(f"v_add_u32 v{vT0}, s{sT1}, v{vRd}")
        A(f"global_load_dwordx4 v[{QL}:{QL+3}], v{vT0}, s[{sWS}:{sWS+1}] {SC}")
        A(f"v_add_u32 v{vT0}, {W_YA}, v{vYa}")
        k.set_exec(0xffffffff)
        A(f"global_load_dwordx4 v[{QL+8}:{QL+11}], v{vT0}, s[{sWS}:{sWS+1}] {SC}")
        k.set_exec(-1)
        A("s_waitcnt vmcnt(0)")
    A(f"s_mov_b32 s{sSpin}, {SPIN}")
    A(f"s_mov_b32 s{sLoad}, 0")
    A(f"s_mov_b32 s{sOk}, 0")
    A("s_setprio 3")
    A("s_barrier")
    stamp(4)
    stamp(1, "epi")
    HD = G + 24
    LB("rpoll")
    A(f"global_load_dwordx4 v[{HD}:{HD+3}], v{vRh}, s[{sWS}:{sWS+1}] {SC}")
    for j in range(8):
        va = vRd if j < 4 else vRd2
        A(f"s_bitcmp1_b32 s{sLoad}, {j}")
        A(f"s_cbranch_scc0 L_rs{j}")
        A(f"global_load_dwordx4 v[{QL+4*j}:{QL+4*j+3}], v{va}, s[{sWS}:{sWS+1}] offset:{1024*(j%4)} {SC}")
        LB(f"rs{j}")
    A("s_waitcnt vmcnt(0)")
    xor3(HD + 4, f"v{HD}", f"v{HD+1}", f"v{HD+2}")
    A(f"v_cmp_eq_u32 vcc, s{sTag}, v{HD+4}")
    A(f"s_and_b32 s{sHv}, vcc_lo, 0xff")
    for j in range(8):
        A(f"s_bitcmp1_b32 s{sLoad}, {j}")
        A(f"s_cbranch_scc0 L_rv{j}")
        xor3(a, f"v{QL+4*j}", f"v{QL+4*j+1}", f"v{QL+4*j+2}")
        A(f"v_xor_b32 v{a}, v{a}, v{QL+4*j+3}")
        A(f"v_cmp_ne_u32 vcc, s{sTag}, v{a}")
        A(f"s_cbranch_vccnz L_rv{j}")
        A(f"s_bitset1_b32 s{sOk}, {j}")
        LB(f"rv{j}")
    A(f"s_and_b32 s{sT0}, s{sOk}, s{sHv}")
    A(f"s_cmp_eq_u32 s{sT0}, 0xff")
    A("s_cbranch_scc1 L_rok")
    A(f"s_bcnt1_i32_b32 s{sT0}, s{sHv}")
    A(f"s_cmp_ge_u32 s{sT0}, {8-nmiss}")
    A(f"s_cselect_b32 s{sLoad}, 0xff, s{sHv}")
    A(f"s_andn2_b32 s{sLoad}, s{sLoad}, s{sOk}")
    spin_tail("rpoll", sleep=hsleep)
    LB("rok")
    stamp(3, "epi")
    A(f"v_mov_b32 v{HD+4}, v{HD}")
    k.butterfly("v_max_f32", [HD + 4], 3)
    A(f"v_sub_f32 v{HD+5}, v{HD}, v{HD+4}")
    A(f"v_mul_f32 v{HD+5}, {LOG2E}, v{HD+5}")
    A(f"v_exp_f32 v{HD+5}, v{HD+5}")
    A("s_nop 0")
    A(f"v_mul_f32 v{HD+6}, v{HD+5}, v{HD+1}")
    for j in range(8):
        A(f"v_readlane_b32 s{sWt+j}, v{HD+5}, {j}")
    k.dpp("v_add_f32", HD + 6, "quad_perm:[1,0,3,2]")
    O = HD + 8
    A(f"v_pk_mul_f32 v[{O}:{O+1}], v[{QL}:{QL+1}], s[{sWt}:{sWt+1}] op_sel_hi:[1,0]")
    A(f"v_mul_f32 v{O+2}, s{sWt}, v{QL+2}")
    k.dpp("v_add_f32", HD + 6, "quad_perm:[2,3,0,1]")
    for j in range(1, 8):
        k.pkfma(O, QL + 4 * j, sWt + j, pre="s")
        A(f"v_fmac_f32 v{O+2}, s{sWt+j}, v{QL+4*j+2}")
        if j == 1:
            k.dpp("v_add_f32", HD + 6, "row_half_mirror")
        if j == 2:
            A(f"v_rcp_f32 v{HD+7}, v{HD+6}")
    for i in range(3):
        A(f"v_mul_f32 v{O+4+i}, v{O+i}, v{HD+7}")
    for i in range(3):
        A(f"v_fma_f32 v{O+i}, -v{O+4+i}, v{HD+6}, v{O+i}")
    for i in range(3):
        A(f"v_fma_f32 v{O+i}, v{O+i}, v{HD+7}, v{O+4+i}")
    A(f"v_cvt_pk_bf16_f32 v{O+4}, v{O}, v{O+1}")
    A(f"v_cvt_pk_bf16_f32 v{O+5}, v{O+2}, v{O+2}")
    A(f"ds_write_b16 v{vOl}, v{O+4} offset:{L_OB}")
    A(f"ds_write_b16_d16_hi v{vOl}, v{O+4} offset:{L_OB+128}")
    A(f"ds_write_b16 v{vOl}, v{O+5} offset:{L_OB+256}")
    A("s_waitcnt lgkmcnt(0)")
    A("s_barrier")
    for kb in range(6):
        A(f"ds_read_b128 v[{AF+4*kb}:{AF+4*kb+3}], v{vAf} offset:{L_OB+64*kb}")
    A("s_waitcnt lgkmcnt(0)")
    proj_store(6, FB, 24, W_YA, "ya_done")
    stamp(4, "epi")
    A(f"s_cmp_eq_u32 s{sFin}, 0")
    A("s_cbranch_scc1 L_svc_end")
    ysum(W_YA, "yap", ysleep, 8)
    A(f"v_pk_add_f32 v[{Yv}:{Yv+1}], v[{Yv}:{Yv+1}], v[{FXR}:{FXR+1}]")
    A(f"v_cvt_pk_bf16_f32 v{Yv}, v{Yv}, v{Yv+1}")
    k.set_exec(0xffff)
    A(f"global_store_short v{FXR+5}, v{Yv}, s[{sOUT}:{sOUT+1}]")
    A(f"global_store_short_d16_hi v{FXR+5}, v{Yv}, s[{sOUT}:{sOUT+1}] offset:1280")
    k.set_exec(-1)
    C("generation bump by (h=0, j=0, w=0)")
    A(f"s_or_b32 s{sT0}, s2, s{sW}")
    A(f"s_cmp_eq_u32 s{sT0}, 0")
    A("s_cbranch_scc0 L_svc_end")
    A(f"v_mov_b32 v{vT0}, {W_GEN}")
    A(f"v_mov_b32 v{vT1}, s{sTag}")
    k.set_exec(1)
    A(f"global_store_dword v{vT0}, v{vT1}, s[{sWS}:{sWS+1}] {SC}")
    k.set_exec(-1)
    LB("svc_end")
    stamp(5)
    stamp(5, "epi")
    write_stamps(QL, vT0)
    A("s_endpgm")
    LB("stream")
    in_service[0] = False
    C("================= stream waves (4..7) =================")
    vKoff, vOne, vM, vLs, vAl, vQa, vCa = 2, 6, 7, 8, 9, 10, 11
    vClaim = [5, 0]
    S = 12
    k.TP = 16
    k.ntp = 4
    D = 16
    QF = 24
    ACC = 36
    SL = 60
    MG = 60

    def kreg(x):
        return SL + 48 * x

    def vreg(x):
        return SL + 48 * x + 24

    def loads(base, srd, so):
        for j in range(6):
            r = base + 4 * j
            A(f"buffer_load_dwordx4 v[{r}:{r+3}], v{vKoff}, s[{srd}:{srd+3}], s{so} offen offset:{boff[j]} nt")

    def k_tile(x):
        s0 = kreg(x)
        Da, Db = D, D + 4
        for n in range(3):
            ca = "0" if n == 0 else f"v[{Da}:{Da+3}]"
            cb = "0" if n == 0 else f"v[{Db}:{Db+3}]"
            A(f"v_mfma_f32_16x16x32_bf16 v[{Da}:{Da+3}], v[{QF+4*n}:{QF+4*n+3}], v[{s0+4*n}:{s0+4*n+3}], {ca}")
            A(f"v_mfma_f32_16x16x32_bf16 v[{Db}:{Db+3}], v[{QF+4*n}:{QF+4*n+3}], v[{s0+12+4*n}:{s0+12+4*n+3}], {cb}")

    def softmax():
        for t in range(2):
            d = D + 4 * t
            A(f"v_add_f32_dpp v{S+t}, v{d+1}, v{d} row_ror:8 row_mask:0xf bank_mask:0x3")
            A(f"v_add_f32_dpp v{S+t}, v{d}, v{d+1} row_ror:8 row_mask:0xf bank_mask:0xc")
        if mimic:
            k.rnd2(S, S + 1, vT0)
        for t in range(2):
            A(f"v_mul_f32 v{S+t}, {SCALE}, v{S+t}")
        if mimic:
            k.rnd2(S, S + 1, vT0)
        A(f"v_max3_f32 v{vT0}, v{vM}, v{S}, v{S+1}")
        A(f"v_sub_f32 v{vAl}, v{vM}, v{vT0}")
        for t in range(2):
            A(f"v_sub_f32 v{S+t}, v{S+t}, v{vT0}")
        A(f"v_mul_f32 v{vAl}, {LOG2E}, v{vAl}")
        for t in range(2):
            A(f"v_mul_f32 v{S+t}, {LOG2E}, v{S+t}")
        A(f"v_exp_f32 v{vAl}, v{vAl}")
        for t in range(2):
            A(f"v_exp_f32 v{S+t}, v{S+t}")
        A(f"v_mov_b32 v{vM}, v{vT0}")
        A(f"v_fma_f32 v{vLs}, v{vLs}, v{vAl}, v{S}")
        for i in range(12):
            k.pkmul(ACC + 2 * i, vAl)
        A(f"v_add_f32 v{vLs}, v{vLs}, v{S+1}")

    def v_tile(x):
        s0 = vreg(x)
        items = [(s0 + 12 * half + 4 * n + d, ACC + 8 * n + 2 * d, S + half)
                 for half in range(2) for n in range(3) for d in range(4)]
        pend = []
        for it in items:
            t = k.unpack(it[0])
            pend.append((it[1], t, it[2]))
            if len(pend) > 2:
                ac, tt, m = pend.pop(0)
                k.pkfma(ac, tt, m)
        for ac, tt, m in pend:
            k.pkfma(ac, tt, m)

    def flush():
        A(f"v_mov_b32 v{vT0}, v{vM}")
        k.butterfly("v_max_f32", [vT0], 3)
        A(f"v_sub_f32 v{vAl}, v{vM}, v{vT0}")
        A(f"v_mul_f32 v{vAl}, {LOG2E}, v{vAl}")
        A(f"v_exp_f32 v{vAl}, v{vAl}")
        A(f"s_mul_i32 s{sT0}, s{sWs}, 5")
        A(f"s_add_u32 s{sT0}, s{sT0}, s{sSlot}")
        A(f"s_lshl_b32 s{sT1}, s{sT0}, 10")
        A(f"v_mul_f32 v{vLs}, v{vLs}, v{vAl}")
        for i in range(12):
            k.pkmul(ACC + 2 * i, vAl)
        k.dpp("v_add_f32", vLs, "quad_perm:[1,0,3,2]")
        for n in range(3):
            for c in range(4):
                x, y = ACC + 8 * n + c, ACC + 8 * n + c + 4
                A(f"v_add_f32_dpp v{x}, v{x}, v{x} row_half_mirror row_mask:0xf bank_mask:0x5")
                A(f"v_add_f32_dpp v{x}, v{y}, v{y} row_half_mirror row_mask:0xf bank_mask:0xa")
        k.dpp("v_add_f32", vLs, "quad_perm:[2,3,0,1]")
        for n in range(3):
            for c in range(2):
                x, y = ACC + 8 * n + c, ACC + 8 * n + c + 2
                A(f"v_cndmask_b32 v{x+4}, v{y}, v{x}, s[{sM1}:{sM1+1}]")
                A(f"v_cndmask_b32 v{x}, v{x}, v{y}, s[{sM1}:{sM1+1}]")
        k.dpp("v_add_f32", vLs, "row_half_mirror")
        for n in range(3):
            for c in range(2):
                x = ACC + 8 * n + c
                A(f"v_add_f32_dpp v{x}, v{x+4}, v{x} quad_perm:[2,3,0,1] row_mask:0xf bank_mask:0xf")
        for n in range(3):
            x, y = ACC + 8 * n, ACC + 8 * n + 1
            A(f"v_cndmask_b32 v{x+4}, v{y}, v{x}, s[{sM0}:{sM0+1}]")
            A(f"v_cndmask_b32 v{x}, v{x}, v{y}, s[{sM0}:{sM0+1}]")
        A(f"v_lshl_add_u32 v{vT1}, v{vL}, 4, s{sT1}")
        A(f"s_lshl_b32 s{sT0}, s{sT0}, 4")
        for n in range(3):
            x = ACC + 8 * n
            A(f"v_add_f32_dpp v{D+n}, v{x+4}, v{x} quad_perm:[1,0,3,2] row_mask:0xf bank_mask:0xf")
        A(f"v_mov_b32 v{S}, v{vT0}")
        A(f"v_mov_b32 v{S+1}, v{vLs}")
        A(f"v_mov_b32 v{S+2}, s{sPairSt}")
        A(f"v_mov_b32 v{vT0}, s{sT0}")
        A(f"ds_write_b128 v{vT1}, v[{D}:{D+3}] offset:{L_REC}")
        k.set_exec(1)
        A(f"ds_write_b128 v{vT0}, v[{S}:{S+3}] offset:{L_RHD}")
        k.set_exec(-1)
        A(f"s_add_u32 s{sSlot}, s{sSlot}, 1")

    def reset_state():
        A(f"v_mov_b32 v{vM}, {NEGBIG}")
        A(f"v_mov_b32 v{vLs}, 0")
        for i in range(24):
            A(f"v_mov_b32 v{ACC+i}, 0")

    def load_q():
        A(f"s_lshl_b32 s{sT0}, s{sPairCur}, 9")
        A(f"v_add_u32 v{vT0}, s{sT0}, v{vQa}")
        for n in range(3):
            A(f"ds_read_b128 v[{QF+4*n}:{QF+4*n+3}], v{vT0} offset:{L_QH+128*n}")
        A(f"s_mov_b32 s{sPairSt}, s{sPairCur}")

    uid = [0]

    def check_pair(x):
        uid[0] += 1
        A(f"s_cmp_eq_u32 s{sPair[x]}, s{sPairSt}")
        A(f"s_cbranch_scc1 L_same{uid[0]}")
        A(f"s_mov_b32 s{sPairCur}, s{sPair[x]}")
        A(f"s_call_b64 s[{sRet}:{sRet+1}], L_switch")
        LB(f"same{uid[0]}")

    A(f"s_sub_u32 s{sWs}, s{sW}, 4")
    A(f"v_and_b32 v{vT0}, 7, v{vL}")
    A(f"v_lshrrev_b32 v{vT1}, 3, v{vL}")
    A(f"v_mul_u32_u24 v{vKoff}, 384, v{vT0}")
    A(f"v_lshl_add_u32 v{vKoff}, v{vT1}, 4, v{vKoff}")
    A(f"s_lshr_b32 s{sPairCur}, s{sJ}, 1")
    A(f"s_mul_i32 s{sHoff}, s{sH}, 3145728")
    A(f"s_mul_i32 s{sStat}, s{sPairCur}, 100663296")
    A(f"s_add_u32 s{sStat}, s{sStat}, s{sHoff}")
    A(f"s_and_b32 s{sT0}, s{sJ}, 1")
    A(f"s_lshl_b32 s{sT0}, s{sT0}, 2")
    A(f"s_add_u32 s{sT0}, s{sT0}, s{sWs}")
    A(f"s_mul_i32 s{sT0}, s{sT0}, {NS*6144}")
    A(f"s_add_u32 s{sStat}, s{sStat}, s{sT0}")
    A("s_waitcnt lgkmcnt(0)")
    A(f"s_load_dword s{sTag}, s[{sWS}:{sWS+1}], {W_GEN}")
    k.srd(rK, sKp, 402653184)
    k.srd(rV, sVp, 402653184)
    A("s_barrier")
    if noq:
        A("s_barrier")
    order = [2 + i for i in range(NPRE)] + [0, 1]
    for x in order:
        loads(kreg(x), rK, sStat)
        loads(vreg(x), rV, sStat)
        A(f"s_add_u32 s{sStat}, s{sStat}, 6144")
    A(f"v_lshrrev_b32 v{vQa}, 4, v{vL}")
    A(f"v_lshlrev_b32 v{vQa}, 5, v{vQa}")
    A(f"v_and_b32 v{vT1}, 1, v{vL}")
    A(f"v_lshl_add_u32 v{vQa}, v{vT1}, 4, v{vQa}")
    A(f"v_mov_b32 v{vOne}, 1")
    A(f"s_mul_i32 s{sT0}, s{sH}, {qstride}")
    A(f"s_add_u32 s{sT0}, s{sT0}, {W_QCNT}")
    A(f"v_mov_b32 v{vCa}, s{sT0}")
    A(f"s_mov_b32 s{sPair[0]}, s{sPairCur}")
    A(f"s_mov_b32 s{sPair[1]}, s{sPairCur}")
    A(f"s_mov_b32 s{sRem}, {NS - 2 - NPRE}")
    A(f"s_mov_b32 s{sSlot}, 0")
    A(f"s_mov_b32 s{sM1}, 0xcccccccc")
    A(f"s_mov_b32 s{sM1+1}, 0xcccccccc")
    A(f"s_mov_b32 s{sM0}, 0xaaaaaaaa")
    A(f"s_mov_b32 s{sM0+1}, 0xaaaaaaaa")
    reset_state()
    A("s_waitcnt lgkmcnt(0)")
    A(f"s_add_u32 s{sTag}, s{sTag}, 1")
    stamp(1)
    if not noq:
        A("s_barrier")
    load_q()
    A("s_waitcnt lgkmcnt(0)")
    stamp(2)
    for i in range(NPRE):
        rem = 12 * (NPRE + 2 - i)
        A(f"s_waitcnt vmcnt({rem-6})")
        k_tile(2 + i)
        A("s_nop 7")
        softmax()
        A(f"s_waitcnt vmcnt({rem-12})")
        v_tile(2 + i)
    LB("loop")
    for x in range(2):
        A("s_waitcnt vmcnt(18)")
        check_pair(x)
        k_tile(x)
        A(f"s_sub_u32 s{sRem}, s{sRem}, 1")
        A(f"s_cmp_gt_i32 s{sRem}, 1")
        A(f"s_cbranch_scc0 L_dyn{x}")
        A(f"s_mov_b32 s{sNxt}, s{sStat}")
        A(f"s_add_u32 s{sStat}, s{sStat}, 6144")
        LB(f"dynret{x}")
        loads(kreg(x), rK, sNxt)
        softmax()
        A("s_waitcnt vmcnt(18)")
        v_tile(x)
        loads(vreg(x), rV, sNxt)
    A("s_branch L_loop")
    for x in range(2):
        LB(f"dyn{x}")
        A(f"s_mov_b32 s{sNxt}, s{sStat}")
        A(f"s_add_u32 s{sStat}, s{sStat}, 6144")
        A(f"s_cmp_ge_i32 s{sRem}, 0")
        A(f"s_cbranch_scc1 L_claim{x}")
        A(f"v_readfirstlane_b32 s{sT0}, v{vClaim[x]}")
        A("s_nop 3")
        A(f"s_cmp_ge_u32 s{sT0}, {NPOOL}")
        A(f"s_cbranch_scc1 L_last{x}")
        A(f"s_lshr_b32 s{sPair[x]}, s{sT0}, {LDP}")
        A(f"s_and_b32 s{sT0}, s{sT0}, {DP-1}")
        A(f"s_add_u32 s{sT0}, s{sT0}, {512-DP}")
        A(f"s_mul_i32 s{sT0}, s{sT0}, 6144")
        A(f"s_mul_i32 s{sNxt}, s{sPair[x]}, 100663296")
        A(f"s_add_u32 s{sNxt}, s{sNxt}, s{sHoff}")
        A(f"s_add_u32 s{sNxt}, s{sNxt}, s{sT0}")
        LB(f"claim{x}")
        k.set_exec(1)
        A(f"global_atomic_add v{vClaim[x]}, v{vCa}, v{vOne}, s[{sWS}:{sWS+1}] sc0")
        k.set_exec(-1)
        A(f"s_branch L_dynret{x}")
    LB("switch")
    flush()
    lds_wait4("swrdy", vT1, vT0)
    load_q()
    reset_state()
    A("s_waitcnt lgkmcnt(0)")
    A(f"s_setpc_b64 s[{sRet}:{sRet+1}]")
    for x in range(2):
        y = 1 - x
        LB(f"last{x}")
        stamp(3)
        A("s_nop 3")
        softmax()
        A("s_waitcnt vmcnt(12)")
        v_tile(x)
        A("s_waitcnt vmcnt(6)")
        check_pair(y)
        k_tile(y)
        A("s_nop 7")
        softmax()
        A("s_waitcnt vmcnt(0)")
        v_tile(y)
        if x == 0:
            A("s_branch L_fin")
    LB("fin")
    flush()
    vRa, vRhh = QF, QF + 2
    A(f"s_lshl_b32 s{sT0}, s{sH}, 2")
    A(f"s_add_u32 s{sT0}, s{sT0}, s{sWs}")
    A(f"s_lshl_b32 s{sT0}, s{sT0}, 3")
    A(f"s_add_u32 s{sT0}, s{sT0}, s{sJ}")
    A(f"s_lshl_b32 s{sT1}, s{sT0}, 10")
    A(f"s_add_u32 s{sT1}, s{sT1}, {W_REC}")
    A(f"v_lshl_add_u32 v{vRa}, v{vL}, 4, s{sT1}")
    A(f"s_lshl_b32 s{sT1}, s{sT0}, 7")
    A(f"s_add_u32 s{sT1}, s{sT1}, {W_RH}")
    A(f"v_lshl_add_u32 v{vRhh}, v{vL}, 4, s{sT1}")
    A(f"v_min_u32 v{vT0}, 19, v{vL}")
    A(f"v_lshlrev_b32 v{vT0}, 4, v{vT0}")
    A(f"v_lshlrev_b32 v{vT1}, 4, v{vL}")
    A(f"v_cmp_gt_u32 s[{sM0}:{sM0+1}], 20, v{vL}")
    A(f"v_mov_b32 v{vM}, {NEGBIG}")
    A("s_waitcnt lgkmcnt(0)")
    A("s_barrier")
    stamp(4)
    C("==== WG merge: stream wave w handles pair w ====")
    A(f"ds_read_b128 v[{S}:{S+3}], v{vT0} offset:{L_RHD}")
    for i in range(14):
        A(f"ds_read_b128 v[{MG+4*i}:{MG+4*i+3}], v{vT1} offset:{L_REC+1024*i}")
    A("s_waitcnt lgkmcnt(14)")
    A(f"v_cmp_eq_u32 vcc, s{sWs}, v{S+2}")
    A(f"s_and_b64 vcc, vcc, s[{sM0}:{sM0+1}]")
    for i in range(14, 20):
        A(f"ds_read_b128 v[{MG+4*i}:{MG+4*i+3}], v{vT1} offset:{L_REC+1024*i}")
    A(f"v_cndmask_b32 v{vM}, v{vM}, v{S}, vcc")
    C("records live in lanes 0..19: reduce rows 0,1 only")
    k.butterfly("v_max_f32", [vM], 4)
    A("s_nop 0")
    A(f"v_readlane_b32 s{sT0}, v{vM}, 0")
    A(f"v_readlane_b32 s{sT1}, v{vM}, 16")
    A("s_nop 0")
    A(f"v_mov_b32 v{vM}, s{sT0}")
    A(f"v_max_f32 v{vM}, s{sT1}, v{vM}")
    A(f"v_sub_f32 v{vAl}, v{S}, v{vM}")
    A(f"v_mul_f32 v{vAl}, {LOG2E}, v{vAl}")
    A(f"v_exp_f32 v{vAl}, v{vAl}")
    A("s_nop 0")
    A(f"v_cndmask_b32 v{vAl}, 0, v{vAl}, vcc")
    A(f"v_mul_f32 v{vLs}, v{vAl}, v{S+1}")
    ctr = ["quad_perm:[1,0,3,2]", "quad_perm:[2,3,0,1]", "row_half_mirror", "row_mirror"]
    for i in range(20):
        A(f"v_readlane_b32 s{sWt+i}, v{vAl}, {i}")
        if i % 4 == 2 and i // 4 < 4:
            k.dpp("v_add_f32", vLs, ctr[i // 4])
    A(f"v_readlane_b32 s{sT0}, v{vLs}, 0")
    A(f"v_readlane_b32 s{sT1}, v{vLs}, 16")
    A("s_waitcnt lgkmcnt(0)")
    A(f"v_pk_mul_f32 v[{ACC}:{ACC+1}], v[{MG}:{MG+1}], s[{sWt}:{sWt+1}] op_sel_hi:[1,0]")
    A(f"v_mul_f32 v{ACC+2}, s{sWt}, v{MG+2}")
    A(f"v_mov_b32 v{ACC+9}, s{sT0}")
    A(f"v_add_f32 v{ACC+9}, s{sT1}, v{ACC+9}")
    A(f"v_mov_b32 v{ACC+8}, v{vM}")
    xor3(ACC + 10, f"v{vM}", f"v{ACC+9}", f"s{sTag}")
    for i in range(1, 20):
        k.pkfma(ACC, MG + 4 * i, sWt + i, pre="s")
        A(f"v_fmac_f32 v{ACC+2}, s{sWt+i}, v{MG+4*i+2}")
    xor3(ACC + 3, f"v{ACC}", f"v{ACC+1}", f"v{ACC+2}")
    A(f"v_xor_b32 v{ACC+3}, s{sTag}, v{ACC+3}")
    A(f"global_store_dwordx4 v{vRa}, v[{ACC}:{ACC+3}], s[{sWS}:{sWS+1}] {SC}")
    k.set_exec(0xff)
    A(f"global_store_dwordx4 v{vRhh}, v[{ACC+8}:{ACC+11}], s[{sWS}:{sWS+1}] {SC}")
    k.set_exec(-1)
    stamp(5)
    write_stamps(MG, vT1)
    LB("end")
    A("s_endpgm")
    return k, (256, 256), L_TOTAL


def build(stamps=False, **kw):
    k2, r2, l2 = build_main(stamps, **kw)
    txt = HEADER
    txt += f"; @launch grid=(256,1,1) block=(512,1,1) lds={l2}\n"
    txt += '.amdgcn_target "amdgcn-amd-amdhsa--gfx950"\n.text\n'
    txt += k2.text()
    txt += '.section .rodata,"a"\n'
    txt += k2.desc(*r2)
    return txt


if __name__ == "__main__":
    out = sys.argv[1] if len(sys.argv) > 1 else f"cdna_kernels/{NAME}.s"
    stamps = sys.argv[2] if len(sys.argv) > 2 and sys.argv[2] != "-" else False
    kw = {}
    for a in sys.argv[3:]:
        n, v = a.split("=")
        kw[n] = int(v)
    open(out, "w").write(build(stamps, **kw))
    print("wrote", out)
```

```python
import sys
from gen_v1 import HEADER, NAME
from gen_v2 import K, load_kernargs, SCALE, LOG2E, NEGBIG
from gen_v2 import sX, sKp, sVp, sWQp, sWOp, sW1p, sB1p, sW2p, sB2p, sOUT, sDBG, sWS

W_GEN = 0x0
W_QCNT = 0x800000
W_RH = 0xE0000
W_FR = 0x20000
W_YA = 0x400000
W_REC = 0x100000
W_QC = 0x200000
W_YB = 0x240000
W_QP = 0x300000
W_STAMP = 0x1000000
SPIN = 0x80000


def build_main(stamps=False, DP=64, NPRE=2, mimic=1, hsleep=1, qsleep=32, nmiss=2, pre1=0, pre2=0, noq=0, stop=0, ysleep=1, qstride=4352, stnt=0, ldnt=0, fsleep=200):
    SCS = "sc1 nt" if stnt else "sc1"
    SCL = "sc1 nt" if ldnt else "sc1"
    SC = "sc1"
    k = K(f"{NAME}_kernel")
    k.lab = lambda s: f"L_{s}"
    k.LB = lambda s: k.L.append(f"L_{s}:")
    A, LB, C = k.A, k.LB, k.C
    sT0, sT1, sT2, sT3 = k.sT
    NS = (512 - DP) // 8
    LDP = DP.bit_length() - 1
    NPOOL = 4 * DP
    sW, sH, sJ = 3, 4, 5
    sRem, sStat, sNxt = 6, 7, 12
    sPairCur, sPairSt, sSlot, sHoff = 13, 14, 42, 43
    rK, rV = 44, 48
    sPair = [52, 53]
    sRet = 54
    sWt = 56
    sTm = 76
    sTag = 78
    sSpin = 79
    rW = 80
    sOff = 84
    sWs = 85
    sM1, sM0 = 86, 88
    sTs = 96
    L_QH = 0
    L_SYNC = 2048
    L_RHD = 2112
    L_OB = 2560
    L_REC = 4096
    L_XN = L_REC + 20480
    L_WT = 32768
    L_TOTAL = L_WT + 65536
    boff = [0, 128, 256, 3072, 3200, 3328]
    in_service = [True]

    def stamp(i, mode="stamps"):
        if stamps and (mode == stamps or (mode == "stamps" and (i == 0 or not in_service[0]))):
            A(f"s_memrealtime s[{sTm}:{sTm+1}]")
            A("s_waitcnt lgkmcnt(0)")
            A(f"s_mov_b32 s{sTs+i}, s{sTm}")

    def write_stamps(tmp, vA):
        if stamps:
            A(f"s_getreg_b32 s{sT2}, hwreg(HW_REG_XCC_ID)")
            A(f"s_lshl_b32 s{sT1}, s2, 3")
            A(f"s_add_u32 s{sT1}, s{sT1}, s{sW}")
            A(f"s_lshl_b32 s{sT1}, s{sT1}, 5")
            A(f"s_add_u32 s{sT1}, s{sT1}, {W_STAMP}")
            for i in range(6):
                A(f"v_mov_b32 v{tmp+i}, s{sTs+i}")
            A(f"v_mov_b32 v{tmp+6}, s{sT2}")
            A(f"v_mov_b32 v{tmp+7}, 0x12345678")
            A(f"v_mov_b32 v{vA}, s{sT1}")
            k.set_exec(1)
            A(f"global_store_dwordx4 v{vA}, v[{tmp}:{tmp+3}], s[{sWS}:{sWS+1}]")
            A(f"global_store_dwordx4 v{vA}, v[{tmp+4}:{tmp+7}], s[{sWS}:{sWS+1}] offset:16")
            k.set_exec(-1)

    def xor3(d, a, b, c):
        A(f"v_bitop3_b32 v{d}, {a}, {b}, {c} bitop3:0x96")

    def spin_tail(loop, sleep=None):
        if sleep:
            A(f"s_sleep {sleep}")
        A(f"s_sub_u32 s{sSpin}, s{sSpin}, 1")
        A(f"s_cmp_lg_u32 s{sSpin}, 0")
        A(f"s_cbranch_scc1 L_{loop}")

    def lds_wait4(tagl, vA, vD):
        A(f"v_mov_b32 v{vA}, {L_SYNC}")
        A(f"s_mov_b32 s{sSpin}, {SPIN*16}")
        LB(tagl)
        A(f"ds_read_b32 v{vD}, v{vA}")
        A("s_waitcnt lgkmcnt(0)")
        A(f"v_readfirstlane_b32 s{sT0}, v{vD}")
        A("s_nop 3")
        A(f"s_cmp_ge_u32 s{sT0}, 4")
        A(f"s_cbranch_scc1 L_{tagl}ok")
        spin_tail(tagl, sleep=4)
        LB(tagl + "ok")

    vL, vT0, vT1 = 1, 3, 4
    A("s_cmp_ge_u32 s2, 256")
    A("s_cbranch_scc1 L_end")
    stamp(0)
    load_kernargs(k)
    A(f"v_and_b32 v{vL}, 63, v0")
    A(f"v_lshrrev_b32 v{vT0}, 6, v0")
    A(f"s_mov_b32 s{k.sMsk}, 0xffff0000")
    A(f"v_readfirstlane_b32 s{sW}, v{vT0}")
    A(f"s_lshr_b32 s{sH}, s2, 3")
    A(f"s_and_b32 s{sJ}, s2, 7")
    A(f"s_cmp_ge_u32 s{sW}, 4")
    A("s_cbranch_scc1 L_stream")
    C("================= service waves (0..3) =================")
    vOff, vXa, vXb, vOne_s = 2, 5, 6, 7
    a = 8
    k.TP = 16
    k.ntp = 2
    XR = 20
    XC = 40
    X = 44
    ACC = 84
    WR = 116
    E = 156
    QL = 164
    QK = 196
    B1R = 204
    FXR = 206
    A("s_setprio 3")
    A(f"v_lshrrev_b32 v{vT0}, 3, v{vL}")
    A(f"v_and_b32 v{vT1}, 7, v{vL}")
    A(f"s_cmp_eq_u32 s{sW}, 3")
    A(f"s_movk_i32 s{sT0}, 3072")
    A(f"s_cselect_b32 s{sT0}, s{sT0}, 12288")
    A(f"v_mul_lo_u32 v{vOff}, v{vT0}, s{sT0}")
    A(f"v_lshl_add_u32 v{vOff}, v{vT1}, 4, v{vOff}")
    A(f"s_mul_i32 s{sOff}, s{sJ}, 80")
    A(f"s_mul_i32 s{sOff}, s{sOff}, s{sT0}")
    A(f"s_lshl_b32 s{sT3}, s{sT0}, 3")
    A(f"s_mul_i32 s{sT1}, s{sH}, 384")
    A(f"s_lshl_b32 s{sT2}, s{sW}, 7")
    A(f"s_add_u32 s{sT1}, s{sT1}, s{sT2}")
    A(f"s_min_u32 s{sT2}, s{sH}, 23")
    A(f"s_lshl_b32 s{sT2}, s{sT2}, 7")
    A(f"s_cmp_eq_u32 s{sW}, 3")
    A(f"s_cselect_b32 s{sT1}, s{sT2}, s{sT1}")
    A(f"s_add_u32 s{sOff}, s{sOff}, s{sT1}")
    A(f"v_lshrrev_b32 v{vT0}, 4, v{vL}")
    A(f"v_mul_u32_u24 v{vT0}, 1280, v{vT0}")
    A(f"v_and_b32 v{vT1}, 15, v{vL}")
    A(f"v_lshl_add_u32 v{vXa}, v{vT1}, 4, v{vT0}")
    A(f"v_lshl_add_u32 v{a}, v{vT1}, 3, s{sT2}")
    A(f"v_min_u32 v{vT1}, 9, v{vT1}")
    A(f"v_lshl_add_u32 v{vXb}, v{vT1}, 4, v{vT0}")
    A(f"s_mul_i32 s{sT1}, s{sJ}, 160")
    A(f"v_add_u32 v{vXb}, s{sT1}, v{vXb}")
    A(f"v_mov_b32 v{vOne_s}, 1")
    for i in range(32):
        A(f"v_mov_b32 v{ACC+i}, 0")
    A(f"v_mov_b32 v{vT0}, {L_SYNC}")
    if stop:
        A(f"v_mov_b32 v{vT1}, 4")
        A(f"ds_write_b32 v{vT0}, v{vT1}")
    else:
        A(f"ds_write_b32 v{vT0}, v{ACC}")
    A(f"s_cmp_lt_u32 s{sH}, 24")
    A(f"s_cselect_b32 s{rW+2}, 1966080, 0")
    A("s_waitcnt lgkmcnt(0)")
    A(f"s_load_dword s{sTag}, s[{sWS}:{sWS+1}], {W_GEN}")
    for m in range(5):
        A(f"global_load_dwordx4 v[{XR+4*m}:{XR+4*m+3}], v{vXa}, s[{sX}:{sX+1}] offset:{256*m}")
    A(f"global_load_dwordx4 v[{XC}:{XC+3}], v{vXb}, s[{sX}:{sX+1}]")
    A(f"s_cmp_eq_u32 s{sW}, 3")
    A(f"s_cselect_b32 s{rW}, s{sW1p}, s{sWQp}")
    A(f"s_cselect_b32 s{rW+1}, s{sW1p+1}, s{sWQp+1}")
    A(f"s_cselect_b32 s{rW+2}, s{rW+2}, 7864320")
    A(f"s_mov_b32 s{rW+3}, 0x20000")
    for t in range(10):
        if stop != 1:
            A(f"buffer_load_dwordx4 v[{WR+4*t}:{WR+4*t+3}], v{vOff}, s[{rW}:{rW+3}], s{sOff} offen nt")
        if t < 9:
            A(f"s_add_u32 s{sOff}, s{sOff}, s{sT3}")
    A(f"global_load_dwordx2 v[{B1R}:{B1R+1}], v{a}, s[{sB1p}:{sB1p+1}]")
    if pre1:
        C("touch the hand-off lines this workgroup will write (brings them on-die)")
        A(f"s_lshl_b32 s{sT0}, s2, 12")
        A(f"s_lshl_b32 s{sT1}, s{sW}, 10")
        A(f"s_add_u32 s{sT0}, s{sT0}, s{sT1}")
        A(f"s_lshr_b32 s{sT1}, s{sT0}, 2")
        A(f"s_add_u32 s{sT0}, s{sT0}, {W_QP}")
        A(f"s_add_u32 s{sT1}, s{sT1}, {W_QC}")
        A(f"v_lshl_add_u32 v{vT0}, v{vL}, 4, s{sT0}")
        A(f"v_lshl_add_u32 v{vT1}, v{vL}, 2, s{sT1}")
        A(f"global_load_dwordx4 v[{QL}:{QL+3}], v{vT0}, s[{sWS}:{sWS+1}] {SC}")
        A(f"global_load_dword v{QL+4}, v{vT1}, s[{sWS}:{sWS+1}] {SC}")
    C("queue counter of this octet = 0 (j == 0, wave 0)")
    A(f"s_mul_i32 s{sT0}, s{sH}, {qstride}")
    A(f"s_add_u32 s{sT0}, s{sT0}, {W_QCNT}")
    A(f"v_mov_b32 v{vT0}, s{sT0}")
    A(f"s_or_b32 s{sT0}, s{sJ}, s{sW}")
    A(f"s_cmp_eq_u32 s{sT0}, 0")
    A("s_cbranch_scc0 L_noq")
    k.set_exec(1)
    A(f"global_store_dword v{vT0}, v{ACC}, s[{sWS}:{sWS+1}] {SC}")
    k.set_exec(-1)
    LB("noq")
    C("barrier 1 releases the stream waves")
    A("s_barrier")
    if noq:
        A("s_barrier")
    A(f"s_mul_i32 s{sT0}, s{sW}, 5120")
    A(f"v_lshl_add_u32 v{vT0}, v{vL}, 4, s{sT0}")
    for i in range(5):
        A(f"ds_write_b128 v{vT0}, v[{ACC}:{ACC+3}] offset:{L_REC+1024*i}")
    A(f"v_mov_b32 v{E}, {NEGBIG}")
    for i in range(1, 4):
        A(f"v_mov_b32 v{E+i}, 0")
    A(f"v_min_u32 v{vT0}, 19, v{vL}")
    A(f"v_lshlrev_b32 v{vT0}, 4, v{vT0}")
    A(f"ds_write_b128 v{vT0}, v[{E}:{E+3}] offset:{L_RHD}")
    if stop == 1:
        A("s_waitcnt vmcnt(0) lgkmcnt(0)")
        A("s_branch L_svc_end")
    C("---- LayerNorm statistics, 16 lanes per batch ----")
    A(f"s_waitcnt vmcnt({11 + 2*pre1})")
    stamp(1, "pro")
    for i in range(20):
        A(f"v_lshlrev_b32 v{X+2*i}, 16, v{XR+i}")
        A(f"v_and_b32 v{X+2*i+1}, s{k.sMsk}, v{XR+i}")
    A(f"v_pk_add_f32 v[{a}:{a+1}], v[{X}:{X+1}], v[{X+2}:{X+3}]")
    A(f"v_pk_add_f32 v[{a+2}:{a+3}], v[{X+4}:{X+5}], v[{X+6}:{X+7}]")
    for i in range(4, 20):
        d = a + 2 * (i & 1)
        A(f"v_pk_add_f32 v[{d}:{d+1}], v[{d}:{d+1}], v[{X+2*i}:{X+2*i+1}]")
    A(f"v_pk_add_f32 v[{a}:{a+1}], v[{a}:{a+1}], v[{a+2}:{a+3}]")
    A(f"v_add_f32 v{a}, v{a}, v{a+1}")
    k.butterfly("v_add_f32", [a], 4)
    A(f"v_mul_f32 v{a}, {-1.0/640.0!r}, v{a}")
    for i in range(20):
        A(f"v_pk_add_f32 v[{X+2*i}:{X+2*i+1}], v[{X+2*i}:{X+2*i+1}], v[{a}:{a+1}] op_sel_hi:[1,0]")
    A(f"v_pk_mul_f32 v[{a+2}:{a+3}], v[{X}:{X+1}], v[{X}:{X+1}]")
    A(f"v_pk_mul_f32 v[{a+4}:{a+5}], v[{X+2}:{X+3}], v[{X+2}:{X+3}]")
    for i in range(2, 20):
        d = a + 2 + 2 * (i & 1)
        A(f"v_pk_fma_f32 v[{d}:{d+1}], v[{X+2*i}:{X+2*i+1}], v[{X+2*i}:{X+2*i+1}], v[{d}:{d+1}]")
    A(f"v_pk_add_f32 v[{a+2}:{a+3}], v[{a+2}:{a+3}], v[{a+4}:{a+5}]")
    A(f"v_add_f32 v{a+2}, v{a+2}, v{a+3}")
    k.butterfly("v_add_f32", [a + 2], 4)
    A(f"v_mul_f32 v{a+2}, {1.0/640.0!r}, v{a+2}")
    k.rnd2(a, a + 2, a + 1)
    A(f"v_add_f32 v{a+2}, 0x3727c5ac, v{a+2}")
    k.rnd1(a + 2, a + 1)
    A(f"v_sqrt_f32 v{a+2}, v{a+2}")
    A("s_waitcnt lgkmcnt(0)")
    for i in range(4):
        A(f"v_lshlrev_b32 v{E+2*i}, 16, v{XC+i}")
        A(f"v_and_b32 v{E+2*i+1}, s{k.sMsk}, v{XC+i}")
    k.rnd1(a + 2, a + 1)
    A(f"v_rcp_f32 v{a+3}, v{a+2}")
    for i in range(8):
        A(f"v_add_f32 v{E+i}, v{E+i}, v{a}")
    for i in range(0, 8, 2):
        k.rnd2(E + i, E + i + 1, a + 1)
    for i in range(8):
        A(f"v_mul_f32 v{a+4}, v{E+i}, v{a+3}")
        A(f"v_fma_f32 v{a+5}, -v{a+4}, v{a+2}, v{E+i}")
        A(f"v_fma_f32 v{E+i}, v{a+5}, v{a+3}, v{a+4}")
    for i in range(0, 8, 2):
        k.rnd2(E + i, E + i + 1, a + 1)
    A(f"s_mul_i32 s{sT0}, s{sW}, 1280")
    A(f"v_and_b32 v{vT1}, 15, v{vL}")
    A(f"v_min_u32 v{vT1}, 9, v{vT1}")
    A(f"v_lshl_add_u32 v{vT1}, v{vT1}, 7, s{sT0}")
    A(f"v_lshrrev_b32 v{vT0}, 4, v{vL}")
    A(f"v_lshl_add_u32 v{vT1}, v{vT0}, 2, v{vT1}")
    for i in range(8):
        A(f"ds_write_b32 v{vT1}, v{E+i} offset:{L_XN+16*i}")
    A(f"v_lshrrev_b32 v{vT0}, 3, v{vL}")
    A(f"v_lshl_add_u32 v{vT0}, v{vT0}, 4, s{sT0}")
    A(f"s_add_u32 s{sTag}, s{sTag}, 1")
    XN = X
    for t in range(10):
        A(f"ds_read_b128 v[{XN+4*t}:{XN+4*t+3}], v{vT0} offset:{L_XN+128*t}")
    C("granule index 16w + 2e + half, row b = l>>4")
    A(f"v_and_b32 v{vT0}, 7, v{vL}")
    A(f"v_bfe_u32 v{vT1}, v{vL}, 3, 1")
    A(f"v_lshl_add_u32 v{vT0}, v{vT0}, 1, v{vT1}")
    A(f"s_lshl_b32 s{sT0}, s{sW}, 4")
    A(f"v_add_u32 v{vT0}, s{sT0}, v{vT0}")
    A(f"v_lshrrev_b32 v{vT1}, 4, v{vL}")
    A(f"v_lshl_add_u32 v{vT0}, v{vT1}, 6, v{vT0}")
    A(f"s_lshl_b32 s{sT0}, s2, 12")
    A(f"s_add_u32 s{sT0}, s{sT0}, {W_QP}")
    A(f"s_lshl_b32 s{sT1}, s2, 10")
    A(f"s_lshl_b32 s{sT2}, s{sW}, 8")
    A(f"s_add_u32 s{sT1}, s{sT1}, s{sT2}")
    A(f"s_add_u32 s{sT1}, s{sT1}, {W_QC}")
    A(f"v_lshl_add_u32 v{vXa}, v{vT0}, 4, s{sT0}")
    A(f"v_lshl_add_u32 v{vXb}, v{vL}, 2, s{sT1}")
    stamp(1)
    stamp(2, "pro")
    for t in range(10):
        A(f"s_waitcnt vmcnt({10-t+2*pre1 if t < 9 else 0}) lgkmcnt({9-t})")
        if t == 0:
            stamp(3, "pro")
        if t == 9:
            stamp(4, "pro")
        for d in range(4):
            tt = k.unpack(WR + 4 * t + d)
            for b in range(4):
                k.pkfma(ACC + 8 * b + 2 * d, tt, XN + 4 * t + b)
    C("reduce-scatter over lane bits 5,4,3")
    A("s_nop 1")
    for i in range(16):
        A(f"v_permlane32_swap_b32 v{ACC+i}, v{ACC+16+i}")
    for i in range(16):
        A(f"v_add_f32 v{ACC+i}, v{ACC+i}, v{ACC+16+i}")
    A("s_nop 1")
    for i in range(8):
        A(f"v_permlane16_swap_b32 v{ACC+i}, v{ACC+8+i}")
    for i in range(8):
        A(f"v_add_f32 v{ACC+i}, v{ACC+i}, v{ACC+8+i}")
    A("s_nop 1")
    for i in range(4):
        A(f"v_add_f32_dpp v{E+i}, v{ACC+i}, v{ACC+i} row_ror:8 row_mask:0xf bank_mask:0x3")
        A(f"v_add_f32_dpp v{E+i}, v{ACC+4+i}, v{ACC+4+i} row_ror:8 row_mask:0xf bank_mask:0xc")
    A(f"global_store_dwordx4 v{vXa}, v[{E}:{E+3}], s[{sWS}:{sWS+1}] {SCS}")
    xor3(E + 4, f"v{E}", f"v{E+1}", f"v{E+2}")
    xor3(E + 4, f"v{E+4}", f"v{E+3}", f"s{sTag}")
    A(f"global_store_dword v{vXb}, v{E+4}, s[{sWS}:{sWS+1}] {SCS}")
    stamp(2)
    stamp(5, "pro")
    if stop == 2:
        A("s_waitcnt vmcnt(0) lgkmcnt(0)")
        A("s_branch L_svc_end")
    C("addresses: final row FR[h*4+w], LDS row w")
    vFr, vQl = a + 6, a + 7
    A(f"s_lshl_b32 s{sT0}, s{sH}, 2")
    A(f"s_add_u32 s{sT0}, s{sT0}, s{sW}")
    A(f"s_lshl_b32 s{sT0}, s{sT0}, 10")
    A(f"s_add_u32 s{sT0}, s{sT0}, {W_FR}")
    A(f"v_lshl_add_u32 v{vFr}, v{vL}, 4, s{sT0}")
    A(f"s_lshl_b32 s{sT1}, s{sW}, 9")
    A(f"v_lshl_add_u32 v{vQl}, v{vL}, 3, s{sT1}")
    A(f"s_mov_b32 s{sSpin}, {SPIN}")
    A(f"s_lshr_b32 s{sPairCur}, s{sJ}, 1")
    A(f"s_cmp_eq_u32 s{sPairCur}, s{sW}")
    A("s_cbranch_scc0 L_nonhome")
    C("---- home wave: gather the 8 partial rows ----")
    A(f"s_lshl_b32 s{sT0}, s{sH}, 15")
    A(f"s_lshl_b32 s{sT1}, s{sW}, 10")
    A(f"s_add_u32 s{sT0}, s{sT0}, s{sT1}")
    A(f"s_add_u32 s{sT0}, s{sT0}, {W_QP}")
    A(f"v_lshl_add_u32 v{vXa}, v{vL}, 4, s{sT0}")
    C("check of granule l: [wg][w' = l>>4][16 b + 8 (l&1) + ((l&15)>>1)]")
    A(f"s_lshl_b32 s{sT1}, s{sH}, 13")
    A(f"s_lshl_b32 s{sT2}, s{sW}, 6")
    A(f"s_add_u32 s{sT1}, s{sT1}, s{sT2}")
    A(f"s_add_u32 s{sT1}, s{sT1}, {W_QC}")
    A(f"v_lshrrev_b32 v{vT0}, 4, v{vL}")
    A(f"v_lshl_add_u32 v{vXb}, v{vT0}, 8, s{sT1}")
    A(f"v_and_b32 v{vT0}, 1, v{vL}")
    A(f"v_lshl_add_u32 v{vXb}, v{vT0}, 5, v{vXb}")
    A(f"v_bfe_u32 v{vT0}, v{vL}, 1, 3")
    A(f"v_lshl_add_u32 v{vXb}, v{vT0}, 2, v{vXb}")
    A(f"v_add_u32 v{vT1}, 4096, v{vXb}")
    if qsleep:
        A(f"s_sleep {qsleep}")
    LB("qpoll")
    A(f"v_mov_b32 v{vT0}, v{vXa}")
    for j in range(8):
        if j:
            A(f"v_add_u32 v{vT0}, 4096, v{vT0}")
        A(f"global_load_dwordx4 v[{QL+4*j}:{QL+4*j+3}], v{vT0}, s[{sWS}:{sWS+1}] {SCL}")
        va = vXb if j < 4 else vT1
        A(f"global_load_dword v{QK+j}, v{va}, s[{sWS}:{sWS+1}] offset:{1024*(j%4)} {SCL}")
    for j in range(8):
        A(f"s_waitcnt vmcnt({14-2*j})")
        xor3(a, f"v{QL+4*j}", f"v{QL+4*j+1}", f"v{QL+4*j+2}")
        xor3(a + 1, f"v{QL+4*j+3}", f"v{QK+j}", f"s{sTag}")
        if j == 0:
            A(f"v_xor_b32 v{a+2}, v{a}, v{a+1}")
        else:
            A(f"v_xor_b32 v{a}, v{a}, v{a+1}")
            A(f"v_or_b32 v{a+2}, v{a+2}, v{a}")
    A(f"v_cmp_ne_u32 vcc, 0, v{a+2}")
    A("s_cbranch_vccz L_qok")
    spin_tail("qpoll")
    LB("qok")
    for j in range(1, 8):
        A(f"v_pk_add_f32 v[{QL}:{QL+1}], v[{QL}:{QL+1}], v[{QL+4*j}:{QL+4*j+1}]")
        A(f"v_pk_add_f32 v[{QL+2}:{QL+3}], v[{QL+2}:{QL+3}], v[{QL+4*j+2}:{QL+4*j+3}]")
    A(f"v_cvt_pk_bf16_f32 v{QL+4}, v{QL}, v{QL+1}")
    A(f"v_cvt_pk_bf16_f32 v{QL+5}, v{QL+2}, v{QL+3}")
    A(f"ds_write_b64 v{vQl}, v[{QL+4}:{QL+5}] offset:{L_QH}")
    stamp(3)
    if stamps == "stamps":
        A(f"s_sub_u32 s{sTs+1}, {SPIN}, s{sSpin}")
        A(f"s_mul_i32 s{sTs+1}, s{sTs+1}, 100")
        A(f"s_add_u32 s{sTs+1}, s{sTs+1}, s{sTs}")
    A("s_waitcnt lgkmcnt(0)")
    if not noq:
        A("s_barrier")
    A("s_setprio 0")
    C("hid = bf16(relu(bf16(bf16(sum) + b1))^2) on lanes 48..63")
    Hh = QL + 8
    A(f"v_lshlrev_b32 v{Hh}, 16, v{QL+4}")
    A(f"v_and_b32 v{Hh+1}, s{k.sMsk}, v{QL+4}")
    A(f"v_lshlrev_b32 v{Hh+2}, 16, v{QL+5}")
    A(f"v_and_b32 v{Hh+3}, s{k.sMsk}, v{QL+5}")
    A(f"v_lshlrev_b32 v{Hh+4}, 16, v{B1R}")
    A(f"v_and_b32 v{Hh+5}, s{k.sMsk}, v{B1R}")
    A(f"v_lshlrev_b32 v{Hh+6}, 16, v{B1R+1}")
    A(f"v_and_b32 v{Hh+7}, s{k.sMsk}, v{B1R+1}")
    for i in range(4):
        A(f"v_add_f32 v{Hh+i}, v{Hh+i}, v{Hh+4+i}")
    k.rnd2(Hh, Hh + 1, a)
    k.rnd2(Hh + 2, Hh + 3, a)
    for i in range(4):
        A(f"v_cmp_gt_f32 vcc, v{Hh+i}, 0")
        A("s_nop 1")
        A(f"v_cndmask_b32 v{Hh+i}, 0, v{Hh+i}, vcc")
    for i in range(4):
        A(f"v_mul_f32 v{Hh+i}, v{Hh+i}, v{Hh+i}")
    k.set_exec(0xffff << 48)
    A(f"v_cvt_pk_bf16_f32 v{QL+4}, v{Hh}, v{Hh+1}")
    A(f"v_cvt_pk_bf16_f32 v{QL+5}, v{Hh+2}, v{Hh+3}")
    A(f"ds_write_b64 v{vQl}, v[{QL+4}:{QL+5}] offset:{L_QH}")
    k.set_exec(-1)
    xor3(QL + 6, f"v{QL+4}", f"v{QL+5}", f"s{sTag}")
    A(f"s_bitcmp1_b32 s{sJ}, 0")
    A("s_cbranch_scc1 L_rowdone")
    A(f"global_store_dwordx4 v{vFr}, v[{QL+4}:{QL+7}], s[{sWS}:{sWS+1}] {SCS}")
    A("s_branch L_rowdone")
    C("---- other waves: fetch the finished row later ----")
    LB("nonhome")
    A("s_waitcnt lgkmcnt(0)")
    if not noq:
        A("s_barrier")
    A("s_setprio 0")
    for i in range(fsleep // 100):
        A("s_sleep 100")
    A(f"s_sleep {fsleep % 100}")
    LB("fpoll")
    A(f"global_load_dwordx4 v[{QL+4}:{QL+7}], v{vFr}, s[{sWS}:{sWS+1}] {SCL}")
    A("s_waitcnt vmcnt(0)")
    xor3(a, f"v{QL+4}", f"v{QL+5}", f"v{QL+6}")
    A(f"v_cmp_ne_u32 vcc, s{sTag}, v{a}")
    A("s_cbranch_vccz L_fok")
    spin_tail("fpoll", sleep=32)
    LB("fok")
    A(f"ds_write_b64 v{vQl}, v[{QL+4}:{QL+5}] offset:{L_QH}")
    stamp(3)
    LB("rowdone")
    stamp(1, "svc")
    if stop == 3:
        A("s_waitcnt vmcnt(0) lgkmcnt(0)")
        A("s_branch L_svc_end")
    C("weight lines -> registers -> LDS image [256 rows][128 B]; pass 1 only for j < 2")
    G = 20
    FB = 116
    F2 = 212
    AF = 228
    DD = 8
    vG = vOff
    rW2 = 44
    A(f"v_lshrrev_b32 v{vT0}, 3, v{vL}")
    A(f"v_mul_u32_u24 v{vG}, {1280-128}, v{vT0}")
    A(f"v_lshl_add_u32 v{vG}, v{vL}, 4, v{vG}")
    k.srd(rW, sWOp, 7864320)
    k.srd(rW2, sW2p, 1966080)
    A(f"s_lshl_b32 s{sT0}, s{sH}, 2")
    A(f"s_add_u32 s{sT0}, s{sT0}, s{sW}")
    A(f"s_lshl_b32 s{sT2}, s{sJ}, 7")
    A(f"s_mul_i32 s{sOff}, s{sT0}, {48*1280}")
    A(f"s_add_u32 s{sOff}, s{sOff}, s{sT2}")
    A(f"s_mul_i32 s{sT3}, s{sT0}, {16*1280}")
    A(f"s_add_u32 s{sT3}, s{sT3}, s{sT2}")
    A(f"s_mul_i32 s{sT0}, s{sW}, {48*128}")
    A(f"s_add_u32 s{sT0}, s{sT0}, {L_WT}")
    A(f"v_lshl_add_u32 v{vXa}, v{vL}, 4, s{sT0}")
    A(f"s_lshl_b32 s{sT0}, s{sW}, 11")
    A(f"s_add_u32 s{sT0}, s{sT0}, {L_WT + 192*128}")
    A(f"v_lshl_add_u32 v{vXb}, v{vL}, 4, s{sT0}")
    for p in range(2):
        if p == 1:
            A(f"s_cmp_lt_u32 s{sJ}, 2")
            A("s_cbranch_scc0 L_wl_done")
        for i in range(6):
            A(f"s_add_u32 s{sT0}, s{sOff}, {8*1280*i}")
            A(f"buffer_load_dwordx4 v[{G+4*i}:{G+4*i+3}], v{vG}, s[{rW}:{rW+3}], s{sT0} offen offset:{1024*p} nt")
        for i in range(2):
            A(f"s_add_u32 s{sT0}, s{sT3}, {8*1280*i}")
            A(f"buffer_load_dwordx4 v[{G+24+4*i}:{G+24+4*i+3}], v{vG}, s[{rW2}:{rW2+3}], s{sT0} offen offset:{1024*p} nt")
        for i in range(6):
            A(f"s_waitcnt vmcnt({7-i})")
            A(f"ds_write_b128 v{vXa}, v[{G+4*i}:{G+4*i+3}] offset:{32768*p+1024*i}")
        for i in range(2):
            A(f"s_waitcnt vmcnt({1-i})")
            A(f"ds_write_b128 v{vXb}, v[{G+24+4*i}:{G+24+4*i+3}] offset:{32768*p+1024*i}")
        A("s_waitcnt lgkmcnt(0)")
    LB("wl_done")
    A(f"v_mov_b32 v{vT1}, {L_SYNC}")
    k.set_exec(1)
    A(f"ds_add_u32 v{vT1}, v{vOne_s}")
    k.set_exec(-1)
    C("transpose-read address: (8g + r)*128 + c*8 + w*32")
    A(f"v_lshrrev_b32 v{vT0}, 4, v{vL}")
    A(f"v_lshlrev_b32 v{vT0}, 3, v{vT0}")
    A(f"v_bfe_u32 v{vG}, v{vL}, 2, 2")
    A(f"v_add_lshl_u32 v{vG}, v{vG}, v{vT0}, 7")
    A(f"v_and_b32 v{vT0}, 3, v{vL}")
    A(f"v_lshl_add_u32 v{vG}, v{vT0}, 3, v{vG}")
    A(f"s_lshl_b32 s{sT0}, s{sW}, 5")
    A(f"s_add_u32 s{sT0}, s{sT0}, {L_WT}")
    A(f"v_add_u32 v{vG}, s{sT0}, v{vG}")
    lds_wait4("rdy", vT1, vT0)
    stamp(2, "svc")
    if stop == 4:
        A("s_waitcnt vmcnt(0) lgkmcnt(0)")
        A("s_branch L_svc_end")

    def frags(nkb, dst, row0, p):
        for kb in range(nkb):
            for hh in range(2):
                r = dst + 4 * kb + 2 * hh
                A(f"ds_read_b64_tr_b16 v[{r}:{r+1}], v{vG} offset:{(row0+32*kb+4*hh)*128 + 32768*p}")
    frags(2, F2, 192, 0)
    frags(6, FB, 0, 0)
    A(f"s_cmp_lt_u32 s{sJ}, 2")
    A("s_cbranch_scc0 L_g1")
    frags(2, F2 + 8, 192, 1)
    frags(6, FB + 24, 0, 1)
    LB("g1")
    C("A fragment address: batch row (l&15)>>2, k offset 16*(l>>4) bytes -> D lane group g = batch g")
    vAf = vXa
    vYa = vXb
    A(f"v_bfe_u32 v{vT0}, v{vL}, 2, 2")
    A(f"v_lshrrev_b32 v{vT1}, 4, v{vL}")
    A(f"v_lshlrev_b32 v{vT1}, 4, v{vT1}")
    A(f"v_lshl_add_u32 v{vAf}, v{vT0}, 9, v{vT1}")
    for kb in range(2):
        A(f"ds_read_b128 v[{AF+4*kb}:{AF+4*kb+3}], v{vAf} offset:{L_QH+384+64*kb}")
    A(f"v_mul_u32_u24 v{vAf}, 384, v{vT0}")
    A(f"v_add_u32 v{vAf}, v{vAf}, v{vT1}")
    C("Y address: [group = 4j + w][h][half][n] x 16 B : lanes 0..31 contiguous")
    A(f"s_lshl_b32 s{sT0}, s{sJ}, 2")
    A(f"s_add_u32 s{sT0}, s{sT0}, s{sW}")
    A(f"s_lshl_b32 s{sT0}, s{sT0}, 15")
    A(f"s_lshl_b32 s{sT1}, s{sH}, 10")
    A(f"s_add_u32 s{sT0}, s{sT0}, s{sT1}")
    A(f"s_add_u32 s{sT0}, s{sT0}, {W_YA}")
    A(f"v_lshl_add_u32 v{vYa}, v{vL}, 4, s{sT0}")
    A(f"s_mov_b32 s{sM1}, 0xffff0000")
    A(f"s_mov_b32 s{sM1+1}, 0xffff0000")
    A("s_waitcnt lgkmcnt(0)")

    YO = [252, QK]
    C("FFN2 partial B (zero for h >= 24)")
    for p in range(2):
        d = DD + 4 * p
        for kb in range(2):
            c = "0" if kb == 0 else f"v[{d}:{d+3}]"
            f = F2 + p * 8 + 4 * kb
            A(f"v_mfma_f32_16x16x32_bf16 v[{d}:{d+3}], v[{AF+4*kb}:{AF+4*kb+3}], v[{f}:{f+3}], {c}")
    A(f"s_cmp_lt_u32 s{sH}, 24")
    A(f"s_cselect_b32 s{sT0}, -1, 0")
    A(f"v_add_u32 v{QK+4}, {1024*1024}, v{vYa}")
    A("s_nop 5")
    for p in range(2):
        A(f"v_and_b32 v{YO[p]+1}, s{sT0}, v{DD+4*p}")
        A(f"v_xor_b32 v{YO[p]+3}, s{sTag}, v{YO[p]+1}")

    def proj_store(nkb, frag, fstride, tagl):
        for kb in range(nkb):
            for p in range(2):
                d = DD + 4 * p
                c = "0" if kb == 0 else f"v[{d}:{d+3}]"
                f = frag + p * fstride + 4 * kb
                A(f"s_waitcnt lgkmcnt({nkb-1-kb})") if p == 0 else None
                A(f"v_mfma_f32_16x16x32_bf16 v[{d}:{d+3}], v[{AF+4*kb}:{AF+4*kb+3}], v[{f}:{f+3}], {c}")
        A(f"s_cmp_lt_u32 s{sJ}, 2")
        A("s_nop 5")
        for p in range(2):
            if p == 1:
                A(f"s_cbranch_scc0 L_{tagl}")
            A(f"v_mov_b32 v{YO[p]}, v{DD+4*p}")
            A(f"v_xor_b32 v{YO[p]+2}, v{DD+4*p}, v{YO[p]+3}")
            va = vYa if p == 0 else QK + 4
            A(f"global_store_dwordx4 v{va}, v[{YO[p]}:{YO[p]+3}], s[{sWS}:{sWS+1}] {SC}")
        LB(tagl)
    stamp(3, "svc")
    if stop == 5:
        A("s_waitcnt vmcnt(0) lgkmcnt(0)")
        A("s_branch L_svc_end")
    C("---- finaliser task (h < 4, or h < 8 when j < 2): group 4(j + 8(h>>2)) + w, batch h&3 ----")
    sFin = sWs
    vFa = vG
    A(f"s_cmp_lt_u32 s{sJ}, 2")
    A(f"s_cselect_b32 s{sT1}, 8, 4")
    A(f"s_cmp_lt_u32 s{sH}, s{sT1}")
    A(f"s_cselect_b32 s{sFin}, 1, 0")
    A(f"s_cselect_b32 s{sT2}, s{sH}, 0")
    A(f"s_lshr_b32 s{sT0}, s{sT2}, 2")
    A(f"s_lshl_b32 s{sT0}, s{sT0}, 3")
    A(f"s_add_u32 s{sT0}, s{sT0}, s{sJ}")
    A(f"s_lshl_b32 s{sT0}, s{sT0}, 2")
    A(f"s_add_u32 s{sT0}, s{sT0}, s{sW}")
    A(f"s_and_b32 s{sT2}, s{sT2}, 3")
    A(f"s_lshl_b32 s{sT1}, s{sT0}, 15")
    A(f"s_lshl_b32 s{sT3}, s{sT2}, 8")
    A(f"s_add_u32 s{sT1}, s{sT1}, s{sT3}")
    A(f"v_lshrrev_b32 v{vT0}, 4, v{vL}")
    A(f"v_lshl_add_u32 v{vFa}, v{vT0}, 10, s{sT1}")
    A(f"v_and_b32 v{vT0}, 15, v{vL}")
    A(f"v_lshl_add_u32 v{vFa}, v{vT0}, 4, v{vFa}")
    A(f"s_lshl_b32 s{sT0}, s{sT0}, 5")
    A(f"v_lshl_add_u32 v{vT1}, v{vT0}, 1, s{sT0}")
    A(f"s_mul_i32 s{sT2}, s{sT2}, 1280")
    A(f"v_add_u32 v{FXR+5}, s{sT2}, v{vT1}")
    Yv = G + 40
    Ya = G + 72

    def ysum(ybase, tagl, sleep, nld):
        A(f"s_mov_b32 s{sSpin}, {SPIN}")
        LB(tagl)
        for i in range(nld):
            A(f"global_load_dwordx4 v[{Yv+4*i}:{Yv+4*i+3}], v{Ya+i}, s[{sWS}:{sWS+1}] {SC}")
        for i in range(nld):
            A(f"s_waitcnt vmcnt({nld-1-i})")
            xor3(a, f"v{Yv+4*i}", f"v{Yv+4*i+1}", f"v{Yv+4*i+2}")
            if i == 0:
                A(f"v_xor_b32 v{a+1}, s{sTag}, v{a}")
            else:
                A(f"v_xor_b32 v{a}, s{sTag}, v{a}")
                A(f"v_or_b32 v{a+1}, v{a+1}, v{a}")
                A(f"v_pk_add_f32 v[{Yv}:{Yv+1}], v[{Yv}:{Yv+1}], v[{Yv+4*i}:{Yv+4*i+1}]")
        A(f"v_cmp_ne_u32 vcc, 0, v{a+1}")
        A(f"s_cbranch_vccz L_{tagl}ok")
        spin_tail(tagl, sleep=sleep)
        LB(tagl + "ok")
        for op in ("v_permlane16_swap_b32", "v_permlane32_swap_b32"):
            A(f"v_mov_b32 v{Yv+2}, v{Yv}")
            A(f"v_mov_b32 v{Yv+3}, v{Yv+1}")
            A("s_nop 0")
            A(f"{op} v{Yv}, v{Yv+2}")
            A(f"{op} v{Yv+1}, v{Yv+3}")
            A("s_nop 0")
            A(f"v_pk_add_f32 v[{Yv}:{Yv+1}], v[{Yv}:{Yv+1}], v[{Yv+2}:{Yv+3}]")

    for i in range(8):
        A(f"v_add_u32 v{Ya+i}, {W_YA + 4096*i}, v{vFa}")
    A(f"s_cmp_eq_u32 s{sFin}, 0")
    A("s_cbranch_scc1 L_nofin1")
    A(f"global_load_ushort v{FXR}, v{FXR+5}, s[{sX}:{sX+1}]")
    A(f"global_load_ushort v{FXR+1}, v{vT1}, s[{sB2p}:{sB2p+1}]")
    A("s_waitcnt vmcnt(0)")
    for i in range(2):
        A(f"v_lshlrev_b32 v{FXR+i}, 16, v{FXR+i}")
    LB("nofin1")
    stamp(5, "svc")
    if stop == 6:
        A("s_waitcnt vmcnt(0) lgkmcnt(0)")
        A("s_branch L_svc_end")
    C("record addresses for batch w")
    vRh, vRd, vRd2, vOl = G + 16, G + 17, G + 18, G + 19
    sLoad, sOk, sHv = 6, 7, 12
    A(f"s_lshl_b32 s{sT0}, s{sH}, 2")
    A(f"s_add_u32 s{sT0}, s{sT0}, s{sW}")
    A(f"s_lshl_b32 s{sT1}, s{sT0}, 10")
    A(f"s_add_u32 s{sT1}, s{sT1}, {W_RH}")
    A(f"v_and_b32 v{vT0}, 7, v{vL}")
    A(f"v_lshl_add_u32 v{vRh}, v{vT0}, 7, s{sT1}")
    A(f"s_lshl_b32 s{sT1}, s{sT0}, 13")
    A(f"s_add_u32 s{sT1}, s{sT1}, {W_REC}")
    A(f"v_lshl_add_u32 v{vRd}, v{vL}, 4, s{sT1}")
    A(f"v_add_u32 v{vRd2}, 4096, v{vRd}")
    A(f"s_mul_i32 s{sT1}, s{sW}, 384")
    A(f"v_lshl_add_u32 v{vOl}, v{vL}, 1, s{sT1}")
    if pre2:
        A(f"s_lshl_b32 s{sT1}, s{sJ}, 10")
        A(f"v_add_u32 v{vT0}, s{sT1}, v{vRd}")
        A(f"global_load_dwordx4 v[{QL}:{QL+3}], v{vT0}, s[{sWS}:{sWS+1}] {SC}")
        A(f"global_load_dwordx4 v[{QL+8}:{QL+11}], v{vYa}, s[{sWS}:{sWS+1}] {SC}")
        A("s_waitcnt vmcnt(0)")
    A(f"s_mov_b32 s{sSpin}, {SPIN}")
    A(f"s_mov_b32 s{sLoad}, 0")
    A(f"s_mov_b32 s{sOk}, 0")
    A("s_setprio 3")
    A("s_barrier")
    stamp(4)
    stamp(1, "epi")
    HD = G + 24
    LB("rpoll")
    A(f"global_load_dwordx4 v[{HD}:{HD+3}], v{vRh}, s[{sWS}:{sWS+1}] {SC}")
    for j in range(8):
        va = vRd if j < 4 else vRd2
        A(f"s_bitcmp1_b32 s{sLoad}, {j}")
        A(f"s_cbranch_scc0 L_rs{j}")
        A(f"global_load_dwordx4 v[{QL+4*j}:{QL+4*j+3}], v{va}, s[{sWS}:{sWS+1}] offset:{1024*(j%4)} {SC}")
        LB(f"rs{j}")
    A("s_waitcnt vmcnt(0)")
    xor3(HD + 4, f"v{HD}", f"v{HD+1}", f"v{HD+2}")
    A(f"v_cmp_eq_u32 vcc, s{sTag}, v{HD+4}")
    A(f"s_and_b32 s{sHv}, vcc_lo, 0xff")
    for j in range(8):
        A(f"s_bitcmp1_b32 s{sLoad}, {j}")
        A(f"s_cbranch_scc0 L_rv{j}")
        xor3(a, f"v{QL+4*j}", f"v{QL+4*j+1}", f"v{QL+4*j+2}")
        A(f"v_xor_b32 v{a}, v{a}, v{QL+4*j+3}")
        A(f"v_cmp_ne_u32 vcc, s{sTag}, v{a}")
        A(f"s_cbranch_vccnz L_rv{j}")
        A(f"s_bitset1_b32 s{sOk}, {j}")
        LB(f"rv{j}")
    A(f"s_and_b32 s{sT0}, s{sOk}, s{sHv}")
    A(f"s_cmp_eq_u32 s{sT0}, 0xff")
    A("s_cbranch_scc1 L_rok")
    A(f"s_bcnt1_i32_b32 s{sT0}, s{sHv}")
    A(f"s_cmp_ge_u32 s{sT0}, {8-nmiss}")
    A(f"s_cselect_b32 s{sLoad}, 0xff, s{sHv}")
    A(f"s_andn2_b32 s{sLoad}, s{sLoad}, s{sOk}")
    spin_tail("rpoll", sleep=hsleep)
    LB("rok")
    stamp(3, "epi")
    A(f"v_mov_b32 v{HD+4}, v{HD}")
    k.butterfly("v_max_f32", [HD + 4], 3)
    A(f"v_sub_f32 v{HD+5}, v{HD}, v{HD+4}")
    A(f"v_mul_f32 v{HD+5}, {LOG2E}, v{HD+5}")
    A(f"v_exp_f32 v{HD+5}, v{HD+5}")
    A("s_nop 0")
    A(f"v_mul_f32 v{HD+6}, v{HD+5}, v{HD+1}")
    for j in range(8):
        A(f"v_readlane_b32 s{sWt+j}, v{HD+5}, {j}")
    k.dpp("v_add_f32", HD + 6, "quad_perm:[1,0,3,2]")
    O = HD + 8
    A(f"v_pk_mul_f32 v[{O}:{O+1}], v[{QL}:{QL+1}], s[{sWt}:{sWt+1}] op_sel_hi:[1,0]")
    A(f"v_mul_f32 v{O+2}, s{sWt}, v{QL+2}")
    k.dpp("v_add_f32", HD + 6, "quad_perm:[2,3,0,1]")
    for j in range(1, 8):
        k.pkfma(O, QL + 4 * j, sWt + j, pre="s")
        A(f"v_fmac_f32 v{O+2}, s{sWt+j}, v{QL+4*j+2}")
        if j == 1:
            k.dpp("v_add_f32", HD + 6, "row_half_mirror")
        if j == 2:
            A(f"v_rcp_f32 v{HD+7}, v{HD+6}")
    for i in range(3):
        A(f"v_mul_f32 v{O+4+i}, v{O+i}, v{HD+7}")
    for i in range(3):
        A(f"v_fma_f32 v{O+i}, -v{O+4+i}, v{HD+6}, v{O+i}")
    for i in range(3):
        A(f"v_fma_f32 v{O+i}, v{O+i}, v{HD+7}, v{O+4+i}")
    A(f"v_cvt_pk_bf16_f32 v{O+4}, v{O}, v{O+1}")
    A(f"v_cvt_pk_bf16_f32 v{O+5}, v{O+2}, v{O+2}")
    A(f"ds_write_b16 v{vOl}, v{O+4} offset:{L_OB}")
    A(f"ds_write_b16_d16_hi v{vOl}, v{O+4} offset:{L_OB+128}")
    A(f"ds_write_b16 v{vOl}, v{O+5} offset:{L_OB+256}")
    A("s_waitcnt lgkmcnt(0)")
    A("s_barrier")
    for kb in range(6):
        A(f"ds_read_b128 v[{AF+4*kb}:{AF+4*kb+3}], v{vAf} offset:{L_OB+64*kb}")
    proj_store(6, FB, 24, "ya_done")
    stamp(4, "epi")
    A(f"s_cmp_eq_u32 s{sFin}, 0")
    A("s_cbranch_scc1 L_svc_end")
    ysum(W_YA, "yap", ysleep, 8)
    k.set_exec(0xffff)
    k.rnd2(Yv, Yv + 1, Yv + 2)
    A(f"v_pk_add_f32 v[{Yv}:{Yv+1}], v[{Yv}:{Yv+1}], v[{FXR}:{FXR+1}]")
    k.rnd2(Yv, Yv + 1, Yv + 2)
    A(f"v_add_f32 v{Yv}, v{Yv}, v{Yv+1}")
    A(f"v_cvt_pk_bf16_f32 v{Yv}, v{Yv}, v{Yv}")
    A(f"global_store_short v{FXR+5}, v{Yv}, s[{sOUT}:{sOUT+1}]")
    k.set_exec(-1)
    C("generation bump by (h=0, j=0, w=0)")
    A(f"s_or_b32 s{sT0}, s2, s{sW}")
    A(f"s_cmp_eq_u32 s{sT0}, 0")
    A("s_cbranch_scc0 L_svc_end")
    A(f"v_mov_b32 v{vT0}, {W_GEN}")
    A(f"v_mov_b32 v{vT1}, s{sTag}")
    k.set_exec(1)
    A(f"global_store_dword v{vT0}, v{vT1}, s[{sWS}:{sWS+1}] {SC}")
    k.set_exec(-1)
    LB("svc_end")
    stamp(5)
    stamp(5, "epi")
    write_stamps(QL, vT0)
    A("s_endpgm")
    LB("stream")
    in_service[0] = False
    C("================= stream waves (4..7) =================")
    vKoff, vOne, vM, vLs, vAl, vQa, vCa = 2, 6, 7, 8, 9, 10, 11
    vClaim = [5, 0]
    S = 12
    k.TP = 16
    k.ntp = 4
    D = 16
    QF = 24
    ACC = 36
    SL = 60
    MG = 60

    def kreg(x):
        return SL + 48 * x

    def vreg(x):
        return SL + 48 * x + 24

    def loads(base, srd, so):
        for j in range(6):
            r = base + 4 * j
            A(f"buffer_load_dwordx4 v[{r}:{r+3}], v{vKoff}, s[{srd}:{srd+3}], s{so} offen offset:{boff[j]} nt")

    def k_tile(x):
        s0 = kreg(x)
        Da, Db = D, D + 4
        for n in range(3):
            ca = "0" if n == 0 else f"v[{Da}:{Da+3}]"
            cb = "0" if n == 0 else f"v[{Db}:{Db+3}]"
            A(f"v_mfma_f32_16x16x32_bf16 v[{Da}:{Da+3}], v[{QF+4*n}:{QF+4*n+3}], v[{s0+4*n}:{s0+4*n+3}], {ca}")
            A(f"v_mfma_f32_16x16x32_bf16 v[{Db}:{Db+3}], v[{QF+4*n}:{QF+4*n+3}], v[{s0+12+4*n}:{s0+12+4*n+3}], {cb}")

    def softmax():
        for t in range(2):
            d = D + 4 * t
            A(f"v_add_f32_dpp v{S+t}, v{d+1}, v{d} row_ror:8 row_mask:0xf bank_mask:0x3")
            A(f"v_add_f32_dpp v{S+t}, v{d}, v{d+1} row_ror:8 row_mask:0xf bank_mask:0xc")
        if mimic:
            k.rnd2(S, S + 1, vT0)
        for t in range(2):
            A(f"v_mul_f32 v{S+t}, {SCALE}, v{S+t}")
        if mimic:
            k.rnd2(S, S + 1, vT0)
        A(f"v_max3_f32 v{vT0}, v{vM}, v{S}, v{S+1}")
        A(f"v_sub_f32 v{vAl}, v{vM}, v{vT0}")
        for t in range(2):
            A(f"v_sub_f32 v{S+t}, v{S+t}, v{vT0}")
        A(f"v_mul_f32 v{vAl}, {LOG2E}, v{vAl}")
        for t in range(2):
            A(f"v_mul_f32 v{S+t}, {LOG2E}, v{S+t}")
        A(f"v_exp_f32 v{vAl}, v{vAl}")
        for t in range(2):
            A(f"v_exp_f32 v{S+t}, v{S+t}")
        A(f"v_mov_b32 v{vM}, v{vT0}")
        A(f"v_fma_f32 v{vLs}, v{vLs}, v{vAl}, v{S}")
        for i in range(12):
            k.pkmul(ACC + 2 * i, vAl)
        A(f"v_add_f32 v{vLs}, v{vLs}, v{S+1}")

    def v_tile(x):
        s0 = vreg(x)
        items = [(s0 + 12 * half + 4 * n + d, ACC + 8 * n + 2 * d, S + half)
                 for half in range(2) for n in range(3) for d in range(4)]
        pend = []
        for it in items:
            t = k.unpack(it[0])
            pend.append((it[1], t, it[2]))
            if len(pend) > 2:
                ac, tt, m = pend.pop(0)
                k.pkfma(ac, tt, m)
        for ac, tt, m in pend:
            k.pkfma(ac, tt, m)

    def flush():
        A(f"v_mov_b32 v{vT0}, v{vM}")
        k.butterfly("v_max_f32", [vT0], 3)
        A(f"v_sub_f32 v{vAl}, v{vM}, v{vT0}")
        A(f"v_mul_f32 v{vAl}, {LOG2E}, v{vAl}")
        A(f"v_exp_f32 v{vAl}, v{vAl}")
        A(f"s_mul_i32 s{sT0}, s{sWs}, 5")
        A(f"s_add_u32 s{sT0}, s{sT0}, s{sSlot}")
        A(f"s_lshl_b32 s{sT1}, s{sT0}, 10")
        A(f"v_mul_f32 v{vLs}, v{vLs}, v{vAl}")
        for i in range(12):
            k.pkmul(ACC + 2 * i, vAl)
        k.dpp("v_add_f32", vLs, "quad_perm:[1,0,3,2]")
        for n in range(3):
            for c in range(4):
                x, y = ACC + 8 * n + c, ACC + 8 * n + c + 4
                A(f"v_add_f32_dpp v{x}, v{x}, v{x} row_half_mirror row_mask:0xf bank_mask:0x5")
                A(f"v_add_f32_dpp v{x}, v{y}, v{y} row_half_mirror row_mask:0xf bank_mask:0xa")
        k.dpp("v_add_f32", vLs, "quad_perm:[2,3,0,1]")
        for n in range(3):
            for c in range(2):
                x, y = ACC + 8 * n + c, ACC + 8 * n + c + 2
                A(f"v_cndmask_b32 v{x+4}, v{y}, v{x}, s[{sM1}:{sM1+1}]")
                A(f"v_cndmask_b32 v{x}, v{x}, v{y}, s[{sM1}:{sM1+1}]")
        k.dpp("v_add_f32", vLs, "row_half_mirror")
        for n in range(3):
            for c in range(2):
                x = ACC + 8 * n + c
                A(f"v_add_f32_dpp v{x}, v{x+4}, v{x} quad_perm:[2,3,0,1] row_mask:0xf bank_mask:0xf")
        for n in range(3):
            x, y = ACC + 8 * n, ACC + 8 * n + 1
            A(f"v_cndmask_b32 v{x+4}, v{y}, v{x}, s[{sM0}:{sM0+1}]")
            A(f"v_cndmask_b32 v{x}, v{x}, v{y}, s[{sM0}:{sM0+1}]")
        A(f"v_lshl_add_u32 v{vT1}, v{vL}, 4, s{sT1}")
        A(f"s_lshl_b32 s{sT0}, s{sT0}, 4")
        for n in range(3):
            x = ACC + 8 * n
            A(f"v_add_f32_dpp v{D+n}, v{x+4}, v{x} quad_perm:[1,0,3,2] row_mask:0xf bank_mask:0xf")
        A(f"v_mov_b32 v{S}, v{vT0}")
        A(f"v_mov_b32 v{S+1}, v{vLs}")
        A(f"v_mov_b32 v{S+2}, s{sPairSt}")
        A(f"v_mov_b32 v{vT0}, s{sT0}")
        A(f"ds_write_b128 v{vT1}, v[{D}:{D+3}] offset:{L_REC}")
        k.set_exec(1)
        A(f"ds_write_b128 v{vT0}, v[{S}:{S+3}] offset:{L_RHD}")
        k.set_exec(-1)
        A(f"s_add_u32 s{sSlot}, s{sSlot}, 1")

    def reset_state():
        A(f"v_mov_b32 v{vM}, {NEGBIG}")
        A(f"v_mov_b32 v{vLs}, 0")
        for i in range(24):
            A(f"v_mov_b32 v{ACC+i}, 0")

    def load_q():
        A(f"s_lshl_b32 s{sT0}, s{sPairCur}, 9")
        A(f"v_add_u32 v{vT0}, s{sT0}, v{vQa}")
        for n in range(3):
            A(f"ds_read_b128 v[{QF+4*n}:{QF+4*n+3}], v{vT0} offset:{L_QH+128*n}")
        A(f"s_mov_b32 s{sPairSt}, s{sPairCur}")

    uid = [0]

    def check_pair(x):
        uid[0] += 1
        A(f"s_cmp_eq_u32 s{sPair[x]}, s{sPairSt}")
        A(f"s_cbranch_scc1 L_same{uid[0]}")
        A(f"s_mov_b32 s{sPairCur}, s{sPair[x]}")
        A(f"s_call_b64 s[{sRet}:{sRet+1}], L_switch")
        LB(f"same{uid[0]}")

    A(f"s_sub_u32 s{sWs}, s{sW}, 4")
    A(f"v_and_b32 v{vT0}, 7, v{vL}")
    A(f"v_lshrrev_b32 v{vT1}, 3, v{vL}")
    A(f"v_mul_u32_u24 v{vKoff}, 384, v{vT0}")
    A(f"v_lshl_add_u32 v{vKoff}, v{vT1}, 4, v{vKoff}")
    A(f"s_lshr_b32 s{sPairCur}, s{sJ}, 1")
    A(f"s_mul_i32 s{sHoff}, s{sH}, 3145728")
    A(f"s_mul_i32 s{sStat}, s{sPairCur}, 100663296")
    A(f"s_add_u32 s{sStat}, s{sStat}, s{sHoff}")
    A(f"s_and_b32 s{sT0}, s{sJ}, 1")
    A(f"s_lshl_b32 s{sT0}, s{sT0}, 2")
    A(f"s_add_u32 s{sT0}, s{sT0}, s{sWs}")
    A(f"s_mul_i32 s{sT0}, s{sT0}, {NS*6144}")
    A(f"s_add_u32 s{sStat}, s{sStat}, s{sT0}")
    A("s_waitcnt lgkmcnt(0)")
    A(f"s_load_dword s{sTag}, s[{sWS}:{sWS+1}], {W_GEN}")
    k.srd(rK, sKp, 402653184)
    k.srd(rV, sVp, 402653184)
    A("s_barrier")
    if noq:
        A("s_barrier")
    order = [2 + i for i in range(NPRE)] + [0, 1]
    for x in order:
        loads(kreg(x), rK, sStat)
        loads(vreg(x), rV, sStat)
        A(f"s_add_u32 s{sStat}, s{sStat}, 6144")
    A(f"v_lshrrev_b32 v{vQa}, 4, v{vL}")
    A(f"v_lshlrev_b32 v{vQa}, 5, v{vQa}")
    A(f"v_and_b32 v{vT1}, 1, v{vL}")
    A(f"v_lshl_add_u32 v{vQa}, v{vT1}, 4, v{vQa}")
    A(f"v_mov_b32 v{vOne}, 1")
    A(f"s_mul_i32 s{sT0}, s{sH}, {qstride}")
    A(f"s_add_u32 s{sT0}, s{sT0}, {W_QCNT}")
    A(f"v_mov_b32 v{vCa}, s{sT0}")
    A(f"s_mov_b32 s{sPair[0]}, s{sPairCur}")
    A(f"s_mov_b32 s{sPair[1]}, s{sPairCur}")
    A(f"s_mov_b32 s{sRem}, {NS - 2 - NPRE}")
    A(f"s_mov_b32 s{sSlot}, 0")
    A(f"s_mov_b32 s{sM1}, 0xcccccccc")
    A(f"s_mov_b32 s{sM1+1}, 0xcccccccc")
    A(f"s_mov_b32 s{sM0}, 0xaaaaaaaa")
    A(f"s_mov_b32 s{sM0+1}, 0xaaaaaaaa")
    reset_state()
    A("s_waitcnt lgkmcnt(0)")
    A(f"s_add_u32 s{sTag}, s{sTag}, 1")
    stamp(1)
    if not noq:
        A("s_barrier")
    load_q()
    A("s_waitcnt lgkmcnt(0)")
    stamp(2)
    for i in range(NPRE):
        rem = 12 * (NPRE + 2 - i)
        A(f"s_waitcnt vmcnt({rem-6})")
        k_tile(2 + i)
        A("s_nop 7")
        softmax()
        A(f"s_waitcnt vmcnt({rem-12})")
        v_tile(2 + i)
    LB("loop")
    for x in range(2):
        A("s_waitcnt vmcnt(18)")
        check_pair(x)
        k_tile(x)
        A(f"s_sub_u32 s{sRem}, s{sRem}, 1")
        A(f"s_cmp_gt_i32 s{sRem}, 1")
        A(f"s_cbranch_scc0 L_dyn{x}")
        A(f"s_mov_b32 s{sNxt}, s{sStat}")
        A(f"s_add_u32 s{sStat}, s{sStat}, 6144")
        LB(f"dynret{x}")
        loads(kreg(x), rK, sNxt)
        softmax()
        A("s_waitcnt vmcnt(18)")
        v_tile(x)
        loads(vreg(x), rV, sNxt)
    A("s_branch L_loop")
    for x in range(2):
        LB(f"dyn{x}")
        A(f"s_mov_b32 s{sNxt}, s{sStat}")
        A(f"s_add_u32 s{sStat}, s{sStat}, 6144")
        A(f"s_cmp_ge_i32 s{sRem}, 0")
        A(f"s_cbranch_scc1 L_claim{x}")
        A(f"v_readfirstlane_b32 s{sT0}, v{vClaim[x]}")
        A("s_nop 3")
        A(f"s_cmp_ge_u32 s{sT0}, {NPOOL}")
        A(f"s_cbranch_scc1 L_last{x}")
        A(f"s_lshr_b32 s{sPair[x]}, s{sT0}, {LDP}")
        A(f"s_and_b32 s{sT0}, s{sT0}, {DP-1}")
        A(f"s_add_u32 s{sT0}, s{sT0}, {512-DP}")
        A(f"s_mul_i32 s{sT0}, s{sT0}, 6144")
        A(f"s_mul_i32 s{sNxt}, s{sPair[x]}, 100663296")
        A(f"s_add_u32 s{sNxt}, s{sNxt}, s{sHoff}")
        A(f"s_add_u32 s{sNxt}, s{sNxt}, s{sT0}")
        LB(f"claim{x}")
        k.set_exec(1)
        A(f"global_atomic_add v{vClaim[x]}, v{vCa}, v{vOne}, s[{sWS}:{sWS+1}] sc0")
        k.set_exec(-1)
        A(f"s_branch L_dynret{x}")
    LB("switch")
    flush()
    lds_wait4("swrdy", vT1, vT0)
    load_q()
    reset_state()
    A("s_waitcnt lgkmcnt(0)")
    A(f"s_setpc_b64 s[{sRet}:{sRet+1}]")
    for x in range(2):
        y = 1 - x
        LB(f"last{x}")
        stamp(3)
        A("s_nop 3")
        softmax()
        A("s_waitcnt vmcnt(12)")
        v_tile(x)
        A("s_waitcnt vmcnt(6)")
        check_pair(y)
        k_tile(y)
        A("s_nop 7")
        softmax()
        A("s_waitcnt vmcnt(0)")
        v_tile(y)
        if x == 0:
            A("s_branch L_fin")
    LB("fin")
    flush()
    vRa, vRhh = QF, QF + 2
    A(f"s_lshl_b32 s{sT0}, s{sH}, 2")
    A(f"s_add_u32 s{sT0}, s{sT0}, s{sWs}")
    A(f"s_lshl_b32 s{sT0}, s{sT0}, 3")
    A(f"s_add_u32 s{sT0}, s{sT0}, s{sJ}")
    A(f"s_lshl_b32 s{sT1}, s{sT0}, 10")
    A(f"s_add_u32 s{sT1}, s{sT1}, {W_REC}")
    A(f"v_lshl_add_u32 v{vRa}, v{vL}, 4, s{sT1}")
    A(f"s_lshl_b32 s{sT1}, s{sT0}, 7")
    A(f"s_add_u32 s{sT1}, s{sT1}, {W_RH}")
    A(f"v_lshl_add_u32 v{vRhh}, v{vL}, 4, s{sT1}")
    A(f"v_min_u32 v{vT0}, 19, v{vL}")
    A(f"v_lshlrev_b32 v{vT0}, 4, v{vT0}")
    A(f"v_lshlrev_b32 v{vT1}, 4, v{vL}")
    A(f"v_cmp_gt_u32 s[{sM0}:{sM0+1}], 20, v{vL}")
    A(f"v_mov_b32 v{vM}, {NEGBIG}")
    A("s_waitcnt lgkmcnt(0)")
    A("s_barrier")
    stamp(4)
    C("==== WG merge: stream wave w handles pair w ====")
    A(f"ds_read_b128 v[{S}:{S+3}], v{vT0} offset:{L_RHD}")
    for i in range(14):
        A(f"ds_read_b128 v[{MG+4*i}:{MG+4*i+3}], v{vT1} offset:{L_REC+1024*i}")
    A("s_waitcnt lgkmcnt(14)")
    A(f"v_cmp_eq_u32 vcc, s{sWs}, v{S+2}")
    A(f"s_and_b64 vcc, vcc, s[{sM0}:{sM0+1}]")
    for i in range(14, 20):
        A(f"ds_read_b128 v[{MG+4*i}:{MG+4*i+3}], v{vT1} offset:{L_REC+1024*i}")
    A(f"v_cndmask_b32 v{vM}, v{vM}, v{S}, vcc")
    C("records live in lanes 0..19: reduce rows 0,1 only")
    k.butterfly("v_max_f32", [vM], 4)
    A("s_nop 0")
    A(f"v_readlane_b32 s{sT0}, v{vM}, 0")
    A(f"v_readlane_b32 s{sT1}, v{vM}, 16")
    A("s_nop 0")
    A(f"v_mov_b32 v{vM}, s{sT0}")
    A(f"v_max_f32 v{vM}, s{sT1}, v{vM}")
    A(f"v_sub_f32 v{vAl}, v{S}, v{vM}")
    A(f"v_mul_f32 v{vAl}, {LOG2E}, v{vAl}")
    A(f"v_exp_f32 v{vAl}, v{vAl}")
    A("s_nop 0")
    A(f"v_cndmask_b32 v{vAl}, 0, v{vAl}, vcc")
    A(f"v_mul_f32 v{vLs}, v{vAl}, v{S+1}")
    ctr = ["quad_perm:[1,0,3,2]", "quad_perm:[2,3,0,1]", "row_half_mirror", "row_mirror"]
    for i in range(20):
        A(f"v_readlane_b32 s{sWt+i}, v{vAl}, {i}")
        if i % 4 == 2 and i // 4 < 4:
            k.dpp("v_add_f32", vLs, ctr[i // 4])
    A(f"v_readlane_b32 s{sT0}, v{vLs}, 0")
    A(f"v_readlane_b32 s{sT1}, v{vLs}, 16")
    A("s_waitcnt lgkmcnt(0)")
    A(f"v_pk_mul_f32 v[{ACC}:{ACC+1}], v[{MG}:{MG+1}], s[{sWt}:{sWt+1}] op_sel_hi:[1,0]")
    A(f"v_mul_f32 v{ACC+2}, s{sWt}, v{MG+2}")
    A(f"v_mov_b32 v{ACC+9}, s{sT0}")
    A(f"v_add_f32 v{ACC+9}, s{sT1}, v{ACC+9}")
    A(f"v_mov_b32 v{ACC+8}, v{vM}")
    xor3(ACC + 10, f"v{vM}", f"v{ACC+9}", f"s{sTag}")
    for i in range(1, 20):
        k.pkfma(ACC, MG + 4 * i, sWt + i, pre="s")
        A(f"v_fmac_f32 v{ACC+2}, s{sWt+i}, v{MG+4*i+2}")
    xor3(ACC + 3, f"v{ACC}", f"v{ACC+1}", f"v{ACC+2}")
    A(f"v_xor_b32 v{ACC+3}, s{sTag}, v{ACC+3}")
    A(f"global_store_dwordx4 v{vRa}, v[{ACC}:{ACC+3}], s[{sWS}:{sWS+1}] {SC}")
    k.set_exec(0xff)
    A(f"global_store_dwordx4 v{vRhh}, v[{ACC+8}:{ACC+11}], s[{sWS}:{sWS+1}] {SC}")
    k.set_exec(-1)
    stamp(5)
    write_stamps(MG, vT1)
    LB("end")
    A("s_endpgm")
    return k, (256, 256), L_TOTAL


def build(stamps=False, **kw):
    k2, r2, l2 = build_main(stamps, **kw)
    txt = HEADER
    txt += f"; @launch grid=(256,1,1) block=(512,1,1) lds={l2}\n"
    txt += '.amdgcn_target "amdgcn-amd-amdhsa--gfx950"\n.text\n'
    txt += k2.text()
    txt += '.section .rodata,"a"\n'
    txt += k2.desc(*r2)
    return txt


if __name__ == "__main__":
    out = sys.argv[1] if len(sys.argv) > 1 else f"cdna_kernels/{NAME}.s"
    stamps = sys.argv[2] if len(sys.argv) > 2 and sys.argv[2] != "-" else False
    kw = {}
    for a in sys.argv[3:]:
        n, v = a.split("=")
        kw[n] = int(v)
    open(out, "w").write(build(stamps, **kw))
    print("wrote", out)
```

```python
import sys
from gen_v1 import HEADER, NAME
from gen_v2 import K, load_kernargs, SCALE, LOG2E, NEGBIG
from gen_v2 import sX, sKp, sVp, sWQp, sWOp, sW1p, sB1p, sW2p, sB2p, sOUT, sDBG, sWS

W_GEN = 0x0
W_QCNT = 0x800000
W_RH = 0xE0000
W_FR = 0x20000
W_YA = 0x400000
W_REC = 0x100000
W_QC = 0x200000
W_YB = 0x240000
W_QP = 0x300000
W_STAMP = 0x1000000
SPIN = 0x80000


def build_main(stamps=False, DP=64, NPRE=2, mimic=1, hsleep=1, qsleep=32, nmiss=2, pre1=0, pre2=0, noq=0, stop=0, ysleep=1, qstride=4352, stnt=0, ldnt=0, fsleep=200, dbg=0):
    SCS = "sc1 nt" if stnt else "sc1"
    SCL = "sc1 nt" if ldnt else "sc1"
    SC = "sc1"
    k = K(f"{NAME}_kernel")
    k.lab = lambda s: f"L_{s}"
    k.LB = lambda s: k.L.append(f"L_{s}:")
    A, LB, C = k.A, k.LB, k.C
    sT0, sT1, sT2, sT3 = k.sT
    NS = (512 - DP) // 8
    LDP = DP.bit_length() - 1
    NPOOL = 4 * DP
    sW, sH, sJ = 3, 4, 5
    sRem, sStat, sNxt = 6, 7, 12
    sPairCur, sPairSt, sSlot, sHoff = 13, 14, 42, 43
    rK, rV = 44, 48
    sPair = [52, 53]
    sRet = 54
    sWt = 56
    sTm = 76
    sTag = 78
    sSpin = 79
    rW = 80
    sOff = 84
    sWs = 85
    sM1, sM0 = 86, 88
    sTs = 96
    L_QH = 0
    L_SYNC = 2048
    L_RHD = 2112
    L_OB = 2560
    L_REC = 4096
    L_XN = L_REC + 20480
    L_WT = 32768
    L_TOTAL = L_WT + 65536
    boff = [0, 128, 256, 3072, 3200, 3328]
    in_service = [True]

    def stamp(i, mode="stamps"):
        if stamps and (mode == stamps or (mode == "stamps" and (i == 0 or not in_service[0]))):
            A(f"s_memrealtime s[{sTm}:{sTm+1}]")
            A("s_waitcnt lgkmcnt(0)")
            A(f"s_mov_b32 s{sTs+i}, s{sTm}")

    def write_stamps(tmp, vA):
        if stamps and dbg:
            if in_service[0]:
                C("debug: WGs 0,40,85,130 wave 0 report (t1,t3,t5) - t0 and xcc")
                A(f"s_cmp_eq_u32 s{sW}, 0")
                A("s_cbranch_scc0 L_nodbg")
                A(f"s_mul_i32 s{sT1}, s2, 1457")
                A(f"s_lshr_b32 s{sT1}, s{sT1}, 16")
                A(f"s_mul_i32 s{sT3}, s{sT1}, 45")
                A(f"s_cmp_eq_u32 s{sT3}, s2")
                A("s_cbranch_scc0 L_nodbg")
                A(f"s_cmp_lt_u32 s{sT1}, 4")
                A("s_cbranch_scc0 L_nodbg")
                A(f"s_getreg_b32 s{sT2}, hwreg(HW_REG_XCC_ID)")
                A(f"s_lshl_b32 s{sT1}, s{sT1}, 4")
                for n, i in enumerate((1, 3, 5)):
                    A(f"s_sub_u32 s{sT3}, s{sTs+i}, s{sTs}")
                    A(f"v_mov_b32 v{tmp+n}, s{sT3}")
                A(f"v_mov_b32 v{tmp+3}, s{sT2}")
                A(f"v_mov_b32 v{vA}, s{sT1}")
                k.set_exec(1)
                A(f"global_store_dwordx4 v{vA}, v[{tmp}:{tmp+3}], s[{sDBG}:{sDBG+1}]")
                k.set_exec(-1)
                LB("nodbg")
        elif stamps:
            A(f"s_getreg_b32 s{sT2}, hwreg(HW_REG_XCC_ID)")
            A(f"s_lshl_b32 s{sT1}, s2, 3")
            A(f"s_add_u32 s{sT1}, s{sT1}, s{sW}")
            A(f"s_lshl_b32 s{sT1}, s{sT1}, 5")
            A(f"s_add_u32 s{sT1}, s{sT1}, {W_STAMP}")
            for i in range(6):
                A(f"v_mov_b32 v{tmp+i}, s{sTs+i}")
            A(f"v_mov_b32 v{tmp+6}, s{sT2}")
            A(f"v_mov_b32 v{tmp+7}, 0x12345678")
            A(f"v_mov_b32 v{vA}, s{sT1}")
            k.set_exec(1)
            A(f"global_store_dwordx4 v{vA}, v[{tmp}:{tmp+3}], s[{sWS}:{sWS+1}]")
            A(f"global_store_dwordx4 v{vA}, v[{tmp+4}:{tmp+7}], s[{sWS}:{sWS+1}] offset:16")
            k.set_exec(-1)

    def xor3(d, a, b, c):
        A(f"v_bitop3_b32 v{d}, {a}, {b}, {c} bitop3:0x96")

    def spin_tail(loop, sleep=None):
        if sleep:
            A(f"s_sleep {sleep}")
        A(f"s_sub_u32 s{sSpin}, s{sSpin}, 1")
        A(f"s_cmp_lg_u32 s{sSpin}, 0")
        A(f"s_cbranch_scc1 L_{loop}")

    def lds_wait4(tagl, vA, vD):
        A(f"v_mov_b32 v{vA}, {L_SYNC}")
        A(f"s_mov_b32 s{sSpin}, {SPIN*16}")
        LB(tagl)
        A(f"ds_read_b32 v{vD}, v{vA}")
        A("s_waitcnt lgkmcnt(0)")
        A(f"v_readfirstlane_b32 s{sT0}, v{vD}")
        A("s_nop 3")
        A(f"s_cmp_ge_u32 s{sT0}, 4")
        A(f"s_cbranch_scc1 L_{tagl}ok")
        spin_tail(tagl, sleep=4)
        LB(tagl + "ok")

    vL, vT0, vT1 = 1, 3, 4
    A("s_cmp_ge_u32 s2, 256")
    A("s_cbranch_scc1 L_end")
    stamp(0)
    load_kernargs(k)
    A(f"v_and_b32 v{vL}, 63, v0")
    A(f"v_lshrrev_b32 v{vT0}, 6, v0")
    A(f"s_mov_b32 s{k.sMsk}, 0xffff0000")
    A(f"v_readfirstlane_b32 s{sW}, v{vT0}")
    A(f"s_lshr_b32 s{sH}, s2, 3")
    A(f"s_and_b32 s{sJ}, s2, 7")
    A(f"s_cmp_ge_u32 s{sW}, 4")
    A("s_cbranch_scc1 L_stream")
    C("================= service waves (0..3) =================")
    vOff, vXa, vXb, vOne_s = 2, 5, 6, 7
    a = 8
    k.TP = 16
    k.ntp = 2
    XR = 20
    XC = 40
    X = 44
    ACC = 84
    WR = 116
    E = 156
    QL = 164
    QK = 196
    B1R = 204
    FXR = 206
    A("s_setprio 3")
    A(f"v_lshrrev_b32 v{vT0}, 3, v{vL}")
    A(f"v_and_b32 v{vT1}, 7, v{vL}")
    A(f"s_cmp_eq_u32 s{sW}, 3")
    A(f"s_movk_i32 s{sT0}, 3072")
    A(f"s_cselect_b32 s{sT0}, s{sT0}, 12288")
    A(f"v_mul_lo_u32 v{vOff}, v{vT0}, s{sT0}")
    A(f"v_lshl_add_u32 v{vOff}, v{vT1}, 4, v{vOff}")
    A(f"s_mul_i32 s{sOff}, s{sJ}, 80")
    A(f"s_mul_i32 s{sOff}, s{sOff}, s{sT0}")
    A(f"s_lshl_b32 s{sT3}, s{sT0}, 3")
    A(f"s_mul_i32 s{sT1}, s{sH}, 384")
    A(f"s_lshl_b32 s{sT2}, s{sW}, 7")
    A(f"s_add_u32 s{sT1}, s{sT1}, s{sT2}")
    A(f"s_min_u32 s{sT2}, s{sH}, 23")
    A(f"s_lshl_b32 s{sT2}, s{sT2}, 7")
    A(f"s_cmp_eq_u32 s{sW}, 3")
    A(f"s_cselect_b32 s{sT1}, s{sT2}, s{sT1}")
    A(f"s_add_u32 s{sOff}, s{sOff}, s{sT1}")
    A(f"v_lshrrev_b32 v{vT0}, 4, v{vL}")
    A(f"v_mul_u32_u24 v{vT0}, 1280, v{vT0}")
    A(f"v_and_b32 v{vT1}, 15, v{vL}")
    A(f"v_lshl_add_u32 v{vXa}, v{vT1}, 4, v{vT0}")
    A(f"v_lshl_add_u32 v{a}, v{vT1}, 3, s{sT2}")
    A(f"v_min_u32 v{vT1}, 9, v{vT1}")
    A(f"v_lshl_add_u32 v{vXb}, v{vT1}, 4, v{vT0}")
    A(f"s_mul_i32 s{sT1}, s{sJ}, 160")
    A(f"v_add_u32 v{vXb}, s{sT1}, v{vXb}")
    A(f"v_mov_b32 v{vOne_s}, 1")
    for i in range(32):
        A(f"v_mov_b32 v{ACC+i}, 0")
    A(f"v_mov_b32 v{vT0}, {L_SYNC}")
    if stop:
        A(f"v_mov_b32 v{vT1}, 4")
        A(f"ds_write_b32 v{vT0}, v{vT1}")
    else:
        A(f"ds_write_b32 v{vT0}, v{ACC}")
    A(f"s_cmp_lt_u32 s{sH}, 24")
    A(f"s_cselect_b32 s{rW+2}, 1966080, 0")
    A("s_waitcnt lgkmcnt(0)")
    A(f"s_load_dword s{sTag}, s[{sWS}:{sWS+1}], {W_GEN}")
    for m in range(5):
        A(f"global_load_dwordx4 v[{XR+4*m}:{XR+4*m+3}], v{vXa}, s[{sX}:{sX+1}] offset:{256*m}")
    A(f"global_load_dwordx4 v[{XC}:{XC+3}], v{vXb}, s[{sX}:{sX+1}]")
    A(f"s_cmp_eq_u32 s{sW}, 3")
    A(f"s_cselect_b32 s{rW}, s{sW1p}, s{sWQp}")
    A(f"s_cselect_b32 s{rW+1}, s{sW1p+1}, s{sWQp+1}")
    A(f"s_cselect_b32 s{rW+2}, s{rW+2}, 7864320")
    A(f"s_mov_b32 s{rW+3}, 0x20000")
    for t in range(10):
        if stop != 1:
            A(f"buffer_load_dwordx4 v[{WR+4*t}:{WR+4*t+3}], v{vOff}, s[{rW}:{rW+3}], s{sOff} offen nt")
        if t < 9:
            A(f"s_add_u32 s{sOff}, s{sOff}, s{sT3}")
    A(f"global_load_dwordx2 v[{B1R}:{B1R+1}], v{a}, s[{sB1p}:{sB1p+1}]")
    if pre1:
        C("touch the hand-off lines this workgroup will write (brings them on-die)")
        A(f"s_lshl_b32 s{sT0}, s2, 12")
        A(f"s_lshl_b32 s{sT1}, s{sW}, 10")
        A(f"s_add_u32 s{sT0}, s{sT0}, s{sT1}")
        A(f"s_lshr_b32 s{sT1}, s{sT0}, 2")
        A(f"s_add_u32 s{sT0}, s{sT0}, {W_QP}")
        A(f"s_add_u32 s{sT1}, s{sT1}, {W_QC}")
        A(f"v_lshl_add_u32 v{vT0}, v{vL}, 4, s{sT0}")
        A(f"v_lshl_add_u32 v{vT1}, v{vL}, 2, s{sT1}")
        A(f"global_load_dwordx4 v[{QL}:{QL+3}], v{vT0}, s[{sWS}:{sWS+1}] {SC}")
        A(f"global_load_dword v{QL+4}, v{vT1}, s[{sWS}:{sWS+1}] {SC}")
    C("queue counter of this octet = 0 (j == 0, wave 0)")
    A(f"s_mul_i32 s{sT0}, s{sH}, {qstride}")
    A(f"s_add_u32 s{sT0}, s{sT0}, {W_QCNT}")
    A(f"v_mov_b32 v{vT0}, s{sT0}")
    A(f"s_or_b32 s{sT0}, s{sJ}, s{sW}")
    A(f"s_cmp_eq_u32 s{sT0}, 0")
    A("s_cbranch_scc0 L_noq")
    k.set_exec(1)
    A(f"global_store_dword v{vT0}, v{ACC}, s[{sWS}:{sWS+1}] {SC}")
    k.set_exec(-1)
    LB("noq")
    C("barrier 1 releases the stream waves")
    A("s_barrier")
    if noq:
        A("s_barrier")
    A(f"s_mul_i32 s{sT0}, s{sW}, 5120")
    A(f"v_lshl_add_u32 v{vT0}, v{vL}, 4, s{sT0}")
    for i in range(5):
        A(f"ds_write_b128 v{vT0}, v[{ACC}:{ACC+3}] offset:{L_REC+1024*i}")
    A(f"v_mov_b32 v{E}, {NEGBIG}")
    for i in range(1, 4):
        A(f"v_mov_b32 v{E+i}, 0")
    A(f"v_min_u32 v{vT0}, 19, v{vL}")
    A(f"v_lshlrev_b32 v{vT0}, 4, v{vT0}")
    A(f"ds_write_b128 v{vT0}, v[{E}:{E+3}] offset:{L_RHD}")
    if stop == 1:
        A("s_waitcnt vmcnt(0) lgkmcnt(0)")
        A("s_branch L_svc_end")
    C("---- LayerNorm statistics, 16 lanes per batch ----")
    A(f"s_waitcnt vmcnt({11 + 2*pre1})")
    stamp(1, "pro")
    for i in range(20):
        A(f"v_lshlrev_b32 v{X+2*i}, 16, v{XR+i}")
        A(f"v_and_b32 v{X+2*i+1}, s{k.sMsk}, v{XR+i}")
    A(f"v_pk_add_f32 v[{a}:{a+1}], v[{X}:{X+1}], v[{X+2}:{X+3}]")
    A(f"v_pk_add_f32 v[{a+2}:{a+3}], v[{X+4}:{X+5}], v[{X+6}:{X+7}]")
    for i in range(4, 20):
        d = a + 2 * (i & 1)
        A(f"v_pk_add_f32 v[{d}:{d+1}], v[{d}:{d+1}], v[{X+2*i}:{X+2*i+1}]")
    A(f"v_pk_add_f32 v[{a}:{a+1}], v[{a}:{a+1}], v[{a+2}:{a+3}]")
    A(f"v_add_f32 v{a}, v{a}, v{a+1}")
    k.butterfly("v_add_f32", [a], 4)
    A(f"v_mul_f32 v{a}, {-1.0/640.0!r}, v{a}")
    for i in range(20):
        A(f"v_pk_add_f32 v[{X+2*i}:{X+2*i+1}], v[{X+2*i}:{X+2*i+1}], v[{a}:{a+1}] op_sel_hi:[1,0]")
    A(f"v_pk_mul_f32 v[{a+2}:{a+3}], v[{X}:{X+1}], v[{X}:{X+1}]")
    A(f"v_pk_mul_f32 v[{a+4}:{a+5}], v[{X+2}:{X+3}], v[{X+2}:{X+3}]")
    for i in range(2, 20):
        d = a + 2 + 2 * (i & 1)
        A(f"v_pk_fma_f32 v[{d}:{d+1}], v[{X+2*i}:{X+2*i+1}], v[{X+2*i}:{X+2*i+1}], v[{d}:{d+1}]")
    A(f"v_pk_add_f32 v[{a+2}:{a+3}], v[{a+2}:{a+3}], v[{a+4}:{a+5}]")
    A(f"v_add_f32 v{a+2}, v{a+2}, v{a+3}")
    k.butterfly("v_add_f32", [a + 2], 4)
    A(f"v_mul_f32 v{a+2}, {1.0/640.0!r}, v{a+2}")
    k.rnd2(a, a + 2, a + 1)
    A(f"v_add_f32 v{a+2}, 0x3727c5ac, v{a+2}")
    k.rnd1(a + 2, a + 1)
    A(f"v_sqrt_f32 v{a+2}, v{a+2}")
    A("s_waitcnt lgkmcnt(0)")
    for i in range(4):
        A(f"v_lshlrev_b32 v{E+2*i}, 16, v{XC+i}")
        A(f"v_and_b32 v{E+2*i+1}, s{k.sMsk}, v{XC+i}")
    k.rnd1(a + 2, a + 1)
    A(f"v_rcp_f32 v{a+3}, v{a+2}")
    for i in range(8):
        A(f"v_add_f32 v{E+i}, v{E+i}, v{a}")
    for i in range(0, 8, 2):
        k.rnd2(E + i, E + i + 1, a + 1)
    for i in range(8):
        A(f"v_mul_f32 v{a+4}, v{E+i}, v{a+3}")
        A(f"v_fma_f32 v{a+5}, -v{a+4}, v{a+2}, v{E+i}")
        A(f"v_fma_f32 v{E+i}, v{a+5}, v{a+3}, v{a+4}")
    for i in range(0, 8, 2):
        k.rnd2(E + i, E + i + 1, a + 1)
    A(f"s_mul_i32 s{sT0}, s{sW}, 1280")
    A(f"v_and_b32 v{vT1}, 15, v{vL}")
    A(f"v_min_u32 v{vT1}, 9, v{vT1}")
    A(f"v_lshl_add_u32 v{vT1}, v{vT1}, 7, s{sT0}")
    A(f"v_lshrrev_b32 v{vT0}, 4, v{vL}")
    A(f"v_lshl_add_u32 v{vT1}, v{vT0}, 2, v{vT1}")
    for i in range(8):
        A(f"ds_write_b32 v{vT1}, v{E+i} offset:{L_XN+16*i}")
    A(f"v_lshrrev_b32 v{vT0}, 3, v{vL}")
    A(f"v_lshl_add_u32 v{vT0}, v{vT0}, 4, s{sT0}")
    A(f"s_add_u32 s{sTag}, s{sTag}, 1")
    XN = X
    for t in range(10):
        A(f"ds_read_b128 v[{XN+4*t}:{XN+4*t+3}], v{vT0} offset:{L_XN+128*t}")
    C("granule index 16w + 2e + half, row b = l>>4")
    A(f"v_and_b32 v{vT0}, 7, v{vL}")
    A(f"v_bfe_u32 v{vT1}, v{vL}, 3, 1")
    A(f"v_lshl_add_u32 v{vT0}, v{vT0}, 1, v{vT1}")
    A(f"s_lshl_b32 s{sT0}, s{sW}, 4")
    A(f"v_add_u32 v{vT0}, s{sT0}, v{vT0}")
    A(f"v_lshrrev_b32 v{vT1}, 4, v{vL}")
    A(f"v_lshl_add_u32 v{vT0}, v{vT1}, 6, v{vT0}")
    A(f"s_lshl_b32 s{sT0}, s2, 12")
    A(f"s_add_u32 s{sT0}, s{sT0}, {W_QP}")
    A(f"s_lshl_b32 s{sT1}, s2, 10")
    A(f"s_lshl_b32 s{sT2}, s{sW}, 8")
    A(f"s_add_u32 s{sT1}, s{sT1}, s{sT2}")
    A(f"s_add_u32 s{sT1}, s{sT1}, {W_QC}")
    A(f"v_lshl_add_u32 v{vXa}, v{vT0}, 4, s{sT0}")
    A(f"v_lshl_add_u32 v{vXb}, v{vL}, 2, s{sT1}")
    stamp(1)
    stamp(2, "pro")
    for t in range(10):
        A(f"s_waitcnt vmcnt({10-t+2*pre1 if t < 9 else 0}) lgkmcnt({9-t})")
        if t == 0:
            stamp(3, "pro")
        if t == 9:
            stamp(4, "pro")
        for d in range(4):
            tt = k.unpack(WR + 4 * t + d)
            for b in range(4):
                k.pkfma(ACC + 8 * b + 2 * d, tt, XN + 4 * t + b)
    C("reduce-scatter over lane bits 5,4,3")
    A("s_nop 1")
    for i in range(16):
        A(f"v_permlane32_swap_b32 v{ACC+i}, v{ACC+16+i}")
    for i in range(16):
        A(f"v_add_f32 v{ACC+i}, v{ACC+i}, v{ACC+16+i}")
    A("s_nop 1")
    for i in range(8):
        A(f"v_permlane16_swap_b32 v{ACC+i}, v{ACC+8+i}")
    for i in range(8):
        A(f"v_add_f32 v{ACC+i}, v{ACC+i}, v{ACC+8+i}")
    A("s_nop 1")
    for i in range(4):
        A(f"v_add_f32_dpp v{E+i}, v{ACC+i}, v{ACC+i} row_ror:8 row_mask:0xf bank_mask:0x3")
        A(f"v_add_f32_dpp v{E+i}, v{ACC+4+i}, v{ACC+4+i} row_ror:8 row_mask:0xf bank_mask:0xc")
    A(f"global_store_dwordx4 v{vXa}, v[{E}:{E+3}], s[{sWS}:{sWS+1}] {SCS}")
    xor3(E + 4, f"v{E}", f"v{E+1}", f"v{E+2}")
    xor3(E + 4, f"v{E+4}", f"v{E+3}", f"s{sTag}")
    A(f"global_store_dword v{vXb}, v{E+4}, s[{sWS}:{sWS+1}] {SCS}")
    stamp(2)
    stamp(5, "pro")
    if stop == 2:
        A("s_waitcnt vmcnt(0) lgkmcnt(0)")
        A("s_branch L_svc_end")
    C("addresses: final row FR[h*4+w], LDS row w")
    vFr, vQl = a + 6, a + 7
    A(f"s_lshl_b32 s{sT0}, s{sH}, 2")
    A(f"s_add_u32 s{sT0}, s{sT0}, s{sW}")
    A(f"s_lshl_b32 s{sT0}, s{sT0}, 10")
    A(f"s_add_u32 s{sT0}, s{sT0}, {W_FR}")
    A(f"v_lshl_add_u32 v{vFr}, v{vL}, 4, s{sT0}")
    A(f"s_lshl_b32 s{sT1}, s{sW}, 9")
    A(f"v_lshl_add_u32 v{vQl}, v{vL}, 3, s{sT1}")
    A(f"s_mov_b32 s{sSpin}, {SPIN}")
    A(f"s_lshr_b32 s{sPairCur}, s{sJ}, 1")
    A(f"s_cmp_eq_u32 s{sPairCur}, s{sW}")
    A("s_cbranch_scc0 L_nonhome")
    C("---- home wave: gather the 8 partial rows ----")
    A(f"s_lshl_b32 s{sT0}, s{sH}, 15")
    A(f"s_lshl_b32 s{sT1}, s{sW}, 10")
    A(f"s_add_u32 s{sT0}, s{sT0}, s{sT1}")
    A(f"s_add_u32 s{sT0}, s{sT0}, {W_QP}")
    A(f"v_lshl_add_u32 v{vXa}, v{vL}, 4, s{sT0}")
    C("check of granule l: [wg][w' = l>>4][16 b + 8 (l&1) + ((l&15)>>1)]")
    A(f"s_lshl_b32 s{sT1}, s{sH}, 13")
    A(f"s_lshl_b32 s{sT2}, s{sW}, 6")
    A(f"s_add_u32 s{sT1}, s{sT1}, s{sT2}")
    A(f"s_add_u32 s{sT1}, s{sT1}, {W_QC}")
    A(f"v_lshrrev_b32 v{vT0}, 4, v{vL}")
    A(f"v_lshl_add_u32 v{vXb}, v{vT0}, 8, s{sT1}")
    A(f"v_and_b32 v{vT0}, 1, v{vL}")
    A(f"v_lshl_add_u32 v{vXb}, v{vT0}, 5, v{vXb}")
    A(f"v_bfe_u32 v{vT0}, v{vL}, 1, 3")
    A(f"v_lshl_add_u32 v{vXb}, v{vT0}, 2, v{vXb}")
    A(f"v_add_u32 v{vT1}, 4096, v{vXb}")
    if qsleep:
        A(f"s_sleep {qsleep}")
    LB("qpoll")
    A(f"v_mov_b32 v{vT0}, v{vXa}")
    for j in range(8):
        if j:
            A(f"v_add_u32 v{vT0}, 4096, v{vT0}")
        A(f"global_load_dwordx4 v[{QL+4*j}:{QL+4*j+3}], v{vT0}, s[{sWS}:{sWS+1}] {SCL}")
        va = vXb if j < 4 else vT1
        A(f"global_load_dword v{QK+j}, v{va}, s[{sWS}:{sWS+1}] offset:{1024*(j%4)} {SCL}")
    for j in range(8):
        A(f"s_waitcnt vmcnt({14-2*j})")
        xor3(a, f"v{QL+4*j}", f"v{QL+4*j+1}", f"v{QL+4*j+2}")
        xor3(a + 1, f"v{QL+4*j+3}", f"v{QK+j}", f"s{sTag}")
        if j == 0:
            A(f"v_xor_b32 v{a+2}, v{a}, v{a+1}")
        else:
            A(f"v_xor_b32 v{a}, v{a}, v{a+1}")
            A(f"v_or_b32 v{a+2}, v{a+2}, v{a}")
    A(f"v_cmp_ne_u32 vcc, 0, v{a+2}")
    A("s_cbranch_vccz L_qok")
    spin_tail("qpoll")
    LB("qok")
    for j in range(1, 8):
        A(f"v_pk_add_f32 v[{QL}:{QL+1}], v[{QL}:{QL+1}], v[{QL+4*j}:{QL+4*j+1}]")
        A(f"v_pk_add_f32 v[{QL+2}:{QL+3}], v[{QL+2}:{QL+3}], v[{QL+4*j+2}:{QL+4*j+3}]")
    A(f"v_cvt_pk_bf16_f32 v{QL+4}, v{QL}, v{QL+1}")
    A(f"v_cvt_pk_bf16_f32 v{QL+5}, v{QL+2}, v{QL+3}")
    A(f"ds_write_b64 v{vQl}, v[{QL+4}:{QL+5}] offset:{L_QH}")
    stamp(3)
    if stamps == "stamps":
        A(f"s_sub_u32 s{sTs+1}, {SPIN}, s{sSpin}")
        A(f"s_mul_i32 s{sTs+1}, s{sTs+1}, 100")
        A(f"s_add_u32 s{sTs+1}, s{sTs+1}, s{sTs}")
    A("s_waitcnt lgkmcnt(0)")
    if not noq:
        A("s_barrier")
    A("s_setprio 0")
    C("hid = bf16(relu(bf16(bf16(sum) + b1))^2) on lanes 48..63")
    Hh = QL + 8
    A(f"v_lshlrev_b32 v{Hh}, 16, v{QL+4}")
    A(f"v_and_b32 v{Hh+1}, s{k.sMsk}, v{QL+4}")
    A(f"v_lshlrev_b32 v{Hh+2}, 16, v{QL+5}")
    A(f"v_and_b32 v{Hh+3}, s{k.sMsk}, v{QL+5}")
    A(f"v_lshlrev_b32 v{Hh+4}, 16, v{B1R}")
    A(f"v_and_b32 v{Hh+5}, s{k.sMsk}, v{B1R}")
    A(f"v_lshlrev_b32 v{Hh+6}, 16, v{B1R+1}")
    A(f"v_and_b32 v{Hh+7}, s{k.sMsk}, v{B1R+1}")
    for i in range(4):
        A(f"v_add_f32 v{Hh+i}, v{Hh+i}, v{Hh+4+i}")
    k.rnd2(Hh, Hh + 1, a)
    k.rnd2(Hh + 2, Hh + 3, a)
    for i in range(4):
        A(f"v_cmp_gt_f32 vcc, v{Hh+i}, 0")
        A("s_nop 1")
        A(f"v_cndmask_b32 v{Hh+i}, 0, v{Hh+i}, vcc")
    for i in range(4):
        A(f"v_mul_f32 v{Hh+i}, v{Hh+i}, v{Hh+i}")
    k.set_exec(0xffff << 48)
    A(f"v_cvt_pk_bf16_f32 v{QL+4}, v{Hh}, v{Hh+1}")
    A(f"v_cvt_pk_bf16_f32 v{QL+5}, v{Hh+2}, v{Hh+3}")
    A(f"ds_write_b64 v{vQl}, v[{QL+4}:{QL+5}] offset:{L_QH}")
    k.set_exec(-1)
    xor3(QL + 6, f"v{QL+4}", f"v{QL+5}", f"s{sTag}")
    A(f"s_bitcmp1_b32 s{sJ}, 0")
    A("s_cbranch_scc1 L_rowdone")
    A(f"global_store_dwordx4 v{vFr}, v[{QL+4}:{QL+7}], s[{sWS}:{sWS+1}] {SCS}")
    A("s_branch L_rowdone")
    C("---- other waves: fetch the finished row later ----")
    LB("nonhome")
    A("s_waitcnt lgkmcnt(0)")
    if not noq:
        A("s_barrier")
    A("s_setprio 0")
    for i in range(fsleep // 100):
        A("s_sleep 100")
    A(f"s_sleep {fsleep % 100}")
    LB("fpoll")
    A(f"global_load_dwordx4 v[{QL+4}:{QL+7}], v{vFr}, s[{sWS}:{sWS+1}] {SCL}")
    A("s_waitcnt vmcnt(0)")
    xor3(a, f"v{QL+4}", f"v{QL+5}", f"v{QL+6}")
    A(f"v_cmp_ne_u32 vcc, s{sTag}, v{a}")
    A("s_cbranch_vccz L_fok")
    spin_tail("fpoll", sleep=32)
    LB("fok")
    A(f"ds_write_b64 v{vQl}, v[{QL+4}:{QL+5}] offset:{L_QH}")
    stamp(3)
    LB("rowdone")
    stamp(1, "svc")
    if stop == 3:
        A("s_waitcnt vmcnt(0) lgkmcnt(0)")
        A("s_branch L_svc_end")
    C("weight lines -> registers -> LDS image [256 rows][128 B]; pass 1 only for j < 2")
    G = 20
    FB = 116
    F2 = 212
    AF = 228
    DD = 8
    vG = vOff
    rW2 = 44
    A(f"v_lshrrev_b32 v{vT0}, 3, v{vL}")
    A(f"v_mul_u32_u24 v{vG}, {1280-128}, v{vT0}")
    A(f"v_lshl_add_u32 v{vG}, v{vL}, 4, v{vG}")
    k.srd(rW, sWOp, 7864320)
    k.srd(rW2, sW2p, 1966080)
    A(f"s_lshl_b32 s{sT0}, s{sH}, 2")
    A(f"s_add_u32 s{sT0}, s{sT0}, s{sW}")
    A(f"s_lshl_b32 s{sT2}, s{sJ}, 7")
    A(f"s_mul_i32 s{sOff}, s{sT0}, {48*1280}")
    A(f"s_add_u32 s{sOff}, s{sOff}, s{sT2}")
    A(f"s_mul_i32 s{sT3}, s{sT0}, {16*1280}")
    A(f"s_add_u32 s{sT3}, s{sT3}, s{sT2}")
    A(f"s_mul_i32 s{sT0}, s{sW}, {48*128}")
    A(f"s_add_u32 s{sT0}, s{sT0}, {L_WT}")
    A(f"v_lshl_add_u32 v{vXa}, v{vL}, 4, s{sT0}")
    A(f"s_lshl_b32 s{sT0}, s{sW}, 11")
    A(f"s_add_u32 s{sT0}, s{sT0}, {L_WT + 192*128}")
    A(f"v_lshl_add_u32 v{vXb}, v{vL}, 4, s{sT0}")
    for p in range(2):
        if p == 1:
            A(f"s_cmp_lt_u32 s{sJ}, 2")
            A("s_cbranch_scc0 L_wl_done")
        for i in range(6):
            A(f"s_add_u32 s{sT0}, s{sOff}, {8*1280*i}")
            A(f"buffer_load_dwordx4 v[{G+4*i}:{G+4*i+3}], v{vG}, s[{rW}:{rW+3}], s{sT0} offen offset:{1024*p} nt")
        for i in range(2):
            A(f"s_add_u32 s{sT0}, s{sT3}, {8*1280*i}")
            A(f"buffer_load_dwordx4 v[{G+24+4*i}:{G+24+4*i+3}], v{vG}, s[{rW2}:{rW2+3}], s{sT0} offen offset:{1024*p} nt")
        for i in range(6):
            A(f"s_waitcnt vmcnt({7-i})")
            A(f"ds_write_b128 v{vXa}, v[{G+4*i}:{G+4*i+3}] offset:{32768*p+1024*i}")
        for i in range(2):
            A(f"s_waitcnt vmcnt({1-i})")
            A(f"ds_write_b128 v{vXb}, v[{G+24+4*i}:{G+24+4*i+3}] offset:{32768*p+1024*i}")
        A("s_waitcnt lgkmcnt(0)")
    LB("wl_done")
    A(f"v_mov_b32 v{vT1}, {L_SYNC}")
    k.set_exec(1)
    A(f"ds_add_u32 v{vT1}, v{vOne_s}")
    k.set_exec(-1)
    C("transpose-read address: (8g + r)*128 + c*8 + w*32")
    A(f"v_lshrrev_b32 v{vT0}, 4, v{vL}")
    A(f"v_lshlrev_b32 v{vT0}, 3, v{vT0}")
    A(f"v_bfe_u32 v{vG}, v{vL}, 2, 2")
    A(f"v_add_lshl_u32 v{vG}, v{vG}, v{vT0}, 7")
    A(f"v_and_b32 v{vT0}, 3, v{vL}")
    A(f"v_lshl_add_u32 v{vG}, v{vT0}, 3, v{vG}")
    A(f"s_lshl_b32 s{sT0}, s{sW}, 5")
    A(f"s_add_u32 s{sT0}, s{sT0}, {L_WT}")
    A(f"v_add_u32 v{vG}, s{sT0}, v{vG}")
    lds_wait4("rdy", vT1, vT0)
    stamp(2, "svc")
    if stop == 4:
        A("s_waitcnt vmcnt(0) lgkmcnt(0)")
        A("s_branch L_svc_end")

    def frags(nkb, dst, row0, p):
        for kb in range(nkb):
            for hh in range(2):
                r = dst + 4 * kb + 2 * hh
                A(f"ds_read_b64_tr_b16 v[{r}:{r+1}], v{vG} offset:{(row0+32*kb+4*hh)*128 + 32768*p}")
    frags(2, F2, 192, 0)
    frags(6, FB, 0, 0)
    A(f"s_cmp_lt_u32 s{sJ}, 2")
    A("s_cbranch_scc0 L_g1")
    frags(2, F2 + 8, 192, 1)
    frags(6, FB + 24, 0, 1)
    LB("g1")
    C("A fragment address: batch row (l&15)>>2, k offset 16*(l>>4) bytes -> D lane group g = batch g")
    vAf = vXa
    vYa = vXb
    A(f"v_bfe_u32 v{vT0}, v{vL}, 2, 2")
    A(f"v_lshrrev_b32 v{vT1}, 4, v{vL}")
    A(f"v_lshlrev_b32 v{vT1}, 4, v{vT1}")
    A(f"v_lshl_add_u32 v{vAf}, v{vT0}, 9, v{vT1}")
    for kb in range(2):
        A(f"ds_read_b128 v[{AF+4*kb}:{AF+4*kb+3}], v{vAf} offset:{L_QH+384+64*kb}")
    A(f"v_mul_u32_u24 v{vAf}, 384, v{vT0}")
    A(f"v_add_u32 v{vAf}, v{vAf}, v{vT1}")
    C("Y address: [group = 4j + w][h][half][n] x 16 B : lanes 0..31 contiguous")
    A(f"s_lshl_b32 s{sT0}, s{sJ}, 2")
    A(f"s_add_u32 s{sT0}, s{sT0}, s{sW}")
    A(f"s_lshl_b32 s{sT0}, s{sT0}, 15")
    A(f"s_lshl_b32 s{sT1}, s{sH}, 10")
    A(f"s_add_u32 s{sT0}, s{sT0}, s{sT1}")
    A(f"s_add_u32 s{sT0}, s{sT0}, {W_YA}")
    A(f"v_lshl_add_u32 v{vYa}, v{vL}, 4, s{sT0}")
    A(f"s_mov_b32 s{sM1}, 0xffff0000")
    A(f"s_mov_b32 s{sM1+1}, 0xffff0000")
    A("s_waitcnt lgkmcnt(0)")

    YO = [252, QK]
    C("FFN2 partial B (zero for h >= 24)")
    for p in range(2):
        d = DD + 4 * p
        for kb in range(2):
            c = "0" if kb == 0 else f"v[{d}:{d+3}]"
            f = F2 + p * 8 + 4 * kb
            A(f"v_mfma_f32_16x16x32_bf16 v[{d}:{d+3}], v[{AF+4*kb}:{AF+4*kb+3}], v[{f}:{f+3}], {c}")
    A(f"s_cmp_lt_u32 s{sH}, 24")
    A(f"s_cselect_b32 s{sT0}, -1, 0")
    A(f"v_add_u32 v{QK+4}, {1024*1024}, v{vYa}")
    A("s_nop 5")
    for p in range(2):
        A(f"v_and_b32 v{YO[p]+1}, s{sT0}, v{DD+4*p}")
        A(f"v_xor_b32 v{YO[p]+3}, s{sTag}, v{YO[p]+1}")

    def proj_store(nkb, frag, fstride, tagl):
        for kb in range(nkb):
            for p in range(2):
                d = DD + 4 * p
                c = "0" if kb == 0 else f"v[{d}:{d+3}]"
                f = frag + p * fstride + 4 * kb
                A(f"s_waitcnt lgkmcnt({nkb-1-kb})") if p == 0 else None
                A(f"v_mfma_f32_16x16x32_bf16 v[{d}:{d+3}], v[{AF+4*kb}:{AF+4*kb+3}], v[{f}:{f+3}], {c}")
        A(f"s_cmp_lt_u32 s{sJ}, 2")
        A("s_nop 5")
        for p in range(2):
            if p == 1:
                A(f"s_cbranch_scc0 L_{tagl}")
            A(f"v_mov_b32 v{YO[p]}, v{DD+4*p}")
            A(f"v_xor_b32 v{YO[p]+2}, v{DD+4*p}, v{YO[p]+3}")
            va = vYa if p == 0 else QK + 4
            A(f"global_store_dwordx4 v{va}, v[{YO[p]}:{YO[p]+3}], s[{sWS}:{sWS+1}] {SC}")
        LB(tagl)
    stamp(3, "svc")
    if stop == 5:
        A("s_waitcnt vmcnt(0) lgkmcnt(0)")
        A("s_branch L_svc_end")
    C("---- finaliser task (h < 4, or h < 8 when j < 2): group 4(j + 8(h>>2)) + w, batch h&3 ----")
    sFin = sWs
    vFa = vG
    A(f"s_cmp_lt_u32 s{sJ}, 2")
    A(f"s_cselect_b32 s{sT1}, 8, 4")
    A(f"s_cmp_lt_u32 s{sH}, s{sT1}")
    A(f"s_cselect_b32 s{sFin}, 1, 0")
    A(f"s_cselect_b32 s{sT2}, s{sH}, 0")
    A(f"s_lshr_b32 s{sT0}, s{sT2}, 2")
    A(f"s_lshl_b32 s{sT0}, s{sT0}, 3")
    A(f"s_add_u32 s{sT0}, s{sT0}, s{sJ}")
    A(f"s_lshl_b32 s{sT0}, s{sT0}, 2")
    A(f"s_add_u32 s{sT0}, s{sT0}, s{sW}")
    A(f"s_and_b32 s{sT2}, s{sT2}, 3")
    A(f"s_lshl_b32 s{sT1}, s{sT0}, 15")
    A(f"s_lshl_b32 s{sT3}, s{sT2}, 8")
    A(f"s_add_u32 s{sT1}, s{sT1}, s{sT3}")
    A(f"v_lshrrev_b32 v{vT0}, 4, v{vL}")
    A(f"v_lshl_add_u32 v{vFa}, v{vT0}, 10, s{sT1}")
    A(f"v_and_b32 v{vT0}, 15, v{vL}")
    A(f"v_lshl_add_u32 v{vFa}, v{vT0}, 4, v{vFa}")
    A(f"s_lshl_b32 s{sT0}, s{sT0}, 5")
    A(f"v_lshl_add_u32 v{vT1}, v{vT0}, 1, s{sT0}")
    A(f"s_mul_i32 s{sT2}, s{sT2}, 1280")
    A(f"v_add_u32 v{FXR+5}, s{sT2}, v{vT1}")
    Yv = G + 40
    Ya = G + 72

    def ysum(ybase, tagl, sleep, nld):
        A(f"s_mov_b32 s{sSpin}, {SPIN}")
        LB(tagl)
        for i in range(nld):
            A(f"global_load_dwordx4 v[{Yv+4*i}:{Yv+4*i+3}], v{Ya+i}, s[{sWS}:{sWS+1}] {SC}")
        for i in range(nld):
            A(f"s_waitcnt vmcnt({nld-1-i})")
            xor3(a, f"v{Yv+4*i}", f"v{Yv+4*i+1}", f"v{Yv+4*i+2}")
            if i == 0:
                A(f"v_xor_b32 v{a+1}, s{sTag}, v{a}")
            else:
                A(f"v_xor_b32 v{a}, s{sTag}, v{a}")
                A(f"v_or_b32 v{a+1}, v{a+1}, v{a}")
                A(f"v_pk_add_f32 v[{Yv}:{Yv+1}], v[{Yv}:{Yv+1}], v[{Yv+4*i}:{Yv+4*i+1}]")
        A(f"v_cmp_ne_u32 vcc, 0, v{a+1}")
        A(f"s_cbranch_vccz L_{tagl}ok")
        spin_tail(tagl, sleep=sleep)
        LB(tagl + "ok")
        for op in ("v_permlane16_swap_b32", "v_permlane32_swap_b32"):
            A(f"v_mov_b32 v{Yv+2}, v{Yv}")
            A(f"v_mov_b32 v{Yv+3}, v{Yv+1}")
            A("s_nop 0")
            A(f"{op} v{Yv}, v{Yv+2}")
            A(f"{op} v{Yv+1}, v{Yv+3}")
            A("s_nop 0")
            A(f"v_pk_add_f32 v[{Yv}:{Yv+1}], v[{Yv}:{Yv+1}], v[{Yv+2}:{Yv+3}]")

    for i in range(8):
        A(f"v_add_u32 v{Ya+i}, {W_YA + 4096*i}, v{vFa}")
    A(f"s_cmp_eq_u32 s{sFin}, 0")
    A("s_cbranch_scc1 L_nofin1")
    A(f"global_load_ushort v{FXR}, v{FXR+5}, s[{sX}:{sX+1}]")
    A(f"global_load_ushort v{FXR+1}, v{vT1}, s[{sB2p}:{sB2p+1}]")
    A("s_waitcnt vmcnt(0)")
    for i in range(2):
        A(f"v_lshlrev_b32 v{FXR+i}, 16, v{FXR+i}")
    LB("nofin1")
    stamp(5, "svc")
    if stop == 6:
        A("s_waitcnt vmcnt(0) lgkmcnt(0)")
        A("s_branch L_svc_end")
    C("record addresses for batch w")
    vRh, vRd, vRd2, vOl = G + 16, G + 17, G + 18, G + 19
    sLoad, sOk, sHv = 6, 7, 12
    A(f"s_lshl_b32 s{sT0}, s{sH}, 2")
    A(f"s_add_u32 s{sT0}, s{sT0}, s{sW}")
    A(f"s_lshl_b32 s{sT1}, s{sT0}, 10")
    A(f"s_add_u32 s{sT1}, s{sT1}, {W_RH}")
    A(f"v_and_b32 v{vT0}, 7, v{vL}")
    A(f"v_lshl_add_u32 v{vRh}, v{vT0}, 7, s{sT1}")
    A(f"s_lshl_b32 s{sT1}, s{sT0}, 13")
    A(f"s_add_u32 s{sT1}, s{sT1}, {W_REC}")
    A(f"v_lshl_add_u32 v{vRd}, v{vL}, 4, s{sT1}")
    A(f"v_add_u32 v{vRd2}, 4096, v{vRd}")
    A(f"s_mul_i32 s{sT1}, s{sW}, 384")
    A(f"v_lshl_add_u32 v{vOl}, v{vL}, 1, s{sT1}")
    if pre2:
        A(f"s_lshl_b32 s{sT1}, s{sJ}, 10")
        A(f"v_add_u32 v{vT0}, s{sT1}, v{vRd}")
        A(f"global_load_dwordx4 v[{QL}:{QL+3}], v{vT0}, s[{sWS}:{sWS+1}] {SC}")
        A(f"global_load_dwordx4 v[{QL+8}:{QL+11}], v{vYa}, s[{sWS}:{sWS+1}] {SC}")
        A("s_waitcnt vmcnt(0)")
    A(f"s_mov_b32 s{sSpin}, {SPIN}")
    A(f"s_mov_b32 s{sLoad}, 0")
    A(f"s_mov_b32 s{sOk}, 0")
    A("s_setprio 3")
    A("s_barrier")
    stamp(4)
    stamp(1, "epi")
    HD = G + 24
    LB("rpoll")
    A(f"global_load_dwordx4 v[{HD}:{HD+3}], v{vRh}, s[{sWS}:{sWS+1}] {SC}")
    for j in range(8):
        va = vRd if j < 4 else vRd2
        A(f"s_bitcmp1_b32 s{sLoad}, {j}")
        A(f"s_cbranch_scc0 L_rs{j}")
        A(f"global_load_dwordx4 v[{QL+4*j}:{QL+4*j+3}], v{va}, s[{sWS}:{sWS+1}] offset:{1024*(j%4)} {SC}")
        LB(f"rs{j}")
    A("s_waitcnt vmcnt(0)")
    xor3(HD + 4, f"v{HD}", f"v{HD+1}", f"v{HD+2}")
    A(f"v_cmp_eq_u32 vcc, s{sTag}, v{HD+4}")
    A(f"s_and_b32 s{sHv}, vcc_lo, 0xff")
    for j in range(8):
        A(f"s_bitcmp1_b32 s{sLoad}, {j}")
        A(f"s_cbranch_scc0 L_rv{j}")
        xor3(a, f"v{QL+4*j}", f"v{QL+4*j+1}", f"v{QL+4*j+2}")
        A(f"v_xor_b32 v{a}, v{a}, v{QL+4*j+3}")
        A(f"v_cmp_ne_u32 vcc, s{sTag}, v{a}")
        A(f"s_cbranch_vccnz L_rv{j}")
        A(f"s_bitset1_b32 s{sOk}, {j}")
        LB(f"rv{j}")
    A(f"s_and_b32 s{sT0}, s{sOk}, s{sHv}")
    A(f"s_cmp_eq_u32 s{sT0}, 0xff")
    A("s_cbranch_scc1 L_rok")
    A(f"s_bcnt1_i32_b32 s{sT0}, s{sHv}")
    A(f"s_cmp_ge_u32 s{sT0}, {8-nmiss}")
    A(f"s_cselect_b32 s{sLoad}, 0xff, s{sHv}")
    A(f"s_andn2_b32 s{sLoad}, s{sLoad}, s{sOk}")
    spin_tail("rpoll", sleep=hsleep)
    LB("rok")
    stamp(3, "epi")
    A(f"v_mov_b32 v{HD+4}, v{HD}")
    k.butterfly("v_max_f32", [HD + 4], 3)
    A(f"v_sub_f32 v{HD+5}, v{HD}, v{HD+4}")
    A(f"v_mul_f32 v{HD+5}, {LOG2E}, v{HD+5}")
    A(f"v_exp_f32 v{HD+5}, v{HD+5}")
    A("s_nop 0")
    A(f"v_mul_f32 v{HD+6}, v{HD+5}, v{HD+1}")
    for j in range(8):
        A(f"v_readlane_b32 s{sWt+j}, v{HD+5}, {j}")
    k.dpp("v_add_f32", HD + 6, "quad_perm:[1,0,3,2]")
    O = HD + 8
    A(f"v_pk_mul_f32 v[{O}:{O+1}], v[{QL}:{QL+1}], s[{sWt}:{sWt+1}] op_sel_hi:[1,0]")
    A(f"v_mul_f32 v{O+2}, s{sWt}, v{QL+2}")
    k.dpp("v_add_f32", HD + 6, "quad_perm:[2,3,0,1]")
    for j in range(1, 8):
        k.pkfma(O, QL + 4 * j, sWt + j, pre="s")
        A(f"v_fmac_f32 v{O+2}, s{sWt+j}, v{QL+4*j+2}")
        if j == 1:
            k.dpp("v_add_f32", HD + 6, "row_half_mirror")
        if j == 2:
            A(f"v_rcp_f32 v{HD+7}, v{HD+6}")
    for i in range(3):
        A(f"v_mul_f32 v{O+4+i}, v{O+i}, v{HD+7}")
    for i in range(3):
        A(f"v_fma_f32 v{O+i}, -v{O+4+i}, v{HD+6}, v{O+i}")
    for i in range(3):
        A(f"v_fma_f32 v{O+i}, v{O+i}, v{HD+7}, v{O+4+i}")
    A(f"v_cvt_pk_bf16_f32 v{O+4}, v{O}, v{O+1}")
    A(f"v_cvt_pk_bf16_f32 v{O+5}, v{O+2}, v{O+2}")
    A(f"ds_write_b16 v{vOl}, v{O+4} offset:{L_OB}")
    A(f"ds_write_b16_d16_hi v{vOl}, v{O+4} offset:{L_OB+128}")
    A(f"ds_write_b16 v{vOl}, v{O+5} offset:{L_OB+256}")
    A("s_waitcnt lgkmcnt(0)")
    A("s_barrier")
    for kb in range(6):
        A(f"ds_read_b128 v[{AF+4*kb}:{AF+4*kb+3}], v{vAf} offset:{L_OB+64*kb}")
    proj_store(6, FB, 24, "ya_done")
    stamp(4, "epi")
    A(f"s_cmp_eq_u32 s{sFin}, 0")
    A("s_cbranch_scc1 L_svc_end")
    ysum(W_YA, "yap", ysleep, 8)
    k.set_exec(0xffff)
    k.rnd2(Yv, Yv + 1, Yv + 2)
    A(f"v_pk_add_f32 v[{Yv}:{Yv+1}], v[{Yv}:{Yv+1}], v[{FXR}:{FXR+1}]")
    k.rnd2(Yv, Yv + 1, Yv + 2)
    A(f"v_add_f32 v{Yv}, v{Yv}, v{Yv+1}")
    A(f"v_cvt_pk_bf16_f32 v{Yv}, v{Yv}, v{Yv}")
    A(f"global_store_short v{FXR+5}, v{Yv}, s[{sOUT}:{sOUT+1}]")
    k.set_exec(-1)
    C("generation bump by (h=0, j=0, w=0)")
    A(f"s_or_b32 s{sT0}, s2, s{sW}")
    A(f"s_cmp_eq_u32 s{sT0}, 0")
    A("s_cbranch_scc0 L_svc_end")
    A(f"v_mov_b32 v{vT0}, {W_GEN}")
    A(f"v_mov_b32 v{vT1}, s{sTag}")
    k.set_exec(1)
    A(f"global_store_dword v{vT0}, v{vT1}, s[{sWS}:{sWS+1}] {SC}")
    k.set_exec(-1)
    LB("svc_end")
    stamp(5)
    stamp(5, "epi")
    write_stamps(QL, vT0)
    A("s_endpgm")
    LB("stream")
    in_service[0] = False
    C("================= stream waves (4..7) =================")
    vKoff, vOne, vM, vLs, vAl, vQa, vCa = 2, 6, 7, 8, 9, 10, 11
    vClaim = [5, 0]
    S = 12
    k.TP = 16
    k.ntp = 4
    D = 16
    QF = 24
    ACC = 36
    SL = 60
    MG = 60

    def kreg(x):
        return SL + 48 * x

    def vreg(x):
        return SL + 48 * x + 24

    def loads(base, srd, so):
        for j in range(6):
            r = base + 4 * j
            A(f"buffer_load_dwordx4 v[{r}:{r+3}], v{vKoff}, s[{srd}:{srd+3}], s{so} offen offset:{boff[j]} nt")

    def k_tile(x):
        s0 = kreg(x)
        Da, Db = D, D + 4
        for n in range(3):
            ca = "0" if n == 0 else f"v[{Da}:{Da+3}]"
            cb = "0" if n == 0 else f"v[{Db}:{Db+3}]"
            A(f"v_mfma_f32_16x16x32_bf16 v[{Da}:{Da+3}], v[{QF+4*n}:{QF+4*n+3}], v[{s0+4*n}:{s0+4*n+3}], {ca}")
            A(f"v_mfma_f32_16x16x32_bf16 v[{Db}:{Db+3}], v[{QF+4*n}:{QF+4*n+3}], v[{s0+12+4*n}:{s0+12+4*n+3}], {cb}")

    def softmax():
        for t in range(2):
            d = D + 4 * t
            A(f"v_add_f32_dpp v{S+t}, v{d+1}, v{d} row_ror:8 row_mask:0xf bank_mask:0x3")
            A(f"v_add_f32_dpp v{S+t}, v{d}, v{d+1} row_ror:8 row_mask:0xf bank_mask:0xc")
        if mimic:
            k.rnd2(S, S + 1, vT0)
        for t in range(2):
            A(f"v_mul_f32 v{S+t}, {SCALE}, v{S+t}")
        if mimic:
            k.rnd2(S, S + 1, vT0)
        A(f"v_max3_f32 v{vT0}, v{vM}, v{S}, v{S+1}")
        A(f"v_sub_f32 v{vAl}, v{vM}, v{vT0}")
        for t in range(2):
            A(f"v_sub_f32 v{S+t}, v{S+t}, v{vT0}")
        A(f"v_mul_f32 v{vAl}, {LOG2E}, v{vAl}")
        for t in range(2):
            A(f"v_mul_f32 v{S+t}, {LOG2E}, v{S+t}")
        A(f"v_exp_f32 v{vAl}, v{vAl}")
        for t in range(2):
            A(f"v_exp_f32 v{S+t}, v{S+t}")
        A(f"v_mov_b32 v{vM}, v{vT0}")
        A(f"v_fma_f32 v{vLs}, v{vLs}, v{vAl}, v{S}")
        for i in range(12):
            k.pkmul(ACC + 2 * i, vAl)
        A(f"v_add_f32 v{vLs}, v{vLs}, v{S+1}")

    def v_tile(x):
        s0 = vreg(x)
        items = [(s0 + 12 * half + 4 * n + d, ACC + 8 * n + 2 * d, S + half)
                 for half in range(2) for n in range(3) for d in range(4)]
        pend = []
        for it in items:
            t = k.unpack(it[0])
            pend.append((it[1], t, it[2]))
            if len(pend) > 2:
                ac, tt, m = pend.pop(0)
                k.pkfma(ac, tt, m)
        for ac, tt, m in pend:
            k.pkfma(ac, tt, m)

    def flush():
        A(f"v_mov_b32 v{vT0}, v{vM}")
        k.butterfly("v_max_f32", [vT0], 3)
        A(f"v_sub_f32 v{vAl}, v{vM}, v{vT0}")
        A(f"v_mul_f32 v{vAl}, {LOG2E}, v{vAl}")
        A(f"v_exp_f32 v{vAl}, v{vAl}")
        A(f"s_mul_i32 s{sT0}, s{sWs}, 5")
        A(f"s_add_u32 s{sT0}, s{sT0}, s{sSlot}")
        A(f"s_lshl_b32 s{sT1}, s{sT0}, 10")
        A(f"v_mul_f32 v{vLs}, v{vLs}, v{vAl}")
        for i in range(12):
            k.pkmul(ACC + 2 * i, vAl)
        k.dpp("v_add_f32", vLs, "quad_perm:[1,0,3,2]")
        for n in range(3):
            for c in range(4):
                x, y = ACC + 8 * n + c, ACC + 8 * n + c + 4
                A(f"v_add_f32_dpp v{x}, v{x}, v{x} row_half_mirror row_mask:0xf bank_mask:0x5")
                A(f"v_add_f32_dpp v{x}, v{y}, v{y} row_half_mirror row_mask:0xf bank_mask:0xa")
        k.dpp("v_add_f32", vLs, "quad_perm:[2,3,0,1]")
        for n in range(3):
            for c in range(2):
                x, y = ACC + 8 * n + c, ACC + 8 * n + c + 2
                A(f"v_cndmask_b32 v{x+4}, v{y}, v{x}, s[{sM1}:{sM1+1}]")
                A(f"v_cndmask_b32 v{x}, v{x}, v{y}, s[{sM1}:{sM1+1}]")
        k.dpp("v_add_f32", vLs, "row_half_mirror")
        for n in range(3):
            for c in range(2):
                x = ACC + 8 * n + c
                A(f"v_add_f32_dpp v{x}, v{x+4}, v{x} quad_perm:[2,3,0,1] row_mask:0xf bank_mask:0xf")
        for n in range(3):
            x, y = ACC + 8 * n, ACC + 8 * n + 1
            A(f"v_cndmask_b32 v{x+4}, v{y}, v{x}, s[{sM0}:{sM0+1}]")
            A(f"v_cndmask_b32 v{x}, v{x}, v{y}, s[{sM0}:{sM0+1}]")
        A(f"v_lshl_add_u32 v{vT1}, v{vL}, 4, s{sT1}")
        A(f"s_lshl_b32 s{sT0}, s{sT0}, 4")
        for n in range(3):
            x = ACC + 8 * n
            A(f"v_add_f32_dpp v{D+n}, v{x+4}, v{x} quad_perm:[1,0,3,2] row_mask:0xf bank_mask:0xf")
        A(f"v_mov_b32 v{S}, v{vT0}")
        A(f"v_mov_b32 v{S+1}, v{vLs}")
        A(f"v_mov_b32 v{S+2}, s{sPairSt}")
        A(f"v_mov_b32 v{vT0}, s{sT0}")
        A(f"ds_write_b128 v{vT1}, v[{D}:{D+3}] offset:{L_REC}")
        k.set_exec(1)
        A(f"ds_write_b128 v{vT0}, v[{S}:{S+3}] offset:{L_RHD}")
        k.set_exec(-1)
        A(f"s_add_u32 s{sSlot}, s{sSlot}, 1")

    def reset_state():
        A(f"v_mov_b32 v{vM}, {NEGBIG}")
        A(f"v_mov_b32 v{vLs}, 0")
        for i in range(24):
            A(f"v_mov_b32 v{ACC+i}, 0")

    def load_q():
        A(f"s_lshl_b32 s{sT0}, s{sPairCur}, 9")
        A(f"v_add_u32 v{vT0}, s{sT0}, v{vQa}")
        for n in range(3):
            A(f"ds_read_b128 v[{QF+4*n}:{QF+4*n+3}], v{vT0} offset:{L_QH+128*n}")
        A(f"s_mov_b32 s{sPairSt}, s{sPairCur}")

    uid = [0]

    def check_pair(x):
        uid[0] += 1
        A(f"s_cmp_eq_u32 s{sPair[x]}, s{sPairSt}")
        A(f"s_cbranch_scc1 L_same{uid[0]}")
        A(f"s_mov_b32 s{sPairCur}, s{sPair[x]}")
        A(f"s_call_b64 s[{sRet}:{sRet+1}], L_switch")
        LB(f"same{uid[0]}")

    A(f"s_sub_u32 s{sWs}, s{sW}, 4")
    A(f"v_and_b32 v{vT0}, 7, v{vL}")
    A(f"v_lshrrev_b32 v{vT1}, 3, v{vL}")
    A(f"v_mul_u32_u24 v{vKoff}, 384, v{vT0}")
    A(f"v_lshl_add_u32 v{vKoff}, v{vT1}, 4, v{vKoff}")
    A(f"s_lshr_b32 s{sPairCur}, s{sJ}, 1")
    A(f"s_mul_i32 s{sHoff}, s{sH}, 3145728")
    A(f"s_mul_i32 s{sStat}, s{sPairCur}, 100663296")
    A(f"s_add_u32 s{sStat}, s{sStat}, s{sHoff}")
    A(f"s_and_b32 s{sT0}, s{sJ}, 1")
    A(f"s_lshl_b32 s{sT0}, s{sT0}, 2")
    A(f"s_add_u32 s{sT0}, s{sT0}, s{sWs}")
    A(f"s_mul_i32 s{sT0}, s{sT0}, {NS*6144}")
    A(f"s_add_u32 s{sStat}, s{sStat}, s{sT0}")
    A("s_waitcnt lgkmcnt(0)")
    A(f"s_load_dword s{sTag}, s[{sWS}:{sWS+1}], {W_GEN}")
    k.srd(rK, sKp, 402653184)
    k.srd(rV, sVp, 402653184)
    A("s_barrier")
    if noq:
        A("s_barrier")
    order = [2 + i for i in range(NPRE)] + [0, 1]
    for x in order:
        loads(kreg(x), rK, sStat)
        loads(vreg(x), rV, sStat)
        A(f"s_add_u32 s{sStat}, s{sStat}, 6144")
    A(f"v_lshrrev_b32 v{vQa}, 4, v{vL}")
    A(f"v_lshlrev_b32 v{vQa}, 5, v{vQa}")
    A(f"v_and_b32 v{vT1}, 1, v{vL}")
    A(f"v_lshl_add_u32 v{vQa}, v{vT1}, 4, v{vQa}")
    A(f"v_mov_b32 v{vOne}, 1")
    A(f"s_mul_i32 s{sT0}, s{sH}, {qstride}")
    A(f"s_add_u32 s{sT0}, s{sT0}, {W_QCNT}")
    A(f"v_mov_b32 v{vCa}, s{sT0}")
    A(f"s_mov_b32 s{sPair[0]}, s{sPairCur}")
    A(f"s_mov_b32 s{sPair[1]}, s{sPairCur}")
    A(f"s_mov_b32 s{sRem}, {NS - 2 - NPRE}")
    A(f"s_mov_b32 s{sSlot}, 0")
    A(f"s_mov_b32 s{sM1}, 0xcccccccc")
    A(f"s_mov_b32 s{sM1+1}, 0xcccccccc")
    A(f"s_mov_b32 s{sM0}, 0xaaaaaaaa")
    A(f"s_mov_b32 s{sM0+1}, 0xaaaaaaaa")
    reset_state()
    A("s_waitcnt lgkmcnt(0)")
    A(f"s_add_u32 s{sTag}, s{sTag}, 1")
    stamp(1)
    if not noq:
        A("s_barrier")
    load_q()
    A("s_waitcnt lgkmcnt(0)")
    stamp(2)
    for i in range(NPRE):
        rem = 12 * (NPRE + 2 - i)
        A(f"s_waitcnt vmcnt({rem-6})")
        k_tile(2 + i)
        A("s_nop 7")
        softmax()
        A(f"s_waitcnt vmcnt({rem-12})")
        v_tile(2 + i)
    LB("loop")
    for x in range(2):
        A("s_waitcnt vmcnt(18)")
        check_pair(x)
        k_tile(x)
        A(f"s_sub_u32 s{sRem}, s{sRem}, 1")
        A(f"s_cmp_gt_i32 s{sRem}, 1")
        A(f"s_cbranch_scc0 L_dyn{x}")
        A(f"s_mov_b32 s{sNxt}, s{sStat}")
        A(f"s_add_u32 s{sStat}, s{sStat}, 6144")
        LB(f"dynret{x}")
        loads(kreg(x), rK, sNxt)
        softmax()
        A("s_waitcnt vmcnt(18)")
        v_tile(x)
        loads(vreg(x), rV, sNxt)
    A("s_branch L_loop")
    for x in range(2):
        LB(f"dyn{x}")
        A(f"s_mov_b32 s{sNxt}, s{sStat}")
        A(f"s_add_u32 s{sStat}, s{sStat}, 6144")
        A(f"s_cmp_ge_i32 s{sRem}, 0")
        A(f"s_cbranch_scc1 L_claim{x}")
        A(f"v_readfirstlane_b32 s{sT0}, v{vClaim[x]}")
        A("s_nop 3")
        A(f"s_cmp_ge_u32 s{sT0}, {NPOOL}")
        A(f"s_cbranch_scc1 L_last{x}")
        A(f"s_lshr_b32 s{sPair[x]}, s{sT0}, {LDP}")
        A(f"s_and_b32 s{sT0}, s{sT0}, {DP-1}")
        A(f"s_add_u32 s{sT0}, s{sT0}, {512-DP}")
        A(f"s_mul_i32 s{sT0}, s{sT0}, 6144")
        A(f"s_mul_i32 s{sNxt}, s{sPair[x]}, 100663296")
        A(f"s_add_u32 s{sNxt}, s{sNxt}, s{sHoff}")
        A(f"s_add_u32 s{sNxt}, s{sNxt}, s{sT0}")
        LB(f"claim{x}")
        k.set_exec(1)
        A(f"global_atomic_add v{vClaim[x]}, v{vCa}, v{vOne}, s[{sWS}:{sWS+1}] sc0")
        k.set_exec(-1)
        A(f"s_branch L_dynret{x}")
    LB("switch")
    flush()
    lds_wait4("swrdy", vT1, vT0)
    load_q()
    reset_state()
    A("s_waitcnt lgkmcnt(0)")
    A(f"s_setpc_b64 s[{sRet}:{sRet+1}]")
    for x in range(2):
        y = 1 - x
        LB(f"last{x}")
        stamp(3)
        A("s_nop 3")
        softmax()
        A("s_waitcnt vmcnt(12)")
        v_tile(x)
        A("s_waitcnt vmcnt(6)")
        check_pair(y)
        k_tile(y)
        A("s_nop 7")
        softmax()
        A("s_waitcnt vmcnt(0)")
        v_tile(y)
        if x == 0:
            A("s_branch L_fin")
    LB("fin")
    flush()
    vRa, vRhh = QF, QF + 2
    A(f"s_lshl_b32 s{sT0}, s{sH}, 2")
    A(f"s_add_u32 s{sT0}, s{sT0}, s{sWs}")
    A(f"s_lshl_b32 s{sT0}, s{sT0}, 3")
    A(f"s_add_u32 s{sT0}, s{sT0}, s{sJ}")
    A(f"s_lshl_b32 s{sT1}, s{sT0}, 10")
    A(f"s_add_u32 s{sT1}, s{sT1}, {W_REC}")
    A(f"v_lshl_add_u32 v{vRa}, v{vL}, 4, s{sT1}")
    A(f"s_lshl_b32 s{sT1}, s{sT0}, 7")
    A(f"s_add_u32 s{sT1}, s{sT1}, {W_RH}")
    A(f"v_lshl_add_u32 v{vRhh}, v{vL}, 4, s{sT1}")
    A(f"v_min_u32 v{vT0}, 19, v{vL}")
    A(f"v_lshlrev_b32 v{vT0}, 4, v{vT0}")
    A(f"v_lshlrev_b32 v{vT1}, 4, v{vL}")
    A(f"v_cmp_gt_u32 s[{sM0}:{sM0+1}], 20, v{vL}")
    A(f"v_mov_b32 v{vM}, {NEGBIG}")
    A("s_waitcnt lgkmcnt(0)")
    A("s_barrier")
    stamp(4)
    C("==== WG merge: stream wave w handles pair w ====")
    A(f"ds_read_b128 v[{S}:{S+3}], v{vT0} offset:{L_RHD}")
    for i in range(14):
        A(f"ds_read_b128 v[{MG+4*i}:{MG+4*i+3}], v{vT1} offset:{L_REC+1024*i}")
    A("s_waitcnt lgkmcnt(14)")
    A(f"v_cmp_eq_u32 vcc, s{sWs}, v{S+2}")
    A(f"s_and_b64 vcc, vcc, s[{sM0}:{sM0+1}]")
    for i in range(14, 20):
        A(f"ds_read_b128 v[{MG+4*i}:{MG+4*i+3}], v{vT1} offset:{L_REC+1024*i}")
    A(f"v_cndmask_b32 v{vM}, v{vM}, v{S}, vcc")
    C("records live in lanes 0..19: reduce rows 0,1 only")
    k.butterfly("v_max_f32", [vM], 4)
    A("s_nop 0")
    A(f"v_readlane_b32 s{sT0}, v{vM}, 0")
    A(f"v_readlane_b32 s{sT1}, v{vM}, 16")
    A("s_nop 0")
    A(f"v_mov_b32 v{vM}, s{sT0}")
    A(f"v_max_f32 v{vM}, s{sT1}, v{vM}")
    A(f"v_sub_f32 v{vAl}, v{S}, v{vM}")
    A(f"v_mul_f32 v{vAl}, {LOG2E}, v{vAl}")
    A(f"v_exp_f32 v{vAl}, v{vAl}")
    A("s_nop 0")
    A(f"v_cndmask_b32 v{vAl}, 0, v{vAl}, vcc")
    A(f"v_mul_f32 v{vLs}, v{vAl}, v{S+1}")
    ctr = ["quad_perm:[1,0,3,2]", "quad_perm:[2,3,0,1]", "row_half_mirror", "row_mirror"]
    for i in range(20):
        A(f"v_readlane_b32 s{sWt+i}, v{vAl}, {i}")
        if i % 4 == 2 and i // 4 < 4:
            k.dpp("v_add_f32", vLs, ctr[i // 4])
    A(f"v_readlane_b32 s{sT0}, v{vLs}, 0")
    A(f"v_readlane_b32 s{sT1}, v{vLs}, 16")
    A("s_waitcnt lgkmcnt(0)")
    A(f"v_pk_mul_f32 v[{ACC}:{ACC+1}], v[{MG}:{MG+1}], s[{sWt}:{sWt+1}] op_sel_hi:[1,0]")
    A(f"v_mul_f32 v{ACC+2}, s{sWt}, v{MG+2}")
    A(f"v_mov_b32 v{ACC+9}, s{sT0}")
    A(f"v_add_f32 v{ACC+9}, s{sT1}, v{ACC+9}")
    A(f"v_mov_b32 v{ACC+8}, v{vM}")
    xor3(ACC + 10, f"v{vM}", f"v{ACC+9}", f"s{sTag}")
    for i in range(1, 20):
        k.pkfma(ACC, MG + 4 * i, sWt + i, pre="s")
        A(f"v_fmac_f32 v{ACC+2}, s{sWt+i}, v{MG+4*i+2}")
    xor3(ACC + 3, f"v{ACC}", f"v{ACC+1}", f"v{ACC+2}")
    A(f"v_xor_b32 v{ACC+3}, s{sTag}, v{ACC+3}")
    A(f"global_store_dwordx4 v{vRa}, v[{ACC}:{ACC+3}], s[{sWS}:{sWS+1}] {SC}")
    k.set_exec(0xff)
    A(f"global_store_dwordx4 v{vRhh}, v[{ACC+8}:{ACC+11}], s[{sWS}:{sWS+1}] {SC}")
    k.set_exec(-1)
    stamp(5)
    write_stamps(MG, vT1)
    LB("end")
    A("s_endpgm")
    return k, (256, 256), L_TOTAL


def build(stamps=False, **kw):
    k2, r2, l2 = build_main(stamps, **kw)
    txt = HEADER
    txt += f"; @launch grid=(256,1,1) block=(512,1,1) lds={l2}\n"
    txt += '.amdgcn_target "amdgcn-amd-amdhsa--gfx950"\n.text\n'
    txt += k2.text()
    txt += '.section .rodata,"a"\n'
    txt += k2.desc(*r2)
    return txt


if __name__ == "__main__":
    out = sys.argv[1] if len(sys.argv) > 1 else f"cdna_kernels/{NAME}.s"
    stamps = sys.argv[2] if len(sys.argv) > 2 and sys.argv[2] != "-" else False
    kw = {}
    for a in sys.argv[3:]:
        n, v = a.split("=")
        kw[n] = int(v)
    open(out, "w").write(build(stamps, **kw))
    print("wrote", out)
```

```python
import sys
from gen_v1 import HEADER, NAME
from gen_v2 import K, load_kernargs, SCALE, LOG2E, NEGBIG
from gen_v2 import sX, sKp, sVp, sWQp, sWOp, sW1p, sB1p, sW2p, sB2p, sOUT, sDBG, sWS

W_GEN = 0x0
W_QCNT = 0x800000
W_RH = 0xE0000
W_FR = 0x20000
W_YA = 0x400000
W_REC = 0x100000
W_QC = 0x200000
W_YB = 0x240000
W_QP = 0x300000
W_STAMP = 0x1000000
SPIN = 0x80000


def build_main(stamps=False, DP=64, NPRE=2, mimic=1, hsleep=1, qsleep=32, nmiss=2, pre1=0, pre2=0, noq=0, stop=0, ysleep=1, qstride=4352, stnt=0, ldnt=0, fsleep=200, dbg=0, ilv=4, rot=1, bar1=0, early=0, ymiss=1, esleep=4, alias=0, n1=32, g1=4, n2=32, g2=2):
    SCS = "sc1 nt" if stnt else "sc1"
    SCL = "sc1 nt" if ldnt else "sc1"
    SC = "sc1"
    k = K(f"{NAME}_kernel")
    k.lab = lambda s: f"L_{s}"
    k.LB = lambda s: k.L.append(f"L_{s}:")
    A, LB, C = k.A, k.LB, k.C
    sT0, sT1, sT2, sT3 = k.sT
    NS = (512 - DP) // 8
    LDP = DP.bit_length() - 1
    NPOOL = 4 * DP
    sW, sH, sJ = 3, 4, 5
    sRem, sStat, sNxt = 6, 7, 12
    sPairCur, sPairSt, sSlot, sHoff = 13, 14, 42, 43
    rK, rV = 44, 48
    sPair = [52, 53]
    sRet = 54
    sWt = 56
    sTm = 76
    sTag = 78
    sTagY = 94
    sOB = 95
    sSpin = 79
    rW = 80
    sOff = 84
    sWs = 85
    sM1, sM0 = 86, 88
    sRet2 = 92
    sTs = 96
    L_QH = 0
    L_SYNC = 2048
    L_RHD = 2112
    L_OB = 2560
    L_REC = 4096
    L_XN = L_REC + 20480
    L_WT = 32768
    L_TOTAL = L_WT + 65536
    boff = [0, 128, 256, 3072, 3200, 3328]
    in_service = [True]

    def stamp(i, mode="stamps"):
        if stamps and (mode == stamps or (mode == "stamps" and (i == 0 or not in_service[0]))):
            A(f"s_memrealtime s[{sTm}:{sTm+1}]")
            A("s_waitcnt lgkmcnt(0)")
            A(f"s_mov_b32 s{sTs+i}, s{sTm}")

    def write_stamps(tmp, vA):
        if stamps and dbg:
            if in_service[0]:
                C("debug: WGs 0,40,85,130 wave 0 report (t1,t3,t5) - t0 and xcc")
                A(f"s_cmp_eq_u32 s{sW}, 0")
                A("s_cbranch_scc0 L_nodbg")
                A(f"s_mul_i32 s{sT1}, s2, 1457")
                A(f"s_lshr_b32 s{sT1}, s{sT1}, 16")
                A(f"s_mul_i32 s{sT3}, s{sT1}, 45")
                A(f"s_cmp_eq_u32 s{sT3}, s2")
                A("s_cbranch_scc0 L_nodbg")
                A(f"s_cmp_lt_u32 s{sT1}, 4")
                A("s_cbranch_scc0 L_nodbg")
                A(f"s_getreg_b32 s{sT2}, hwreg(HW_REG_XCC_ID)")
                A(f"s_lshl_b32 s{sT1}, s{sT1}, 4")
                for n, i in enumerate((1, 3, 5)):
                    A(f"s_sub_u32 s{sT3}, s{sTs+i}, s{sTs}")
                    A(f"v_mov_b32 v{tmp+n}, s{sT3}")
                A(f"v_mov_b32 v{tmp+3}, s{sT2}")
                A(f"v_mov_b32 v{vA}, s{sT1}")
                k.set_exec(1)
                A(f"global_store_dwordx4 v{vA}, v[{tmp}:{tmp+3}], s[{sDBG}:{sDBG+1}]")
                k.set_exec(-1)
                LB("nodbg")
        elif stamps:
            A(f"s_getreg_b32 s{sT2}, hwreg(HW_REG_XCC_ID)")
            A(f"s_lshl_b32 s{sT1}, s2, 3")
            A(f"s_add_u32 s{sT1}, s{sT1}, s{sW}")
            A(f"s_lshl_b32 s{sT1}, s{sT1}, 5")
            A(f"s_add_u32 s{sT1}, s{sT1}, {W_STAMP}")
            for i in range(6):
                A(f"v_mov_b32 v{tmp+i}, s{sTs+i}")
            A(f"v_mov_b32 v{tmp+6}, s{sT2}")
            A(f"v_mov_b32 v{tmp+7}, 0x12345678")
            A(f"v_mov_b32 v{vA}, s{sT1}")
            k.set_exec(1)
            A(f"global_store_dwordx4 v{vA}, v[{tmp}:{tmp+3}], s[{sWS}:{sWS+1}]")
            A(f"global_store_dwordx4 v{vA}, v[{tmp+4}:{tmp+7}], s[{sWS}:{sWS+1}] offset:16")
            k.set_exec(-1)

    def xor3(d, a, b, c):
        A(f"v_bitop3_b32 v{d}, {a}, {b}, {c} bitop3:0x96")

    def spin_tail(loop, sleep=None):
        if sleep:
            A(f"s_sleep {sleep}")
        A(f"s_sub_u32 s{sSpin}, s{sSpin}, 1")
        A(f"s_cmp_lg_u32 s{sSpin}, 0")
        A(f"s_cbranch_scc1 L_{loop}")

    def lds_wait4(tagl, vA, vD, off=0, n=4, sleep=4):
        A(f"v_mov_b32 v{vA}, {L_SYNC}")
        A(f"s_mov_b32 s{sSpin}, {SPIN*16}")
        LB(tagl)
        A(f"ds_read_b32 v{vD}, v{vA} offset:{off}")
        A("s_waitcnt lgkmcnt(0)")
        A(f"v_readfirstlane_b32 s{sT0}, v{vD}")
        A(f"s_sub_u32 s{sSpin}, s{sSpin}, 1")
        A(f"s_cselect_b32 s{sT0}, {n}, s{sT0}")
        A(f"s_cmp_ge_u32 s{sT0}, {n}")
        if sleep:
            A(f"s_cbranch_scc1 L_{tagl}ok")
            A(f"s_sleep {sleep}")
            A(f"s_branch L_{tagl}")
        else:
            A(f"s_cbranch_scc0 L_{tagl}")
        LB(tagl + "ok")

    vL, vT0, vT1 = 1, 3, 4
    A("s_cmp_ge_u32 s2, 256")
    A("s_cbranch_scc1 L_end")
    stamp(0)
    load_kernargs(k)
    A(f"v_and_b32 v{vL}, 63, v0")
    A(f"v_lshrrev_b32 v{vT0}, 6, v0")
    A(f"s_mov_b32 s{k.sMsk}, 0xffff0000")
    A(f"v_readfirstlane_b32 s{sW}, v{vT0}")
    A(f"s_lshr_b32 s{sH}, s2, 3")
    A(f"s_and_b32 s{sJ}, s2, 7")
    A(f"s_cmp_ge_u32 s{sW}, 4")
    A("s_cbranch_scc1 L_stream")
    C("================= service waves (0..3) =================")
    vOff, vXa, vXb, vOne_s = 2, 5, 6, 7
    a = 8
    k.TP = 16
    k.ntp = 2
    XR = 20
    XC = 40
    X = 44
    ACC = 84
    WR = 116
    E = 156
    QL = 164
    QK = 196
    B1R = 204
    FXR = 206
    A("s_setprio 3")
    A(f"v_lshrrev_b32 v{vT0}, 3, v{vL}")
    A(f"v_and_b32 v{vT1}, 7, v{vL}")
    A(f"s_cmp_eq_u32 s{sW}, 3")
    A(f"s_movk_i32 s{sT0}, 3072")
    A(f"s_cselect_b32 s{sT0}, s{sT0}, 12288")
    A(f"v_mul_lo_u32 v{vOff}, v{vT0}, s{sT0}")
    A(f"v_lshl_add_u32 v{vOff}, v{vT1}, 4, v{vOff}")
    A(f"s_mul_i32 s{sOff}, s{sJ}, 80")
    A(f"s_mul_i32 s{sOff}, s{sOff}, s{sT0}")
    A(f"s_lshl_b32 s{sT3}, s{sT0}, 3")
    A(f"s_mul_i32 s{sT1}, s{sH}, 384")
    A(f"s_lshl_b32 s{sT2}, s{sW}, 7")
    A(f"s_add_u32 s{sT1}, s{sT1}, s{sT2}")
    A(f"s_min_u32 s{sT2}, s{sH}, 23")
    A(f"s_lshl_b32 s{sT2}, s{sT2}, 7")
    A(f"s_cmp_eq_u32 s{sW}, 3")
    A(f"s_cselect_b32 s{sT1}, s{sT2}, s{sT1}")
    A(f"s_add_u32 s{sOff}, s{sOff}, s{sT1}")
    A(f"v_lshrrev_b32 v{vT0}, 4, v{vL}")
    A(f"v_mul_u32_u24 v{vT0}, 1280, v{vT0}")
    A(f"v_and_b32 v{vT1}, 15, v{vL}")
    A(f"v_lshl_add_u32 v{vXa}, v{vT1}, 4, v{vT0}")
    A(f"v_lshl_add_u32 v{a}, v{vT1}, 3, s{sT2}")
    A(f"v_min_u32 v{vT1}, 9, v{vT1}")
    A(f"v_lshl_add_u32 v{vXb}, v{vT1}, 4, v{vT0}")
    A(f"s_mul_i32 s{sT1}, s{sJ}, 160")
    A(f"v_add_u32 v{vXb}, s{sT1}, v{vXb}")
    A(f"v_mov_b32 v{vOne_s}, 1")
    for i in range(32):
        A(f"v_mov_b32 v{ACC+i}, 0")
    A(f"v_mov_b32 v{vT0}, {L_SYNC}")
    if stop:
        A(f"v_mov_b32 v{vT1}, 4")
        A(f"ds_write_b32 v{vT0}, v{vT1}")
    else:
        A(f"ds_write_b32 v{vT0}, v{ACC}")
    A(f"ds_write_b64 v{vT0}, v[{ACC}:{ACC+1}] offset:8")
    A(f"s_cmp_lt_u32 s{sH}, 24")
    A(f"s_cselect_b32 s{rW+2}, 1966080, 0")
    A("s_waitcnt lgkmcnt(0)")
    A(f"s_load_dword s{sTag}, s[{sWS}:{sWS+1}], {W_GEN}")
    for m in range(5):
        A(f"global_load_dwordx4 v[{XR+4*m}:{XR+4*m+3}], v{vXa}, s[{sX}:{sX+1}] offset:{256*m}")
    A(f"global_load_dwordx4 v[{XC}:{XC+3}], v{vXb}, s[{sX}:{sX+1}]")
    A(f"s_cmp_eq_u32 s{sW}, 3")
    A(f"s_cselect_b32 s{rW}, s{sW1p}, s{sWQp}")
    A(f"s_cselect_b32 s{rW+1}, s{sW1p+1}, s{sWQp+1}")
    A(f"s_cselect_b32 s{rW+2}, s{rW+2}, 7864320")
    A(f"s_mov_b32 s{rW+3}, 0x20000")
    for t in range(10):
        if stop != 1:
            A(f"buffer_load_dwordx4 v[{WR+4*t}:{WR+4*t+3}], v{vOff}, s[{rW}:{rW+3}], s{sOff} offen nt")
        if t < 9:
            A(f"s_add_u32 s{sOff}, s{sOff}, s{sT3}")
    A(f"global_load_dwordx2 v[{B1R}:{B1R+1}], v{a}, s[{sB1p}:{sB1p+1}]")
    A(f"s_mul_i32 s{sOB}, s{sH}, 40960")
    A(f"s_add_u32 s{sOB}, s{sOB}, {W_QP}")
    C("queue counter of this octet = 0 (j == 0, wave 0)")
    A(f"s_mul_i32 s{sT0}, s{sH}, {qstride}")
    A(f"s_add_u32 s{sT0}, s{sT0}, {W_QCNT}")
    A(f"v_mov_b32 v{vT0}, s{sT0}")
    A(f"s_or_b32 s{sT0}, s{sJ}, s{sW}")
    A(f"s_cmp_eq_u32 s{sT0}, 0")
    A("s_cbranch_scc0 L_noq")
    k.set_exec(1)
    A(f"global_store_dword v{vT0}, v{ACC}, s[{sWS}:{sWS+1}] {SC}")
    k.set_exec(-1)
    LB("noq")
    C("barrier 1 releases the stream waves")
    if bar1:
        A("s_barrier")
    if noq:
        A("s_barrier")
    A(f"s_mul_i32 s{sT0}, s{sW}, 5120")
    A(f"v_lshl_add_u32 v{vT0}, v{vL}, 4, s{sT0}")
    for i in range(5):
        A(f"ds_write_b128 v{vT0}, v[{ACC}:{ACC+3}] offset:{L_REC+1024*i}")
    A(f"v_mov_b32 v{E}, {NEGBIG}")
    for i in range(1, 4):
        A(f"v_mov_b32 v{E+i}, 0")
    A(f"v_min_u32 v{vT0}, 19, v{vL}")
    A(f"v_lshlrev_b32 v{vT0}, 4, v{vT0}")
    A(f"ds_write_b128 v{vT0}, v[{E}:{E+3}] offset:{L_RHD}")
    if stop == 1:
        A("s_waitcnt vmcnt(0) lgkmcnt(0)")
        A("s_branch L_svc_end")
    C("---- LayerNorm statistics, 16 lanes per batch ----")
    A(f"s_waitcnt vmcnt({11 + 2*pre1})")
    stamp(1, "pro")
    for i in range(20):
        A(f"v_lshlrev_b32 v{X+2*i}, 16, v{XR+i}")
        A(f"v_and_b32 v{X+2*i+1}, s{k.sMsk}, v{XR+i}")
    A(f"v_pk_add_f32 v[{a}:{a+1}], v[{X}:{X+1}], v[{X+2}:{X+3}]")
    A(f"v_pk_add_f32 v[{a+2}:{a+3}], v[{X+4}:{X+5}], v[{X+6}:{X+7}]")
    for i in range(4, 20):
        d = a + 2 * (i & 1)
        A(f"v_pk_add_f32 v[{d}:{d+1}], v[{d}:{d+1}], v[{X+2*i}:{X+2*i+1}]")
    A(f"v_pk_add_f32 v[{a}:{a+1}], v[{a}:{a+1}], v[{a+2}:{a+3}]")
    A(f"v_add_f32 v{a}, v{a}, v{a+1}")
    k.butterfly("v_add_f32", [a], 4)
    A(f"v_mul_f32 v{a}, {-1.0/640.0!r}, v{a}")
    for i in range(20):
        A(f"v_pk_add_f32 v[{X+2*i}:{X+2*i+1}], v[{X+2*i}:{X+2*i+1}], v[{a}:{a+1}] op_sel_hi:[1,0]")
    A(f"v_pk_mul_f32 v[{a+2}:{a+3}], v[{X}:{X+1}], v[{X}:{X+1}]")
    A(f"v_pk_mul_f32 v[{a+4}:{a+5}], v[{X+2}:{X+3}], v[{X+2}:{X+3}]")
    for i in range(2, 20):
        d = a + 2 + 2 * (i & 1)
        A(f"v_pk_fma_f32 v[{d}:{d+1}], v[{X+2*i}:{X+2*i+1}], v[{X+2*i}:{X+2*i+1}], v[{d}:{d+1}]")
    A(f"v_pk_add_f32 v[{a+2}:{a+3}], v[{a+2}:{a+3}], v[{a+4}:{a+5}]")
    A(f"v_add_f32 v{a+2}, v{a+2}, v{a+3}")
    k.butterfly("v_add_f32", [a + 2], 4)
    A(f"v_mul_f32 v{a+2}, {1.0/640.0!r}, v{a+2}")
    k.rnd2(a, a + 2, a + 1)
    A(f"v_add_f32 v{a+2}, 0x3727c5ac, v{a+2}")
    k.rnd1(a + 2, a + 1)
    A(f"v_sqrt_f32 v{a+2}, v{a+2}")
    A("s_waitcnt lgkmcnt(0)")
    for i in range(4):
        A(f"v_lshlrev_b32 v{E+2*i}, 16, v{XC+i}")
        A(f"v_and_b32 v{E+2*i+1}, s{k.sMsk}, v{XC+i}")
    k.rnd1(a + 2, a + 1)
    A(f"v_rcp_f32 v{a+3}, v{a+2}")
    for i in range(8):
        A(f"v_add_f32 v{E+i}, v{E+i}, v{a}")
    for i in range(0, 8, 2):
        k.rnd2(E + i, E + i + 1, a + 1)
    for i in range(8):
        A(f"v_mul_f32 v{a+4}, v{E+i}, v{a+3}")
        A(f"v_fma_f32 v{a+5}, -v{a+4}, v{a+2}, v{E+i}")
        A(f"v_fma_f32 v{E+i}, v{a+5}, v{a+3}, v{a+4}")
    for i in range(0, 8, 2):
        k.rnd2(E + i, E + i + 1, a + 1)
    A(f"s_mul_i32 s{sT0}, s{sW}, 1280")
    A(f"v_and_b32 v{vT1}, 15, v{vL}")
    A(f"v_min_u32 v{vT1}, 9, v{vT1}")
    A(f"v_lshl_add_u32 v{vT1}, v{vT1}, 7, s{sT0}")
    A(f"v_lshrrev_b32 v{vT0}, 4, v{vL}")
    A(f"v_lshl_add_u32 v{vT1}, v{vT0}, 2, v{vT1}")
    for i in range(8):
        A(f"ds_write_b32 v{vT1}, v{E+i} offset:{L_XN+16*i}")
    A(f"v_lshrrev_b32 v{vT0}, 3, v{vL}")
    A(f"v_lshl_add_u32 v{vT0}, v{vT0}, 4, s{sT0}")
    A(f"s_add_u32 s{sTag}, s{sTag}, 1")
    A(f"s_addc_u32 s{sTag}, s{sTag}, 0")
    A(f"s_cmp_eq_u32 s{sTag}, 0x80000001")
    A(f"s_addc_u32 s{sTag}, s{sTag}, 0")
    A(f"s_xor_b32 s{sTagY}, s{sTag}, 0x80000001")
    XN = X
    for t in range(10):
        A(f"ds_read_b128 v[{XN+4*t}:{XN+4*t+3}], v{vT0} offset:{L_XN+128*t}")
    C("granule index 16w + 2e + half, row b = l>>4")
    A(f"v_and_b32 v{vT0}, 7, v{vL}")
    A(f"v_bfe_u32 v{vT1}, v{vL}, 3, 1")
    A(f"v_lshl_add_u32 v{vT0}, v{vT0}, 1, v{vT1}")
    A(f"s_lshl_b32 s{sT0}, s{sW}, 4")
    A(f"v_add_u32 v{vT0}, s{sT0}, v{vT0}")
    A(f"v_lshrrev_b32 v{vT1}, 4, v{vL}")
    A(f"v_lshl_add_u32 v{vT0}, v{vT1}, 6, v{vT0}")
    A(f"s_lshl_b32 s{sT0}, s{sJ}, 12")
    A(f"s_add_u32 s{sT0}, s{sT0}, s{sOB}")
    A(f"s_lshl_b32 s{sT1}, s{sJ}, 10")
    A(f"s_lshl_b32 s{sT2}, s{sW}, 8")
    A(f"s_add_u32 s{sT1}, s{sT1}, s{sT2}")
    A(f"s_add_u32 s{sT1}, s{sT1}, s{sOB}")
    A(f"s_add_u32 s{sT1}, s{sT1}, 32768")
    A(f"v_lshl_add_u32 v{vXa}, v{vT0}, 4, s{sT0}")
    A(f"v_lshl_add_u32 v{vXb}, v{vL}, 2, s{sT1}")
    stamp(1)
    stamp(2, "pro")
    for t in range(10):
        A(f"s_waitcnt vmcnt({10-t+2*pre1 if t < 9 else 0}) lgkmcnt({9-t})")
        if t == 0:
            stamp(3, "pro")
        if t == 9:
            stamp(4, "pro")
        for d in range(4):
            tt = k.unpack(WR + 4 * t + d)
            for b in range(4):
                k.pkfma(ACC + 8 * b + 2 * d, tt, XN + 4 * t + b)
    C("reduce-scatter over lane bits 5,4,3")
    A("s_nop 1")
    for i in range(16):
        A(f"v_permlane32_swap_b32 v{ACC+i}, v{ACC+16+i}")
    for i in range(16):
        A(f"v_add_f32 v{ACC+i}, v{ACC+i}, v{ACC+16+i}")
    A("s_nop 1")
    for i in range(8):
        A(f"v_permlane16_swap_b32 v{ACC+i}, v{ACC+8+i}")
    for i in range(8):
        A(f"v_add_f32 v{ACC+i}, v{ACC+i}, v{ACC+8+i}")
    A("s_nop 1")
    for i in range(4):
        A(f"v_add_f32_dpp v{E+i}, v{ACC+i}, v{ACC+i} row_ror:8 row_mask:0xf bank_mask:0x3")
        A(f"v_add_f32_dpp v{E+i}, v{ACC+4+i}, v{ACC+4+i} row_ror:8 row_mask:0xf bank_mask:0xc")
    A(f"global_store_dwordx4 v{vXa}, v[{E}:{E+3}], s[{sWS}:{sWS+1}] {SCS}")
    xor3(E + 4, f"v{E}", f"v{E+1}", f"v{E+2}")
    xor3(E + 4, f"v{E+4}", f"v{E+3}", f"s{sTag}")
    A(f"global_store_dword v{vXb}, v{E+4}, s[{sWS}:{sWS+1}] {SCS}")
    stamp(2)
    stamp(5, "pro")
    if stop == 2:
        A("s_waitcnt vmcnt(0) lgkmcnt(0)")
        A("s_branch L_svc_end")
    C("addresses: final row FR[h*4+w], LDS row w")
    vFr, vQl = a + 6, a + 7
    A(f"s_lshl_b32 s{sT0}, s{sH}, 2")
    A(f"s_add_u32 s{sT0}, s{sT0}, s{sW}")
    A(f"s_lshl_b32 s{sT0}, s{sT0}, 10")
    A(f"s_add_u32 s{sT0}, s{sT0}, {W_FR}")
    A(f"v_lshl_add_u32 v{vFr}, v{vL}, 4, s{sT0}")
    A(f"s_lshl_b32 s{sT1}, s{sW}, 9")
    A(f"v_lshl_add_u32 v{vQl}, v{vL}, 3, s{sT1}")
    A(f"s_mov_b32 s{sSpin}, {SPIN}")
    A(f"s_lshr_b32 s{sPairCur}, s{sJ}, 1")
    A(f"s_cmp_eq_u32 s{sPairCur}, s{sW}")
    A("s_cbranch_scc0 L_nonhome")
    C("---- home wave: gather the 8 partial rows ----")
    A(f"s_lshl_b32 s{sT1}, s{sW}, 10")
    A(f"s_add_u32 s{sT0}, s{sOB}, s{sT1}")
    A(f"v_lshl_add_u32 v{vXa}, v{vL}, 4, s{sT0}")
    C("check of granule l: [wg][w' = l>>4][16 b + 8 (l&1) + ((l&15)>>1)]")
    A(f"s_lshl_b32 s{sT2}, s{sW}, 6")
    A(f"s_add_u32 s{sT1}, s{sOB}, s{sT2}")
    A(f"s_add_u32 s{sT1}, s{sT1}, 32768")
    A(f"v_lshrrev_b32 v{vT0}, 4, v{vL}")
    A(f"v_lshl_add_u32 v{vXb}, v{vT0}, 8, s{sT1}")
    A(f"v_and_b32 v{vT0}, 1, v{vL}")
    A(f"v_lshl_add_u32 v{vXb}, v{vT0}, 5, v{vXb}")
    A(f"v_bfe_u32 v{vT0}, v{vL}, 1, 3")
    A(f"v_lshl_add_u32 v{vXb}, v{vT0}, 2, v{vXb}")
    A(f"v_add_u32 v{vT1}, 4096, v{vXb}")
    if qsleep:
        A(f"s_sleep {qsleep}")
    LB("qpoll")
    A(f"v_mov_b32 v{vT0}, v{vXa}")
    for j in range(8):
        if j:
            A(f"v_add_u32 v{vT0}, 4096, v{vT0}")
        A(f"global_load_dwordx4 v[{QL+4*j}:{QL+4*j+3}], v{vT0}, s[{sWS}:{sWS+1}] {SCL}")
        va = vXb if j < 4 else vT1
        A(f"global_load_dword v{QK+j}, v{va}, s[{sWS}:{sWS+1}] offset:{1024*(j%4)} {SCL}")
    for j in range(8):
        A(f"s_waitcnt vmcnt({14-2*j})")
        xor3(a, f"v{QL+4*j}", f"v{QL+4*j+1}", f"v{QL+4*j+2}")
        xor3(a + 1, f"v{QL+4*j+3}", f"v{QK+j}", f"s{sTag}")
        if j == 0:
            A(f"v_xor_b32 v{a+2}, v{a}, v{a+1}")
        else:
            A(f"v_xor_b32 v{a}, v{a}, v{a+1}")
            A(f"v_or_b32 v{a+2}, v{a+2}, v{a}")
    A(f"v_cmp_ne_u32 vcc, 0, v{a+2}")
    A("s_cbranch_vccz L_qok")
    spin_tail("qpoll")
    LB("qok")
    for j in range(1, 8):
        A(f"v_pk_add_f32 v[{QL}:{QL+1}], v[{QL}:{QL+1}], v[{QL+4*j}:{QL+4*j+1}]")
        A(f"v_pk_add_f32 v[{QL+2}:{QL+3}], v[{QL+2}:{QL+3}], v[{QL+4*j+2}:{QL+4*j+3}]")
    A(f"v_cvt_pk_bf16_f32 v{QL+4}, v{QL}, v{QL+1}")
    A(f"v_cvt_pk_bf16_f32 v{QL+5}, v{QL+2}, v{QL+3}")
    A(f"ds_write_b64 v{vQl}, v[{QL+4}:{QL+5}] offset:{L_QH}")
    stamp(3)
    if stamps == "stamps":
        A(f"s_sub_u32 s{sTs+1}, {SPIN}, s{sSpin}")
        A(f"s_mul_i32 s{sTs+1}, s{sTs+1}, 100")
        A(f"s_add_u32 s{sTs+1}, s{sTs+1}, s{sTs}")
    A("s_waitcnt lgkmcnt(0)")
    if not noq:
        A("s_barrier")
    A("s_setprio 0")
    C("hid = bf16(relu(bf16(bf16(sum) + b1))^2) on lanes 48..63")
    Hh = QL + 8
    A(f"v_lshlrev_b32 v{Hh}, 16, v{QL+4}")
    A(f"v_and_b32 v{Hh+1}, s{k.sMsk}, v{QL+4}")
    A(f"v_lshlrev_b32 v{Hh+2}, 16, v{QL+5}")
    A(f"v_and_b32 v{Hh+3}, s{k.sMsk}, v{QL+5}")
    A(f"v_lshlrev_b32 v{Hh+4}, 16, v{B1R}")
    A(f"v_and_b32 v{Hh+5}, s{k.sMsk}, v{B1R}")
    A(f"v_lshlrev_b32 v{Hh+6}, 16, v{B1R+1}")
    A(f"v_and_b32 v{Hh+7}, s{k.sMsk}, v{B1R+1}")
    for i in range(4):
        A(f"v_add_f32 v{Hh+i}, v{Hh+i}, v{Hh+4+i}")
    k.rnd2(Hh, Hh + 1, a)
    k.rnd2(Hh + 2, Hh + 3, a)
    for i in range(4):
        A(f"v_cmp_gt_f32 vcc, v{Hh+i}, 0")
        A("s_nop 1")
        A(f"v_cndmask_b32 v{Hh+i}, 0, v{Hh+i}, vcc")
    for i in range(4):
        A(f"v_mul_f32 v{Hh+i}, v{Hh+i}, v{Hh+i}")
    k.set_exec(0xffff << 48)
    A(f"v_cvt_pk_bf16_f32 v{QL+4}, v{Hh}, v{Hh+1}")
    A(f"v_cvt_pk_bf16_f32 v{QL+5}, v{Hh+2}, v{Hh+3}")
    A(f"ds_write_b64 v{vQl}, v[{QL+4}:{QL+5}] offset:{L_QH}")
    k.set_exec(-1)
    xor3(QL + 6, f"v{QL+4}", f"v{QL+5}", f"s{sTag}")
    A(f"s_bitcmp1_b32 s{sJ}, 0")
    A("s_cbranch_scc1 L_rowdone")
    A(f"global_store_dwordx4 v{vFr}, v[{QL+4}:{QL+7}], s[{sWS}:{sWS+1}] {SCS}")
    A("s_branch L_rowdone")
    C("---- other waves: fetch the finished row later ----")
    LB("nonhome")
    A("s_waitcnt lgkmcnt(0)")
    if not noq:
        A("s_barrier")
    A("s_setprio 0")
    for i in range(fsleep // 100):
        A("s_sleep 100")
    A(f"s_sleep {fsleep % 100}")
    LB("fpoll")
    A(f"global_load_dwordx4 v[{QL+4}:{QL+7}], v{vFr}, s[{sWS}:{sWS+1}] {SCL}")
    A("s_waitcnt vmcnt(0)")
    xor3(a, f"v{QL+4}", f"v{QL+5}", f"v{QL+6}")
    A(f"v_cmp_ne_u32 vcc, s{sTag}, v{a}")
    A("s_cbranch_vccz L_fok")
    spin_tail("fpoll", sleep=32)
    LB("fok")
    A(f"ds_write_b64 v{vQl}, v[{QL+4}:{QL+5}] offset:{L_QH}")
    stamp(3)
    LB("rowdone")
    stamp(1, "svc")
    if stop == 3:
        A("s_waitcnt vmcnt(0) lgkmcnt(0)")
        A("s_branch L_svc_end")
    C("weight lines -> registers -> LDS image [256 rows][128 B]; pass 1 only for j < 2")
    G = 20
    FB = 116
    F2 = 212
    AF = 228
    DD = 8
    vG = vOff
    rW2 = 44
    A(f"v_lshrrev_b32 v{vT0}, 3, v{vL}")
    A(f"v_mul_u32_u24 v{vG}, {1280-128}, v{vT0}")
    A(f"v_lshl_add_u32 v{vG}, v{vL}, 4, v{vG}")
    k.srd(rW, sWOp, 7864320)
    k.srd(rW2, sW2p, 1966080)
    A(f"s_lshl_b32 s{sT0}, s{sH}, 2")
    A(f"s_add_u32 s{sT0}, s{sT0}, s{sW}")
    A(f"s_lshl_b32 s{sT2}, s{sJ}, 7")
    A(f"s_mul_i32 s{sOff}, s{sT0}, {48*1280}")
    A(f"s_add_u32 s{sOff}, s{sOff}, s{sT2}")
    A(f"s_mul_i32 s{sT3}, s{sT0}, {16*1280}")
    A(f"s_add_u32 s{sT3}, s{sT3}, s{sT2}")
    A(f"s_mul_i32 s{sT0}, s{sW}, {48*128}")
    A(f"s_add_u32 s{sT0}, s{sT0}, {L_WT}")
    A(f"v_lshl_add_u32 v{vXa}, v{vL}, 4, s{sT0}")
    A(f"s_lshl_b32 s{sT0}, s{sW}, 11")
    A(f"s_add_u32 s{sT0}, s{sT0}, {L_WT + 192*128}")
    A(f"v_lshl_add_u32 v{vXb}, v{vL}, 4, s{sT0}")
    for p in range(2):
        if p == 1:
            A(f"s_cmp_lt_u32 s{sJ}, 2")
            A("s_cbranch_scc0 L_wl_done")
        for i in range(6):
            A(f"s_add_u32 s{sT0}, s{sOff}, {8*1280*i}")
            A(f"buffer_load_dwordx4 v[{G+4*i}:{G+4*i+3}], v{vG}, s[{rW}:{rW+3}], s{sT0} offen offset:{1024*p} nt")
        for i in range(2):
            A(f"s_add_u32 s{sT0}, s{sT3}, {8*1280*i}")
            A(f"buffer_load_dwordx4 v[{G+24+4*i}:{G+24+4*i+3}], v{vG}, s[{rW2}:{rW2+3}], s{sT0} offen offset:{1024*p} nt")
        for i in range(6):
            A(f"s_waitcnt vmcnt({7-i})")
            A(f"ds_write_b128 v{vXa}, v[{G+4*i}:{G+4*i+3}] offset:{32768*p+1024*i}")
        for i in range(2):
            A(f"s_waitcnt vmcnt({1-i})")
            A(f"ds_write_b128 v{vXb}, v[{G+24+4*i}:{G+24+4*i+3}] offset:{32768*p+1024*i}")
        A("s_waitcnt lgkmcnt(0)")
    LB("wl_done")
    A(f"v_mov_b32 v{vT1}, {L_SYNC}")
    k.set_exec(1)
    A(f"ds_add_u32 v{vT1}, v{vOne_s}")
    k.set_exec(-1)
    C("transpose-read address: (8g + r)*128 + c*8 + w*32")
    A(f"v_lshrrev_b32 v{vT0}, 4, v{vL}")
    A(f"v_lshlrev_b32 v{vT0}, 3, v{vT0}")
    A(f"v_bfe_u32 v{vG}, v{vL}, 2, 2")
    A(f"v_add_lshl_u32 v{vG}, v{vG}, v{vT0}, 7")
    A(f"v_and_b32 v{vT0}, 3, v{vL}")
    A(f"v_lshl_add_u32 v{vG}, v{vT0}, 3, v{vG}")
    A(f"s_lshl_b32 s{sT0}, s{sW}, 5")
    A(f"s_add_u32 s{sT0}, s{sT0}, {L_WT}")
    A(f"v_add_u32 v{vG}, s{sT0}, v{vG}")
    lds_wait4("rdy", vT1, vT0)
    stamp(2, "svc")
    if stop == 4:
        A("s_waitcnt vmcnt(0) lgkmcnt(0)")
        A("s_branch L_svc_end")

    def frags(nkb, dst, row0, p):
        for kb in range(nkb):
            for hh in range(2):
                r = dst + 4 * kb + 2 * hh
                A(f"ds_read_b64_tr_b16 v[{r}:{r+1}], v{vG} offset:{(row0+32*kb+4*hh)*128 + 32768*p}")
    frags(2, F2, 192, 0)
    frags(6, FB, 0, 0)
    A(f"s_cmp_lt_u32 s{sJ}, 2")
    A("s_cbranch_scc0 L_g1")
    frags(2, F2 + 8, 192, 1)
    frags(6, FB + 24, 0, 1)
    LB("g1")
    C("A fragment address: batch row (l&15)>>2, k offset 16*(l>>4) bytes -> D lane group g = batch g")
    vAf = vXa
    vYa = vXb
    A(f"v_bfe_u32 v{vT0}, v{vL}, 2, 2")
    A(f"v_lshrrev_b32 v{vT1}, 4, v{vL}")
    A(f"v_lshlrev_b32 v{vT1}, 4, v{vT1}")
    A(f"v_lshl_add_u32 v{vAf}, v{vT0}, 9, v{vT1}")
    for kb in range(2):
        A(f"ds_read_b128 v[{AF+4*kb}:{AF+4*kb+3}], v{vAf} offset:{L_QH+384+64*kb}")
    A(f"v_mul_u32_u24 v{vAf}, 384, v{vT0}")
    A(f"v_add_u32 v{vAf}, v{vAf}, v{vT1}")
    C("Y address: [group = 4j + w][h][half][n] x 16 B : lanes 0..31 contiguous")
    A(f"s_lshl_b32 s{sT0}, s{sJ}, 2")
    A(f"s_add_u32 s{sT0}, s{sT0}, s{sW}")
    A(f"s_lshl_b32 s{sT0}, s{sT0}, 10")
    A(f"s_add_u32 s{sT0}, s{sT0}, s{sOB}")
    A(f"v_lshl_add_u32 v{vYa}, v{vL}, 4, s{sT0}")
    A(f"s_mov_b32 s{sM1}, 0xffff0000")
    A(f"s_mov_b32 s{sM1+1}, 0xffff0000")
    A("s_waitcnt lgkmcnt(0)")

    YO = [252, QK]
    C("FFN2 partial B (zero for h >= 24)")
    for p in range(2):
        d = DD + 4 * p
        for kb in range(2):
            c = "0" if kb == 0 else f"v[{d}:{d+3}]"
            f = F2 + p * 8 + 4 * kb
            A(f"v_mfma_f32_16x16x32_bf16 v[{d}:{d+3}], v[{AF+4*kb}:{AF+4*kb+3}], v[{f}:{f+3}], {c}")
    A(f"s_cmp_lt_u32 s{sH}, 24")
    A(f"s_cselect_b32 s{sT0}, -1, 0")
    A(f"v_add_u32 v{QK+4}, 32768, v{vYa}")
    A("s_nop 5")
    for p in range(2):
        A(f"v_and_b32 v{YO[p]+1}, s{sT0}, v{DD+4*p}")
        A(f"v_xor_b32 v{YO[p]+3}, s{sTagY}, v{YO[p]+1}")

    def proj_store(nkb, frag, fstride, tagl):
        for kb in range(nkb):
            for p in range(2):
                d = DD + 4 * p
                c = "0" if kb == 0 else f"v[{d}:{d+3}]"
                f = frag + p * fstride + 4 * kb
                A(f"s_waitcnt lgkmcnt({nkb-1-kb})") if p == 0 else None
                A(f"v_mfma_f32_16x16x32_bf16 v[{d}:{d+3}], v[{AF+4*kb}:{AF+4*kb+3}], v[{f}:{f+3}], {c}")
        A(f"s_cmp_lt_u32 s{sJ}, 2")
        A("s_nop 5")
        for p in range(2):
            if p == 1:
                A(f"s_cbranch_scc0 L_{tagl}")
            A(f"v_mov_b32 v{YO[p]}, v{DD+4*p}")
            A(f"v_xor_b32 v{YO[p]+2}, v{DD+4*p}, v{YO[p]+3}")
            va = vYa if p == 0 else QK + 4
            A(f"global_store_dwordx4 v{va}, v[{YO[p]}:{YO[p]+3}], s[{sWS}:{sWS+1}] {SC}")
        LB(tagl)
    stamp(3, "svc")
    if stop == 5:
        A("s_waitcnt vmcnt(0) lgkmcnt(0)")
        A("s_branch L_svc_end")
    C("---- finaliser task (h < 4, or h < 8 when j < 2): group 4(j + 8(h>>2)) + w, batch h&3 ----")
    sFin = sWs
    vFa = vG
    A(f"s_cmp_lt_u32 s{sJ}, 2")
    A(f"s_cselect_b32 s{sT1}, 8, 4")
    A(f"s_cmp_lt_u32 s{sH}, s{sT1}")
    A(f"s_cselect_b32 s{sFin}, 1, 0")
    A(f"s_cselect_b32 s{sT2}, s{sH}, 0")
    A(f"s_lshr_b32 s{sT0}, s{sT2}, 2")
    A(f"s_lshl_b32 s{sT0}, s{sT0}, 3")
    A(f"s_add_u32 s{sT0}, s{sT0}, s{sJ}")
    A(f"s_lshl_b32 s{sT0}, s{sT0}, 2")
    A(f"s_add_u32 s{sT0}, s{sT0}, s{sW}")
    A(f"s_and_b32 s{sT2}, s{sT2}, 3")
    A(f"s_lshl_b32 s{sT1}, s{sT0}, 10")
    A(f"s_lshl_b32 s{sT3}, s{sT2}, 8")
    A(f"s_add_u32 s{sT1}, s{sT1}, s{sT3}")
    A(f"v_lshrrev_b32 v{vT0}, 4, v{vL}")
    A(f"v_mul_u32_u24 v{vFa}, 40960, v{vT0}")
    A(f"v_add_u32 v{vFa}, s{sT1}, v{vFa}")
    A(f"v_and_b32 v{vT0}, 15, v{vL}")
    A(f"v_lshl_add_u32 v{vFa}, v{vT0}, 4, v{vFa}")
    A(f"s_lshl_b32 s{sT0}, s{sT0}, 5")
    A(f"v_lshl_add_u32 v{vT1}, v{vT0}, 1, s{sT0}")
    A(f"s_mul_i32 s{sT2}, s{sT2}, 1280")
    A(f"v_add_u32 v{FXR+5}, s{sT2}, v{vT1}")
    Yv = G + 40
    Ya = G + 72

    def ysum(ybase, tagl, sleep, nld):
        sMiss = 6
        A(f"s_mov_b32 s{sSpin}, {SPIN}")
        A(f"s_mov_b32 s{sMiss}, 0xff")
        LB(tagl)
        for i in range(nld):
            A(f"s_bitcmp1_b32 s{sMiss}, {i}")
            A(f"s_cbranch_scc0 L_ys{i}")
            A(f"global_load_dwordx4 v[{Yv+4*i}:{Yv+4*i+3}], v{Ya+i}, s[{sWS}:{sWS+1}] {SC}")
            LB(f"ys{i}")
        A("s_waitcnt vmcnt(0)")
        for i in range(nld):
            xor3(a + (i & 1), f"v{Yv+4*i}", f"v{Yv+4*i+1}", f"v{Yv+4*i+2}")
            A(f"v_cmp_ne_u32 vcc, s{sTagY}, v{a+(i&1)}")
            A(f"s_cbranch_vccnz L_yv{i}")
            A(f"s_bitset0_b32 s{sMiss}, {i}")
            LB(f"yv{i}")
        A(f"s_cmp_eq_u32 s{sMiss}, 0")
        A(f"s_cbranch_scc1 L_{tagl}ok")
        if not ymiss:
            A(f"s_mov_b32 s{sMiss}, 0xff")
        spin_tail(tagl, sleep=sleep)
        LB(tagl + "ok")
        for i in range(0, 8, 2):
            A(f"v_pk_add_f32 v[{Yv+4*i}:{Yv+4*i+1}], v[{Yv+4*i}:{Yv+4*i+1}], v[{Yv+4*i+4}:{Yv+4*i+5}]")
        A(f"v_pk_add_f32 v[{Yv}:{Yv+1}], v[{Yv}:{Yv+1}], v[{Yv+8}:{Yv+9}]")
        A(f"v_pk_add_f32 v[{Yv+16}:{Yv+17}], v[{Yv+16}:{Yv+17}], v[{Yv+24}:{Yv+25}]")
        A(f"v_pk_add_f32 v[{Yv}:{Yv+1}], v[{Yv}:{Yv+1}], v[{Yv+16}:{Yv+17}]")
        for op in ("v_permlane16_swap_b32", "v_permlane32_swap_b32"):
            A(f"v_mov_b32 v{Yv+2}, v{Yv}")
            A(f"v_mov_b32 v{Yv+3}, v{Yv+1}")
            A("s_nop 0")
            A(f"{op} v{Yv}, v{Yv+2}")
            A(f"{op} v{Yv+1}, v{Yv+3}")
            A("s_nop 0")
            A(f"v_pk_add_f32 v[{Yv}:{Yv+1}], v[{Yv}:{Yv+1}], v[{Yv+2}:{Yv+3}]")

    for i in range(8):
        A(f"v_add_u32 v{Ya+i}, {W_QP + 4*40960*i}, v{vFa}")
    A(f"s_cmp_eq_u32 s{sFin}, 0")
    A("s_cbranch_scc1 L_nofin1")
    A(f"global_load_ushort v{FXR}, v{FXR+5}, s[{sX}:{sX+1}]")
    A(f"global_load_ushort v{FXR+1}, v{vT1}, s[{sB2p}:{sB2p+1}]")
    A("s_waitcnt vmcnt(0)")
    for i in range(2):
        A(f"v_lshlrev_b32 v{FXR+i}, 16, v{FXR+i}")
    LB("nofin1")
    stamp(5, "svc")
    if stop == 6:
        A("s_waitcnt vmcnt(0) lgkmcnt(0)")
        A("s_branch L_svc_end")
    C("record addresses for batch w")
    vRh, vRd, vRd2, vOl = G + 16, G + 17, G + 18, G + 19
    sLoad, sOk, sHv = 6, 7, 12
    A(f"s_lshl_b32 s{sT0}, s{sH}, 2")
    A(f"s_add_u32 s{sT0}, s{sT0}, s{sW}")
    A(f"s_lshl_b32 s{sT1}, s{sT0}, 10")
    A(f"s_add_u32 s{sT1}, s{sT1}, {W_RH}")
    A(f"v_and_b32 v{vT0}, 7, v{vL}")
    A(f"v_lshl_add_u32 v{vRh}, v{vT0}, 7, s{sT1}")
    A(f"s_lshl_b32 s{sT1}, s{sT0}, 13")
    A(f"s_add_u32 s{sT1}, s{sT1}, {W_REC}")
    A(f"v_lshl_add_u32 v{vRd}, v{vL}, 4, s{sT1}")
    A(f"v_add_u32 v{vRd2}, 4096, v{vRd}")
    A(f"s_mul_i32 s{sT1}, s{sW}, 384")
    A(f"v_lshl_add_u32 v{vOl}, v{vL}, 1, s{sT1}")
    if pre2:
        A(f"s_lshl_b32 s{sT1}, s{sJ}, 10")
        A(f"v_add_u32 v{vT0}, s{sT1}, v{vRd}")
        A(f"global_load_dwordx4 v[{QL}:{QL+3}], v{vT0}, s[{sWS}:{sWS+1}] {SC}")
        A(f"global_load_dwordx4 v[{QL+8}:{QL+11}], v{vYa}, s[{sWS}:{sWS+1}] {SC}")
        A("s_waitcnt vmcnt(0)")
    A(f"s_mov_b32 s{sLoad}, 0")
    A(f"s_mov_b32 s{sOk}, 0")
    if early:
        lds_wait4("nl", vT1, vT0, off=8, n=early, sleep=8)
    A(f"s_mov_b32 s{sSpin}, {SPIN}")
    A("s_setprio 3")
    if not early:
        A("s_barrier")
    stamp(4)
    stamp(1, "epi")
    HD = G + 24
    LB("rpoll")
    A(f"global_load_dwordx4 v[{HD}:{HD+3}], v{vRh}, s[{sWS}:{sWS+1}] {SC}")
    for j in range(8):
        va = vRd if j < 4 else vRd2
        A(f"s_bitcmp1_b32 s{sLoad}, {j}")
        A(f"s_cbranch_scc0 L_rs{j}")
        A(f"global_load_dwordx4 v[{QL+4*j}:{QL+4*j+3}], v{va}, s[{sWS}:{sWS+1}] offset:{1024*(j%4)} {SC}")
        LB(f"rs{j}")
    A("s_waitcnt vmcnt(0)")
    xor3(HD + 4, f"v{HD}", f"v{HD+1}", f"v{HD+2}")
    A(f"v_cmp_eq_u32 vcc, s{sTag}, v{HD+4}")
    A(f"s_and_b32 s{sHv}, vcc_lo, 0xff")
    for j in range(8):
        A(f"s_bitcmp1_b32 s{sLoad}, {j}")
        A(f"s_cbranch_scc0 L_rv{j}")
        xor3(a, f"v{QL+4*j}", f"v{QL+4*j+1}", f"v{QL+4*j+2}")
        A(f"v_xor_b32 v{a}, v{a}, v{QL+4*j+3}")
        A(f"v_cmp_ne_u32 vcc, s{sTag}, v{a}")
        A(f"s_cbranch_vccnz L_rv{j}")
        A(f"s_bitset1_b32 s{sOk}, {j}")
        LB(f"rv{j}")
    A(f"s_and_b32 s{sT0}, s{sOk}, s{sHv}")
    A(f"s_cmp_eq_u32 s{sT0}, 0xff")
    A("s_cbranch_scc1 L_rok")
    A(f"s_bcnt1_i32_b32 s{sT0}, s{sHv}")
    A(f"s_cmp_ge_u32 s{sT0}, {8-nmiss}")
    A(f"s_cselect_b32 s{sLoad}, 0xff, s{sHv}")
    A("s_cbranch_scc1 L_rfast")
    A(f"s_sleep {esleep}")
    LB("rfast")
    A(f"s_andn2_b32 s{sLoad}, s{sLoad}, s{sOk}")
    spin_tail("rpoll", sleep=0)
    LB("rok")
    stamp(3, "epi")
    A(f"v_mov_b32 v{HD+4}, v{HD}")
    k.butterfly("v_max_f32", [HD + 4], 3)
    A(f"v_sub_f32 v{HD+5}, v{HD}, v{HD+4}")
    A(f"v_mul_f32 v{HD+5}, {LOG2E}, v{HD+5}")
    A(f"v_exp_f32 v{HD+5}, v{HD+5}")
    A("s_nop 0")
    A(f"v_mul_f32 v{HD+6}, v{HD+5}, v{HD+1}")
    for j in range(8):
        A(f"v_readlane_b32 s{sWt+j}, v{HD+5}, {j}")
    k.dpp("v_add_f32", HD + 6, "quad_perm:[1,0,3,2]")
    O = HD + 8
    A(f"v_pk_mul_f32 v[{O}:{O+1}], v[{QL}:{QL+1}], s[{sWt}:{sWt+1}] op_sel_hi:[1,0]")
    A(f"v_mul_f32 v{O+2}, s{sWt}, v{QL+2}")
    k.dpp("v_add_f32", HD + 6, "quad_perm:[2,3,0,1]")
    for j in range(1, 8):
        k.pkfma(O, QL + 4 * j, sWt + j, pre="s")
        A(f"v_fmac_f32 v{O+2}, s{sWt+j}, v{QL+4*j+2}")
        if j == 1:
            k.dpp("v_add_f32", HD + 6, "row_half_mirror")
        if j == 2:
            A(f"v_rcp_f32 v{HD+7}, v{HD+6}")
    for i in range(3):
        A(f"v_mul_f32 v{O+4+i}, v{O+i}, v{HD+7}")
    for i in range(3):
        A(f"v_fma_f32 v{O+i}, -v{O+4+i}, v{HD+6}, v{O+i}")
    for i in range(3):
        A(f"v_fma_f32 v{O+i}, v{O+i}, v{HD+7}, v{O+4+i}")
    A(f"v_cvt_pk_bf16_f32 v{O+4}, v{O}, v{O+1}")
    A(f"v_cvt_pk_bf16_f32 v{O+5}, v{O+2}, v{O+2}")
    A(f"ds_write_b16 v{vOl}, v{O+4} offset:{L_OB}")
    A(f"ds_write_b16_d16_hi v{vOl}, v{O+4} offset:{L_OB+128}")
    A(f"ds_write_b16 v{vOl}, v{O+5} offset:{L_OB+256}")
    A("s_waitcnt lgkmcnt(0)")
    A("s_barrier")
    for kb in range(6):
        A(f"ds_read_b128 v[{AF+4*kb}:{AF+4*kb+3}], v{vAf} offset:{L_OB+64*kb}")
    proj_store(6, FB, 24, "ya_done")
    stamp(4, "epi")
    A(f"s_cmp_eq_u32 s{sFin}, 0")
    A("s_cbranch_scc1 L_svc_end")
    ysum(W_YA, "yap", ysleep, 8)
    k.set_exec(0xffff)
    k.rnd2(Yv, Yv + 1, Yv + 2)
    A(f"v_pk_add_f32 v[{Yv}:{Yv+1}], v[{Yv}:{Yv+1}], v[{FXR}:{FXR+1}]")
    k.rnd2(Yv, Yv + 1, Yv + 2)
    A(f"v_add_f32 v{Yv}, v{Yv}, v{Yv+1}")
    A(f"v_cvt_pk_bf16_f32 v{Yv}, v{Yv}, v{Yv}")
    A(f"global_store_short v{FXR+5}, v{Yv}, s[{sOUT}:{sOUT+1}]")
    k.set_exec(-1)
    C("generation bump by (h=0, j=0, w=0)")
    A(f"s_or_b32 s{sT0}, s2, s{sW}")
    A(f"s_cmp_eq_u32 s{sT0}, 0")
    A("s_cbranch_scc0 L_svc_end")
    A(f"v_mov_b32 v{vT0}, {W_GEN}")
    A(f"v_mov_b32 v{vT1}, s{sTag}")
    k.set_exec(1)
    A(f"global_store_dword v{vT0}, v{vT1}, s[{sWS}:{sWS+1}] {SC}")
    k.set_exec(-1)
    LB("svc_end")
    stamp(5)
    stamp(5, "epi")
    write_stamps(QL, vT0)
    A("s_endpgm")
    LB("stream")
    in_service[0] = False
    C("================= stream waves (4..7) =================")
    vKoff, vOne, vM, vLs, vAl, vQa, vCa = 2, 6, 7, 8, 9, 10, 11
    vClaim = [5, 0]
    S = 12
    k.TP = 16
    k.ntp = 4
    D = 16
    QF = 24
    ACC = 36
    SL = 60
    MG = 60

    def kreg(x):
        return SL + 48 * x

    def vreg(x):
        return SL + 48 * x + 24

    def loads(base, srd, so):
        for j in range(6):
            r = base + 4 * j
            A(f"buffer_load_dwordx4 v[{r}:{r+3}], v{vKoff}, s[{srd}:{srd+3}], s{so} offen offset:{boff[j]} nt")

    def k_tile(x):
        s0 = kreg(x)
        Da, Db = D, D + 4
        for n in range(3):
            ca = "0" if n == 0 else f"v[{Da}:{Da+3}]"
            cb = "0" if n == 0 else f"v[{Db}:{Db+3}]"
            A(f"v_mfma_f32_16x16x32_bf16 v[{Da}:{Da+3}], v[{QF+4*n}:{QF+4*n+3}], v[{s0+4*n}:{s0+4*n+3}], {ca}")
            A(f"v_mfma_f32_16x16x32_bf16 v[{Db}:{Db+3}], v[{QF+4*n}:{QF+4*n+3}], v[{s0+12+4*n}:{s0+12+4*n+3}], {cb}")

    def softmax():
        for t in range(2):
            d = D + 4 * t
            A(f"v_add_f32_dpp v{S+t}, v{d+1}, v{d} row_ror:8 row_mask:0xf bank_mask:0x3")
            A(f"v_add_f32_dpp v{S+t}, v{d}, v{d+1} row_ror:8 row_mask:0xf bank_mask:0xc")
        if mimic:
            k.rnd2(S, S + 1, vT0)
        for t in range(2):
            A(f"v_mul_f32 v{S+t}, {SCALE}, v{S+t}")
        if mimic:
            k.rnd2(S, S + 1, vT0)
        A(f"v_max3_f32 v{vT0}, v{vM}, v{S}, v{S+1}")
        A(f"v_sub_f32 v{vAl}, v{vM}, v{vT0}")
        for t in range(2):
            A(f"v_sub_f32 v{S+t}, v{S+t}, v{vT0}")
        A(f"v_mul_f32 v{vAl}, {LOG2E}, v{vAl}")
        for t in range(2):
            A(f"v_mul_f32 v{S+t}, {LOG2E}, v{S+t}")
        A(f"v_exp_f32 v{vAl}, v{vAl}")
        for t in range(2):
            A(f"v_exp_f32 v{S+t}, v{S+t}")
        A(f"v_mov_b32 v{vM}, v{vT0}")
        A(f"v_fma_f32 v{vLs}, v{vLs}, v{vAl}, v{S}")
        for i in range(12):
            k.pkmul(ACC + 2 * i, vAl)
        A(f"v_add_f32 v{vLs}, v{vLs}, v{S+1}")

    def v_tile(x):
        s0 = vreg(x)
        items = [(s0 + 12 * half + 4 * n + d, ACC + 8 * n + 2 * d, S + half)
                 for half in range(2) for n in range(3) for d in range(4)]
        pend = []
        for it in items:
            t = k.unpack(it[0])
            pend.append((it[1], t, it[2]))
            if len(pend) > 2:
                ac, tt, m = pend.pop(0)
                k.pkfma(ac, tt, m)
        for ac, tt, m in pend:
            k.pkfma(ac, tt, m)

    def flush():
        A(f"v_mov_b32 v{vT0}, v{vM}")
        k.butterfly("v_max_f32", [vT0], 3)
        A(f"v_sub_f32 v{vAl}, v{vM}, v{vT0}")
        A(f"v_mul_f32 v{vAl}, {LOG2E}, v{vAl}")
        A(f"v_exp_f32 v{vAl}, v{vAl}")
        A(f"s_mul_i32 s{sT0}, s{sWs}, 5")
        A(f"s_add_u32 s{sT0}, s{sT0}, s{sSlot}")
        A(f"s_lshl_b32 s{sT1}, s{sT0}, 10")
        A(f"v_mul_f32 v{vLs}, v{vLs}, v{vAl}")
        for i in range(12):
            k.pkmul(ACC + 2 * i, vAl)
        k.dpp("v_add_f32", vLs, "quad_perm:[1,0,3,2]")
        for n in range(3):
            for c in range(4):
                x, y = ACC + 8 * n + c, ACC + 8 * n + c + 4
                A(f"v_add_f32_dpp v{x}, v{x}, v{x} row_half_mirror row_mask:0xf bank_mask:0x5")
                A(f"v_add_f32_dpp v{x}, v{y}, v{y} row_half_mirror row_mask:0xf bank_mask:0xa")
        k.dpp("v_add_f32", vLs, "quad_perm:[2,3,0,1]")
        for n in range(3):
            for c in range(2):
                x, y = ACC + 8 * n + c, ACC + 8 * n + c + 2
                A(f"v_cndmask_b32 v{x+4}, v{y}, v{x}, s[{sM1}:{sM1+1}]")
                A(f"v_cndmask_b32 v{x}, v{x}, v{y}, s[{sM1}:{sM1+1}]")
        k.dpp("v_add_f32", vLs, "row_half_mirror")
        for n in range(3):
            for c in range(2):
                x = ACC + 8 * n + c
                A(f"v_add_f32_dpp v{x}, v{x+4}, v{x} quad_perm:[2,3,0,1] row_mask:0xf bank_mask:0xf")
        for n in range(3):
            x, y = ACC + 8 * n, ACC + 8 * n + 1
            A(f"v_cndmask_b32 v{x+4}, v{y}, v{x}, s[{sM0}:{sM0+1}]")
            A(f"v_cndmask_b32 v{x}, v{x}, v{y}, s[{sM0}:{sM0+1}]")
        A(f"v_lshl_add_u32 v{vT1}, v{vL}, 4, s{sT1}")
        A(f"s_lshl_b32 s{sT0}, s{sT0}, 4")
        for n in range(3):
            x = ACC + 8 * n
            A(f"v_add_f32_dpp v{D+n}, v{x+4}, v{x} quad_perm:[1,0,3,2] row_mask:0xf bank_mask:0xf")
        A(f"v_mov_b32 v{S}, v{vT0}")
        A(f"v_mov_b32 v{S+1}, v{vLs}")
        A(f"v_mov_b32 v{S+2}, s{sPairSt}")
        A(f"v_mov_b32 v{vT0}, s{sT0}")
        A(f"ds_write_b128 v{vT1}, v[{D}:{D+3}] offset:{L_REC}")
        k.set_exec(1)
        A(f"ds_write_b128 v{vT0}, v[{S}:{S+3}] offset:{L_RHD}")
        k.set_exec(-1)
        A(f"s_add_u32 s{sSlot}, s{sSlot}, 1")

    def reset_state():
        A(f"v_mov_b32 v{vM}, {NEGBIG}")
        A(f"v_mov_b32 v{vLs}, 0")
        for i in range(24):
            A(f"v_mov_b32 v{ACC+i}, 0")

    def load_q():
        A(f"s_lshl_b32 s{sT0}, s{sPairCur}, 9")
        A(f"v_add_u32 v{vT0}, s{sT0}, v{vQa}")
        for n in range(3):
            A(f"ds_read_b128 v[{QF+4*n}:{QF+4*n+3}], v{vT0} offset:{L_QH+128*n}")
        A(f"s_mov_b32 s{sPairSt}, s{sPairCur}")

    uid = [0]

    def check_pair(x):
        uid[0] += 1
        A(f"s_cmp_eq_u32 s{sPair[x]}, s{sPairSt}")
        A(f"s_cbranch_scc1 L_same{uid[0]}")
        A(f"s_mov_b32 s{sPairCur}, s{sPair[x]}")
        A(f"s_call_b64 s[{sRet}:{sRet+1}], L_switch")
        LB(f"same{uid[0]}")

    A(f"s_sub_u32 s{sWs}, s{sW}, 4")
    A(f"v_and_b32 v{vT0}, 7, v{vL}")
    A(f"v_lshrrev_b32 v{vT1}, 3, v{vL}")
    A(f"v_mul_u32_u24 v{vKoff}, 384, v{vT0}")
    A(f"v_lshl_add_u32 v{vKoff}, v{vT1}, 4, v{vKoff}")
    A(f"s_lshr_b32 s{sPairCur}, s{sJ}, 1")
    A(f"s_mul_i32 s{sHoff}, s{sH}, 3145728")
    A(f"s_mul_i32 s{sStat}, s{sPairCur}, 100663296")
    A(f"s_add_u32 s{sStat}, s{sStat}, s{sHoff}")
    STEP = 6144 * ilv
    sBase, sEnd = 90, 91
    sStep, sRunPair, sCi, sCp, sSingle, sNeedW = 80, 81, 82, 83, 84, 95
    n3 = NPOOL - n1 * g1 - n2 * g2
    assert n3 >= 0 and (n1 * g1) % max(g2, 1) == 0 and DP % g1 == 0 and DP % g2 == 0
    CT = n1 + n2 + n3
    vCl = 5
    A(f"s_and_b32 s{sT0}, s{sJ}, 1")
    if ilv == 1:
        A(f"s_lshl_b32 s{sT0}, s{sT0}, 2")
        A(f"s_add_u32 s{sT0}, s{sT0}, s{sWs}")
        A(f"s_mul_i32 s{sT0}, s{sT0}, {NS*6144}")
    elif ilv == 4:
        A(f"s_mul_i32 s{sT0}, s{sT0}, {4*NS}")
        A(f"s_add_u32 s{sT0}, s{sT0}, s{sWs}")
        A(f"s_mul_i32 s{sT0}, s{sT0}, 6144")
    elif ilv == 8:
        A(f"s_lshl_b32 s{sT0}, s{sT0}, 2")
        A(f"s_add_u32 s{sT0}, s{sT0}, s{sWs}")
        A(f"s_mul_i32 s{sT0}, s{sT0}, 6144")
    A(f"s_add_u32 s{sStat}, s{sStat}, s{sT0}")
    if rot:
        A(f"s_mov_b32 s{sBase}, s{sStat}")
        A(f"s_add_u32 s{sEnd}, s{sStat}, {NS*STEP}")
        C("rotation r = hash(wg[, wave]) scaled to [0, NS)")
        if ilv == 1:
            A(f"s_lshl_b32 s{sT0}, s2, 2")
            A(f"s_add_u32 s{sT0}, s{sT0}, s{sWs}")
        elif ilv == 4:
            A(f"s_mov_b32 s{sT0}, s2")
        else:
            A(f"s_lshr_b32 s{sT0}, s2, 1")
        A(f"s_mul_i32 s{sT0}, s{sT0}, 0x9e3779b1")
        A(f"s_mul_hi_u32 s{sT0}, s{sT0}, {NS}")
        A(f"s_mul_i32 s{sT0}, s{sT0}, {STEP}")
        A(f"s_add_u32 s{sStat}, s{sStat}, s{sT0}")

    A(f"s_mov_b32 s{sStep}, {STEP}")

    def adv():
        A(f"s_add_u32 s{sStat}, s{sStat}, s{sStep}")
        if rot:
            A(f"s_cmp_eq_u32 s{sStat}, s{sEnd}")
            A(f"s_cselect_b32 s{sStat}, s{sBase}, s{sStat}")
    A("s_waitcnt lgkmcnt(0)")
    A(f"s_load_dword s{sTag}, s[{sWS}:{sWS+1}], {W_GEN}")
    k.srd(rK, sKp, 402653184)
    k.srd(rV, sVp, 402653184)
    if bar1:
        A("s_barrier")
    if noq:
        A("s_barrier")
    order = [2 + i for i in range(NPRE)] + [0, 1]
    for x in order:
        loads(kreg(x), rK, sStat)
        loads(vreg(x), rV, sStat)
        adv()
    A(f"v_lshrrev_b32 v{vQa}, 4, v{vL}")
    A(f"v_lshlrev_b32 v{vQa}, 5, v{vQa}")
    A(f"v_and_b32 v{vT1}, 1, v{vL}")
    A(f"v_lshl_add_u32 v{vQa}, v{vT1}, 4, v{vQa}")
    A(f"v_mov_b32 v{vOne}, 1")
    A(f"s_mul_i32 s{sT0}, s{sH}, {qstride}")
    A(f"s_add_u32 s{sT0}, s{sT0}, {W_QCNT}")
    A(f"v_mov_b32 v{vCa}, s{sT0}")
    A(f"s_mov_b32 s{sPair[0]}, s{sPairCur}")
    A(f"s_mov_b32 s{sPair[1]}, s{sPairCur}")
    A(f"s_mov_b32 s{sRem}, {NS - 2 - NPRE}")
    A(f"s_mov_b32 s{sSlot}, 0")
    A(f"s_mov_b32 s{sRunPair}, s{sPairCur}")
    A(f"s_mov_b32 s{sCi}, 0")
    A(f"s_mov_b32 s{sCp}, 0")
    A(f"s_mov_b32 s{sSingle}, 0")
    A(f"s_mov_b32 s{sNeedW}, 0")
    A(f"s_mov_b32 s{sM1}, 0xcccccccc")
    A(f"s_mov_b32 s{sM1+1}, 0xcccccccc")
    A(f"s_mov_b32 s{sM0}, 0xaaaaaaaa")
    A(f"s_mov_b32 s{sM0+1}, 0xaaaaaaaa")
    reset_state()
    A("s_waitcnt lgkmcnt(0)")
    A(f"s_add_u32 s{sTag}, s{sTag}, 1")
    A(f"s_addc_u32 s{sTag}, s{sTag}, 0")
    A(f"s_cmp_eq_u32 s{sTag}, 0x80000001")
    A(f"s_addc_u32 s{sTag}, s{sTag}, 0")
    A(f"s_xor_b32 s{sTagY}, s{sTag}, 0x80000001")
    stamp(1)
    if not noq:
        A("s_barrier")
    load_q()
    A("s_waitcnt lgkmcnt(0)")
    stamp(2)
    for i in range(NPRE):
        rem = 12 * (NPRE + 2 - i)
        A(f"s_waitcnt vmcnt({rem-6})")
        k_tile(2 + i)
        A("s_nop 7")
        softmax()
        A(f"s_waitcnt vmcnt({rem-12})")
        v_tile(2 + i)
    LB("loop")
    for x in range(2):
        A("s_waitcnt vmcnt(18)")
        check_pair(x)
        k_tile(x)
        A(f"s_sub_u32 s{sRem}, s{sRem}, 1")
        A(f"s_cmp_gt_i32 s{sRem}, 1")
        A(f"s_cbranch_scc0 L_dyn{x}")
        A(f"s_mov_b32 s{sNxt}, s{sStat}")
        A(f"s_mov_b32 s{sPair[x]}, s{sRunPair}")
        adv()
        LB(f"dynret{x}")
        loads(kreg(x), rK, sNxt)
        softmax()
        A("s_waitcnt vmcnt(18)")
        v_tile(x)
        loads(vreg(x), rV, sNxt)
    A("s_branch L_loop")
    def issue_claim():
        A(f"s_lshl_b64 exec, 1, s{sCi}")
        A(f"global_atomic_add v{vCl}, v{vCa}, v{vOne}, s[{sWS}:{sWS+1}] sc0")
        k.set_exec(-1)
        A(f"s_add_u32 s{sCi}, s{sCi}, 1")

    for x in range(2):
        LB(f"dyn{x}")
        A(f"s_cmp_ge_i32 s{sRem}, 0")
        A(f"s_cbranch_scc1 L_take{x}")
        C("current run exhausted: pop the oldest claim")
        A(f"s_cmp_eq_u32 s{sNeedW}, 0")
        A(f"s_cbranch_scc1 L_now{x}")
        A("s_waitcnt vmcnt(12)")
        A(f"s_mov_b32 s{sNeedW}, 0")
        LB(f"now{x}")
        A(f"s_and_b32 s{sT1}, s{sCp}, 63")
        A(f"v_readlane_b32 s{sT0}, v{vCl}, s{sT1}")
        A(f"s_add_u32 s{sCp}, s{sCp}, 1")
        A("s_nop 2")
        A(f"s_cmp_ge_u32 s{sT0}, {CT}")
        A(f"s_cbranch_scc1 L_last{x}")
        A(f"s_add_u32 s{sT1}, s{sT0}, {n1*g1 + n2*g2 - n1 - n2}")
        A(f"s_mov_b32 s{sRem}, 0")
        A(f"s_mul_i32 s{sT2}, s{sT0}, {g2}")
        A(f"s_add_u32 s{sT2}, s{sT2}, {n1*g1 - n1*g2}")
        A(f"s_cmp_lt_u32 s{sT0}, {n1+n2}")
        A(f"s_cselect_b32 s{sT1}, s{sT2}, s{sT1}")
        A(f"s_cselect_b32 s{sRem}, {g2-1}, s{sRem}")
        A(f"s_mul_i32 s{sT2}, s{sT0}, {g1}")
        A(f"s_cmp_lt_u32 s{sT0}, {n1}")
        A(f"s_cselect_b32 s{sT1}, s{sT2}, s{sT1}")
        A(f"s_cselect_b32 s{sRem}, {g1-1}, s{sRem}")
        A(f"s_lshr_b32 s{sRunPair}, s{sT1}, {LDP}")
        A(f"s_and_b32 s{sT1}, s{sT1}, {DP-1}")
        A(f"s_add_u32 s{sT1}, s{sT1}, {512-DP}")
        A(f"s_mul_i32 s{sT1}, s{sT1}, 6144")
        A(f"s_mul_i32 s{sStat}, s{sRunPair}, 100663296")
        A(f"s_add_u32 s{sStat}, s{sStat}, s{sHoff}")
        A(f"s_add_u32 s{sStat}, s{sStat}, s{sT1}")
        A(f"s_movk_i32 s{sStep}, 6144")
        A(f"s_mov_b32 s{sEnd}, -1")
        C("first single-unit run: switch to two claims in flight")
        A(f"s_or_b32 s{sT1}, s{sRem}, s{sSingle}")
        A(f"s_cbranch_scc1 L_take{x}")
        A(f"s_mov_b32 s{sSingle}, 1")
        A(f"s_mov_b32 s{sNeedW}, 1")
        issue_claim()
        LB(f"take{x}")
        A(f"s_mov_b32 s{sNxt}, s{sStat}")
        A(f"s_mov_b32 s{sPair[x]}, s{sRunPair}")
        adv()
        C("top up: allowed in flight = 1 + single; only when the run has <= 1 unit left")
        A(f"s_cmp_gt_i32 s{sRem}, 1")
        A(f"s_cbranch_scc1 L_dynret{x}")
        A(f"s_sub_u32 s{sT0}, s{sCi}, s{sCp}")
        A(f"s_cmp_gt_u32 s{sT0}, s{sSingle}")
        A(f"s_cbranch_scc1 L_dynret{x}")
        issue_claim()
        A(f"s_branch L_dynret{x}")
    LB("flush")
    flush()
    A(f"s_setpc_b64 s[{sRet2}:{sRet2+1}]")
    LB("switch")
    A(f"s_call_b64 s[{sRet2}:{sRet2+1}], L_flush")
    lds_wait4("swrdy", vT1, vT0)
    load_q()
    reset_state()
    A("s_waitcnt lgkmcnt(0)")
    A(f"s_setpc_b64 s[{sRet}:{sRet+1}]")
    for x in range(2):
        y = 1 - x
        LB(f"last{x}")
        stamp(3)
        if early:
            A(f"v_mov_b32 v{vT1}, {L_SYNC}")
            k.set_exec(1)
            A(f"ds_add_u32 v{vT1}, v{vOne} offset:8")
            k.set_exec(-1)
        else:
            A("s_nop 3")
        softmax()
        A("s_waitcnt vmcnt(12)")
        v_tile(x)
        A("s_waitcnt vmcnt(6)")
        check_pair(y)
        k_tile(y)
        A("s_nop 7")
        softmax()
        A("s_waitcnt vmcnt(0)")
        v_tile(y)
        if x == 0:
            A("s_branch L_fin")
    LB("fin")
    A(f"s_call_b64 s[{sRet2}:{sRet2+1}], L_flush")
    if early:
        A(f"v_mov_b32 v{vAl}, {L_SYNC}")
        k.set_exec(1)
        A(f"ds_add_u32 v{vAl}, v{vOne} offset:12")
        k.set_exec(-1)
    vRa, vRhh = QF, QF + 2
    A(f"s_lshl_b32 s{sT0}, s{sH}, 2")
    A(f"s_add_u32 s{sT0}, s{sT0}, s{sWs}")
    A(f"s_lshl_b32 s{sT0}, s{sT0}, 3")
    A(f"s_add_u32 s{sT0}, s{sT0}, s{sJ}")
    A(f"s_lshl_b32 s{sT1}, s{sT0}, 10")
    A(f"s_add_u32 s{sT1}, s{sT1}, {W_REC}")
    A(f"v_lshl_add_u32 v{vRa}, v{vL}, 4, s{sT1}")
    A(f"s_lshl_b32 s{sT1}, s{sT0}, 7")
    A(f"s_add_u32 s{sT1}, s{sT1}, {W_RH}")
    A(f"v_lshl_add_u32 v{vRhh}, v{vL}, 4, s{sT1}")
    A(f"v_min_u32 v{vT0}, 19, v{vL}")
    A(f"v_lshlrev_b32 v{vT0}, 4, v{vT0}")
    A(f"v_lshlrev_b32 v{vT1}, 4, v{vL}")
    A(f"v_cmp_gt_u32 s[{sM0}:{sM0+1}], 20, v{vL}")
    A(f"v_mov_b32 v{vM}, {NEGBIG}")
    if early:
        lds_wait4("fl", vAl, vLs, off=12, n=4, sleep=0)
    else:
        A("s_waitcnt lgkmcnt(0)")
        A("s_barrier")
    stamp(4)
    C("==== WG merge: stream wave w handles pair w ====")
    A(f"ds_read_b128 v[{S}:{S+3}], v{vT0} offset:{L_RHD}")
    for i in range(14):
        A(f"ds_read_b128 v[{MG+4*i}:{MG+4*i+3}], v{vT1} offset:{L_REC+1024*i}")
    A("s_waitcnt lgkmcnt(14)")
    A(f"v_cmp_eq_u32 vcc, s{sWs}, v{S+2}")
    A(f"s_and_b64 vcc, vcc, s[{sM0}:{sM0+1}]")
    for i in range(14, 20):
        A(f"ds_read_b128 v[{MG+4*i}:{MG+4*i+3}], v{vT1} offset:{L_REC+1024*i}")
    A(f"v_cndmask_b32 v{vM}, v{vM}, v{S}, vcc")
    C("records live in lanes 0..19: reduce rows 0,1 only")
    k.butterfly("v_max_f32", [vM], 4)
    A("s_nop 0")
    A(f"v_readlane_b32 s{sT0}, v{vM}, 0")
    A(f"v_readlane_b32 s{sT1}, v{vM}, 16")
    A("s_nop 0")
    A(f"v_mov_b32 v{vM}, s{sT0}")
    A(f"v_max_f32 v{vM}, s{sT1}, v{vM}")
    A(f"v_sub_f32 v{vAl}, v{S}, v{vM}")
    A(f"v_mul_f32 v{vAl}, {LOG2E}, v{vAl}")
    A(f"v_exp_f32 v{vAl}, v{vAl}")
    A("s_nop 0")
    A(f"v_cndmask_b32 v{vAl}, 0, v{vAl}, vcc")
    A(f"v_mul_f32 v{vLs}, v{vAl}, v{S+1}")
    ctr = ["quad_perm:[1,0,3,2]", "quad_perm:[2,3,0,1]", "row_half_mirror", "row_mirror"]
    for i in range(20):
        A(f"v_readlane_b32 s{sWt+i}, v{vAl}, {i}")
        if i % 4 == 2 and i // 4 < 4:
            k.dpp("v_add_f32", vLs, ctr[i // 4])
    A(f"v_readlane_b32 s{sT0}, v{vLs}, 0")
    A(f"v_readlane_b32 s{sT1}, v{vLs}, 16")
    A("s_waitcnt lgkmcnt(0)")
    A(f"v_pk_mul_f32 v[{ACC}:{ACC+1}], v[{MG}:{MG+1}], s[{sWt}:{sWt+1}] op_sel_hi:[1,0]")
    A(f"v_mul_f32 v{ACC+2}, s{sWt}, v{MG+2}")
    A(f"v_mov_b32 v{ACC+9}, s{sT0}")
    A(f"v_add_f32 v{ACC+9}, s{sT1}, v{ACC+9}")
    A(f"v_mov_b32 v{ACC+8}, v{vM}")
    xor3(ACC + 10, f"v{vM}", f"v{ACC+9}", f"s{sTag}")
    for i in range(1, 20):
        k.pkfma(ACC, MG + 4 * i, sWt + i, pre="s")
        A(f"v_fmac_f32 v{ACC+2}, s{sWt+i}, v{MG+4*i+2}")
    xor3(ACC + 3, f"v{ACC}", f"v{ACC+1}", f"v{ACC+2}")
    A(f"v_xor_b32 v{ACC+3}, s{sTag}, v{ACC+3}")
    A(f"global_store_dwordx4 v{vRa}, v[{ACC}:{ACC+3}], s[{sWS}:{sWS+1}] {SC}")
    k.set_exec(0xff)
    A(f"global_store_dwordx4 v{vRhh}, v[{ACC+8}:{ACC+11}], s[{sWS}:{sWS+1}] {SC}")
    k.set_exec(-1)
    stamp(5)
    write_stamps(MG, vT1)
    LB("end")
    A("s_endpgm")
    return k, (256, 256), L_TOTAL


def build(stamps=False, **kw):
    k2, r2, l2 = build_main(stamps, **kw)
    txt = HEADER
    txt += f"; @launch grid=(256,1,1) block=(512,1,1) lds={l2}\n"
    txt += '.amdgcn_target "amdgcn-amd-amdhsa--gfx950"\n.text\n'
    txt += k2.text()
    txt += '.section .rodata,"a"\n'
    txt += k2.desc(*r2)
    return txt


if __name__ == "__main__":
    out = sys.argv[1] if len(sys.argv) > 1 else f"cdna_kernels/{NAME}.s"
    stamps = sys.argv[2] if len(sys.argv) > 2 and sys.argv[2] != "-" else False
    kw = {}
    for a in sys.argv[3:]:
        n, v = a.split("=")
        kw[n] = int(v)
    open(out, "w").write(build(stamps, **kw))
    print("wrote", out)
```

```python
import sys
from gen_v1 import HEADER, NAME
from gen_v2 import K, load_kernargs, SCALE, LOG2E, NEGBIG
from gen_v2 import sX, sKp, sVp, sWQp, sWOp, sW1p, sB1p, sW2p, sB2p, sOUT, sDBG, sWS

W_GEN = 0x0
W_QCNT = 0x800000
W_RH = 0xE0000
W_FR = 0x20000
W_YA = 0x400000
W_REC = 0x100000
W_QC = 0x200000
W_YB = 0x240000
W_QP = 0x300000
W_STAMP = 0x1000000
SPIN = 0x80000


def build_main(stamps=False, DP=64, NPRE=2, mimic=1, hsleep=1, qsleep=64, nmiss=2, pre1=0, pre2=0, noq=0, stop=0, ysleep=1, qstride=4352, stnt=0, ldnt=0, fsleep=300, dbg=0, ilv=4, rot=1, bar1=0, early=0, ymiss=1, esleep=4, alias=0, n1=32, g1=4, n2=48, g2=2, tstep=0, late=5, la1=0, ypos=2, qflag=1, ovl=1, split=1):
    ldsync = 1 if (early or late) else 0
    SCS = "sc1 nt" if stnt else "sc1"
    SCL = "sc1 nt" if ldnt else "sc1"
    SC = "sc1"
    k = K(f"{NAME}_kernel")
    k.lab = lambda s: f"L_{s}"
    k.LB = lambda s: k.L.append(f"L_{s}:")
    A, LB, C = k.A, k.LB, k.C
    sT0, sT1, sT2, sT3 = k.sT
    NS = (512 - DP) // 8
    LDP = DP.bit_length() - 1
    NPOOL = 4 * DP
    sW, sH, sJ = 3, 4, 5
    sRem, sStat, sNxt = 6, 7, 12
    sPairCur, sPairSt, sSlot, sHoff = 13, 14, 42, 43
    rK, rV = 44, 48
    sPair = [52, 53]
    sRet = 54
    sWt = 56
    sTm = 76
    sTag = 78
    sTagY = 94
    sOB = 95
    sSpin = 79
    rW = 80
    sOff = 84
    sWs = 85
    sM1, sM0 = 86, 88
    sRet2 = 92
    sTs = 96
    L_QH = 0
    L_SYNC = 2048
    L_RHD = 2112
    L_OB = 2560
    L_REC = 4096
    L_XN = L_REC + 20480
    L_WT = 32768
    L_TOTAL = L_WT + 65536
    boff = [0, 128, 256, 3072, 3200, 3328]
    in_service = [True]

    def stamp(i, mode="stamps"):
        if stamps and (mode == stamps or (mode == "stamps" and (i == 0 or not in_service[0]))):
            A(f"s_memrealtime s[{sTm}:{sTm+1}]")
            A("s_waitcnt lgkmcnt(0)")
            A(f"s_mov_b32 s{sTs+i}, s{sTm}")

    def write_stamps(tmp, vA):
        if stamps and dbg:
            if in_service[0]:
                C("debug: WGs 0,40,85,130 wave 0 report (t1,t3,t5) - t0 and xcc")
                A(f"s_cmp_eq_u32 s{sW}, 0")
                A("s_cbranch_scc0 L_nodbg")
                A(f"s_mul_i32 s{sT1}, s2, 1457")
                A(f"s_lshr_b32 s{sT1}, s{sT1}, 16")
                A(f"s_mul_i32 s{sT3}, s{sT1}, 45")
                A(f"s_cmp_eq_u32 s{sT3}, s2")
                A("s_cbranch_scc0 L_nodbg")
                A(f"s_cmp_lt_u32 s{sT1}, 4")
                A("s_cbranch_scc0 L_nodbg")
                A(f"s_getreg_b32 s{sT2}, hwreg(HW_REG_XCC_ID)")
                A(f"s_lshl_b32 s{sT1}, s{sT1}, 4")
                for n, i in enumerate((1, 3, 5)):
                    A(f"s_sub_u32 s{sT3}, s{sTs+i}, s{sTs}")
                    A(f"v_mov_b32 v{tmp+n}, s{sT3}")
                A(f"v_mov_b32 v{tmp+3}, s{sT2}")
                A(f"v_mov_b32 v{vA}, s{sT1}")
                k.set_exec(1)
                A(f"global_store_dwordx4 v{vA}, v[{tmp}:{tmp+3}], s[{sDBG}:{sDBG+1}]")
                k.set_exec(-1)
                LB("nodbg")
        elif stamps:
            A(f"s_getreg_b32 s{sT2}, hwreg(HW_REG_XCC_ID)")
            A(f"s_lshl_b32 s{sT1}, s2, 3")
            A(f"s_add_u32 s{sT1}, s{sT1}, s{sW}")
            A(f"s_lshl_b32 s{sT1}, s{sT1}, 5")
            A(f"s_add_u32 s{sT1}, s{sT1}, {W_STAMP}")
            for i in range(6):
                A(f"v_mov_b32 v{tmp+i}, s{sTs+i}")
            A(f"v_mov_b32 v{tmp+6}, s{sT2}")
            A(f"v_mov_b32 v{tmp+7}, 0x12345678")
            A(f"v_mov_b32 v{vA}, s{sT1}")
            k.set_exec(1)
            A(f"global_store_dwordx4 v{vA}, v[{tmp}:{tmp+3}], s[{sWS}:{sWS+1}]")
            A(f"global_store_dwordx4 v{vA}, v[{tmp+4}:{tmp+7}], s[{sWS}:{sWS+1}] offset:16")
            k.set_exec(-1)

    def xor3(d, a, b, c):
        A(f"v_bitop3_b32 v{d}, {a}, {b}, {c} bitop3:0x96")

    def spin_tail(loop, sleep=None):
        if sleep:
            A(f"s_sleep {sleep}")
        A(f"s_sub_u32 s{sSpin}, s{sSpin}, 1")
        A(f"s_cmp_lg_u32 s{sSpin}, 0")
        A(f"s_cbranch_scc1 L_{loop}")

    def lds_wait4(tagl, vA, vD, off=0, n=4, sleep=4):
        A(f"v_mov_b32 v{vA}, {L_SYNC}")
        A(f"s_mov_b32 s{sSpin}, {SPIN*16}")
        LB(tagl)
        A(f"ds_read_b32 v{vD}, v{vA} offset:{off}")
        A("s_waitcnt lgkmcnt(0)")
        A(f"v_readfirstlane_b32 s{sT0}, v{vD}")
        A(f"s_sub_u32 s{sSpin}, s{sSpin}, 1")
        A(f"s_cselect_b32 s{sT0}, {n}, s{sT0}")
        A(f"s_cmp_ge_u32 s{sT0}, {n}")
        if sleep:
            A(f"s_cbranch_scc1 L_{tagl}ok")
            A(f"s_sleep {sleep}")
            A(f"s_branch L_{tagl}")
        else:
            A(f"s_cbranch_scc0 L_{tagl}")
        LB(tagl + "ok")

    vL, vT0, vT1 = 1, 3, 4
    A("s_cmp_ge_u32 s2, 256")
    A("s_cbranch_scc1 L_end")
    stamp(0)
    load_kernargs(k)
    A(f"v_and_b32 v{vL}, 63, v0")
    A(f"v_lshrrev_b32 v{vT0}, 6, v0")
    A(f"s_mov_b32 s{k.sMsk}, 0xffff0000")
    A(f"v_readfirstlane_b32 s{sW}, v{vT0}")
    A(f"s_lshr_b32 s{sH}, s2, 3")
    A(f"s_and_b32 s{sJ}, s2, 7")
    A(f"s_cmp_ge_u32 s{sW}, 4")
    A("s_cbranch_scc1 L_stream")
    C("================= service waves (0..3) =================")
    vOff, vXa, vXb, vOne_s = 2, 5, 6, 7
    a = 8
    k.TP = 16
    k.ntp = 2
    XR = 20
    XC = 40
    X = 44
    ACC = 84
    WR = 116
    E = 156
    QL = 164
    QK = 196
    B1R = 204
    FXR = 206
    A("s_setprio 3")
    A(f"v_lshrrev_b32 v{vT0}, 3, v{vL}")
    A(f"v_and_b32 v{vT1}, 7, v{vL}")
    A(f"s_cmp_eq_u32 s{sW}, 3")
    A(f"s_movk_i32 s{sT0}, 3072")
    A(f"s_cselect_b32 s{sT0}, s{sT0}, 12288")
    A(f"v_mul_lo_u32 v{vOff}, v{vT0}, s{sT0}")
    A(f"v_lshl_add_u32 v{vOff}, v{vT1}, 4, v{vOff}")
    A(f"s_mul_i32 s{sOff}, s{sJ}, 80")
    A(f"s_mul_i32 s{sOff}, s{sOff}, s{sT0}")
    A(f"s_lshl_b32 s{sT3}, s{sT0}, 3")
    A(f"s_mul_i32 s{sT1}, s{sH}, 384")
    A(f"s_lshl_b32 s{sT2}, s{sW}, 7")
    A(f"s_add_u32 s{sT1}, s{sT1}, s{sT2}")
    A(f"s_min_u32 s{sT2}, s{sH}, 23")
    A(f"s_lshl_b32 s{sT2}, s{sT2}, 7")
    A(f"s_cmp_eq_u32 s{sW}, 3")
    A(f"s_cselect_b32 s{sT1}, s{sT2}, s{sT1}")
    A(f"s_add_u32 s{sOff}, s{sOff}, s{sT1}")
    A(f"v_lshrrev_b32 v{vT0}, 4, v{vL}")
    A(f"v_mul_u32_u24 v{vT0}, 1280, v{vT0}")
    A(f"v_and_b32 v{vT1}, 15, v{vL}")
    A(f"v_lshl_add_u32 v{vXa}, v{vT1}, 4, v{vT0}")
    A(f"v_lshl_add_u32 v{a}, v{vT1}, 3, s{sT2}")
    A(f"v_min_u32 v{vT1}, 9, v{vT1}")
    A(f"v_lshl_add_u32 v{vXb}, v{vT1}, 4, v{vT0}")
    A(f"s_mul_i32 s{sT1}, s{sJ}, 160")
    A(f"v_add_u32 v{vXb}, s{sT1}, v{vXb}")
    A(f"v_mov_b32 v{vOne_s}, 1")
    for i in range(32):
        A(f"v_mov_b32 v{ACC+i}, 0")
    A(f"v_mov_b32 v{vT0}, {L_SYNC}")
    if stop:
        A(f"v_mov_b32 v{vT1}, 4")
        A(f"ds_write_b32 v{vT0}, v{vT1}")
    else:
        A(f"ds_write_b32 v{vT0}, v{ACC}")
    A(f"ds_write_b32 v{vT0}, v{ACC} offset:4")
    A(f"ds_write_b64 v{vT0}, v[{ACC}:{ACC+1}] offset:8")
    A(f"ds_write_b64 v{vT0}, v[{ACC}:{ACC+1}] offset:16")
    A(f"s_cmp_lt_u32 s{sH}, 24")
    A(f"s_cselect_b32 s{rW+2}, 1966080, 0")
    A("s_waitcnt lgkmcnt(0)")
    A(f"s_load_dword s{sTag}, s[{sWS}:{sWS+1}], {W_GEN}")
    for m in range(5):
        A(f"global_load_dwordx4 v[{XR+4*m}:{XR+4*m+3}], v{vXa}, s[{sX}:{sX+1}] offset:{256*m}")
    A(f"global_load_dwordx4 v[{XC}:{XC+3}], v{vXb}, s[{sX}:{sX+1}]")
    A(f"s_cmp_eq_u32 s{sW}, 3")
    A(f"s_cselect_b32 s{rW}, s{sW1p}, s{sWQp}")
    A(f"s_cselect_b32 s{rW+1}, s{sW1p+1}, s{sWQp+1}")
    A(f"s_cselect_b32 s{rW+2}, s{rW+2}, 7864320")
    A(f"s_mov_b32 s{rW+3}, 0x20000")
    for t in range(10):
        if stop != 1:
            A(f"buffer_load_dwordx4 v[{WR+4*t}:{WR+4*t+3}], v{vOff}, s[{rW}:{rW+3}], s{sOff} offen nt")
        if t < 9:
            A(f"s_add_u32 s{sOff}, s{sOff}, s{sT3}")
    A(f"global_load_dwordx2 v[{B1R}:{B1R+1}], v{a}, s[{sB1p}:{sB1p+1}]")
    A(f"s_mul_i32 s{sOB}, s{sH}, 40960")
    A(f"s_add_u32 s{sOB}, s{sOB}, {W_QP}")
    C("queue counter of this octet = 0 (j == 0, wave 0)")
    A(f"s_mul_i32 s{sT0}, s{sH}, {qstride}")
    A(f"s_add_u32 s{sT0}, s{sT0}, {W_QCNT}")
    A(f"v_mov_b32 v{vT0}, s{sT0}")
    A(f"s_or_b32 s{sT0}, s{sJ}, s{sW}")
    A(f"s_cmp_eq_u32 s{sT0}, 0")
    A("s_cbranch_scc0 L_noq")
    k.set_exec(1)
    A(f"global_store_dword v{vT0}, v{ACC}, s[{sWS}:{sWS+1}] {SC}")
    k.set_exec(-1)
    LB("noq")
    if tstep:
        C("translation warm-up through the scalar path: waves 0/1 static K/V range, waves 2/3 pool K/V")
        sB0 = 60
        A(f"s_bitcmp1_b32 s{sW}, 0")
        A(f"s_cselect_b32 s{sB0}, s{sVp}, s{sKp}")
        A(f"s_cselect_b32 s{sB0+1}, s{sVp+1}, s{sKp+1}")
        A(f"s_mul_i32 s{sT2}, s{sH}, 3145728")
        A(f"s_cmp_ge_u32 s{sW}, 2")
        A("s_cbranch_scc1 L_tw_pool")
        A(f"s_lshr_b32 s{sT0}, s{sJ}, 1")
        A(f"s_mul_i32 s{sT0}, s{sT0}, 100663296")
        A(f"s_add_u32 s{sT0}, s{sT0}, s{sT2}")
        A(f"s_and_b32 s{sT1}, s{sJ}, 1")
        A(f"s_mul_i32 s{sT1}, s{sT1}, {4*NS*6144}")
        A(f"s_add_u32 s{sT0}, s{sT0}, s{sT1}")
        ln = 4 * NS * 6144
        offs = list(range(0, ln, tstep)) + [ln - 64]
        for i, o in enumerate(offs):
            A(f"s_add_u32 s{sT1}, s{sT0}, {o}")
            A(f"s_load_dword s{62 + (i % 8)}, s[{sB0}:{sB0+1}], s{sT1}")
        A("s_branch L_tw_done")
        LB("tw_pool")
        ln = DP * 6144
        offs = list(range(0, ln, tstep)) + [ln - 64]
        i = 0
        for p in range(4):
            for o in offs:
                A(f"s_add_u32 s{sT1}, s{sT2}, {p*100663296 + (512-DP)*6144 + o}")
                A(f"s_load_dword s{62 + (i % 8)}, s[{sB0}:{sB0+1}], s{sT1}")
                i += 1
        LB("tw_done")
    C("barrier 1 releases the stream waves")
    if bar1:
        A("s_barrier")
    if noq:
        A("s_barrier")
    A(f"s_mul_i32 s{sT0}, s{sW}, 5120")
    A(f"v_lshl_add_u32 v{vT0}, v{vL}, 4, s{sT0}")
    for i in range(5):
        A(f"ds_write_b128 v{vT0}, v[{ACC}:{ACC+3}] offset:{L_REC+1024*i}")
    A(f"v_mov_b32 v{E}, {NEGBIG}")
    for i in range(1, 4):
        A(f"v_mov_b32 v{E+i}, 0")
    A(f"v_min_u32 v{vT0}, 19, v{vL}")
    A(f"v_lshlrev_b32 v{vT0}, 4, v{vT0}")
    A(f"ds_write_b128 v{vT0}, v[{E}:{E+3}] offset:{L_RHD}")
    if stop == 1:
        A("s_waitcnt vmcnt(0) lgkmcnt(0)")
        A("s_branch L_svc_end")
    C("---- LayerNorm statistics, 16 lanes per batch ----")
    A(f"s_waitcnt vmcnt({11 + 2*pre1})")
    stamp(1, "pro")
    for i in range(20):
        A(f"v_lshlrev_b32 v{X+2*i}, 16, v{XR+i}")
        A(f"v_and_b32 v{X+2*i+1}, s{k.sMsk}, v{XR+i}")
    A(f"v_pk_add_f32 v[{a}:{a+1}], v[{X}:{X+1}], v[{X+2}:{X+3}]")
    A(f"v_pk_add_f32 v[{a+2}:{a+3}], v[{X+4}:{X+5}], v[{X+6}:{X+7}]")
    for i in range(4, 20):
        d = a + 2 * (i & 1)
        A(f"v_pk_add_f32 v[{d}:{d+1}], v[{d}:{d+1}], v[{X+2*i}:{X+2*i+1}]")
    A(f"v_pk_add_f32 v[{a}:{a+1}], v[{a}:{a+1}], v[{a+2}:{a+3}]")
    A(f"v_add_f32 v{a}, v{a}, v{a+1}")
    k.butterfly("v_add_f32", [a], 4)
    A(f"v_mul_f32 v{a}, {-1.0/640.0!r}, v{a}")
    for i in range(20):
        A(f"v_pk_add_f32 v[{X+2*i}:{X+2*i+1}], v[{X+2*i}:{X+2*i+1}], v[{a}:{a+1}] op_sel_hi:[1,0]")
    A(f"v_pk_mul_f32 v[{a+2}:{a+3}], v[{X}:{X+1}], v[{X}:{X+1}]")
    A(f"v_pk_mul_f32 v[{a+4}:{a+5}], v[{X+2}:{X+3}], v[{X+2}:{X+3}]")
    for i in range(2, 20):
        d = a + 2 + 2 * (i & 1)
        A(f"v_pk_fma_f32 v[{d}:{d+1}], v[{X+2*i}:{X+2*i+1}], v[{X+2*i}:{X+2*i+1}], v[{d}:{d+1}]")
    A(f"v_pk_add_f32 v[{a+2}:{a+3}], v[{a+2}:{a+3}], v[{a+4}:{a+5}]")
    A(f"v_add_f32 v{a+2}, v{a+2}, v{a+3}")
    k.butterfly("v_add_f32", [a + 2], 4)
    A(f"v_mul_f32 v{a+2}, {1.0/640.0!r}, v{a+2}")
    k.rnd2(a, a + 2, a + 1)
    A(f"v_add_f32 v{a+2}, 0x3727c5ac, v{a+2}")
    k.rnd1(a + 2, a + 1)
    A(f"v_sqrt_f32 v{a+2}, v{a+2}")
    A("s_waitcnt lgkmcnt(0)")
    for i in range(4):
        A(f"v_lshlrev_b32 v{E+2*i}, 16, v{XC+i}")
        A(f"v_and_b32 v{E+2*i+1}, s{k.sMsk}, v{XC+i}")
    k.rnd1(a + 2, a + 1)
    A(f"v_rcp_f32 v{a+3}, v{a+2}")
    for i in range(8):
        A(f"v_add_f32 v{E+i}, v{E+i}, v{a}")
    for i in range(0, 8, 2):
        k.rnd2(E + i, E + i + 1, a + 1)
    for i in range(8):
        A(f"v_mul_f32 v{a+4}, v{E+i}, v{a+3}")
        A(f"v_fma_f32 v{a+5}, -v{a+4}, v{a+2}, v{E+i}")
        A(f"v_fma_f32 v{E+i}, v{a+5}, v{a+3}, v{a+4}")
    for i in range(0, 8, 2):
        k.rnd2(E + i, E + i + 1, a + 1)
    A(f"s_mul_i32 s{sT0}, s{sW}, 1280")
    A(f"v_and_b32 v{vT1}, 15, v{vL}")
    A(f"v_min_u32 v{vT1}, 9, v{vT1}")
    A(f"v_lshl_add_u32 v{vT1}, v{vT1}, 7, s{sT0}")
    A(f"v_lshrrev_b32 v{vT0}, 4, v{vL}")
    A(f"v_lshl_add_u32 v{vT1}, v{vT0}, 2, v{vT1}")
    for i in range(8):
        A(f"ds_write_b32 v{vT1}, v{E+i} offset:{L_XN+16*i}")
    A(f"v_lshrrev_b32 v{vT0}, 3, v{vL}")
    A(f"v_lshl_add_u32 v{vT0}, v{vT0}, 4, s{sT0}")
    A(f"s_add_u32 s{sTag}, s{sTag}, 1")
    A(f"s_addc_u32 s{sTag}, s{sTag}, 0")
    A(f"s_cmp_eq_u32 s{sTag}, 0x80000001")
    A(f"s_addc_u32 s{sTag}, s{sTag}, 0")
    A(f"s_xor_b32 s{sTagY}, s{sTag}, 0x80000001")
    XN = X
    for t in range(10):
        A(f"ds_read_b128 v[{XN+4*t}:{XN+4*t+3}], v{vT0} offset:{L_XN+128*t}")
    C("granule index 16w + 2e + half, row b = l>>4")
    A(f"v_and_b32 v{vT0}, 7, v{vL}")
    A(f"v_bfe_u32 v{vT1}, v{vL}, 3, 1")
    A(f"v_lshl_add_u32 v{vT0}, v{vT0}, 1, v{vT1}")
    A(f"s_lshl_b32 s{sT0}, s{sW}, 4")
    A(f"v_add_u32 v{vT0}, s{sT0}, v{vT0}")
    A(f"v_lshrrev_b32 v{vT1}, 4, v{vL}")
    A(f"v_lshl_add_u32 v{vT0}, v{vT1}, 6, v{vT0}")
    A(f"s_lshl_b32 s{sT0}, s{sJ}, 12")
    A(f"s_add_u32 s{sT0}, s{sT0}, s{sOB}")
    A(f"s_lshl_b32 s{sT1}, s{sJ}, 10")
    A(f"s_lshl_b32 s{sT2}, s{sW}, 8")
    A(f"s_add_u32 s{sT1}, s{sT1}, s{sT2}")
    A(f"s_add_u32 s{sT1}, s{sT1}, s{sOB}")
    A(f"s_add_u32 s{sT1}, s{sT1}, 32768")
    A(f"v_lshl_add_u32 v{vXa}, v{vT0}, 4, s{sT0}")
    A(f"v_lshl_add_u32 v{vXb}, v{vL}, 2, s{sT1}")
    stamp(1)
    stamp(2, "pro")
    for t in range(10):
        A(f"s_waitcnt vmcnt({10-t+2*pre1 if t < 9 else 0}) lgkmcnt({9-t})")
        if t == 0:
            stamp(3, "pro")
        if t == 9:
            stamp(4, "pro")
        for d in range(4):
            tt = k.unpack(WR + 4 * t + d)
            for b in range(4):
                k.pkfma(ACC + 8 * b + 2 * d, tt, XN + 4 * t + b)
    C("reduce-scatter over lane bits 5,4,3")
    A("s_nop 1")
    for i in range(16):
        A(f"v_permlane32_swap_b32 v{ACC+i}, v{ACC+16+i}")
    for i in range(16):
        A(f"v_add_f32 v{ACC+i}, v{ACC+i}, v{ACC+16+i}")
    A("s_nop 1")
    for i in range(8):
        A(f"v_permlane16_swap_b32 v{ACC+i}, v{ACC+8+i}")
    for i in range(8):
        A(f"v_add_f32 v{ACC+i}, v{ACC+i}, v{ACC+8+i}")
    A("s_nop 1")
    for i in range(4):
        A(f"v_add_f32_dpp v{E+i}, v{ACC+i}, v{ACC+i} row_ror:8 row_mask:0xf bank_mask:0x3")
        A(f"v_add_f32_dpp v{E+i}, v{ACC+4+i}, v{ACC+4+i} row_ror:8 row_mask:0xf bank_mask:0xc")
    A(f"global_store_dwordx4 v{vXa}, v[{E}:{E+3}], s[{sWS}:{sWS+1}] {SCS}")
    xor3(E + 4, f"v{E}", f"v{E+1}", f"v{E+2}")
    xor3(E + 4, f"v{E+4}", f"v{E+3}", f"s{sTag}")
    A(f"global_store_dword v{vXb}, v{E+4}, s[{sWS}:{sWS+1}] {SCS}")
    stamp(2)
    stamp(5, "pro")
    if stop == 2:
        A("s_waitcnt vmcnt(0) lgkmcnt(0)")
        A("s_branch L_svc_end")
    C("addresses: final row FR[h*4+w], LDS row w")
    vFr, vQl = a + 6, a + 7
    A(f"s_lshl_b32 s{sT0}, s{sH}, 2")
    A(f"s_add_u32 s{sT0}, s{sT0}, s{sW}")
    A(f"s_lshl_b32 s{sT0}, s{sT0}, 10")
    A(f"s_add_u32 s{sT0}, s{sT0}, {W_FR}")
    A(f"v_lshl_add_u32 v{vFr}, v{vL}, 4, s{sT0}")
    A(f"s_lshl_b32 s{sT1}, s{sW}, 9")
    A(f"v_lshl_add_u32 v{vQl}, v{vL}, 3, s{sT1}")
    A(f"s_mov_b32 s{sSpin}, {SPIN}")
    A(f"s_lshr_b32 s{sPairCur}, s{sJ}, 1")
    A(f"s_cmp_eq_u32 s{sPairCur}, s{sW}")
    A("s_cbranch_scc0 L_nonhome")
    C("---- home wave: gather the 8 partial rows ----")
    A(f"s_lshl_b32 s{sT1}, s{sW}, 10")
    A(f"s_add_u32 s{sT0}, s{sOB}, s{sT1}")
    A(f"v_lshl_add_u32 v{vXa}, v{vL}, 4, s{sT0}")
    C("check of granule l: [wg][w' = l>>4][16 b + 8 (l&1) + ((l&15)>>1)]")
    A(f"s_lshl_b32 s{sT2}, s{sW}, 6")
    A(f"s_add_u32 s{sT1}, s{sOB}, s{sT2}")
    A(f"s_add_u32 s{sT1}, s{sT1}, 32768")
    A(f"v_lshrrev_b32 v{vT0}, 4, v{vL}")
    A(f"v_lshl_add_u32 v{vXb}, v{vT0}, 8, s{sT1}")
    A(f"v_and_b32 v{vT0}, 1, v{vL}")
    A(f"v_lshl_add_u32 v{vXb}, v{vT0}, 5, v{vXb}")
    A(f"v_bfe_u32 v{vT0}, v{vL}, 1, 3")
    A(f"v_lshl_add_u32 v{vXb}, v{vT0}, 2, v{vXb}")
    A(f"v_add_u32 v{vT1}, 4096, v{vXb}")
    for i in range(qsleep // 100):
        A("s_sleep 100")
    if qsleep % 100:
        A(f"s_sleep {qsleep % 100}")
    A(f"s_mov_b32 s{sT3}, {1 if ypos else 0}")
    LB("qpoll")
    A(f"v_mov_b32 v{vT0}, v{vXa}")
    for j in range(8):
        if j:
            A(f"v_add_u32 v{vT0}, 4096, v{vT0}")
        A(f"global_load_dwordx4 v[{QL+4*j}:{QL+4*j+3}], v{vT0}, s[{sWS}:{sWS+1}] {SCL}")
        va = vXb if j < 4 else vT1
        A(f"global_load_dword v{QK+j}, v{va}, s[{sWS}:{sWS+1}] offset:{1024*(j%4)} {SCL}")
    if ypos:
        C("first round issued: release the stream waves parked at the yield barrier")
        A(f"s_cmp_eq_u32 s{sT3}, 0")
        A("s_cbranch_scc1 L_noyb")
        A("s_barrier")
        A(f"s_mov_b32 s{sT3}, 0")
        LB("noyb")
    for j in range(8):
        A(f"s_waitcnt vmcnt({14-2*j})")
        xor3(a, f"v{QL+4*j}", f"v{QL+4*j+1}", f"v{QL+4*j+2}")
        xor3(a + 1, f"v{QL+4*j+3}", f"v{QK+j}", f"s{sTag}")
        if j == 0:
            A(f"v_xor_b32 v{a+2}, v{a}, v{a+1}")
        else:
            A(f"v_xor_b32 v{a}, v{a}, v{a+1}")
            A(f"v_or_b32 v{a+2}, v{a+2}, v{a}")
    A(f"v_cmp_ne_u32 vcc, 0, v{a+2}")
    A("s_cbranch_vccz L_qok")
    spin_tail("qpoll")
    LB("qok")
    for j in range(1, 8):
        A(f"v_pk_add_f32 v[{QL}:{QL+1}], v[{QL}:{QL+1}], v[{QL+4*j}:{QL+4*j+1}]")
        A(f"v_pk_add_f32 v[{QL+2}:{QL+3}], v[{QL+2}:{QL+3}], v[{QL+4*j+2}:{QL+4*j+3}]")
    A(f"v_cvt_pk_bf16_f32 v{QL+4}, v{QL}, v{QL+1}")
    A(f"v_cvt_pk_bf16_f32 v{QL+5}, v{QL+2}, v{QL+3}")
    A(f"ds_write_b64 v{vQl}, v[{QL+4}:{QL+5}] offset:{L_QH}")
    stamp(3)
    stamp(3, "ret")
    if stamps == "ret":
        A(f"s_sub_u32 s{sTs+1}, {SPIN}, s{sSpin}")
        A(f"s_mul_i32 s{sTs+1}, s{sTs+1}, 400")
        A(f"s_add_u32 s{sTs+1}, s{sTs+1}, s{sTs}")
        A(f"s_mov_b32 s{sTs+2}, s{sTs}")
        A(f"s_mov_b32 s{sTs+4}, s{sTs}")
        A(f"s_mov_b32 s{sTs+5}, s{sTs}")
    if qflag:
        A(f"v_mov_b32 v{vT0}, {L_SYNC}")
        A(f"ds_write_b32 v{vT0}, v{vOne_s} offset:16")
    else:
        A("s_waitcnt lgkmcnt(0)")
        if not noq:
            A("s_barrier")
    A("s_setprio 0")
    C("hid = bf16(relu(bf16(bf16(sum) + b1))^2) on lanes 48..63")
    Hh = QL + 8
    A(f"v_lshlrev_b32 v{Hh}, 16, v{QL+4}")
    A(f"v_and_b32 v{Hh+1}, s{k.sMsk}, v{QL+4}")
    A(f"v_lshlrev_b32 v{Hh+2}, 16, v{QL+5}")
    A(f"v_and_b32 v{Hh+3}, s{k.sMsk}, v{QL+5}")
    A(f"v_lshlrev_b32 v{Hh+4}, 16, v{B1R}")
    A(f"v_and_b32 v{Hh+5}, s{k.sMsk}, v{B1R}")
    A(f"v_lshlrev_b32 v{Hh+6}, 16, v{B1R+1}")
    A(f"v_and_b32 v{Hh+7}, s{k.sMsk}, v{B1R+1}")
    for i in range(4):
        A(f"v_add_f32 v{Hh+i}, v{Hh+i}, v{Hh+4+i}")
    k.rnd2(Hh, Hh + 1, a)
    k.rnd2(Hh + 2, Hh + 3, a)
    for i in range(4):
        A(f"v_cmp_gt_f32 vcc, v{Hh+i}, 0")
        A("s_nop 1")
        A(f"v_cndmask_b32 v{Hh+i}, 0, v{Hh+i}, vcc")
    for i in range(4):
        A(f"v_mul_f32 v{Hh+i}, v{Hh+i}, v{Hh+i}")
    k.set_exec(0xffff << 48)
    A(f"v_cvt_pk_bf16_f32 v{QL+4}, v{Hh}, v{Hh+1}")
    A(f"v_cvt_pk_bf16_f32 v{QL+5}, v{Hh+2}, v{Hh+3}")
    A(f"ds_write_b64 v{vQl}, v[{QL+4}:{QL+5}] offset:{L_QH}")
    k.set_exec(-1)
    xor3(QL + 6, f"v{QL+4}", f"v{QL+5}", f"s{sTag}")
    A(f"s_bitcmp1_b32 s{sJ}, 0")
    A("s_cbranch_scc1 L_rowdone")
    A(f"global_store_dwordx4 v{vFr}, v[{QL+4}:{QL+7}], s[{sWS}:{sWS+1}] {SCS}")
    A("s_branch L_rowdone")
    C("---- other waves: fetch the finished row later ----")
    LB("nonhome")
    if ypos:
        A("s_barrier")
    A("s_waitcnt lgkmcnt(0)")
    if not noq and not qflag:
        A("s_barrier")
    A("s_setprio 0")
    for i in range(fsleep // 100):
        A("s_sleep 100")
    A(f"s_sleep {fsleep % 100}")
    LB("fpoll")
    A(f"global_load_dwordx4 v[{QL+4}:{QL+7}], v{vFr}, s[{sWS}:{sWS+1}] {SCL}")
    A("s_waitcnt vmcnt(0)")
    xor3(a, f"v{QL+4}", f"v{QL+5}", f"v{QL+6}")
    A(f"v_cmp_ne_u32 vcc, s{sTag}, v{a}")
    A("s_cbranch_vccz L_fok")
    spin_tail("fpoll", sleep=32)
    LB("fok")
    stamp(4, "ret")
    if stamps == "ret":
        A(f"s_sub_u32 s{sTs+2}, {SPIN}, s{sSpin}")
        A(f"s_mul_i32 s{sTs+2}, s{sTs+2}, 133")
        A(f"s_add_u32 s{sTs+2}, s{sTs+2}, s{sTs}")
        A(f"s_mov_b32 s{sTs+1}, s{sTs}")
        A(f"s_mov_b32 s{sTs+3}, s{sTs}")
        A(f"s_mov_b32 s{sTs+5}, s{sTs}")
    A(f"ds_write_b64 v{vQl}, v[{QL+4}:{QL+5}] offset:{L_QH}")
    stamp(3)
    LB("rowdone")
    stamp(1, "svc")
    if stop == 3:
        A("s_waitcnt vmcnt(0) lgkmcnt(0)")
        A("s_branch L_svc_end")
    A(f"v_mov_b32 v{vT1}, {L_SYNC}")
    A("s_waitcnt lgkmcnt(0)")
    k.set_exec(1)
    A(f"ds_add_u32 v{vT1}, v{vOne_s}")
    k.set_exec(-1)
    C("---- address setup for the late phases ----")
    G = 20
    FB = 116
    WS = 116
    F2 = 212
    AF = 228
    DD = 8
    vG = vOff
    vTr, vAf, vYa, vYa2 = G, G + 1, G + 2, G + 3
    vRh, vRd, vRd2, vOl = G + 16, G + 17, G + 18, G + 19
    Yv = G + 40
    Ya = G + 72
    YO = [252, QK]
    rW2 = 44
    sOff2 = 62
    sFin = sWs
    sLoad, sOk, sHv = 6, 7, 12
    A(f"v_lshrrev_b32 v{vT0}, 3, v{vL}")
    A(f"v_mul_u32_u24 v{vG}, {1280-128}, v{vT0}")
    A(f"v_lshl_add_u32 v{vG}, v{vL}, 4, v{vG}")
    k.srd(rW, sWOp, 7864320)
    k.srd(rW2, sW2p, 1966080)
    A(f"s_lshl_b32 s{sT0}, s{sH}, 2")
    A(f"s_add_u32 s{sT0}, s{sT0}, s{sW}")
    A(f"s_lshl_b32 s{sT2}, s{sJ}, 7")
    A(f"s_mul_i32 s{sOff}, s{sT0}, {48*1280}")
    A(f"s_add_u32 s{sOff}, s{sOff}, s{sT2}")
    A(f"s_mul_i32 s{sOff2}, s{sT0}, {16*1280}")
    A(f"s_add_u32 s{sOff2}, s{sOff2}, s{sT2}")
    C("record addresses for batch w")
    A(f"s_lshl_b32 s{sT1}, s{sT0}, 10")
    A(f"s_add_u32 s{sT1}, s{sT1}, {W_RH}")
    A(f"v_and_b32 v{vT0}, 7, v{vL}")
    A(f"v_lshl_add_u32 v{vRh}, v{vT0}, 7, s{sT1}")
    A(f"s_lshl_b32 s{sT1}, s{sT0}, 13")
    A(f"s_add_u32 s{sT1}, s{sT1}, {W_REC}")
    A(f"v_lshl_add_u32 v{vRd}, v{vL}, 4, s{sT1}")
    A(f"v_add_u32 v{vRd2}, 4096, v{vRd}")
    A(f"s_mul_i32 s{sT1}, s{sW}, 384")
    A(f"v_lshl_add_u32 v{vOl}, v{vL}, 1, s{sT1}")
    C("LDS staging addresses")
    A(f"s_mul_i32 s{sT0}, s{sW}, {48*128}")
    A(f"s_add_u32 s{sT0}, s{sT0}, {L_WT}")
    A(f"v_lshl_add_u32 v{vXa}, v{vL}, 4, s{sT0}")
    A(f"s_lshl_b32 s{sT0}, s{sW}, 11")
    A(f"s_add_u32 s{sT0}, s{sT0}, {L_WT + 192*128}")
    A(f"v_lshl_add_u32 v{vXb}, v{vL}, 4, s{sT0}")
    C("transpose-read address: (8g + r)*128 + c*8 + w*32")
    A(f"v_lshrrev_b32 v{vT0}, 4, v{vL}")
    A(f"v_lshlrev_b32 v{vT0}, 3, v{vT0}")
    A(f"v_bfe_u32 v{vTr}, v{vL}, 2, 2")
    A(f"v_add_lshl_u32 v{vTr}, v{vTr}, v{vT0}, 7")
    A(f"v_and_b32 v{vT0}, 3, v{vL}")
    A(f"v_lshl_add_u32 v{vTr}, v{vT0}, 3, v{vTr}")
    A(f"s_lshl_b32 s{sT0}, s{sW}, 5")
    A(f"s_add_u32 s{sT0}, s{sT0}, {L_WT}")
    A(f"v_add_u32 v{vTr}, s{sT0}, v{vTr}")
    C("Y address: octet block + (4j + w) KB")
    A(f"s_lshl_b32 s{sT0}, s{sJ}, 2")
    A(f"s_add_u32 s{sT0}, s{sT0}, s{sW}")
    A(f"s_lshl_b32 s{sT0}, s{sT0}, 10")
    A(f"s_add_u32 s{sT0}, s{sT0}, s{sOB}")
    A(f"v_lshl_add_u32 v{vYa}, v{vL}, 4, s{sT0}")
    A(f"v_add_u32 v{vYa2}, 32768, v{vYa}")
    C("finaliser task (h < 4, or h < 8 when j < 2): group 4(j + 8(h>>2)) + w, batch h&3")
    A(f"s_cmp_lt_u32 s{sJ}, 2")
    A(f"s_cselect_b32 s{sT1}, 8, 4")
    A(f"s_cmp_lt_u32 s{sH}, s{sT1}")
    A(f"s_cselect_b32 s{sFin}, 1, 0")
    A(f"s_cselect_b32 s{sT2}, s{sH}, 0")
    A(f"s_lshr_b32 s{sT0}, s{sT2}, 2")
    A(f"s_lshl_b32 s{sT0}, s{sT0}, 3")
    A(f"s_add_u32 s{sT0}, s{sT0}, s{sJ}")
    A(f"s_lshl_b32 s{sT0}, s{sT0}, 2")
    A(f"s_add_u32 s{sT0}, s{sT0}, s{sW}")
    A(f"s_and_b32 s{sT2}, s{sT2}, 3")
    A(f"s_lshl_b32 s{sT1}, s{sT0}, 10")
    A(f"s_lshl_b32 s{sT3}, s{sT2}, 8")
    A(f"s_add_u32 s{sT1}, s{sT1}, s{sT3}")
    A(f"v_lshrrev_b32 v{vT0}, 4, v{vL}")
    A(f"v_mul_u32_u24 v{a}, 40960, v{vT0}")
    A(f"v_add_u32 v{a}, s{sT1}, v{a}")
    A(f"v_and_b32 v{vT0}, 15, v{vL}")
    A(f"v_lshl_add_u32 v{a}, v{vT0}, 4, v{a}")
    A(f"s_lshl_b32 s{sT0}, s{sT0}, 5")
    A(f"v_lshl_add_u32 v{vT1}, v{vT0}, 1, s{sT0}")
    A(f"s_mul_i32 s{sT2}, s{sT2}, 1280")
    A(f"v_add_u32 v{FXR+5}, s{sT2}, v{vT1}")
    for i in range(8):
        A(f"v_add_u32 v{Ya+i}, {W_QP + 4*40960*i}, v{a}")
    A(f"s_cmp_eq_u32 s{sFin}, 0")
    A("s_cbranch_scc1 L_nofin1")
    A(f"global_load_ushort v{FXR}, v{FXR+5}, s[{sX}:{sX+1}]")
    A(f"global_load_ushort v{FXR+1}, v{vT1}, s[{sB2p}:{sB2p+1}]")
    A("s_waitcnt vmcnt(0)")
    for i in range(2):
        A(f"v_lshlrev_b32 v{FXR+i}, 16, v{FXR+i}")
    LB("nofin1")
    C("hid A fragments once all four rows are in LDS: batch row (l&15)>>2, k offset 16*(l>>4) bytes")
    lds_wait4("rows", vT1, vT0, off=0, sleep=16)
    A(f"v_bfe_u32 v{vT0}, v{vL}, 2, 2")
    A(f"v_lshrrev_b32 v{vT1}, 4, v{vL}")
    A(f"v_lshlrev_b32 v{vT1}, 4, v{vT1}")
    A(f"v_lshl_add_u32 v{vAf}, v{vT0}, 9, v{vT1}")
    HF = G + 4
    for kb in range(2):
        A(f"ds_read_b128 v[{HF+4*kb}:{HF+4*kb+3}], v{vAf} offset:{L_QH+384+64*kb}")
    A(f"v_mul_u32_u24 v{vAf}, 384, v{vT0}")
    A(f"v_add_u32 v{vAf}, v{vAf}, v{vT1}")
    A(f"s_mov_b32 s{sLoad}, 0")
    A(f"s_mov_b32 s{sOk}, 0")
    WSP = [116, Yv]
    luid = [0]

    def only_j01():
        luid[0] += 1
        A(f"s_cmp_lt_u32 s{sJ}, 2")
        A(f"s_cbranch_scc0 L_j01_{luid[0]}")
        return f"j01_{luid[0]}"

    def w_loads(parts):
        lab = None
        for kind, p in parts:
            if p == 1 and lab is None:
                lab = only_j01()
            if kind == "o":
                for i in range(6):
                    A(f"s_add_u32 s{sT0}, s{sOff}, {8*1280*i}")
                    A(f"buffer_load_dwordx4 v[{WSP[p]+4*i}:{WSP[p]+4*i+3}], v{vG}, s[{rW}:{rW+3}], s{sT0} offen offset:{1024*p} nt")
            else:
                for i in range(2):
                    A(f"s_add_u32 s{sT0}, s{sOff2}, {8*1280*i}")
                    A(f"buffer_load_dwordx4 v[{WSP[p]+24+4*i}:{WSP[p]+24+4*i+3}], v{vG}, s[{rW2}:{rW2+3}], s{sT0} offen offset:{1024*p} nt")
        if lab:
            LB(lab)

    def w_stage(parts, cnt):
        lab = None
        for kind, p in parts:
            if p == 1 and lab is None:
                lab = only_j01()
            if kind == "o":
                for i in range(6):
                    A(f"ds_write_b128 v{vXa}, v[{WSP[p]+4*i}:{WSP[p]+4*i+3}] offset:{32768*p+1024*i}")
            else:
                for i in range(2):
                    A(f"ds_write_b128 v{vXb}, v[{WSP[p]+24+4*i}:{WSP[p]+24+4*i+3}] offset:{32768*p+1024*i}")
        if lab:
            LB(lab)
        A(f"v_mov_b32 v{vT1}, {L_SYNC}")
        k.set_exec(1)
        A(f"ds_add_u32 v{vT1}, v{vOne_s} offset:{cnt}")
        k.set_exec(-1)

    def frags(nkb, dst, row0, p):
        for kb in range(nkb):
            for hh in range(2):
                r = dst + 4 * kb + 2 * hh
                A(f"ds_read_b64_tr_b16 v[{r}:{r+1}], v{vTr} offset:{(row0+32*kb+4*hh)*128 + 32768*p}")

    def w_frags(parts):
        lab = None
        for kind, p in parts:
            if p == 1 and lab is None:
                lab = only_j01()
            if kind == "o":
                frags(6, FB + 24 * p, 0, p)
            else:
                frags(2, F2 + 8 * p, 192, p)
        if lab:
            LB(lab)
        A("s_waitcnt lgkmcnt(0)")
        if ("2", 0) in parts:
            C("FFN2 partial B (zero for h >= 24)")
            for p in range(2):
                d = DD + 4 * p
                for kb in range(2):
                    c = "0" if kb == 0 else f"v[{d}:{d+3}]"
                    f = F2 + p * 8 + 4 * kb
                    A(f"v_mfma_f32_16x16x32_bf16 v[{d}:{d+3}], v[{HF+4*kb}:{HF+4*kb+3}], v[{f}:{f+3}], {c}")
            A(f"s_cmp_lt_u32 s{sH}, 24")
            A(f"s_cselect_b32 s{sT0}, -1, 0")
            A("s_nop 6")
            for p in range(2):
                A(f"v_and_b32 v{YO[p]+1}, s{sT0}, v{DD+4*p}")
                A(f"v_xor_b32 v{YO[p]+3}, s{sTagY}, v{YO[p]+1}")

    ALLP = [("o", 0), ("2", 0), ("o", 1), ("2", 1)]
    EARLYP = [("2", 0), ("o", 1), ("2", 1)] if split else []
    LATEP = [x for x in ALLP if x not in EARLYP]
    sStg = 63
    A(f"s_mov_b32 s{sStg}, 0")
    if EARLYP:
        w_loads(EARLYP)
        A("s_waitcnt vmcnt(0)")
        w_stage(EARLYP, 20)
        lds_wait4("rdy0", vT1, vT0, off=20, sleep=4)
        w_frags(EARLYP)
    if late:
        C("the weight lines are fetched while the stream drains")
        if late <= 4:
            lds_wait4("nl", vT1, vT0, off=8, n=late, sleep=8)
        else:
            lds_wait4("nl", vT1, vT0, off=12, n=late - 4, sleep=6)
        A("s_setprio 3")
    stamp(1, "epi")
    w_loads(LATEP)
    if not ovl:
        A("s_waitcnt vmcnt(0)")
        w_stage(LATEP, 4)
        lds_wait4("rdy", vT1, vT0, off=4, sleep=0 if late else 4)
        w_frags(LATEP)

    def proj_store(nkb, frag, fstride, tagl):
        for kb in range(nkb):
            for p in range(2):
                d = DD + 4 * p
                c = "0" if kb == 0 else f"v[{d}:{d+3}]"
                f = frag + p * fstride + 4 * kb
                A(f"s_waitcnt lgkmcnt({nkb-1-kb})") if p == 0 else None
                A(f"v_mfma_f32_16x16x32_bf16 v[{d}:{d+3}], v[{AF+4*kb}:{AF+4*kb+3}], v[{f}:{f+3}], {c}")
        A(f"s_cmp_lt_u32 s{sJ}, 2")
        A("s_nop 5")
        for p in range(2):
            if p == 1:
                A(f"s_cbranch_scc0 L_{tagl}")
            A(f"v_mov_b32 v{YO[p]}, v{DD+4*p}")
            A(f"v_xor_b32 v{YO[p]+2}, v{DD+4*p}, v{YO[p]+3}")
            va = vYa if p == 0 else vYa2
            A(f"global_store_dwordx4 v{va}, v[{YO[p]}:{YO[p]+3}], s[{sWS}:{sWS+1}] {SC}")
        LB(tagl)

    def ysum(ybase, tagl, sleep, nld):
        sMiss = 6
        A(f"s_mov_b32 s{sSpin}, {SPIN}")
        A(f"s_mov_b32 s{sMiss}, 0xff")
        LB(tagl)
        for i in range(nld):
            A(f"s_bitcmp1_b32 s{sMiss}, {i}")
            A(f"s_cbranch_scc0 L_ys{i}")
            A(f"global_load_dwordx4 v[{Yv+4*i}:{Yv+4*i+3}], v{Ya+i}, s[{sWS}:{sWS+1}] {SC}")
            LB(f"ys{i}")
        A("s_waitcnt vmcnt(0)")
        for i in range(nld):
            xor3(a + (i & 1), f"v{Yv+4*i}", f"v{Yv+4*i+1}", f"v{Yv+4*i+2}")
            A(f"v_cmp_ne_u32 vcc, s{sTagY}, v{a+(i&1)}")
            A(f"s_cbranch_vccnz L_yv{i}")
            A(f"s_bitset0_b32 s{sMiss}, {i}")
            LB(f"yv{i}")
        A(f"s_cmp_eq_u32 s{sMiss}, 0")
        A(f"s_cbranch_scc1 L_{tagl}ok")
        spin_tail(tagl, sleep=sleep)
        LB(tagl + "ok")
        for i in range(0, 8, 2):
            A(f"v_pk_add_f32 v[{Yv+4*i}:{Yv+4*i+1}], v[{Yv+4*i}:{Yv+4*i+1}], v[{Yv+4*i+4}:{Yv+4*i+5}]")
        A(f"v_pk_add_f32 v[{Yv}:{Yv+1}], v[{Yv}:{Yv+1}], v[{Yv+8}:{Yv+9}]")
        A(f"v_pk_add_f32 v[{Yv+16}:{Yv+17}], v[{Yv+16}:{Yv+17}], v[{Yv+24}:{Yv+25}]")
        A(f"v_pk_add_f32 v[{Yv}:{Yv+1}], v[{Yv}:{Yv+1}], v[{Yv+16}:{Yv+17}]")
        for op in ("v_permlane16_swap_b32", "v_permlane32_swap_b32"):
            A(f"v_mov_b32 v{Yv+2}, v{Yv}")
            A(f"v_mov_b32 v{Yv+3}, v{Yv+1}")
            A("s_nop 0")
            A(f"{op} v{Yv}, v{Yv+2}")
            A(f"{op} v{Yv+1}, v{Yv+3}")
            A("s_nop 0")
            A(f"v_pk_add_f32 v[{Yv}:{Yv+1}], v[{Yv}:{Yv+1}], v[{Yv+2}:{Yv+3}]")

    stamp(2, "epi")
    C("start polling once this workgroup's stream waves have flushed")
    lds_wait4("fl2", vT1, vT0, off=12, n=4, sleep=2 if late else 8)
    A("s_setprio 3")
    A(f"s_mov_b32 s{sSpin}, {SPIN}")
    stamp(4)
    HD = G + 24
    LB("rpoll")
    A(f"global_load_dwordx4 v[{HD}:{HD+3}], v{vRh}, s[{sWS}:{sWS+1}] {SC}")
    for j in range(8):
        va = vRd if j < 4 else vRd2
        A(f"s_bitcmp1_b32 s{sLoad}, {j}")
        A(f"s_cbranch_scc0 L_rs{j}")
        A(f"global_load_dwordx4 v[{QL+4*j}:{QL+4*j+3}], v{va}, s[{sWS}:{sWS+1}] offset:{1024*(j%4)} {SC}")
        LB(f"rs{j}")
    if ovl:
        C("second round onwards: fragments while the poll is in flight")
        A(f"s_cmp_eq_u32 s{sStg}, 1")
        A("s_cbranch_scc0 L_nofr")
        A(f"s_mov_b32 s{sT3}, s{sSpin}")
        A(f"s_call_b64 s[{sRet}:{sRet+1}], L_dofr")
        A(f"s_mov_b32 s{sSpin}, s{sT3}")
        LB("nofr")
    A("s_waitcnt vmcnt(0)")
    if ovl:
        A(f"s_cmp_eq_u32 s{sStg}, 0")
        A("s_cbranch_scc0 L_nost")
        w_stage(LATEP, 4)
        A(f"s_mov_b32 s{sStg}, 1")
        LB("nost")
    xor3(HD + 4, f"v{HD}", f"v{HD+1}", f"v{HD+2}")
    A(f"v_cmp_eq_u32 vcc, s{sTag}, v{HD+4}")
    A(f"s_and_b32 s{sHv}, vcc_lo, 0xff")
    for j in range(8):
        A(f"s_bitcmp1_b32 s{sLoad}, {j}")
        A(f"s_cbranch_scc0 L_rv{j}")
        xor3(a, f"v{QL+4*j}", f"v{QL+4*j+1}", f"v{QL+4*j+2}")
        A(f"v_xor_b32 v{a}, v{a}, v{QL+4*j+3}")
        A(f"v_cmp_ne_u32 vcc, s{sTag}, v{a}")
        A(f"s_cbranch_vccnz L_rv{j}")
        A(f"s_bitset1_b32 s{sOk}, {j}")
        LB(f"rv{j}")
    A(f"s_and_b32 s{sT0}, s{sOk}, s{sHv}")
    A(f"s_cmp_eq_u32 s{sT0}, 0xff")
    A("s_cbranch_scc1 L_rok")
    A(f"s_bcnt1_i32_b32 s{sT0}, s{sHv}")
    A(f"s_cmp_ge_u32 s{sT0}, {8-nmiss}")
    A(f"s_cselect_b32 s{sLoad}, 0xff, s{sHv}")
    A("s_cbranch_scc1 L_rfast")
    A(f"s_sleep {esleep}")
    LB("rfast")
    A(f"s_andn2_b32 s{sLoad}, s{sLoad}, s{sOk}")
    spin_tail("rpoll", sleep=0)
    LB("rok")
    stamp(3, "epi")
    A(f"v_mov_b32 v{HD+4}, v{HD}")
    k.butterfly("v_max_f32", [HD + 4], 3)
    A(f"v_sub_f32 v{HD+5}, v{HD}, v{HD+4}")
    A(f"v_mul_f32 v{HD+5}, {LOG2E}, v{HD+5}")
    A(f"v_exp_f32 v{HD+5}, v{HD+5}")
    A("s_nop 0")
    A(f"v_mul_f32 v{HD+6}, v{HD+5}, v{HD+1}")
    for j in range(8):
        A(f"v_readlane_b32 s{sWt+j}, v{HD+5}, {j}")
    k.dpp("v_add_f32", HD + 6, "quad_perm:[1,0,3,2]")
    O = HD + 8
    A(f"v_pk_mul_f32 v[{O}:{O+1}], v[{QL}:{QL+1}], s[{sWt}:{sWt+1}] op_sel_hi:[1,0]")
    A(f"v_mul_f32 v{O+2}, s{sWt}, v{QL+2}")
    k.dpp("v_add_f32", HD + 6, "quad_perm:[2,3,0,1]")
    for j in range(1, 8):
        k.pkfma(O, QL + 4 * j, sWt + j, pre="s")
        A(f"v_fmac_f32 v{O+2}, s{sWt+j}, v{QL+4*j+2}")
        if j == 1:
            k.dpp("v_add_f32", HD + 6, "row_half_mirror")
        if j == 2:
            A(f"v_rcp_f32 v{HD+7}, v{HD+6}")
    for i in range(3):
        A(f"v_mul_f32 v{O+4+i}, v{O+i}, v{HD+7}")
    for i in range(3):
        A(f"v_fma_f32 v{O+i}, -v{O+4+i}, v{HD+6}, v{O+i}")
    for i in range(3):
        A(f"v_fma_f32 v{O+i}, v{O+i}, v{HD+7}, v{O+4+i}")
    A(f"v_cvt_pk_bf16_f32 v{O+4}, v{O}, v{O+1}")
    A(f"v_cvt_pk_bf16_f32 v{O+5}, v{O+2}, v{O+2}")
    A(f"ds_write_b16 v{vOl}, v{O+4} offset:{L_OB}")
    A(f"ds_write_b16_d16_hi v{vOl}, v{O+4} offset:{L_OB+128}")
    A(f"ds_write_b16 v{vOl}, v{O+5} offset:{L_OB+256}")
    A("s_waitcnt lgkmcnt(0)")
    A("s_barrier")
    for kb in range(6):
        A(f"ds_read_b128 v[{AF+4*kb}:{AF+4*kb+3}], v{vAf} offset:{L_OB+64*kb}")
    proj_store(6, FB, 24, "ya_done")
    stamp(4, "epi")
    A(f"s_cmp_eq_u32 s{sFin}, 0")
    A("s_cbranch_scc1 L_svc_end")
    ysum(W_YA, "yap", ysleep, 8)
    k.set_exec(0xffff)
    k.rnd2(Yv, Yv + 1, Yv + 2)
    A(f"v_pk_add_f32 v[{Yv}:{Yv+1}], v[{Yv}:{Yv+1}], v[{FXR}:{FXR+1}]")
    k.rnd2(Yv, Yv + 1, Yv + 2)
    A(f"v_add_f32 v{Yv}, v{Yv}, v{Yv+1}")
    A(f"v_cvt_pk_bf16_f32 v{Yv}, v{Yv}, v{Yv}")
    A(f"global_store_short v{FXR+5}, v{Yv}, s[{sOUT}:{sOUT+1}]")
    k.set_exec(-1)
    C("generation bump by (h=0, j=0, w=0)")
    A(f"s_or_b32 s{sT0}, s2, s{sW}")
    A(f"s_cmp_eq_u32 s{sT0}, 0")
    A("s_cbranch_scc0 L_svc_end")
    A(f"v_mov_b32 v{vT0}, {W_GEN}")
    A(f"v_mov_b32 v{vT1}, s{sTag}")
    k.set_exec(1)
    A(f"global_store_dword v{vT0}, v{vT1}, s[{sWS}:{sWS+1}] {SC}")
    k.set_exec(-1)
    A("s_branch L_svc_end")
    if ovl:
        LB("dofr")
        lds_wait4("rdy", vT1, vT0, off=4, sleep=0)
        w_frags(LATEP)
        A(f"s_mov_b32 s{sStg}, 2")
        A(f"s_setpc_b64 s[{sRet}:{sRet+1}]")
    LB("svc_end")
    stamp(5)
    stamp(5, "epi")
    write_stamps(QL, vT0)
    A("s_endpgm")
    LB("stream")
    in_service[0] = False
    C("================= stream waves (4..7) =================")
    vKoff, vOne, vM, vLs, vAl, vQa, vCa = 2, 6, 7, 8, 9, 10, 11
    vClaim = [5, 0]
    S = 12
    k.TP = 16
    k.ntp = 4
    D = 16
    QF = 24
    ACC = 36
    SL = 60
    MG = 60

    def kreg(x):
        return SL + 48 * x

    def vreg(x):
        return SL + 48 * x + 24

    def loads(base, srd, so):
        for j in range(6):
            r = base + 4 * j
            A(f"buffer_load_dwordx4 v[{r}:{r+3}], v{vKoff}, s[{srd}:{srd+3}], s{so} offen offset:{boff[j]} nt")

    def k_tile(x):
        s0 = kreg(x)
        Da, Db = D, D + 4
        for n in range(3):
            ca = "0" if n == 0 else f"v[{Da}:{Da+3}]"
            cb = "0" if n == 0 else f"v[{Db}:{Db+3}]"
            A(f"v_mfma_f32_16x16x32_bf16 v[{Da}:{Da+3}], v[{QF+4*n}:{QF+4*n+3}], v[{s0+4*n}:{s0+4*n+3}], {ca}")
            A(f"v_mfma_f32_16x16x32_bf16 v[{Db}:{Db+3}], v[{QF+4*n}:{QF+4*n+3}], v[{s0+12+4*n}:{s0+12+4*n+3}], {cb}")

    def softmax():
        for t in range(2):
            d = D + 4 * t
            A(f"v_add_f32_dpp v{S+t}, v{d+1}, v{d} row_ror:8 row_mask:0xf bank_mask:0x3")
            A(f"v_add_f32_dpp v{S+t}, v{d}, v{d+1} row_ror:8 row_mask:0xf bank_mask:0xc")
        if mimic:
            k.rnd2(S, S + 1, vT0)
        for t in range(2):
            A(f"v_mul_f32 v{S+t}, {SCALE}, v{S+t}")
        if mimic:
            k.rnd2(S, S + 1, vT0)
        A(f"v_max3_f32 v{vT0}, v{vM}, v{S}, v{S+1}")
        A(f"v_sub_f32 v{vAl}, v{vM}, v{vT0}")
        for t in range(2):
            A(f"v_sub_f32 v{S+t}, v{S+t}, v{vT0}")
        A(f"v_mul_f32 v{vAl}, {LOG2E}, v{vAl}")
        for t in range(2):
            A(f"v_mul_f32 v{S+t}, {LOG2E}, v{S+t}")
        A(f"v_exp_f32 v{vAl}, v{vAl}")
        for t in range(2):
            A(f"v_exp_f32 v{S+t}, v{S+t}")
        A(f"v_mov_b32 v{vM}, v{vT0}")
        A(f"v_fma_f32 v{vLs}, v{vLs}, v{vAl}, v{S}")
        for i in range(12):
            k.pkmul(ACC + 2 * i, vAl)
        A(f"v_add_f32 v{vLs}, v{vLs}, v{S+1}")

    def v_tile(x):
        s0 = vreg(x)
        items = [(s0 + 12 * half + 4 * n + d, ACC + 8 * n + 2 * d, S + half)
                 for half in range(2) for n in range(3) for d in range(4)]
        pend = []
        for it in items:
            t = k.unpack(it[0])
            pend.append((it[1], t, it[2]))
            if len(pend) > 2:
                ac, tt, m = pend.pop(0)
                k.pkfma(ac, tt, m)
        for ac, tt, m in pend:
            k.pkfma(ac, tt, m)

    def flush():
        A(f"v_mov_b32 v{vT0}, v{vM}")
        k.butterfly("v_max_f32", [vT0], 3)
        A(f"v_sub_f32 v{vAl}, v{vM}, v{vT0}")
        A(f"v_mul_f32 v{vAl}, {LOG2E}, v{vAl}")
        A(f"v_exp_f32 v{vAl}, v{vAl}")
        A(f"s_mul_i32 s{sT0}, s{sWs}, 5")
        A(f"s_add_u32 s{sT0}, s{sT0}, s{sSlot}")
        A(f"s_lshl_b32 s{sT1}, s{sT0}, 10")
        A(f"v_mul_f32 v{vLs}, v{vLs}, v{vAl}")
        for i in range(12):
            k.pkmul(ACC + 2 * i, vAl)
        k.dpp("v_add_f32", vLs, "quad_perm:[1,0,3,2]")
        for n in range(3):
            for c in range(4):
                x, y = ACC + 8 * n + c, ACC + 8 * n + c + 4
                A(f"v_add_f32_dpp v{x}, v{x}, v{x} row_half_mirror row_mask:0xf bank_mask:0x5")
                A(f"v_add_f32_dpp v{x}, v{y}, v{y} row_half_mirror row_mask:0xf bank_mask:0xa")
        k.dpp("v_add_f32", vLs, "quad_perm:[2,3,0,1]")
        for n in range(3):
            for c in range(2):
                x, y = ACC + 8 * n + c, ACC + 8 * n + c + 2
                A(f"v_cndmask_b32 v{x+4}, v{y}, v{x}, s[{sM1}:{sM1+1}]")
                A(f"v_cndmask_b32 v{x}, v{x}, v{y}, s[{sM1}:{sM1+1}]")
        k.dpp("v_add_f32", vLs, "row_half_mirror")
        for n in range(3):
            for c in range(2):
                x = ACC + 8 * n + c
                A(f"v_add_f32_dpp v{x}, v{x+4}, v{x} quad_perm:[2,3,0,1] row_mask:0xf bank_mask:0xf")
        for n in range(3):
            x, y = ACC + 8 * n, ACC + 8 * n + 1
            A(f"v_cndmask_b32 v{x+4}, v{y}, v{x}, s[{sM0}:{sM0+1}]")
            A(f"v_cndmask_b32 v{x}, v{x}, v{y}, s[{sM0}:{sM0+1}]")
        A(f"v_lshl_add_u32 v{vT1}, v{vL}, 4, s{sT1}")
        A(f"s_lshl_b32 s{sT0}, s{sT0}, 4")
        for n in range(3):
            x = ACC + 8 * n
            A(f"v_add_f32_dpp v{D+n}, v{x+4}, v{x} quad_perm:[1,0,3,2] row_mask:0xf bank_mask:0xf")
        A(f"v_mov_b32 v{S}, v{vT0}")
        A(f"v_mov_b32 v{S+1}, v{vLs}")
        A(f"v_mov_b32 v{S+2}, s{sPairSt}")
        A(f"v_mov_b32 v{vT0}, s{sT0}")
        A(f"ds_write_b128 v{vT1}, v[{D}:{D+3}] offset:{L_REC}")
        k.set_exec(1)
        A(f"ds_write_b128 v{vT0}, v[{S}:{S+3}] offset:{L_RHD}")
        k.set_exec(-1)
        A(f"s_add_u32 s{sSlot}, s{sSlot}, 1")

    def reset_state():
        A(f"v_mov_b32 v{vM}, {NEGBIG}")
        A(f"v_mov_b32 v{vLs}, 0")
        for i in range(24):
            A(f"v_mov_b32 v{ACC+i}, 0")

    def load_q():
        A(f"s_lshl_b32 s{sT0}, s{sPairCur}, 9")
        A(f"v_add_u32 v{vT0}, s{sT0}, v{vQa}")
        for n in range(3):
            A(f"ds_read_b128 v[{QF+4*n}:{QF+4*n+3}], v{vT0} offset:{L_QH+128*n}")
        A(f"s_mov_b32 s{sPairSt}, s{sPairCur}")

    uid = [0]

    def check_pair(x):
        uid[0] += 1
        A(f"s_cmp_eq_u32 s{sPair[x]}, s{sPairSt}")
        A(f"s_cbranch_scc1 L_same{uid[0]}")
        A(f"s_mov_b32 s{sPairCur}, s{sPair[x]}")
        A(f"s_call_b64 s[{sRet}:{sRet+1}], L_switch")
        LB(f"same{uid[0]}")

    A(f"s_sub_u32 s{sWs}, s{sW}, 4")
    A(f"v_and_b32 v{vT0}, 7, v{vL}")
    A(f"v_lshrrev_b32 v{vT1}, 3, v{vL}")
    A(f"v_mul_u32_u24 v{vKoff}, 384, v{vT0}")
    A(f"v_lshl_add_u32 v{vKoff}, v{vT1}, 4, v{vKoff}")
    A(f"s_lshr_b32 s{sPairCur}, s{sJ}, 1")
    A(f"s_mul_i32 s{sHoff}, s{sH}, 3145728")
    A(f"s_mul_i32 s{sStat}, s{sPairCur}, 100663296")
    A(f"s_add_u32 s{sStat}, s{sStat}, s{sHoff}")
    STEP = 6144 * ilv
    sBase, sEnd = 90, 91
    sStep, sRunPair, sCi, sCp, sSingle, sNeedW = 80, 81, 82, 83, 84, 95
    n3 = NPOOL - n1 * g1 - n2 * g2
    assert n3 >= 0 and (n1 * g1) % max(g2, 1) == 0 and DP % g1 == 0 and DP % g2 == 0
    CT = n1 + n2 + n3
    vCl = 5
    A(f"s_and_b32 s{sT0}, s{sJ}, 1")
    if ilv == 1:
        A(f"s_lshl_b32 s{sT0}, s{sT0}, 2")
        A(f"s_add_u32 s{sT0}, s{sT0}, s{sWs}")
        A(f"s_mul_i32 s{sT0}, s{sT0}, {NS*6144}")
    elif ilv == 4:
        A(f"s_mul_i32 s{sT0}, s{sT0}, {4*NS}")
        A(f"s_add_u32 s{sT0}, s{sT0}, s{sWs}")
        A(f"s_mul_i32 s{sT0}, s{sT0}, 6144")
    elif ilv == 8:
        A(f"s_lshl_b32 s{sT0}, s{sT0}, 2")
        A(f"s_add_u32 s{sT0}, s{sT0}, s{sWs}")
        A(f"s_mul_i32 s{sT0}, s{sT0}, 6144")
    A(f"s_add_u32 s{sStat}, s{sStat}, s{sT0}")
    if rot:
        A(f"s_mov_b32 s{sBase}, s{sStat}")
        A(f"s_add_u32 s{sEnd}, s{sStat}, {NS*STEP}")
        C("rotation r = hash(wg[, wave]) scaled to [0, NS)")
        if ilv == 1:
            A(f"s_lshl_b32 s{sT0}, s2, 2")
            A(f"s_add_u32 s{sT0}, s{sT0}, s{sWs}")
        elif ilv == 4:
            A(f"s_mov_b32 s{sT0}, s2")
        else:
            A(f"s_lshr_b32 s{sT0}, s2, 1")
        A(f"s_mul_i32 s{sT0}, s{sT0}, 0x9e3779b1")
        A(f"s_mul_hi_u32 s{sT0}, s{sT0}, {NS}")
        A(f"s_mul_i32 s{sT0}, s{sT0}, {STEP}")
        A(f"s_add_u32 s{sStat}, s{sStat}, s{sT0}")

    A(f"s_mov_b32 s{sStep}, {STEP}")

    def adv():
        A(f"s_add_u32 s{sStat}, s{sStat}, s{sStep}")
        if rot:
            A(f"s_cmp_eq_u32 s{sStat}, s{sEnd}")
            A(f"s_cselect_b32 s{sStat}, s{sBase}, s{sStat}")
    A("s_waitcnt lgkmcnt(0)")
    A(f"s_load_dword s{sTag}, s[{sWS}:{sWS+1}], {W_GEN}")
    k.srd(rK, sKp, 402653184)
    k.srd(rV, sVp, 402653184)
    if bar1:
        A("s_barrier")
    if noq:
        A("s_barrier")
    order = [2 + i for i in range(NPRE)] + [0, 1]
    for xi, x in enumerate(order):
        if ypos and xi == ypos:
            A("s_barrier")
        loads(kreg(x), rK, sStat)
        loads(vreg(x), rV, sStat)
        adv()
    A(f"v_lshrrev_b32 v{vQa}, 4, v{vL}")
    A(f"v_lshlrev_b32 v{vQa}, 5, v{vQa}")
    A(f"v_and_b32 v{vT1}, 1, v{vL}")
    A(f"v_lshl_add_u32 v{vQa}, v{vT1}, 4, v{vQa}")
    A(f"v_mov_b32 v{vOne}, 1")
    A(f"s_mul_i32 s{sT0}, s{sH}, {qstride}")
    A(f"s_add_u32 s{sT0}, s{sT0}, {W_QCNT}")
    A(f"v_mov_b32 v{vCa}, s{sT0}")
    A(f"s_mov_b32 s{sPair[0]}, s{sPairCur}")
    A(f"s_mov_b32 s{sPair[1]}, s{sPairCur}")
    A(f"s_mov_b32 s{sRem}, {NS - 2 - NPRE}")
    A(f"s_mov_b32 s{sSlot}, 0")
    A(f"s_mov_b32 s{sRunPair}, s{sPairCur}")
    A(f"s_mov_b32 s{sCi}, 0")
    A(f"s_mov_b32 s{sCp}, 0")
    A(f"s_mov_b32 s{sSingle}, 0")
    A(f"s_mov_b32 s{sNeedW}, 0")
    A(f"s_mov_b32 s{sM1}, 0xcccccccc")
    A(f"s_mov_b32 s{sM1+1}, 0xcccccccc")
    A(f"s_mov_b32 s{sM0}, 0xaaaaaaaa")
    A(f"s_mov_b32 s{sM0+1}, 0xaaaaaaaa")
    reset_state()
    A("s_waitcnt lgkmcnt(0)")
    A(f"s_add_u32 s{sTag}, s{sTag}, 1")
    A(f"s_addc_u32 s{sTag}, s{sTag}, 0")
    A(f"s_cmp_eq_u32 s{sTag}, 0x80000001")
    A(f"s_addc_u32 s{sTag}, s{sTag}, 0")
    A(f"s_xor_b32 s{sTagY}, s{sTag}, 0x80000001")
    stamp(1)
    if qflag:
        lds_wait4("qf", vT1, vT0, off=16, n=1, sleep=1)
    elif not noq:
        A("s_barrier")
    load_q()
    A("s_waitcnt lgkmcnt(0)")
    stamp(2)
    for i in range(NPRE):
        rem = 12 * (NPRE + 2 - i)
        A(f"s_waitcnt vmcnt({rem-6})")
        k_tile(2 + i)
        A("s_nop 7")
        softmax()
        A(f"s_waitcnt vmcnt({rem-12})")
        v_tile(2 + i)
    LB("loop")
    for x in range(2):
        A("s_waitcnt vmcnt(18)")
        check_pair(x)
        k_tile(x)
        A(f"s_sub_u32 s{sRem}, s{sRem}, 1")
        A(f"s_cmp_gt_i32 s{sRem}, 1")
        A(f"s_cbranch_scc0 L_dyn{x}")
        A(f"s_mov_b32 s{sNxt}, s{sStat}")
        A(f"s_mov_b32 s{sPair[x]}, s{sRunPair}")
        adv()
        LB(f"dynret{x}")
        loads(kreg(x), rK, sNxt)
        softmax()
        A("s_waitcnt vmcnt(18)")
        v_tile(x)
        loads(vreg(x), rV, sNxt)
    A("s_branch L_loop")
    def issue_claim():
        A(f"s_lshl_b64 exec, 1, s{sCi}")
        A(f"global_atomic_add v{vCl}, v{vCa}, v{vOne}, s[{sWS}:{sWS+1}] sc0")
        k.set_exec(-1)
        A(f"s_add_u32 s{sCi}, s{sCi}, 1")

    for x in range(2):
        LB(f"dyn{x}")
        A(f"s_cmp_ge_i32 s{sRem}, 0")
        A(f"s_cbranch_scc1 L_take{x}")
        C("current run exhausted: pop the oldest claim")
        A(f"s_cmp_eq_u32 s{sNeedW}, 0")
        A(f"s_cbranch_scc1 L_now{x}")
        A("s_waitcnt vmcnt(12)")
        if not la1:
            A(f"s_mov_b32 s{sNeedW}, 0")
        LB(f"now{x}")
        A(f"s_and_b32 s{sT1}, s{sCp}, 63")
        A(f"v_readlane_b32 s{sT0}, v{vCl}, s{sT1}")
        A(f"s_add_u32 s{sCp}, s{sCp}, 1")
        A("s_nop 2")
        A(f"s_cmp_ge_u32 s{sT0}, {CT}")
        A(f"s_cbranch_scc1 L_last{x}")
        A(f"s_add_u32 s{sT1}, s{sT0}, {n1*g1 + n2*g2 - n1 - n2}")
        A(f"s_mov_b32 s{sRem}, 0")
        A(f"s_mul_i32 s{sT2}, s{sT0}, {g2}")
        A(f"s_add_u32 s{sT2}, s{sT2}, {n1*g1 - n1*g2}")
        A(f"s_cmp_lt_u32 s{sT0}, {n1+n2}")
        A(f"s_cselect_b32 s{sT1}, s{sT2}, s{sT1}")
        A(f"s_cselect_b32 s{sRem}, {g2-1}, s{sRem}")
        A(f"s_mul_i32 s{sT2}, s{sT0}, {g1}")
        A(f"s_cmp_lt_u32 s{sT0}, {n1}")
        A(f"s_cselect_b32 s{sT1}, s{sT2}, s{sT1}")
        A(f"s_cselect_b32 s{sRem}, {g1-1}, s{sRem}")
        A(f"s_lshr_b32 s{sRunPair}, s{sT1}, {LDP}")
        A(f"s_and_b32 s{sT1}, s{sT1}, {DP-1}")
        A(f"s_add_u32 s{sT1}, s{sT1}, {512-DP}")
        A(f"s_mul_i32 s{sT1}, s{sT1}, 6144")
        A(f"s_mul_i32 s{sStat}, s{sRunPair}, 100663296")
        A(f"s_add_u32 s{sStat}, s{sStat}, s{sHoff}")
        A(f"s_add_u32 s{sStat}, s{sStat}, s{sT1}")
        A(f"s_movk_i32 s{sStep}, 6144")
        A(f"s_mov_b32 s{sEnd}, -1")
        C("first single-unit run: switch to two claims in flight")
        A(f"s_or_b32 s{sT1}, s{sRem}, s{sSingle}")
        A(f"s_cbranch_scc1 L_take{x}")
        A(f"s_mov_b32 s{sNeedW}, 1")
        if not la1:
            A(f"s_mov_b32 s{sSingle}, 1")
            issue_claim()
        LB(f"take{x}")
        A(f"s_mov_b32 s{sNxt}, s{sStat}")
        A(f"s_mov_b32 s{sPair[x]}, s{sRunPair}")
        adv()
        C("top up: allowed in flight = 1 + single; only when the run has <= 1 unit left")
        A(f"s_cmp_gt_i32 s{sRem}, 1")
        A(f"s_cbranch_scc1 L_dynret{x}")
        A(f"s_sub_u32 s{sT0}, s{sCi}, s{sCp}")
        A(f"s_cmp_gt_u32 s{sT0}, s{sSingle}")
        A(f"s_cbranch_scc1 L_dynret{x}")
        issue_claim()
        A(f"s_branch L_dynret{x}")
    LB("flush")
    flush()
    A(f"s_setpc_b64 s[{sRet2}:{sRet2+1}]")
    LB("switch")
    A(f"s_call_b64 s[{sRet2}:{sRet2+1}], L_flush")
    lds_wait4("swrdy", vT1, vT0)
    load_q()
    reset_state()
    A("s_waitcnt lgkmcnt(0)")
    A(f"s_setpc_b64 s[{sRet}:{sRet+1}]")
    for x in range(2):
        y = 1 - x
        LB(f"last{x}")
        stamp(3)
        if True:
            A(f"v_mov_b32 v{vT1}, {L_SYNC}")
            k.set_exec(1)
            A(f"ds_add_u32 v{vT1}, v{vOne} offset:8")
            k.set_exec(-1)
        else:
            A("s_nop 3")
        softmax()
        A("s_waitcnt vmcnt(12)")
        v_tile(x)
        A("s_waitcnt vmcnt(6)")
        check_pair(y)
        k_tile(y)
        A("s_nop 7")
        softmax()
        A("s_waitcnt vmcnt(0)")
        v_tile(y)
        if x == 0:
            A("s_branch L_fin")
    LB("fin")
    A(f"s_call_b64 s[{sRet2}:{sRet2+1}], L_flush")
    if True:
        A(f"v_mov_b32 v{vAl}, {L_SYNC}")
        k.set_exec(1)
        A(f"ds_add_u32 v{vAl}, v{vOne} offset:12")
        k.set_exec(-1)
    vRa, vRhh = QF, QF + 2
    A(f"s_lshl_b32 s{sT0}, s{sH}, 2")
    A(f"s_add_u32 s{sT0}, s{sT0}, s{sWs}")
    A(f"s_lshl_b32 s{sT0}, s{sT0}, 3")
    A(f"s_add_u32 s{sT0}, s{sT0}, s{sJ}")
    A(f"s_lshl_b32 s{sT1}, s{sT0}, 10")
    A(f"s_add_u32 s{sT1}, s{sT1}, {W_REC}")
    A(f"v_lshl_add_u32 v{vRa}, v{vL}, 4, s{sT1}")
    A(f"s_lshl_b32 s{sT1}, s{sT0}, 7")
    A(f"s_add_u32 s{sT1}, s{sT1}, {W_RH}")
    A(f"v_lshl_add_u32 v{vRhh}, v{vL}, 4, s{sT1}")
    A(f"v_min_u32 v{vT0}, 19, v{vL}")
    A(f"v_lshlrev_b32 v{vT0}, 4, v{vT0}")
    A(f"v_lshlrev_b32 v{vT1}, 4, v{vL}")
    A(f"v_cmp_gt_u32 s[{sM0}:{sM0+1}], 20, v{vL}")
    A(f"v_mov_b32 v{vM}, {NEGBIG}")
    if True:
        lds_wait4("fl", vAl, vLs, off=12, n=4, sleep=0)
    else:
        A("s_waitcnt lgkmcnt(0)")
        A("s_barrier")
    stamp(4)
    C("==== WG merge: stream wave w handles pair w ====")
    A(f"ds_read_b128 v[{S}:{S+3}], v{vT0} offset:{L_RHD}")
    for i in range(14):
        A(f"ds_read_b128 v[{MG+4*i}:{MG+4*i+3}], v{vT1} offset:{L_REC+1024*i}")
    A("s_waitcnt lgkmcnt(14)")
    A(f"v_cmp_eq_u32 vcc, s{sWs}, v{S+2}")
    A(f"s_and_b64 vcc, vcc, s[{sM0}:{sM0+1}]")
    for i in range(14, 20):
        A(f"ds_read_b128 v[{MG+4*i}:{MG+4*i+3}], v{vT1} offset:{L_REC+1024*i}")
    A(f"v_cndmask_b32 v{vM}, v{vM}, v{S}, vcc")
    C("records live in lanes 0..19: reduce rows 0,1 only")
    k.butterfly("v_max_f32", [vM], 4)
    A("s_nop 0")
    A(f"v_readlane_b32 s{sT0}, v{vM}, 0")
    A(f"v_readlane_b32 s{sT1}, v{vM}, 16")
    A("s_nop 0")
    A(f"v_mov_b32 v{vM}, s{sT0}")
    A(f"v_max_f32 v{vM}, s{sT1}, v{vM}")
    A(f"v_sub_f32 v{vAl}, v{S}, v{vM}")
    A(f"v_mul_f32 v{vAl}, {LOG2E}, v{vAl}")
    A(f"v_exp_f32 v{vAl}, v{vAl}")
    A("s_nop 0")
    A(f"v_cndmask_b32 v{vAl}, 0, v{vAl}, vcc")
    A(f"v_mul_f32 v{vLs}, v{vAl}, v{S+1}")
    ctr = ["quad_perm:[1,0,3,2]", "quad_perm:[2,3,0,1]", "row_half_mirror", "row_mirror"]
    for i in range(20):
        A(f"v_readlane_b32 s{sWt+i}, v{vAl}, {i}")
        if i % 4 == 2 and i // 4 < 4:
            k.dpp("v_add_f32", vLs, ctr[i // 4])
    A(f"v_readlane_b32 s{sT0}, v{vLs}, 0")
    A(f"v_readlane_b32 s{sT1}, v{vLs}, 16")
    A("s_waitcnt lgkmcnt(0)")
    A(f"v_pk_mul_f32 v[{ACC}:{ACC+1}], v[{MG}:{MG+1}], s[{sWt}:{sWt+1}] op_sel_hi:[1,0]")
    A(f"v_mul_f32 v{ACC+2}, s{sWt}, v{MG+2}")
    A(f"v_mov_b32 v{ACC+9}, s{sT0}")
    A(f"v_add_f32 v{ACC+9}, s{sT1}, v{ACC+9}")
    A(f"v_mov_b32 v{ACC+8}, v{vM}")
    xor3(ACC + 10, f"v{vM}", f"v{ACC+9}", f"s{sTag}")
    for i in range(1, 20):
        k.pkfma(ACC, MG + 4 * i, sWt + i, pre="s")
        A(f"v_fmac_f32 v{ACC+2}, s{sWt+i}, v{MG+4*i+2}")
    xor3(ACC + 3, f"v{ACC}", f"v{ACC+1}", f"v{ACC+2}")
    A(f"v_xor_b32 v{ACC+3}, s{sTag}, v{ACC+3}")
    A(f"global_store_dwordx4 v{vRa}, v[{ACC}:{ACC+3}], s[{sWS}:{sWS+1}] {SC}")
    k.set_exec(0xff)
    A(f"global_store_dwordx4 v{vRhh}, v[{ACC+8}:{ACC+11}], s[{sWS}:{sWS+1}] {SC}")
    k.set_exec(-1)
    stamp(5)
    write_stamps(MG, vT1)
    LB("end")
    A("s_endpgm")
    return k, (256, 256), L_TOTAL


def build(stamps=False, **kw):
    k2, r2, l2 = build_main(stamps, **kw)
    txt = HEADER
    txt += f"; @launch grid=(256,1,1) block=(512,1,1) lds={l2}\n"
    txt += '.amdgcn_target "amdgcn-amd-amdhsa--gfx950"\n.text\n'
    txt += k2.text()
    txt += '.section .rodata,"a"\n'
    txt += k2.desc(*r2)
    return txt


if __name__ == "__main__":
    out = sys.argv[1] if len(sys.argv) > 1 else f"cdna_kernels/{NAME}.s"
    stamps = sys.argv[2] if len(sys.argv) > 2 and sys.argv[2] != "-" else False
    kw = {}
    for a in sys.argv[3:]:
        n, v = a.split("=")
        kw[n] = int(v)
    open(out, "w").write(build(stamps, **kw))
    print("wrote", out)
```

```python
import sys
from gen_v1 import HEADER, NAME
from gen_v2 import K, load_kernargs, SCALE, LOG2E, NEGBIG
from gen_v2 import sX, sKp, sVp, sWQp, sWOp, sW1p, sB1p, sW2p, sB2p, sOUT, sDBG, sWS

W_GEN = 0x0
W_QCNT = 0x800000
W_RH = 0xE0000
W_FR = 0x20000
W_YA = 0x400000
W_REC = 0x100000
W_QC = 0x200000
W_YB = 0x240000
W_QP = 0x300000
W_STAMP = 0x1000000
SPIN = 0x80000


def build_main(stamps=False, DP=64, NPRE=2, mimic=1, hsleep=1, qsleep=64, nmiss=2, pre1=0, pre2=0, noq=0, stop=0, ysleep=1, qstride=4352, stnt=0, ldnt=0, fsleep=120, dbg=0, ilv=4, rot=1, bar1=0, early=0, ymiss=1, esleep=4, alias=0, n1=24, g1=4, n2=24, g2=2, tstep=0, late=5, la1=0, ypos=3, qflag=1, ovl=1, split=1, pm=1, NDIR=1, NSD=2, NIT=7):
    ldsync = 1 if (early or late) else 0
    SCS = "sc1 nt" if stnt else "sc1"
    SCL = "sc1 nt" if ldnt else "sc1"
    SC = "sc1"
    k = K(f"{NAME}_kernel")
    k.lab = lambda s: f"L_{s}"
    k.LB = lambda s: k.L.append(f"L_{s}:")
    A, LB, C = k.A, k.LB, k.C
    sT0, sT1, sT2, sT3 = k.sT
    NS = (512 - DP) // 8
    LDP = DP.bit_length() - 1
    NPOOL = 4 * DP
    sW, sH, sJ = 3, 4, 5
    sRem, sStat, sNxt = 6, 7, 12
    sPairCur, sPairSt, sSlot, sHoff = 13, 14, 42, 43
    rK, rV = 44, 48
    sPair = [52, 53]
    sRet = 54
    sWt = 56
    sTm = 76
    sTag = 78
    sTagY = 94
    sOB = 95
    sSpin = 79
    rW = 80
    sOff = 84
    sWs = 85
    sM1, sM0 = 86, 88
    sRet2 = 92
    sTs = 96
    L_QH = 0
    L_SYNC = 2048
    L_RHD = 2112
    L_OB = 2560
    L_REC = 4096
    L_XN = L_REC + 16384
    L_WT = 32768
    L_SC = L_WT + 65536
    L_TOTAL = L_SC + 4 * 3584
    boff = [0, 128, 256, 1536, 1664, 1792] if pm == 1 else [0, 128, 256, 3072, 3200, 3328]
    in_service = [True]

    def stamp(i, mode="stamps"):
        if stamps == "ph" and mode == "stamps" and not in_service[0] and i in (1, 3, 4):
            return
        if stamps and (mode == stamps or (mode == "stamps" and (i == 0 or not in_service[0]))):
            A(f"s_memrealtime s[{sTm}:{sTm+1}]")
            A("s_waitcnt lgkmcnt(0)")
            A(f"s_mov_b32 s{sTs+i}, s{sTm}")

    def write_stamps(tmp, vA):
        if stamps and dbg:
            if in_service[0]:
                C("debug: WGs 0,40,85,130 wave 0 report (t1,t3,t5) - t0 and xcc")
                A(f"s_cmp_eq_u32 s{sW}, 0")
                A("s_cbranch_scc0 L_nodbg")
                A(f"s_mul_i32 s{sT1}, s2, 1457")
                A(f"s_lshr_b32 s{sT1}, s{sT1}, 16")
                A(f"s_mul_i32 s{sT3}, s{sT1}, 45")
                A(f"s_cmp_eq_u32 s{sT3}, s2")
                A("s_cbranch_scc0 L_nodbg")
                A(f"s_cmp_lt_u32 s{sT1}, 4")
                A("s_cbranch_scc0 L_nodbg")
                A(f"s_getreg_b32 s{sT2}, hwreg(HW_REG_XCC_ID)")
                A(f"s_lshl_b32 s{sT1}, s{sT1}, 4")
                for n, i in enumerate((1, 3, 5)):
                    A(f"s_sub_u32 s{sT3}, s{sTs+i}, s{sTs}")
                    A(f"v_mov_b32 v{tmp+n}, s{sT3}")
                A(f"v_mov_b32 v{tmp+3}, s{sT2}")
                A(f"v_mov_b32 v{vA}, s{sT1}")
                k.set_exec(1)
                A(f"global_store_dwordx4 v{vA}, v[{tmp}:{tmp+3}], s[{sDBG}:{sDBG+1}]")
                k.set_exec(-1)
                LB("nodbg")
        elif stamps:
            A(f"s_getreg_b32 s{sT2}, hwreg(HW_REG_XCC_ID)")
            A(f"s_lshl_b32 s{sT1}, s2, 3")
            A(f"s_add_u32 s{sT1}, s{sT1}, s{sW}")
            A(f"s_lshl_b32 s{sT1}, s{sT1}, 5")
            A(f"s_add_u32 s{sT1}, s{sT1}, {W_STAMP}")
            for i in range(6):
                A(f"v_mov_b32 v{tmp+i}, s{sTs+i}")
            A(f"v_mov_b32 v{tmp+6}, s{sT2}")
            A(f"v_mov_b32 v{tmp+7}, 0x12345678")
            A(f"v_mov_b32 v{vA}, s{sT1}")
            k.set_exec(1)
            A(f"global_store_dwordx4 v{vA}, v[{tmp}:{tmp+3}], s[{sWS}:{sWS+1}]")
            A(f"global_store_dwordx4 v{vA}, v[{tmp+4}:{tmp+7}], s[{sWS}:{sWS+1}] offset:16")
            k.set_exec(-1)

    def xor3(d, a, b, c):
        A(f"v_bitop3_b32 v{d}, {a}, {b}, {c} bitop3:0x96")

    def spin_tail(loop, sleep=None):
        if sleep:
            A(f"s_sleep {sleep}")
        A(f"s_sub_u32 s{sSpin}, s{sSpin}, 1")
        A(f"s_cmp_lg_u32 s{sSpin}, 0")
        A(f"s_cbranch_scc1 L_{loop}")

    def lds_wait4(tagl, vA, vD, off=0, n=4, sleep=4):
        A(f"v_mov_b32 v{vA}, {L_SYNC}")
        A(f"s_mov_b32 s{sSpin}, {SPIN*16}")
        LB(tagl)
        A(f"ds_read_b32 v{vD}, v{vA} offset:{off}")
        A("s_waitcnt lgkmcnt(0)")
        A(f"v_readfirstlane_b32 s{sT0}, v{vD}")
        A(f"s_sub_u32 s{sSpin}, s{sSpin}, 1")
        A(f"s_cselect_b32 s{sT0}, {n}, s{sT0}")
        A(f"s_cmp_ge_u32 s{sT0}, {n}")
        if sleep:
            A(f"s_cbranch_scc1 L_{tagl}ok")
            A(f"s_sleep {sleep}")
            A(f"s_branch L_{tagl}")
        else:
            A(f"s_cbranch_scc0 L_{tagl}")
        LB(tagl + "ok")

    vL, vT0, vT1 = 1, 3, 4
    A("s_cmp_ge_u32 s2, 256")
    A("s_cbranch_scc1 L_end")
    stamp(0)
    load_kernargs(k)
    A(f"v_and_b32 v{vL}, 63, v0")
    A(f"v_lshrrev_b32 v{vT0}, 6, v0")
    A(f"s_mov_b32 s{k.sMsk}, 0xffff0000")
    A(f"v_readfirstlane_b32 s{sW}, v{vT0}")
    A(f"s_lshr_b32 s{sH}, s2, 3")
    A(f"s_and_b32 s{sJ}, s2, 7")
    A(f"s_cmp_ge_u32 s{sW}, 4")
    A("s_cbranch_scc1 L_stream")
    C("================= service waves (0..3) =================")
    vOff, vXa, vXb, vOne_s = 2, 5, 6, 7
    a = 8
    k.TP = 16
    k.ntp = 2
    XR = 20
    XC = 40
    X = 44
    ACC = 84
    WR = 116
    E = 156
    QL = 164
    QK = 196
    B1R = 204
    FXR = 206
    A("s_setprio 3")
    A(f"v_lshrrev_b32 v{vT0}, 3, v{vL}")
    A(f"v_and_b32 v{vT1}, 7, v{vL}")
    A(f"s_cmp_eq_u32 s{sW}, 3")
    A(f"s_movk_i32 s{sT0}, 3072")
    A(f"s_cselect_b32 s{sT0}, s{sT0}, 12288")
    A(f"v_mul_lo_u32 v{vOff}, v{vT0}, s{sT0}")
    A(f"v_lshl_add_u32 v{vOff}, v{vT1}, 4, v{vOff}")
    A(f"s_mul_i32 s{sOff}, s{sJ}, 80")
    A(f"s_mul_i32 s{sOff}, s{sOff}, s{sT0}")
    A(f"s_lshl_b32 s{sT3}, s{sT0}, 3")
    A(f"s_mul_i32 s{sT1}, s{sH}, 384")
    A(f"s_lshl_b32 s{sT2}, s{sW}, 7")
    A(f"s_add_u32 s{sT1}, s{sT1}, s{sT2}")
    A(f"s_min_u32 s{sT2}, s{sH}, 23")
    A(f"s_lshl_b32 s{sT2}, s{sT2}, 7")
    A(f"s_cmp_eq_u32 s{sW}, 3")
    A(f"s_cselect_b32 s{sT1}, s{sT2}, s{sT1}")
    A(f"s_add_u32 s{sOff}, s{sOff}, s{sT1}")
    A(f"v_lshrrev_b32 v{vT0}, 4, v{vL}")
    A(f"v_mul_u32_u24 v{vT0}, 1280, v{vT0}")
    A(f"v_and_b32 v{vT1}, 15, v{vL}")
    A(f"v_lshl_add_u32 v{vXa}, v{vT1}, 4, v{vT0}")
    A(f"v_lshl_add_u32 v{a}, v{vT1}, 3, s{sT2}")
    A(f"v_min_u32 v{vT1}, 9, v{vT1}")
    A(f"v_lshl_add_u32 v{vXb}, v{vT1}, 4, v{vT0}")
    A(f"s_mul_i32 s{sT1}, s{sJ}, 160")
    A(f"v_add_u32 v{vXb}, s{sT1}, v{vXb}")
    A(f"v_mov_b32 v{vOne_s}, 1")
    for i in range(32):
        A(f"v_mov_b32 v{ACC+i}, 0")
    A(f"v_and_b32 v{vT0}, 15, v{vL}")
    A(f"v_lshlrev_b32 v{vT0}, 2, v{vT0}")
    A(f"ds_write_b32 v{vT0}, v{ACC} offset:{L_SYNC}")
    A(f"s_cmp_lt_u32 s{sH}, 24")
    A(f"s_cselect_b32 s{rW+2}, 1966080, 0")
    A("s_waitcnt lgkmcnt(0)")
    A(f"s_load_dword s{sTag}, s[{sWS}:{sWS+1}], {W_GEN}")
    for m in range(5):
        A(f"global_load_dwordx4 v[{XR+4*m}:{XR+4*m+3}], v{vXa}, s[{sX}:{sX+1}] offset:{256*m}")
    A(f"global_load_dwordx4 v[{XC}:{XC+3}], v{vXb}, s[{sX}:{sX+1}]")
    A(f"s_cmp_eq_u32 s{sW}, 3")
    A(f"s_cselect_b32 s{rW}, s{sW1p}, s{sWQp}")
    A(f"s_cselect_b32 s{rW+1}, s{sW1p+1}, s{sWQp+1}")
    A(f"s_cselect_b32 s{rW+2}, s{rW+2}, 7864320")
    A(f"s_mov_b32 s{rW+3}, 0x20000")
    for t in range(10):
        if stop != 1:
            A(f"buffer_load_dwordx4 v[{WR+4*t}:{WR+4*t+3}], v{vOff}, s[{rW}:{rW+3}], s{sOff} offen nt")
        if t < 9:
            A(f"s_add_u32 s{sOff}, s{sOff}, s{sT3}")
    A(f"global_load_dwordx2 v[{B1R}:{B1R+1}], v{a}, s[{sB1p}:{sB1p+1}]")
    A(f"s_mul_i32 s{sOB}, s{sH}, 40960")
    A(f"s_add_u32 s{sOB}, s{sOB}, {W_QP}")
    C("queue counter of this octet = 0 (j == 0, wave 0)")
    A(f"s_mul_i32 s{sT0}, s{sH}, {qstride}")
    A(f"s_add_u32 s{sT0}, s{sT0}, {W_QCNT}")
    A(f"v_mov_b32 v{vT0}, s{sT0}")
    A(f"s_or_b32 s{sT0}, s{sJ}, s{sW}")
    A(f"s_cmp_eq_u32 s{sT0}, 0")
    A("s_cbranch_scc0 L_noq")
    k.set_exec(1)
    A(f"global_store_dword v{vT0}, v{ACC}, s[{sWS}:{sWS+1}] {SC}")
    k.set_exec(-1)
    LB("noq")
    if tstep:
        C("translation warm-up through the scalar path: waves 0/1 static K/V range, waves 2/3 pool K/V")
        sB0 = 60
        A(f"s_bitcmp1_b32 s{sW}, 0")
        A(f"s_cselect_b32 s{sB0}, s{sVp}, s{sKp}")
        A(f"s_cselect_b32 s{sB0+1}, s{sVp+1}, s{sKp+1}")
        A(f"s_mul_i32 s{sT2}, s{sH}, 3145728")
        A(f"s_cmp_ge_u32 s{sW}, 2")
        A("s_cbranch_scc1 L_tw_pool")
        A(f"s_lshr_b32 s{sT0}, s{sJ}, 1")
        A(f"s_mul_i32 s{sT0}, s{sT0}, 100663296")
        A(f"s_add_u32 s{sT0}, s{sT0}, s{sT2}")
        A(f"s_and_b32 s{sT1}, s{sJ}, 1")
        A(f"s_mul_i32 s{sT1}, s{sT1}, {4*NS*6144}")
        A(f"s_add_u32 s{sT0}, s{sT0}, s{sT1}")
        ln = 4 * NS * 6144
        offs = list(range(0, ln, tstep)) + [ln - 64]
        for i, o in enumerate(offs):
            A(f"s_add_u32 s{sT1}, s{sT0}, {o}")
            A(f"s_load_dword s{62 + (i % 8)}, s[{sB0}:{sB0+1}], s{sT1}")
        A("s_branch L_tw_done")
        LB("tw_pool")
        ln = DP * 6144
        offs = list(range(0, ln, tstep)) + [ln - 64]
        i = 0
        for p in range(4):
            for o in offs:
                A(f"s_add_u32 s{sT1}, s{sT2}, {p*100663296 + (512-DP)*6144 + o}")
                A(f"s_load_dword s{62 + (i % 8)}, s[{sB0}:{sB0+1}], s{sT1}")
                i += 1
        LB("tw_done")
    C("barrier 1 releases the stream waves")
    if bar1:
        A("s_barrier")
    if noq:
        A("s_barrier")
    if stop == 1:
        A("s_waitcnt vmcnt(0) lgkmcnt(0)")
        A("s_branch L_svc_end")
    C("---- LayerNorm statistics, 16 lanes per batch ----")
    A(f"s_waitcnt vmcnt({11 + 2*pre1})")
    stamp(1, "pro")
    for i in range(20):
        A(f"v_lshlrev_b32 v{X+2*i}, 16, v{XR+i}")
        A(f"v_and_b32 v{X+2*i+1}, s{k.sMsk}, v{XR+i}")
    A(f"v_pk_add_f32 v[{a}:{a+1}], v[{X}:{X+1}], v[{X+2}:{X+3}]")
    A(f"v_pk_add_f32 v[{a+2}:{a+3}], v[{X+4}:{X+5}], v[{X+6}:{X+7}]")
    for i in range(4, 20):
        d = a + 2 * (i & 1)
        A(f"v_pk_add_f32 v[{d}:{d+1}], v[{d}:{d+1}], v[{X+2*i}:{X+2*i+1}]")
    A(f"v_pk_add_f32 v[{a}:{a+1}], v[{a}:{a+1}], v[{a+2}:{a+3}]")
    A(f"v_add_f32 v{a}, v{a}, v{a+1}")
    k.butterfly("v_add_f32", [a], 4)
    A(f"v_mul_f32 v{a}, {-1.0/640.0!r}, v{a}")
    for i in range(20):
        A(f"v_pk_add_f32 v[{X+2*i}:{X+2*i+1}], v[{X+2*i}:{X+2*i+1}], v[{a}:{a+1}] op_sel_hi:[1,0]")
    A(f"v_pk_mul_f32 v[{a+2}:{a+3}], v[{X}:{X+1}], v[{X}:{X+1}]")
    A(f"v_pk_mul_f32 v[{a+4}:{a+5}], v[{X+2}:{X+3}], v[{X+2}:{X+3}]")
    for i in range(2, 20):
        d = a + 2 + 2 * (i & 1)
        A(f"v_pk_fma_f32 v[{d}:{d+1}], v[{X+2*i}:{X+2*i+1}], v[{X+2*i}:{X+2*i+1}], v[{d}:{d+1}]")
    A(f"v_pk_add_f32 v[{a+2}:{a+3}], v[{a+2}:{a+3}], v[{a+4}:{a+5}]")
    A(f"v_add_f32 v{a+2}, v{a+2}, v{a+3}")
    k.butterfly("v_add_f32", [a + 2], 4)
    A(f"v_mul_f32 v{a+2}, {1.0/640.0!r}, v{a+2}")
    k.rnd2(a, a + 2, a + 1)
    A(f"v_add_f32 v{a+2}, 0x3727c5ac, v{a+2}")
    k.rnd1(a + 2, a + 1)
    A(f"v_sqrt_f32 v{a+2}, v{a+2}")
    A("s_waitcnt lgkmcnt(0)")
    for i in range(4):
        A(f"v_lshlrev_b32 v{E+2*i}, 16, v{XC+i}")
        A(f"v_and_b32 v{E+2*i+1}, s{k.sMsk}, v{XC+i}")
    k.rnd1(a + 2, a + 1)
    A(f"v_rcp_f32 v{a+3}, v{a+2}")
    for i in range(8):
        A(f"v_add_f32 v{E+i}, v{E+i}, v{a}")
    for i in range(0, 8, 2):
        k.rnd2(E + i, E + i + 1, a + 1)
    for i in range(8):
        A(f"v_mul_f32 v{a+4}, v{E+i}, v{a+3}")
        A(f"v_fma_f32 v{a+5}, -v{a+4}, v{a+2}, v{E+i}")
        A(f"v_fma_f32 v{E+i}, v{a+5}, v{a+3}, v{a+4}")
    for i in range(0, 8, 2):
        k.rnd2(E + i, E + i + 1, a + 1)
    A(f"s_mul_i32 s{sT0}, s{sW}, 1280")
    A(f"v_and_b32 v{vT1}, 15, v{vL}")
    A(f"v_min_u32 v{vT1}, 9, v{vT1}")
    A(f"v_lshl_add_u32 v{vT1}, v{vT1}, 7, s{sT0}")
    A(f"v_lshrrev_b32 v{vT0}, 4, v{vL}")
    A(f"v_lshl_add_u32 v{vT1}, v{vT0}, 2, v{vT1}")
    for i in range(8):
        A(f"ds_write_b32 v{vT1}, v{E+i} offset:{L_XN+16*i}")
    A(f"v_lshrrev_b32 v{vT0}, 3, v{vL}")
    A(f"v_lshl_add_u32 v{vT0}, v{vT0}, 4, s{sT0}")
    A(f"s_add_u32 s{sTag}, s{sTag}, 1")
    A(f"s_addc_u32 s{sTag}, s{sTag}, 0")
    A(f"s_cmp_eq_u32 s{sTag}, 0x80000001")
    A(f"s_addc_u32 s{sTag}, s{sTag}, 0")
    A(f"s_xor_b32 s{sTagY}, s{sTag}, 0x80000001")
    XN = X
    for t in range(10):
        A(f"ds_read_b128 v[{XN+4*t}:{XN+4*t+3}], v{vT0} offset:{L_XN+128*t}")
    C("granule index 16w + 2e + half, row b = l>>4")
    A(f"v_and_b32 v{vT0}, 7, v{vL}")
    A(f"v_bfe_u32 v{vT1}, v{vL}, 3, 1")
    A(f"v_lshl_add_u32 v{vT0}, v{vT0}, 1, v{vT1}")
    A(f"s_lshl_b32 s{sT0}, s{sW}, 4")
    A(f"v_add_u32 v{vT0}, s{sT0}, v{vT0}")
    A(f"v_lshrrev_b32 v{vT1}, 4, v{vL}")
    A(f"v_lshl_add_u32 v{vT0}, v{vT1}, 6, v{vT0}")
    A(f"s_lshl_b32 s{sT0}, s{sJ}, 12")
    A(f"s_add_u32 s{sT0}, s{sT0}, s{sOB}")
    A(f"s_lshl_b32 s{sT1}, s{sJ}, 10")
    A(f"s_lshl_b32 s{sT2}, s{sW}, 8")
    A(f"s_add_u32 s{sT1}, s{sT1}, s{sT2}")
    A(f"s_add_u32 s{sT1}, s{sT1}, s{sOB}")
    A(f"s_add_u32 s{sT1}, s{sT1}, 32768")
    A(f"v_lshl_add_u32 v{vXa}, v{vT0}, 4, s{sT0}")
    A(f"v_lshl_add_u32 v{vXb}, v{vL}, 2, s{sT1}")
    stamp(1)
    stamp(2, "pro")
    for t in range(10):
        A(f"s_waitcnt vmcnt({10-t+2*pre1 if t < 9 else 0}) lgkmcnt({9-t})")
        if t == 0:
            stamp(3, "pro")
        if t == 9:
            stamp(4, "pro")
        for d in range(4):
            tt = k.unpack(WR + 4 * t + d)
            for b in range(4):
                k.pkfma(ACC + 8 * b + 2 * d, tt, XN + 4 * t + b)
    C("reduce-scatter over lane bits 5,4,3")
    A("s_nop 1")
    for i in range(16):
        A(f"v_permlane32_swap_b32 v{ACC+i}, v{ACC+16+i}")
    for i in range(16):
        A(f"v_add_f32 v{ACC+i}, v{ACC+i}, v{ACC+16+i}")
    A("s_nop 1")
    for i in range(8):
        A(f"v_permlane16_swap_b32 v{ACC+i}, v{ACC+8+i}")
    for i in range(8):
        A(f"v_add_f32 v{ACC+i}, v{ACC+i}, v{ACC+8+i}")
    A("s_nop 1")
    for i in range(4):
        A(f"v_add_f32_dpp v{E+i}, v{ACC+i}, v{ACC+i} row_ror:8 row_mask:0xf bank_mask:0x3")
        A(f"v_add_f32_dpp v{E+i}, v{ACC+4+i}, v{ACC+4+i} row_ror:8 row_mask:0xf bank_mask:0xc")
    A(f"global_store_dwordx4 v{vXa}, v[{E}:{E+3}], s[{sWS}:{sWS+1}] {SCS}")
    xor3(E + 4, f"v{E}", f"v{E+1}", f"v{E+2}")
    xor3(E + 4, f"v{E+4}", f"v{E+3}", f"s{sTag}")
    A(f"global_store_dword v{vXb}, v{E+4}, s[{sWS}:{sWS+1}] {SCS}")
    stamp(2)
    stamp(5, "pro")
    if stop == 2:
        A("s_waitcnt vmcnt(0) lgkmcnt(0)")
        A("s_branch L_svc_end")
    C("addresses: final row FR[h*4+w], LDS row w")
    vFr, vQl = a + 6, a + 7
    A(f"s_lshl_b32 s{sT0}, s{sH}, 2")
    A(f"s_add_u32 s{sT0}, s{sT0}, s{sW}")
    A(f"s_lshl_b32 s{sT0}, s{sT0}, 10")
    A(f"s_add_u32 s{sT0}, s{sT0}, {W_FR}")
    A(f"v_lshl_add_u32 v{vFr}, v{vL}, 4, s{sT0}")
    A(f"s_lshl_b32 s{sT1}, s{sW}, 9")
    A(f"v_lshl_add_u32 v{vQl}, v{vL}, 3, s{sT1}")
    A(f"s_mov_b32 s{sSpin}, {SPIN}")
    C("rows < NDIR are gathered by every workgroup; row w >= NDIR by workgroup j == 2w, which publishes it")
    A(f"s_lshl_b32 s{sT0}, s{sW}, 2")
    A(f"s_add_u32 s{sT0}, s{sT0}, {L_SYNC + 32}")
    A(f"v_mov_b32 v{E}, s{sT0}")
    A(f"s_lshl_b32 s{sPairCur}, s{sW}, 1")
    A(f"s_cmp_eq_u32 s{sPairCur}, s{sJ}")
    A(f"s_cselect_b32 s{sPairCur}, 1, 0")
    A(f"s_cmp_lt_u32 s{sW}, {NDIR}")
    A(f"s_cselect_b32 s{sPairCur}, 2, s{sPairCur}")
    A(f"s_cmp_eq_u32 s{sPairCur}, 0")
    A("s_cbranch_scc1 L_nonhome")
    C("---- home wave: gather the 8 partial rows ----")
    A(f"s_lshl_b32 s{sT1}, s{sW}, 10")
    A(f"s_add_u32 s{sT0}, s{sOB}, s{sT1}")
    A(f"v_lshl_add_u32 v{vXa}, v{vL}, 4, s{sT0}")
    C("check of granule l: [wg][w' = l>>4][16 b + 8 (l&1) + ((l&15)>>1)]")
    A(f"s_lshl_b32 s{sT2}, s{sW}, 6")
    A(f"s_add_u32 s{sT1}, s{sOB}, s{sT2}")
    A(f"s_add_u32 s{sT1}, s{sT1}, 32768")
    A(f"v_lshrrev_b32 v{vT0}, 4, v{vL}")
    A(f"v_lshl_add_u32 v{vXb}, v{vT0}, 8, s{sT1}")
    A(f"v_and_b32 v{vT0}, 1, v{vL}")
    A(f"v_lshl_add_u32 v{vXb}, v{vT0}, 5, v{vXb}")
    A(f"v_bfe_u32 v{vT0}, v{vL}, 1, 3")
    A(f"v_lshl_add_u32 v{vXb}, v{vT0}, 2, v{vXb}")
    A(f"v_add_u32 v{vT1}, 4096, v{vXb}")
    for i in range(qsleep // 100):
        A("s_sleep 100")
    if qsleep % 100:
        A(f"s_sleep {qsleep % 100}")
    A(f"s_mov_b32 s{sT3}, {1 if ypos else 0}")
    LB("qpoll")
    A(f"v_mov_b32 v{vT0}, v{vXa}")
    for j in range(8):
        if j:
            A(f"v_add_u32 v{vT0}, 4096, v{vT0}")
        A(f"global_load_dwordx4 v[{QL+4*j}:{QL+4*j+3}], v{vT0}, s[{sWS}:{sWS+1}] {SCL}")
        va = vXb if j < 4 else vT1
        A(f"global_load_dword v{QK+j}, v{va}, s[{sWS}:{sWS+1}] offset:{1024*(j%4)} {SCL}")
    if ypos:
        C("first round issued: release the stream waves parked at the yield barrier")
        A(f"s_cmp_eq_u32 s{sT3}, 0")
        A("s_cbranch_scc1 L_noyb")
        A("s_barrier")
        A(f"s_mov_b32 s{sT3}, 0")
        LB("noyb")
    for j in range(8):
        A(f"s_waitcnt vmcnt({14-2*j})")
        xor3(a, f"v{QL+4*j}", f"v{QL+4*j+1}", f"v{QL+4*j+2}")
        xor3(a + 1, f"v{QL+4*j+3}", f"v{QK+j}", f"s{sTag}")
        if j == 0:
            A(f"v_xor_b32 v{a+2}, v{a}, v{a+1}")
        else:
            A(f"v_xor_b32 v{a}, v{a}, v{a+1}")
            A(f"v_or_b32 v{a+2}, v{a+2}, v{a}")
    A(f"v_cmp_ne_u32 vcc, 0, v{a+2}")
    A("s_cbranch_vccz L_qok")
    spin_tail("qpoll")
    LB("qok")
    for j in range(1, 8):
        A(f"v_pk_add_f32 v[{QL}:{QL+1}], v[{QL}:{QL+1}], v[{QL+4*j}:{QL+4*j+1}]")
        A(f"v_pk_add_f32 v[{QL+2}:{QL+3}], v[{QL+2}:{QL+3}], v[{QL+4*j+2}:{QL+4*j+3}]")
    A(f"v_cvt_pk_bf16_f32 v{QL+4}, v{QL}, v{QL+1}")
    A(f"v_cvt_pk_bf16_f32 v{QL+5}, v{QL+2}, v{QL+3}")
    A(f"ds_write_b64 v{vQl}, v[{QL+4}:{QL+5}] offset:{L_QH}")
    stamp(3)
    stamp(3, "ret")
    if stamps == "ret":
        A(f"s_sub_u32 s{sTs+1}, {SPIN}, s{sSpin}")
        A(f"s_mul_i32 s{sTs+1}, s{sTs+1}, 400")
        A(f"s_add_u32 s{sTs+1}, s{sTs+1}, s{sTs}")
        A(f"s_mov_b32 s{sTs+2}, s{sTs}")
        A(f"s_mov_b32 s{sTs+4}, s{sTs}")
        A(f"s_mov_b32 s{sTs+5}, s{sTs}")
    A(f"ds_write_b32 v{E}, v{vOne_s}")
    A("s_setprio 0")
    C("hid = bf16(relu(bf16(bf16(sum) + b1))^2) on lanes 48..63")
    Hh = QL + 8
    A(f"v_lshlrev_b32 v{Hh}, 16, v{QL+4}")
    A(f"v_and_b32 v{Hh+1}, s{k.sMsk}, v{QL+4}")
    A(f"v_lshlrev_b32 v{Hh+2}, 16, v{QL+5}")
    A(f"v_and_b32 v{Hh+3}, s{k.sMsk}, v{QL+5}")
    A(f"v_lshlrev_b32 v{Hh+4}, 16, v{B1R}")
    A(f"v_and_b32 v{Hh+5}, s{k.sMsk}, v{B1R}")
    A(f"v_lshlrev_b32 v{Hh+6}, 16, v{B1R+1}")
    A(f"v_and_b32 v{Hh+7}, s{k.sMsk}, v{B1R+1}")
    for i in range(4):
        A(f"v_add_f32 v{Hh+i}, v{Hh+i}, v{Hh+4+i}")
    k.rnd2(Hh, Hh + 1, a)
    k.rnd2(Hh + 2, Hh + 3, a)
    for i in range(4):
        A(f"v_cmp_gt_f32 vcc, v{Hh+i}, 0")
        A("s_nop 1")
        A(f"v_cndmask_b32 v{Hh+i}, 0, v{Hh+i}, vcc")
    for i in range(4):
        A(f"v_mul_f32 v{Hh+i}, v{Hh+i}, v{Hh+i}")
    k.set_exec(0xffff << 48)
    A(f"v_cvt_pk_bf16_f32 v{QL+4}, v{Hh}, v{Hh+1}")
    A(f"v_cvt_pk_bf16_f32 v{QL+5}, v{Hh+2}, v{Hh+3}")
    A(f"ds_write_b64 v{vQl}, v[{QL+4}:{QL+5}] offset:{L_QH}")
    k.set_exec(-1)
    xor3(QL + 6, f"v{QL+4}", f"v{QL+5}", f"s{sTag}")
    A(f"s_cmp_eq_u32 s{sPairCur}, 1")
    A("s_cbranch_scc0 L_rowdone")
    A(f"global_store_dwordx4 v{vFr}, v[{QL+4}:{QL+7}], s[{sWS}:{sWS+1}] {SCS}")
    A("s_branch L_rowdone")
    C("---- other waves: fetch the finished row later ----")
    LB("nonhome")
    if ypos:
        A("s_barrier")
    A("s_waitcnt lgkmcnt(0)")
    if not noq and not qflag:
        A("s_barrier")
    A("s_setprio 0")
    for i in range(fsleep // 100):
        A("s_sleep 100")
    A(f"s_sleep {fsleep % 100}")
    LB("fpoll")
    A(f"global_load_dwordx4 v[{QL+4}:{QL+7}], v{vFr}, s[{sWS}:{sWS+1}] {SCL}")
    A("s_waitcnt vmcnt(0)")
    xor3(a, f"v{QL+4}", f"v{QL+5}", f"v{QL+6}")
    A(f"v_cmp_ne_u32 vcc, s{sTag}, v{a}")
    A("s_cbranch_vccz L_fok")
    spin_tail("fpoll", sleep=32)
    LB("fok")
    stamp(4, "ret")
    if stamps == "ret":
        A(f"s_sub_u32 s{sTs+2}, {SPIN}, s{sSpin}")
        A(f"s_mul_i32 s{sTs+2}, s{sTs+2}, 133")
        A(f"s_add_u32 s{sTs+2}, s{sTs+2}, s{sTs}")
        A(f"s_mov_b32 s{sTs+1}, s{sTs}")
        A(f"s_mov_b32 s{sTs+3}, s{sTs}")
        A(f"s_mov_b32 s{sTs+5}, s{sTs}")
    A(f"ds_write_b64 v{vQl}, v[{QL+4}:{QL+5}] offset:{L_QH}")
    A(f"ds_write_b32 v{E}, v{vOne_s}")
    stamp(3)
    LB("rowdone")
    stamp(1, "svc")
    if stop == 3:
        A("s_waitcnt vmcnt(0) lgkmcnt(0)")
        A("s_branch L_svc_end")
    A(f"v_mov_b32 v{vT1}, {L_SYNC}")
    A("s_waitcnt lgkmcnt(0)")
    k.set_exec(1)
    A(f"ds_add_u32 v{vT1}, v{vOne_s}")
    k.set_exec(-1)
    C("---- address setup for the late phases ----")
    G = 20
    FB = 116
    WS = 116
    F2 = 212
    AF = 228
    DD = 8
    vG = vOff
    vTr, vAf, vYa, vYa2 = G, G + 1, G + 2, G + 3
    vRh, vRd, vRd2, vOl = G + 16, G + 17, G + 18, G + 19
    Yv = G + 40
    Ya = G + 72
    YO = [252, QK]
    rW2 = 44
    sOff2 = 62
    sFin = sWs
    sLoad, sOk, sHv = 6, 7, 12
    A(f"v_lshrrev_b32 v{vT0}, 3, v{vL}")
    A(f"v_mul_u32_u24 v{vG}, {1280-128}, v{vT0}")
    A(f"v_lshl_add_u32 v{vG}, v{vL}, 4, v{vG}")
    k.srd(rW, sWOp, 7864320)
    k.srd(rW2, sW2p, 1966080)
    A(f"s_lshl_b32 s{sT0}, s{sH}, 2")
    A(f"s_add_u32 s{sT0}, s{sT0}, s{sW}")
    A(f"s_lshl_b32 s{sT2}, s{sJ}, 7")
    A(f"s_mul_i32 s{sOff}, s{sT0}, {48*1280}")
    A(f"s_add_u32 s{sOff}, s{sOff}, s{sT2}")
    A(f"s_mul_i32 s{sOff2}, s{sT0}, {16*1280}")
    A(f"s_add_u32 s{sOff2}, s{sOff2}, s{sT2}")
    C("record addresses for batch w")
    A(f"s_lshl_b32 s{sT1}, s{sT0}, 10")
    A(f"s_add_u32 s{sT1}, s{sT1}, {W_RH}")
    A(f"v_and_b32 v{vT0}, 7, v{vL}")
    A(f"v_lshl_add_u32 v{vRh}, v{vT0}, 7, s{sT1}")
    A(f"s_lshl_b32 s{sT1}, s{sT0}, 13")
    A(f"s_add_u32 s{sT1}, s{sT1}, {W_REC}")
    A(f"v_lshl_add_u32 v{vRd}, v{vL}, 4, s{sT1}")
    A(f"v_add_u32 v{vRd2}, 4096, v{vRd}")
    A(f"s_mul_i32 s{sT1}, s{sW}, 384")
    A(f"v_lshl_add_u32 v{vOl}, v{vL}, 1, s{sT1}")
    C("LDS staging addresses")
    A(f"s_mul_i32 s{sT0}, s{sW}, {48*128}")
    A(f"s_add_u32 s{sT0}, s{sT0}, {L_WT}")
    A(f"v_lshl_add_u32 v{vXa}, v{vL}, 4, s{sT0}")
    A(f"s_lshl_b32 s{sT0}, s{sW}, 11")
    A(f"s_add_u32 s{sT0}, s{sT0}, {L_WT + 192*128}")
    A(f"v_lshl_add_u32 v{vXb}, v{vL}, 4, s{sT0}")
    C("transpose-read address: (8g + r)*128 + c*8 + w*32")
    A(f"v_lshrrev_b32 v{vT0}, 4, v{vL}")
    A(f"v_lshlrev_b32 v{vT0}, 3, v{vT0}")
    A(f"v_bfe_u32 v{vTr}, v{vL}, 2, 2")
    A(f"v_add_lshl_u32 v{vTr}, v{vTr}, v{vT0}, 7")
    A(f"v_and_b32 v{vT0}, 3, v{vL}")
    A(f"v_lshl_add_u32 v{vTr}, v{vT0}, 3, v{vTr}")
    A(f"s_lshl_b32 s{sT0}, s{sW}, 5")
    A(f"s_add_u32 s{sT0}, s{sT0}, {L_WT}")
    A(f"v_add_u32 v{vTr}, s{sT0}, v{vTr}")
    C("Y address: octet block + (4j + w) KB")
    A(f"s_lshl_b32 s{sT0}, s{sJ}, 2")
    A(f"s_add_u32 s{sT0}, s{sT0}, s{sW}")
    A(f"s_lshl_b32 s{sT0}, s{sT0}, 10")
    A(f"s_add_u32 s{sT0}, s{sT0}, s{sOB}")
    A(f"v_lshl_add_u32 v{vYa}, v{vL}, 4, s{sT0}")
    A(f"v_add_u32 v{vYa2}, 32768, v{vYa}")
    C("finaliser task (h < 4, or h < 8 when j < 2): group 4(j + 8(h>>2)) + w, batch h&3")
    A(f"s_cmp_lt_u32 s{sJ}, 2")
    A(f"s_cselect_b32 s{sT1}, 8, 4")
    A(f"s_cmp_lt_u32 s{sH}, s{sT1}")
    A(f"s_cselect_b32 s{sFin}, 1, 0")
    A(f"s_cselect_b32 s{sT2}, s{sH}, 0")
    A(f"s_lshr_b32 s{sT0}, s{sT2}, 2")
    A(f"s_lshl_b32 s{sT0}, s{sT0}, 3")
    A(f"s_add_u32 s{sT0}, s{sT0}, s{sJ}")
    A(f"s_lshl_b32 s{sT0}, s{sT0}, 2")
    A(f"s_add_u32 s{sT0}, s{sT0}, s{sW}")
    A(f"s_and_b32 s{sT2}, s{sT2}, 3")
    A(f"s_lshl_b32 s{sT1}, s{sT0}, 10")
    A(f"s_lshl_b32 s{sT3}, s{sT2}, 8")
    A(f"s_add_u32 s{sT1}, s{sT1}, s{sT3}")
    A(f"v_lshrrev_b32 v{vT0}, 4, v{vL}")
    A(f"v_mul_u32_u24 v{a}, 40960, v{vT0}")
    A(f"v_add_u32 v{a}, s{sT1}, v{a}")
    A(f"v_and_b32 v{vT0}, 15, v{vL}")
    A(f"v_lshl_add_u32 v{a}, v{vT0}, 4, v{a}")
    A(f"s_lshl_b32 s{sT0}, s{sT0}, 5")
    A(f"v_lshl_add_u32 v{vT1}, v{vT0}, 1, s{sT0}")
    A(f"s_mul_i32 s{sT2}, s{sT2}, 1280")
    A(f"v_add_u32 v{FXR+5}, s{sT2}, v{vT1}")
    for i in range(8):
        A(f"v_add_u32 v{Ya+i}, {W_QP + 4*40960*i}, v{a}")
    A(f"s_cmp_eq_u32 s{sFin}, 0")
    A("s_cbranch_scc1 L_nofin1")
    A(f"global_load_ushort v{FXR}, v{FXR+5}, s[{sX}:{sX+1}]")
    A(f"global_load_ushort v{FXR+1}, v{vT1}, s[{sB2p}:{sB2p+1}]")
    A("s_waitcnt vmcnt(0)")
    for i in range(2):
        A(f"v_lshlrev_b32 v{FXR+i}, 16, v{FXR+i}")
    LB("nofin1")
    C("hid A fragments once all four rows are in LDS: batch row (l&15)>>2, k offset 16*(l>>4) bytes")
    lds_wait4("rows", vT1, vT0, off=0, sleep=16)
    A(f"v_bfe_u32 v{vT0}, v{vL}, 2, 2")
    A(f"v_lshrrev_b32 v{vT1}, 4, v{vL}")
    A(f"v_lshlrev_b32 v{vT1}, 4, v{vT1}")
    A(f"v_lshl_add_u32 v{vAf}, v{vT0}, 9, v{vT1}")
    HF = G + 4
    for kb in range(2):
        A(f"ds_read_b128 v[{HF+4*kb}:{HF+4*kb+3}], v{vAf} offset:{L_QH+384+64*kb}")
    A(f"v_mul_u32_u24 v{vAf}, 384, v{vT0}")
    A(f"v_add_u32 v{vAf}, v{vAf}, v{vT1}")
    A(f"s_mov_b32 s{sLoad}, 0")
    A(f"s_mov_b32 s{sOk}, 0")
    WSP = [116, Yv]
    luid = [0]

    def only_j01():
        luid[0] += 1
        A(f"s_cmp_lt_u32 s{sJ}, 2")
        A(f"s_cbranch_scc0 L_j01_{luid[0]}")
        return f"j01_{luid[0]}"

    def w_loads(parts):
        lab = None
        for kind, p in parts:
            if p == 1 and lab is None:
                lab = only_j01()
            if kind == "o":
                for i in range(6):
                    A(f"s_add_u32 s{sT0}, s{sOff}, {8*1280*i}")
                    A(f"buffer_load_dwordx4 v[{WSP[p]+4*i}:{WSP[p]+4*i+3}], v{vG}, s[{rW}:{rW+3}], s{sT0} offen offset:{1024*p} nt")
            else:
                for i in range(2):
                    A(f"s_add_u32 s{sT0}, s{sOff2}, {8*1280*i}")
                    A(f"buffer_load_dwordx4 v[{WSP[p]+24+4*i}:{WSP[p]+24+4*i+3}], v{vG}, s[{rW2}:{rW2+3}], s{sT0} offen offset:{1024*p} nt")
        if lab:
            LB(lab)

    def w_stage(parts, cnt):
        lab = None
        for kind, p in parts:
            if p == 1 and lab is None:
                lab = only_j01()
            if kind == "o":
                for i in range(6):
                    A(f"ds_write_b128 v{vXa}, v[{WSP[p]+4*i}:{WSP[p]+4*i+3}] offset:{32768*p+1024*i}")
            else:
                for i in range(2):
                    A(f"ds_write_b128 v{vXb}, v[{WSP[p]+24+4*i}:{WSP[p]+24+4*i+3}] offset:{32768*p+1024*i}")
        if lab:
            LB(lab)
        A(f"v_mov_b32 v{vT1}, {L_SYNC}")
        k.set_exec(1)
        A(f"ds_add_u32 v{vT1}, v{vOne_s} offset:{cnt}")
        k.set_exec(-1)

    def frags(nkb, dst, row0, p):
        for kb in range(nkb):
            for hh in range(2):
                r = dst + 4 * kb + 2 * hh
                A(f"ds_read_b64_tr_b16 v[{r}:{r+1}], v{vTr} offset:{(row0+32*kb+4*hh)*128 + 32768*p}")

    def w_frags(parts):
        lab = None
        for kind, p in parts:
            if p == 1 and lab is None:
                lab = only_j01()
            if kind == "o":
                frags(6, FB + 24 * p, 0, p)
            else:
                frags(2, F2 + 8 * p, 192, p)
        if lab:
            LB(lab)
        A("s_waitcnt lgkmcnt(0)")
        if ("2", 0) in parts:
            C("FFN2 partial B (zero for h >= 24)")
            for p in range(2):
                d = DD + 4 * p
                for kb in range(2):
                    c = "0" if kb == 0 else f"v[{d}:{d+3}]"
                    f = F2 + p * 8 + 4 * kb
                    A(f"v_mfma_f32_16x16x32_bf16 v[{d}:{d+3}], v[{HF+4*kb}:{HF+4*kb+3}], v[{f}:{f+3}], {c}")
            A(f"s_cmp_lt_u32 s{sH}, 24")
            A(f"s_cselect_b32 s{sT0}, -1, 0")
            A("s_nop 6")
            for p in range(2):
                A(f"v_and_b32 v{YO[p]+1}, s{sT0}, v{DD+4*p}")
                A(f"v_xor_b32 v{YO[p]+3}, s{sTagY}, v{YO[p]+1}")

    ALLP = [("o", 0), ("2", 0), ("o", 1), ("2", 1)]
    EARLYP = [("2", 0), ("o", 1), ("2", 1)] if split else []
    LATEP = [x for x in ALLP if x not in EARLYP]
    sStg = 63
    A(f"s_mov_b32 s{sStg}, 0")
    if EARLYP:
        w_loads(EARLYP)
        A("s_waitcnt vmcnt(0)")
        w_stage(EARLYP, 20)
        lds_wait4("rdy0", vT1, vT0, off=20, sleep=4)
        w_frags(EARLYP)
    if late:
        C("the weight lines are fetched while the stream drains")
        if late <= 4:
            lds_wait4("nl", vT1, vT0, off=8, n=late, sleep=8)
        else:
            lds_wait4("nl", vT1, vT0, off=12, n=late - 4, sleep=6)
        A("s_setprio 3")
    stamp(1, "epi")
    w_loads(LATEP)
    if not ovl:
        A("s_waitcnt vmcnt(0)")
        w_stage(LATEP, 4)
        lds_wait4("rdy", vT1, vT0, off=4, sleep=0 if late else 4)
        w_frags(LATEP)

    def proj_store(nkb, frag, fstride, tagl):
        for kb in range(nkb):
            for p in range(2):
                d = DD + 4 * p
                c = "0" if kb == 0 else f"v[{d}:{d+3}]"
                f = frag + p * fstride + 4 * kb
                A(f"s_waitcnt lgkmcnt({nkb-1-kb})") if p == 0 else None
                A(f"v_mfma_f32_16x16x32_bf16 v[{d}:{d+3}], v[{AF+4*kb}:{AF+4*kb+3}], v[{f}:{f+3}], {c}")
        A(f"s_cmp_lt_u32 s{sJ}, 2")
        A("s_nop 5")
        for p in range(2):
            if p == 1:
                A(f"s_cbranch_scc0 L_{tagl}")
            A(f"v_mov_b32 v{YO[p]}, v{DD+4*p}")
            A(f"v_xor_b32 v{YO[p]+2}, v{DD+4*p}, v{YO[p]+3}")
            va = vYa if p == 0 else vYa2
            A(f"global_store_dwordx4 v{va}, v[{YO[p]}:{YO[p]+3}], s[{sWS}:{sWS+1}] {SC}")
        LB(tagl)

    def ysum(ybase, tagl, sleep, nld):
        sMiss = 6
        A(f"s_mov_b32 s{sSpin}, {SPIN}")
        A(f"s_mov_b32 s{sMiss}, 0xff")
        LB(tagl)
        for i in range(nld):
            A(f"s_bitcmp1_b32 s{sMiss}, {i}")
            A(f"s_cbranch_scc0 L_ys{i}")
            A(f"global_load_dwordx4 v[{Yv+4*i}:{Yv+4*i+3}], v{Ya+i}, s[{sWS}:{sWS+1}] {SC}")
            LB(f"ys{i}")
        A("s_waitcnt vmcnt(0)")
        for i in range(nld):
            xor3(a + (i & 1), f"v{Yv+4*i}", f"v{Yv+4*i+1}", f"v{Yv+4*i+2}")
            A(f"v_cmp_ne_u32 vcc, s{sTagY}, v{a+(i&1)}")
            A(f"s_cbranch_vccnz L_yv{i}")
            A(f"s_bitset0_b32 s{sMiss}, {i}")
            LB(f"yv{i}")
        A(f"s_cmp_eq_u32 s{sMiss}, 0")
        A(f"s_cbranch_scc1 L_{tagl}ok")
        spin_tail(tagl, sleep=sleep)
        LB(tagl + "ok")
        for i in range(0, 8, 2):
            A(f"v_pk_add_f32 v[{Yv+4*i}:{Yv+4*i+1}], v[{Yv+4*i}:{Yv+4*i+1}], v[{Yv+4*i+4}:{Yv+4*i+5}]")
        A(f"v_pk_add_f32 v[{Yv}:{Yv+1}], v[{Yv}:{Yv+1}], v[{Yv+8}:{Yv+9}]")
        A(f"v_pk_add_f32 v[{Yv+16}:{Yv+17}], v[{Yv+16}:{Yv+17}], v[{Yv+24}:{Yv+25}]")
        A(f"v_pk_add_f32 v[{Yv}:{Yv+1}], v[{Yv}:{Yv+1}], v[{Yv+16}:{Yv+17}]")
        for op in ("v_permlane16_swap_b32", "v_permlane32_swap_b32"):
            A(f"v_mov_b32 v{Yv+2}, v{Yv}")
            A(f"v_mov_b32 v{Yv+3}, v{Yv+1}")
            A("s_nop 0")
            A(f"{op} v{Yv}, v{Yv+2}")
            A(f"{op} v{Yv+1}, v{Yv+3}")
            A("s_nop 0")
            A(f"v_pk_add_f32 v[{Yv}:{Yv+1}], v[{Yv}:{Yv+1}], v[{Yv+2}:{Yv+3}]")

    stamp(2, "epi")
    C("start polling once this workgroup's stream waves have flushed")
    lds_wait4("fl2", vT1, vT0, off=12, n=4, sleep=2 if late else 8)
    A("s_setprio 3")
    A(f"s_mov_b32 s{sSpin}, {SPIN}")
    stamp(4)
    HD = G + 24
    LB("rpoll")
    A(f"global_load_dwordx4 v[{HD}:{HD+3}], v{vRh}, s[{sWS}:{sWS+1}] {SC}")
    for j in range(8):
        va = vRd if j < 4 else vRd2
        A(f"s_bitcmp1_b32 s{sLoad}, {j}")
        A(f"s_cbranch_scc0 L_rs{j}")
        A(f"global_load_dwordx4 v[{QL+4*j}:{QL+4*j+3}], v{va}, s[{sWS}:{sWS+1}] offset:{1024*(j%4)} {SC}")
        LB(f"rs{j}")
    if ovl:
        C("second round onwards: fragments while the poll is in flight")
        A(f"s_cmp_eq_u32 s{sStg}, 1")
        A("s_cbranch_scc0 L_nofr")
        A(f"s_mov_b32 s{sT3}, s{sSpin}")
        A(f"s_call_b64 s[{sRet}:{sRet+1}], L_dofr")
        A(f"s_mov_b32 s{sSpin}, s{sT3}")
        LB("nofr")
    A("s_waitcnt vmcnt(0)")
    if ovl:
        A(f"s_cmp_eq_u32 s{sStg}, 0")
        A("s_cbranch_scc0 L_nost")
        w_stage(LATEP, 4)
        A(f"s_mov_b32 s{sStg}, 1")
        LB("nost")
    xor3(HD + 4, f"v{HD}", f"v{HD+1}", f"v{HD+2}")
    A(f"v_cmp_eq_u32 vcc, s{sTag}, v{HD+4}")
    A(f"s_and_b32 s{sHv}, vcc_lo, 0xff")
    for j in range(8):
        A(f"s_bitcmp1_b32 s{sLoad}, {j}")
        A(f"s_cbranch_scc0 L_rv{j}")
        xor3(a, f"v{QL+4*j}", f"v{QL+4*j+1}", f"v{QL+4*j+2}")
        A(f"v_xor_b32 v{a}, v{a}, v{QL+4*j+3}")
        A(f"v_cmp_ne_u32 vcc, s{sTag}, v{a}")
        A(f"s_cbranch_vccnz L_rv{j}")
        A(f"s_bitset1_b32 s{sOk}, {j}")
        LB(f"rv{j}")
    A(f"s_and_b32 s{sT0}, s{sOk}, s{sHv}")
    A(f"s_cmp_eq_u32 s{sT0}, 0xff")
    A("s_cbranch_scc1 L_rok")
    A(f"s_bcnt1_i32_b32 s{sT0}, s{sHv}")
    A(f"s_cmp_ge_u32 s{sT0}, {8-nmiss}")
    A(f"s_cselect_b32 s{sLoad}, 0xff, s{sHv}")
    A("s_cbranch_scc1 L_rfast")
    A(f"s_sleep {esleep}")
    LB("rfast")
    A(f"s_andn2_b32 s{sLoad}, s{sLoad}, s{sOk}")
    spin_tail("rpoll", sleep=0)
    LB("rok")
    stamp(3, "epi")
    A(f"v_mov_b32 v{HD+4}, v{HD}")
    k.butterfly("v_max_f32", [HD + 4], 3)
    A(f"v_sub_f32 v{HD+5}, v{HD}, v{HD+4}")
    A(f"v_mul_f32 v{HD+5}, {LOG2E}, v{HD+5}")
    A(f"v_exp_f32 v{HD+5}, v{HD+5}")
    A("s_nop 0")
    A(f"v_mul_f32 v{HD+6}, v{HD+5}, v{HD+1}")
    for j in range(8):
        A(f"v_readlane_b32 s{sWt+j}, v{HD+5}, {j}")
    k.dpp("v_add_f32", HD + 6, "quad_perm:[1,0,3,2]")
    O = HD + 8
    A(f"v_pk_mul_f32 v[{O}:{O+1}], v[{QL}:{QL+1}], s[{sWt}:{sWt+1}] op_sel_hi:[1,0]")
    A(f"v_mul_f32 v{O+2}, s{sWt}, v{QL+2}")
    k.dpp("v_add_f32", HD + 6, "quad_perm:[2,3,0,1]")
    for j in range(1, 8):
        k.pkfma(O, QL + 4 * j, sWt + j, pre="s")
        A(f"v_fmac_f32 v{O+2}, s{sWt+j}, v{QL+4*j+2}")
        if j == 1:
            k.dpp("v_add_f32", HD + 6, "row_half_mirror")
        if j == 2:
            A(f"v_rcp_f32 v{HD+7}, v{HD+6}")
    for i in range(3):
        A(f"v_mul_f32 v{O+4+i}, v{O+i}, v{HD+7}")
    for i in range(3):
        A(f"v_fma_f32 v{O+i}, -v{O+4+i}, v{HD+6}, v{O+i}")
    for i in range(3):
        A(f"v_fma_f32 v{O+i}, v{O+i}, v{HD+7}, v{O+4+i}")
    A(f"v_cvt_pk_bf16_f32 v{O+4}, v{O}, v{O+1}")
    A(f"v_cvt_pk_bf16_f32 v{O+5}, v{O+2}, v{O+2}")
    A(f"ds_write_b16 v{vOl}, v{O+4} offset:{L_OB}")
    A(f"ds_write_b16_d16_hi v{vOl}, v{O+4} offset:{L_OB+128}")
    A(f"ds_write_b16 v{vOl}, v{O+5} offset:{L_OB+256}")
    A("s_waitcnt lgkmcnt(0)")
    A("s_barrier")
    for kb in range(6):
        A(f"ds_read_b128 v[{AF+4*kb}:{AF+4*kb+3}], v{vAf} offset:{L_OB+64*kb}")
    proj_store(6, FB, 24, "ya_done")
    stamp(4, "epi")
    A(f"s_cmp_eq_u32 s{sFin}, 0")
    A("s_cbranch_scc1 L_svc_end")
    ysum(W_YA, "yap", ysleep, 8)
    k.set_exec(0xffff)
    k.rnd2(Yv, Yv + 1, Yv + 2)
    A(f"v_pk_add_f32 v[{Yv}:{Yv+1}], v[{Yv}:{Yv+1}], v[{FXR}:{FXR+1}]")
    k.rnd2(Yv, Yv + 1, Yv + 2)
    A(f"v_add_f32 v{Yv}, v{Yv}, v{Yv+1}")
    A(f"v_cvt_pk_bf16_f32 v{Yv}, v{Yv}, v{Yv}")
    A(f"global_store_short v{FXR+5}, v{Yv}, s[{sOUT}:{sOUT+1}]")
    k.set_exec(-1)
    C("generation bump by (h=0, j=0, w=0)")
    A(f"s_or_b32 s{sT0}, s2, s{sW}")
    A(f"s_cmp_eq_u32 s{sT0}, 0")
    A("s_cbranch_scc0 L_svc_end")
    A(f"v_mov_b32 v{vT0}, {W_GEN}")
    A(f"v_mov_b32 v{vT1}, s{sTag}")
    k.set_exec(1)
    A(f"global_store_dword v{vT0}, v{vT1}, s[{sWS}:{sWS+1}] {SC}")
    k.set_exec(-1)
    A("s_branch L_svc_end")
    if ovl:
        LB("dofr")
        lds_wait4("rdy", vT1, vT0, off=4, sleep=0)
        w_frags(LATEP)
        A(f"s_mov_b32 s{sStg}, 2")
        A(f"s_setpc_b64 s[{sRet}:{sRet+1}]")
    LB("svc_end")
    stamp(5)
    stamp(5, "epi")
    write_stamps(QL, vT0)
    A("s_endpgm")
    LB("stream")
    in_service[0] = False
    C("================= stream waves (4..7) =================")
    vKoff, vCl, vOne, vM, vLs, vAl, vQa, vCa = 2, 5, 6, 7, 8, 9, 10, 11
    vHi, vBase, vSa, vSr, vS = 0, 252, 253, 254, 255
    P = 12
    S = 12
    QF = 16
    k.TP = 28
    k.ntp = 4
    D = 28
    ACC = 36
    SL = 60
    MG = 60
    rCur = 52
    sRunBase, sD, sU0, sC = 56, 57, 58, 59
    sLog = 60
    sStep, sCi, sCp, sSingle, sNeedW = 80, 82, 83, 84, 95
    VP0 = (32 if NIT == 7 else 0) + 4 * NSD
    PPS = 64 - VP0
    NPOOL = 8 * PPS
    n3 = NPOOL - n1 * g1 - n2 * g2
    assert n3 >= 0 and (n1 * g1) % g2 == 0 and PPS % g1 == 0 and PPS % g2 == 0
    CT = n1 + n2 + n3
    MAGIC = 65536 // PPS + 1
    assert all((u * MAGIC) >> 16 == u // PPS for u in range(NPOOL))

    def T(t):
        return SL + 24 * t

    def loads(base, srd):
        for j in range(6):
            r = base + 4 * j
            A(f"buffer_load_dwordx4 v[{r}:{r+3}], v{vKoff}, s[{srd}:{srd+3}], s{sNxt} offen offset:{boff[j]} nt")

    def k_tile(s0):
        Da, Db = D, D + 4
        for n in range(3):
            ca = "0" if n == 0 else f"v[{Da}:{Da+3}]"
            cb = "0" if n == 0 else f"v[{Db}:{Db+3}]"
            A(f"v_mfma_f32_16x16x32_bf16 v[{Da}:{Da+3}], v[{QF+4*n}:{QF+4*n+3}], v[{s0+4*n}:{s0+4*n+3}], {ca}")
            A(f"v_mfma_f32_16x16x32_bf16 v[{Db}:{Db+3}], v[{QF+4*n}:{QF+4*n+3}], v[{s0+12+4*n}:{s0+12+4*n+3}], {cb}")

    def softmax():
        for t in range(2):
            d = D + 4 * t
            A(f"v_add_f32_dpp v{S+t}, v{d+1}, v{d} row_ror:8 row_mask:0xf bank_mask:0x3")
            A(f"v_add_f32_dpp v{S+t}, v{d}, v{d+1} row_ror:8 row_mask:0xf bank_mask:0xc")
        k.rnd2(S, S + 1, vT0)
        for t in range(2):
            A(f"v_mul_f32 v{S+t}, {SCALE}, v{S+t}")
        k.rnd2(S, S + 1, vT0)
        A(f"v_max3_f32 v{vT0}, v{vM}, v{S}, v{S+1}")
        A(f"v_sub_f32 v{vAl}, v{vM}, v{vT0}")
        for t in range(2):
            A(f"v_sub_f32 v{S+t}, v{S+t}, v{vT0}")
        A(f"v_mul_f32 v{vAl}, {LOG2E}, v{vAl}")
        for t in range(2):
            A(f"v_mul_f32 v{S+t}, {LOG2E}, v{S+t}")
        A(f"v_exp_f32 v{vAl}, v{vAl}")
        for t in range(2):
            A(f"v_exp_f32 v{S+t}, v{S+t}")
        A(f"v_mov_b32 v{vM}, v{vT0}")
        A(f"v_fma_f32 v{vLs}, v{vLs}, v{vAl}, v{S}")
        for i in range(12):
            k.pkmul(ACC + 2 * i, vAl)
        A(f"v_add_f32 v{vLs}, v{vLs}, v{S+1}")

    def softmax16():
        for t in range(8):
            A(f"ds_read2_b32 v[{P+2*t}:{P+2*t+1}], v{vSr} offset0:{16*t} offset1:{16*t+8}")
        A(f"v_add_u32 v{vSr}, 512, v{vSr}")
        A("s_waitcnt lgkmcnt(0)")
        A(f"v_max3_f32 v{vT0}, v{vM}, v{P}, v{P+1}")
        A(f"v_max3_f32 v{vT1}, v{P+2}, v{P+3}, v{P+4}")
        for i in range(5, 13, 4):
            A(f"v_max3_f32 v{vT0}, v{vT0}, v{P+i}, v{P+i+1}")
            A(f"v_max3_f32 v{vT1}, v{vT1}, v{P+i+2}, v{P+i+3}")
        A(f"v_max3_f32 v{vT0}, v{vT0}, v{P+13}, v{P+14}")
        A(f"v_max3_f32 v{vT0}, v{vT0}, v{vT1}, v{P+15}")
        A(f"v_sub_f32 v{vAl}, v{vM}, v{vT0}")
        A(f"v_sub_f32 v{vT1}, 0, v{vT0}")
        A(f"v_mul_f32 v{vAl}, {LOG2E}, v{vAl}")
        for t in range(8):
            A(f"v_pk_add_f32 v[{P+2*t}:{P+2*t+1}], v[{P+2*t}:{P+2*t+1}], v[{vT1}:{vT1+1}] op_sel_hi:[1,0]")
        A(f"v_exp_f32 v{vAl}, v{vAl}")
        for t in range(8):
            A(f"v_pk_mul_f32 v[{P+2*t}:{P+2*t+1}], v[{P+2*t}:{P+2*t+1}], s[{sLog}:{sLog+1}] op_sel_hi:[1,0]")
        for i in range(16):
            A(f"v_exp_f32 v{P+i}, v{P+i}")
        A(f"v_mov_b32 v{vM}, v{vT0}")
        for i in range(12):
            k.pkmul(ACC + 2 * i, vAl)
        t0 = k.TP
        A(f"v_pk_add_f32 v[{t0}:{t0+1}], v[{P}:{P+1}], v[{P+2}:{P+3}]")
        A(f"v_pk_add_f32 v[{t0+2}:{t0+3}], v[{P+4}:{P+5}], v[{P+6}:{P+7}]")
        for i in range(8, 16, 4):
            A(f"v_pk_add_f32 v[{t0}:{t0+1}], v[{t0}:{t0+1}], v[{P+i}:{P+i+1}]")
            A(f"v_pk_add_f32 v[{t0+2}:{t0+3}], v[{t0+2}:{t0+3}], v[{P+i+2}:{P+i+3}]")
        A(f"v_pk_add_f32 v[{t0}:{t0+1}], v[{t0}:{t0+1}], v[{t0+2}:{t0+3}]")
        A(f"v_fma_f32 v{vLs}, v{vLs}, v{vAl}, v{t0}")
        A(f"v_add_f32 v{vLs}, v{vLs}, v{t0+1}")

    def v_tile(s0, p0):
        items = [(s0 + 12 * half + 4 * n + d, ACC + 8 * n + 2 * d, p0 + half)
                 for half in range(2) for n in range(3) for d in range(4)]
        pend = []
        for it in items:
            t = k.unpack(it[0])
            pend.append((it[1], t, it[2]))
            if len(pend) > 2:
                ac, tt, m = pend.pop(0)
                k.pkfma(ac, tt, m)
        for ac, tt, m in pend:
            k.pkfma(ac, tt, m)

    def flush():
        A(f"v_mov_b32 v{vT0}, v{vM}")
        k.butterfly("v_max_f32", [vT0], 3)
        A(f"v_sub_f32 v{vAl}, v{vM}, v{vT0}")
        A(f"v_mul_f32 v{vAl}, {LOG2E}, v{vAl}")
        A(f"v_exp_f32 v{vAl}, v{vAl}")
        A(f"s_lshl_b32 s{sT0}, s{sWs}, 2")
        A(f"s_add_u32 s{sT0}, s{sT0}, s{sSlot}")
        A(f"s_lshl_b32 s{sT1}, s{sT0}, 10")
        A(f"v_mul_f32 v{vLs}, v{vLs}, v{vAl}")
        for i in range(12):
            k.pkmul(ACC + 2 * i, vAl)
        k.dpp("v_add_f32", vLs, "quad_perm:[1,0,3,2]")
        for n in range(3):
            for c in range(4):
                x, y = ACC + 8 * n + c, ACC + 8 * n + c + 4
                A(f"v_add_f32_dpp v{x}, v{x}, v{x} row_half_mirror row_mask:0xf bank_mask:0x5")
                A(f"v_add_f32_dpp v{x}, v{y}, v{y} row_half_mirror row_mask:0xf bank_mask:0xa")
        k.dpp("v_add_f32", vLs, "quad_perm:[2,3,0,1]")
        for n in range(3):
            for c in range(2):
                x, y = ACC + 8 * n + c, ACC + 8 * n + c + 2
                A(f"v_cndmask_b32 v{x+4}, v{y}, v{x}, s[{sM1}:{sM1+1}]")
                A(f"v_cndmask_b32 v{x}, v{x}, v{y}, s[{sM1}:{sM1+1}]")
        k.dpp("v_add_f32", vLs, "row_half_mirror")
        for n in range(3):
            for c in range(2):
                x = ACC + 8 * n + c
                A(f"v_add_f32_dpp v{x}, v{x+4}, v{x} quad_perm:[2,3,0,1] row_mask:0xf bank_mask:0xf")
        for n in range(3):
            x, y = ACC + 8 * n, ACC + 8 * n + 1
            A(f"v_cndmask_b32 v{x+4}, v{y}, v{x}, s[{sM0}:{sM0+1}]")
            A(f"v_cndmask_b32 v{x}, v{x}, v{y}, s[{sM0}:{sM0+1}]")
        A(f"v_lshl_add_u32 v{vT1}, v{vL}, 4, s{sT1}")
        A(f"s_lshl_b32 s{sT0}, s{sT0}, 3")
        for n in range(3):
            x = ACC + 8 * n
            A(f"v_add_f32_dpp v{D+n}, v{x+4}, v{x} quad_perm:[1,0,3,2] row_mask:0xf bank_mask:0xf")
        A(f"v_mov_b32 v{D+4}, v{vT0}")
        A(f"v_mov_b32 v{D+5}, v{vLs}")
        A(f"v_mov_b32 v{vT0}, s{sT0}")
        A(f"ds_write_b128 v{vT1}, v[{D}:{D+3}] offset:{L_REC}")
        A(f"ds_write_b64 v{vT0}, v[{D+4}:{D+5}] offset:{L_RHD}")
        A(f"s_add_u32 s{sSlot}, s{sSlot}, 1")

    def reset_state():
        A(f"v_mov_b32 v{vM}, {NEGBIG}")
        A(f"v_mov_b32 v{vLs}, 0")
        for i in range(24):
            A(f"v_mov_b32 v{ACC+i}, 0")

    def take():
        if pm == 0:
            A(f"s_mul_i32 s{sNxt}, s{sStat}, 6144")
            A(f"s_add_u32 s{sNxt}, s{sNxt}, s{sRunBase}")
        else:
            A(f"s_lshr_b32 s{sT0}, s{sStat}, 6")
            A(f"s_mul_i32 s{sT0}, s{sT0}, 393216")
            A(f"s_and_b32 s{sT1}, s{sStat}, 63")
            A(f"s_mul_i32 s{sT2}, s{sT1}, 3121")
            A(f"s_lshr_b32 s{sT2}, s{sT2}, 16")
            A(f"s_mul_i32 s{sT2}, s{sT2}, 22")
            A(f"s_add_u32 s{sT2}, s{sT2}, s{sT1}")
            A(f"s_cmp_eq_u32 s{sT1}, 63")
            A(f"s_cselect_b32 s{sT2}, 42, s{sT2}")
            A(f"s_cselect_b32 s{sD}, 43, 21")
            A(f"s_mul_i32 s{sD}, s{sD}, 3072")
            A(f"s_mul_i32 s{sT2}, s{sT2}, 3072")
            A(f"s_add_u32 s{sNxt}, s{sRunBase}, s{sT0}")
            A(f"s_add_u32 s{sNxt}, s{sNxt}, s{sT2}")
            A(f"v_mad_u32_u24 v{vKoff}, v{vHi}, s{sD}, v{vBase}")
        A(f"s_add_u32 s{sStat}, s{sStat}, s{sStep}")

    def set_issue():
        A(f"s_add_u32 s{sT0}, s{sC}, 1")
        A(f"s_cmp_ge_u32 s{sT0}, {NIT}")
        A(f"s_cselect_b32 s{rCur}, s{rV}, s{rK}")
        A(f"s_cselect_b32 s{rCur+1}, s{rV+1}, s{rK+1}")
        A(f"s_cselect_b32 s{sT1}, {NIT}, 0")
        A(f"s_sub_u32 s{sT0}, s{sT0}, s{sT1}")
        A(f"s_lshr_b32 s{sT1}, s{sT0}, 1")
        A(f"s_mul_i32 s{sRunBase}, s{sT1}, 100663296")
        A(f"s_add_u32 s{sRunBase}, s{sRunBase}, s{sHoff}")
        A(f"s_and_b32 s{sT0}, s{sT0}, 1")
        A(f"s_lshl_b32 s{sT0}, s{sT0}, 5")
        A(f"s_add_u32 s{sStat}, s{sU0}, s{sT0}")

    def issue_claim():
        A(f"s_lshl_b64 exec, 1, s{sCi}")
        A(f"global_atomic_add v{vCl}, v{vCa}, v{vOne}, s[{sWS}:{sWS+1}] sc0")
        k.set_exec(-1)
        A(f"s_add_u32 s{sCi}, s{sCi}, 1")

    A(f"s_sub_u32 s{sWs}, s{sW}, 4")
    A(f"v_and_b32 v{vT0}, 7, v{vL}")
    A(f"v_lshrrev_b32 v{vT1}, 3, v{vL}")
    if pm == 1:
        A(f"v_lshrrev_b32 v{vHi}, 2, v{vT0}")
        A(f"v_and_b32 v{vT0}, 3, v{vT0}")
        A(f"v_mul_u32_u24 v{vBase}, 384, v{vT0}")
        A(f"v_lshl_add_u32 v{vBase}, v{vT1}, 4, v{vBase}")
    else:
        A(f"v_mul_u32_u24 v{vKoff}, 384, v{vT0}")
        A(f"v_lshl_add_u32 v{vKoff}, v{vT1}, 4, v{vKoff}")
    A(f"s_mul_i32 s{sHoff}, s{sH}, 3145728")
    A(f"s_mov_b32 s{sRunBase}, s{sHoff}")
    A(f"s_lshl_b32 s{sU0}, s{sJ}, 6")
    A(f"s_add_u32 s{sU0}, s{sU0}, s{sWs}")
    A(f"s_mov_b32 s{sStat}, s{sU0}")
    A(f"s_mov_b32 s{sStep}, 4")
    A("s_waitcnt lgkmcnt(0)")
    A(f"s_load_dword s{sTag}, s[{sWS}:{sWS+1}], {W_GEN}")
    k.srd(rK, sKp, 402653184)
    for t in range(8):
        if ypos and t == 2 * ypos:
            A("s_barrier")
        take()
        loads(T(t), rK)
    k.srd(rV, sVp, 402653184)
    k.srd(rCur, sKp, 402653184)
    A(f"v_lshrrev_b32 v{vQa}, 4, v{vL}")
    A(f"v_lshlrev_b32 v{vQa}, 5, v{vQa}")
    A(f"v_and_b32 v{vT1}, 1, v{vL}")
    A(f"v_lshl_add_u32 v{vQa}, v{vT1}, 4, v{vQa}")
    A(f"v_mov_b32 v{vOne}, 1")
    A(f"s_mul_i32 s{sT0}, s{sH}, {qstride}")
    A(f"s_add_u32 s{sT0}, s{sT0}, {W_QCNT}")
    A(f"v_mov_b32 v{vCa}, s{sT0}")
    A(f"s_mul_i32 s{sT0}, s{sWs}, 3584")
    A(f"s_add_u32 s{sT0}, s{sT0}, {L_SC}")
    A(f"v_and_b32 v{vT0}, 15, v{vL}")
    A(f"v_lshl_add_u32 v{vSa}, v{vT0}, 2, s{sT0}")
    A(f"v_and_b32 v{vT0}, 7, v{vL}")
    A(f"v_lshl_add_u32 v{vSr}, v{vT0}, 2, s{sT0}")
    A(f"s_mov_b32 s{sSlot}, 0")
    A(f"s_mov_b32 s{sCi}, 0")
    A(f"s_mov_b32 s{sCp}, 0")
    A(f"s_mov_b32 s{sSingle}, 0")
    A(f"s_mov_b32 s{sNeedW}, 0")
    A(f"s_mov_b32 s{sC}, 0")
    A(f"s_mov_b32 s{sLog}, {LOG2E}")
    A(f"s_mov_b32 s{sLog+1}, {LOG2E}")
    A(f"s_mov_b32 s{sM1}, 0xcccccccc")
    A(f"s_mov_b32 s{sM1+1}, 0xcccccccc")
    A(f"s_mov_b32 s{sM0}, 0xaaaaaaaa")
    A(f"s_mov_b32 s{sM0+1}, 0xaaaaaaaa")
    reset_state()
    A("s_waitcnt lgkmcnt(0)")
    A(f"s_add_u32 s{sTag}, s{sTag}, 1")
    A(f"s_addc_u32 s{sTag}, s{sTag}, 0")
    A(f"s_cmp_eq_u32 s{sTag}, 0x80000001")
    A(f"s_addc_u32 s{sTag}, s{sTag}, 0")
    stamp(1)
    LB("kloop")
    A(f"s_bitcmp1_b32 s{sC}, 0")
    A("s_cbranch_scc1 L_sameq")
    C("new batch: wait for its q row, load the fragments")
    A(f"s_lshl_b32 s{sT1}, s{sC}, 1")
    A(f"s_add_u32 s{sT1}, s{sT1}, {L_SYNC + 32}")
    A(f"v_mov_b32 v{vT1}, s{sT1}")
    A(f"s_mov_b32 s{sSpin}, {SPIN*16}")
    LB("qf")
    A(f"ds_read_b32 v{vT0}, v{vT1}")
    A("s_waitcnt lgkmcnt(0)")
    A(f"v_readfirstlane_b32 s{sT0}, v{vT0}")
    A(f"s_sub_u32 s{sSpin}, s{sSpin}, 1")
    A(f"s_cselect_b32 s{sT0}, 1, s{sT0}")
    A(f"s_cmp_ge_u32 s{sT0}, 1")
    A("s_cbranch_scc1 L_qfok")
    A("s_sleep 1")
    A("s_branch L_qf")
    LB("qfok")
    A(f"s_lshl_b32 s{sT0}, s{sC}, 8")
    A(f"v_add_u32 v{vT0}, s{sT0}, v{vQa}")
    for n in range(3):
        A(f"ds_read_b128 v[{QF+4*n}:{QF+4*n+3}], v{vT0} offset:{L_QH+128*n}")
    A("s_waitcnt lgkmcnt(0)")
    LB("sameq")
    if stamps == "ph":
        A(f"s_cmp_eq_u32 s{sC}, 2")
        A("s_cbranch_scc0 L_nost1")
        stamp(1, "ph")
        LB("nost1")
    set_issue()
    for t in range(8):
        A("s_waitcnt vmcnt(42)")
        k_tile(T(t))
        take()
        loads(T(t), rCur)
        if pm == 0:
            A("s_nop 1")
        A(f"v_add_f32_dpp v{vS}, v{D+1}, v{D} row_ror:8 row_mask:0xf bank_mask:0x3")
        A(f"v_add_f32_dpp v{vS}, v{D+4}, v{D+5} row_ror:8 row_mask:0xf bank_mask:0xc")
        k.rnd1(vS, vT0)
        A(f"v_mul_f32 v{vS}, {SCALE}, v{vS}")
        k.rnd1(vS, vT0)
        A(f"ds_write_b32 v{vSa}, v{vS} offset:{64*t}")
    A(f"v_add_u32 v{vSa}, 512, v{vSa}")
    A(f"s_add_u32 s{sC}, s{sC}, 1")
    A(f"s_cmp_lt_u32 s{sC}, {NIT}")
    A("s_cbranch_scc1 L_kloop")
    stamp(2)
    LB("vloop")
    set_issue()
    softmax16()
    for t in range(8):
        A("s_waitcnt vmcnt(42)")
        v_tile(T(t), P + 2 * t)
        take()
        loads(T(t), rCur)
    A(f"s_bitcmp1_b32 s{sC}, 0")
    A(f"s_cbranch_scc{NIT & 1} L_nofl")
    A(f"s_call_b64 s[{sRet2}:{sRet2+1}], L_flush")
    reset_state()
    LB("nofl")
    A(f"s_add_u32 s{sC}, s{sC}, 1")
    A(f"s_cmp_lt_u32 s{sC}, {2*NIT-1}")
    A("s_cbranch_scc1 L_vloop")
    C("last two-pass iteration: start the single-pass units (batch 3) behind it")
    stamp(3, "ph")
    if NIT == 6:
        set_issue()
    softmax16()
    A(f"s_mov_b32 s{sRem}, {NSD - 2}")
    for t in range(8):
        A(f"s_waitcnt vmcnt({42 if t <= 4 else 42 - 6*(t-4)})")
        v_tile(T(t), P + 2 * t)
        if t == 0 and NSD == 2:
            issue_claim()
        if t == 2 and NSD == 3:
            issue_claim()
        if t in (0, 2):
            take()
            loads(T(t), rK)
        if t in (1, 3):
            loads(T(t), rV)
    if NIT == 6:
        A(f"s_call_b64 s[{sRet2}:{sRet2+1}], L_flush")
        reset_state()
        lds_wait4("q3", vT1, vT0, off=44, n=1, sleep=1)
    A(f"v_add_u32 v{vT0}, {3*512}, v{vQa}")
    for n in range(3):
        A(f"ds_read_b128 v[{QF+4*n}:{QF+4*n+3}], v{vT0} offset:{L_QH+128*n}")
    A("s_waitcnt lgkmcnt(0)")
    stamp(4, "ph")
    LB("loop")
    for x in range(2):
        A("s_waitcnt vmcnt(18)")
        k_tile(T(2 * x))
        A(f"s_sub_u32 s{sRem}, s{sRem}, 1")
        A(f"s_cmp_gt_i32 s{sRem}, 1")
        A(f"s_cbranch_scc0 L_dyn{x}")
        take()
        LB(f"dynret{x}")
        loads(T(2 * x), rK)
        softmax()
        A("s_waitcnt vmcnt(18)")
        v_tile(T(2 * x + 1), S)
        loads(T(2 * x + 1), rV)
    A("s_branch L_loop")
    for x in range(2):
        LB(f"dyn{x}")
        A(f"s_cmp_ge_i32 s{sRem}, 0")
        A(f"s_cbranch_scc1 L_take{x}")
        C("current run exhausted: pop the oldest claim")
        A(f"s_cmp_eq_u32 s{sNeedW}, 0")
        A(f"s_cbranch_scc1 L_now{x}")
        A("s_waitcnt vmcnt(12)")
        A(f"s_mov_b32 s{sNeedW}, 0")
        LB(f"now{x}")
        A(f"s_and_b32 s{sT1}, s{sCp}, 63")
        A(f"v_readlane_b32 s{sT0}, v{vCl}, s{sT1}")
        A(f"s_add_u32 s{sCp}, s{sCp}, 1")
        A("s_nop 2")
        A(f"s_cmp_ge_u32 s{sT0}, {CT}")
        A(f"s_cbranch_scc1 L_last{x}")
        A(f"s_add_u32 s{sT1}, s{sT0}, {n1*g1 + n2*g2 - n1 - n2}")
        A(f"s_mov_b32 s{sRem}, 0")
        A(f"s_mul_i32 s{sT2}, s{sT0}, {g2}")
        A(f"s_add_u32 s{sT2}, s{sT2}, {n1*g1 - n1*g2}")
        A(f"s_cmp_lt_u32 s{sT0}, {n1+n2}")
        A(f"s_cselect_b32 s{sT1}, s{sT2}, s{sT1}")
        A(f"s_cselect_b32 s{sRem}, {g2-1}, s{sRem}")
        A(f"s_mul_i32 s{sT2}, s{sT0}, {g1}")
        A(f"s_cmp_lt_u32 s{sT0}, {n1}")
        A(f"s_cselect_b32 s{sT1}, s{sT2}, s{sT1}")
        A(f"s_cselect_b32 s{sRem}, {g1-1}, s{sRem}")
        C("pool unit u -> unit index 64*(u/PPS) + VP0 + u%PPS")
        A(f"s_mul_i32 s{sT2}, s{sT1}, {MAGIC}")
        A(f"s_lshr_b32 s{sT2}, s{sT2}, 16")
        A(f"s_mul_i32 s{sT2}, s{sT2}, {VP0}")
        A(f"s_add_u32 s{sStat}, s{sT1}, s{sT2}")
        A(f"s_add_u32 s{sStat}, s{sStat}, {VP0}")
        A(f"s_mov_b32 s{sStep}, 1")
        C("first single-unit run: switch to two claims in flight")
        A(f"s_or_b32 s{sT1}, s{sRem}, s{sSingle}")
        A(f"s_cbranch_scc1 L_take{x}")
        A(f"s_mov_b32 s{sNeedW}, 1")
        A(f"s_mov_b32 s{sSingle}, 1")
        issue_claim()
        LB(f"take{x}")
        take()
        A(f"s_cmp_gt_i32 s{sRem}, 1")
        A(f"s_cbranch_scc1 L_dynret{x}")
        A(f"s_sub_u32 s{sT0}, s{sCi}, s{sCp}")
        A(f"s_cmp_gt_u32 s{sT0}, s{sSingle}")
        A(f"s_cbranch_scc1 L_dynret{x}")
        issue_claim()
        A(f"s_branch L_dynret{x}")
    LB("flush")
    flush()
    A(f"s_setpc_b64 s[{sRet2}:{sRet2+1}]")
    for x in range(2):
        y = 1 - x
        LB(f"last{x}")
        stamp(3)
        A(f"v_mov_b32 v{vT1}, {L_SYNC}")
        k.set_exec(1)
        A(f"ds_add_u32 v{vT1}, v{vOne} offset:8")
        k.set_exec(-1)
        softmax()
        A("s_waitcnt vmcnt(12)")
        v_tile(T(2 * x + 1), S)
        A("s_waitcnt vmcnt(6)")
        k_tile(T(2 * y))
        A("s_nop 7")
        softmax()
        A("s_waitcnt vmcnt(0)")
        v_tile(T(2 * y + 1), S)
        if x == 0:
            A("s_branch L_fin")
    LB("fin")
    A(f"s_call_b64 s[{sRet2}:{sRet2+1}], L_flush")
    A(f"v_mov_b32 v{vAl}, {L_SYNC}")
    k.set_exec(1)
    A(f"ds_add_u32 v{vAl}, v{vOne} offset:12")
    k.set_exec(-1)
    vRa, vRhh = QF, QF + 2
    A(f"s_lshl_b32 s{sT0}, s{sH}, 2")
    A(f"s_add_u32 s{sT0}, s{sT0}, s{sWs}")
    A(f"s_lshl_b32 s{sT0}, s{sT0}, 3")
    A(f"s_add_u32 s{sT0}, s{sT0}, s{sJ}")
    A(f"s_lshl_b32 s{sT1}, s{sT0}, 10")
    A(f"s_add_u32 s{sT1}, s{sT1}, {W_REC}")
    A(f"v_lshl_add_u32 v{vRa}, v{vL}, 4, s{sT1}")
    A(f"s_lshl_b32 s{sT1}, s{sT0}, 7")
    A(f"s_add_u32 s{sT1}, s{sT1}, {W_RH}")
    A(f"v_lshl_add_u32 v{vRhh}, v{vL}, 4, s{sT1}")
    A(f"s_lshl_b32 s{sT1}, s{sWs}, 3")
    A(f"v_and_b32 v{vT0}, 3, v{vL}")
    A(f"v_lshl_add_u32 v{vT0}, v{vT0}, 5, s{sT1}")
    A(f"s_lshl_b32 s{sT1}, s{sWs}, 10")
    A(f"v_lshl_add_u32 v{vT1}, v{vL}, 4, s{sT1}")
    lds_wait4("fl", vAl, vLs, off=12, n=4, sleep=0)
    stamp(4)
    C("==== WG merge: stream wave w merges the four records of batch w ====")
    A(f"ds_read_b64 v[{S}:{S+1}], v{vT0} offset:{L_RHD}")
    for i in range(4):
        A(f"ds_read_b128 v[{MG+4*i}:{MG+4*i+3}], v{vT1} offset:{L_REC+4096*i}")
    A("s_waitcnt lgkmcnt(4)")
    A(f"v_mov_b32 v{ACC+8}, v{S}")
    k.butterfly("v_max_f32", [ACC + 8], 2)
    A(f"v_sub_f32 v{vAl}, v{S}, v{ACC+8}")
    A(f"v_mul_f32 v{vAl}, {LOG2E}, v{vAl}")
    A(f"v_exp_f32 v{vAl}, v{vAl}")
    A("s_nop 0")
    A(f"v_mul_f32 v{ACC+9}, v{vAl}, v{S+1}")
    sWm = 64
    for i in range(4):
        A(f"v_readlane_b32 s{sWm+i}, v{vAl}, {i}")
        if i == 1:
            k.dpp("v_add_f32", ACC + 9, "quad_perm:[1,0,3,2]")
    k.dpp("v_add_f32", ACC + 9, "quad_perm:[2,3,0,1]")
    A("s_waitcnt lgkmcnt(0)")
    A(f"v_pk_mul_f32 v[{ACC}:{ACC+1}], v[{MG}:{MG+1}], s[{sWm}:{sWm+1}] op_sel_hi:[1,0]")
    A(f"v_mul_f32 v{ACC+2}, s{sWm}, v{MG+2}")
    xor3(ACC + 10, f"v{ACC+8}", f"v{ACC+9}", f"s{sTag}")
    for i in range(1, 4):
        k.pkfma(ACC, MG + 4 * i, sWm + i, pre="s")
        A(f"v_fmac_f32 v{ACC+2}, s{sWm+i}, v{MG+4*i+2}")
    xor3(ACC + 3, f"v{ACC}", f"v{ACC+1}", f"v{ACC+2}")
    A(f"v_xor_b32 v{ACC+3}, s{sTag}, v{ACC+3}")
    A(f"global_store_dwordx4 v{vRa}, v[{ACC}:{ACC+3}], s[{sWS}:{sWS+1}] {SC}")
    k.set_exec(0xff)
    A(f"global_store_dwordx4 v{vRhh}, v[{ACC+8}:{ACC+11}], s[{sWS}:{sWS+1}] {SC}")
    k.set_exec(-1)
    stamp(5)
    write_stamps(MG, vT1)
    LB("end")
    A("s_endpgm")
    return k, (256, 256), L_TOTAL


def build(stamps=False, **kw):
    k2, r2, l2 = build_main(stamps, **kw)
    txt = HEADER
    txt += f"; @launch grid=(256,1,1) block=(512,1,1) lds={l2}\n"
    txt += '.amdgcn_target "amdgcn-amd-amdhsa--gfx950"\n.text\n'
    txt += k2.text()
    txt += '.section .rodata,"a"\n'
    txt += k2.desc(*r2)
    return txt


if __name__ == "__main__":
    out = sys.argv[1] if len(sys.argv) > 1 else f"cdna_kernels/{NAME}.s"
    stamps = sys.argv[2] if len(sys.argv) > 2 and sys.argv[2] != "-" else False
    kw = {}
    for a in sys.argv[3:]:
        n, v = a.split("=")
        kw[n] = int(v)
    open(out, "w").write(build(stamps, **kw))
    print("wrote", out)
```

```python
import sys
from gen_v1 import HEADER, NAME
from gen_v2 import K, load_kernargs, SCALE, LOG2E, NEGBIG
from gen_v2 import sX, sKp, sVp, sWQp, sWOp, sW1p, sB1p, sW2p, sB2p, sOUT, sDBG, sWS

W_GEN = 0x0
W_QCNT = 0x800000
W_RH = 0xE0000
W_FR = 0x20000
W_YA = 0x400000
W_REC = 0x100000
W_QC = 0x200000
W_YB = 0x240000
W_QP = 0x300000
W_STAMP = 0x1000000
SPIN = 0x80000


def build_main(stamps=False, DP=64, NPRE=2, mimic=1, hsleep=1, qsleep=64, nmiss=4, pre1=0, pre2=0, noq=0, stop=0, ysleep=1, qstride=4352, stnt=0, ldnt=0, fsleep=120, dbg=0, ilv=4, rot=1, bar1=0, early=0, ymiss=1, esleep=4, alias=0, n1=24, g1=4, n2=24, g2=2, tstep=0, late=5, la1=0, ypos=3, qflag=1, ovl=1, split=1, pm=1, NDIR=1, NSD=2, NIT=7, epub=1, etrig=1, etrig3=2):
    ldsync = 1 if (early or late) else 0
    SCS = "sc1 nt" if stnt else "sc1"
    SCL = "sc1 nt" if ldnt else "sc1"
    SC = "sc1"
    k = K(f"{NAME}_kernel")
    k.lab = lambda s: f"L_{s}"
    k.LB = lambda s: k.L.append(f"L_{s}:")
    A, LB, C = k.A, k.LB, k.C
    sT0, sT1, sT2, sT3 = k.sT
    NS = (512 - DP) // 8
    LDP = DP.bit_length() - 1
    NPOOL = 4 * DP
    sW, sH, sJ = 3, 4, 5
    sRem, sStat, sNxt = 6, 7, 12
    sPairCur, sPairSt, sSlot, sHoff = 13, 14, 42, 43
    rK, rV = 44, 48
    sPair = [52, 53]
    sRet = 54
    sWt = 56
    sTm = 76
    sTag = 78
    sTagY = 94
    sOB = 95
    sSpin = 79
    rW = 80
    sOff = 84
    sWs = 85
    sM1, sM0 = 86, 88
    sRet2 = 92
    sTs = 96
    L_QH = 0
    L_SYNC = 2048
    L_RHD = 2112
    L_OB = 2560
    L_REC = 4096
    L_XN = L_REC + 16384
    L_WT = 32768
    L_SC = L_WT + 65536
    L_TOTAL = L_SC + 4 * 3584
    boff = [0, 128, 256, 1536, 1664, 1792] if pm == 1 else [0, 128, 256, 3072, 3200, 3328]
    in_service = [True]

    def stamp(i, mode="stamps"):
        if stamps == "ph" and mode == "stamps" and not in_service[0] and i in (1, 3, 4):
            return
        if stamps == "st" and mode == "stamps" and not in_service[0] and i in (1, 2, 3, 4):
            return
        if stamps and (mode == stamps or (mode == "stamps" and (i == 0 or not in_service[0]))):
            A(f"s_memrealtime s[{sTm}:{sTm+1}]")
            A("s_waitcnt lgkmcnt(0)")
            A(f"s_mov_b32 s{sTs+i}, s{sTm}")

    def write_stamps(tmp, vA):
        if stamps and dbg:
            if in_service[0]:
                C("debug: WGs 0,40,85,130 wave 0 report (t1,t3,t5) - t0 and xcc")
                A(f"s_cmp_eq_u32 s{sW}, 0")
                A("s_cbranch_scc0 L_nodbg")
                A(f"s_mul_i32 s{sT1}, s2, 1457")
                A(f"s_lshr_b32 s{sT1}, s{sT1}, 16")
                A(f"s_mul_i32 s{sT3}, s{sT1}, 45")
                A(f"s_cmp_eq_u32 s{sT3}, s2")
                A("s_cbranch_scc0 L_nodbg")
                A(f"s_cmp_lt_u32 s{sT1}, 4")
                A("s_cbranch_scc0 L_nodbg")
                A(f"s_getreg_b32 s{sT2}, hwreg(HW_REG_XCC_ID)")
                A(f"s_lshl_b32 s{sT1}, s{sT1}, 4")
                for n, i in enumerate((1, 3, 5)):
                    A(f"s_sub_u32 s{sT3}, s{sTs+i}, s{sTs}")
                    A(f"v_mov_b32 v{tmp+n}, s{sT3}")
                A(f"v_mov_b32 v{tmp+3}, s{sT2}")
                A(f"v_mov_b32 v{vA}, s{sT1}")
                k.set_exec(1)
                A(f"global_store_dwordx4 v{vA}, v[{tmp}:{tmp+3}], s[{sDBG}:{sDBG+1}]")
                k.set_exec(-1)
                LB("nodbg")
        elif stamps:
            A(f"s_getreg_b32 s{sT2}, hwreg(HW_REG_XCC_ID)")
            A(f"s_lshl_b32 s{sT1}, s2, 3")
            A(f"s_add_u32 s{sT1}, s{sT1}, s{sW}")
            A(f"s_lshl_b32 s{sT1}, s{sT1}, 5")
            A(f"s_add_u32 s{sT1}, s{sT1}, {W_STAMP}")
            for i in range(6):
                A(f"v_mov_b32 v{tmp+i}, s{sTs+i}")
            A(f"v_mov_b32 v{tmp+6}, s{sT2}")
            A(f"v_mov_b32 v{tmp+7}, 0x12345678")
            A(f"v_mov_b32 v{vA}, s{sT1}")
            k.set_exec(1)
            A(f"global_store_dwordx4 v{vA}, v[{tmp}:{tmp+3}], s[{sWS}:{sWS+1}]")
            A(f"global_store_dwordx4 v{vA}, v[{tmp+4}:{tmp+7}], s[{sWS}:{sWS+1}] offset:16")
            k.set_exec(-1)

    def xor3(d, a, b, c):
        A(f"v_bitop3_b32 v{d}, {a}, {b}, {c} bitop3:0x96")

    def spin_tail(loop, sleep=None):
        if sleep:
            A(f"s_sleep {sleep}")
        A(f"s_sub_u32 s{sSpin}, s{sSpin}, 1")
        A(f"s_cmp_lg_u32 s{sSpin}, 0")
        A(f"s_cbranch_scc1 L_{loop}")

    def lds_wait4(tagl, vA, vD, off=0, n=4, sleep=4):
        A(f"v_mov_b32 v{vA}, {L_SYNC}")
        A(f"s_mov_b32 s{sSpin}, {SPIN*16}")
        LB(tagl)
        A(f"ds_read_b32 v{vD}, v{vA} offset:{off}")
        A("s_waitcnt lgkmcnt(0)")
        A(f"v_readfirstlane_b32 s{sT0}, v{vD}")
        A(f"s_sub_u32 s{sSpin}, s{sSpin}, 1")
        A(f"s_cselect_b32 s{sT0}, {n}, s{sT0}")
        A(f"s_cmp_ge_u32 s{sT0}, {n}")
        if sleep:
            A(f"s_cbranch_scc1 L_{tagl}ok")
            A(f"s_sleep {sleep}")
            A(f"s_branch L_{tagl}")
        else:
            A(f"s_cbranch_scc0 L_{tagl}")
        LB(tagl + "ok")

    vL, vT0, vT1 = 1, 3, 4
    A("s_cmp_ge_u32 s2, 256")
    A("s_cbranch_scc1 L_end")
    stamp(0)
    load_kernargs(k)
    A(f"v_and_b32 v{vL}, 63, v0")
    A(f"v_lshrrev_b32 v{vT0}, 6, v0")
    A(f"s_mov_b32 s{k.sMsk}, 0xffff0000")
    A(f"v_readfirstlane_b32 s{sW}, v{vT0}")
    A(f"s_lshr_b32 s{sH}, s2, 3")
    A(f"s_and_b32 s{sJ}, s2, 7")
    A(f"s_cmp_ge_u32 s{sW}, 4")
    A("s_cbranch_scc1 L_stream")
    C("================= service waves (0..3) =================")
    vOff, vXa, vXb, vOne_s = 2, 5, 6, 7
    a = 8
    k.TP = 16
    k.ntp = 2
    XR = 20
    XC = 40
    X = 44
    ACC = 84
    WR = 116
    E = 156
    QL = 164
    QK = 196
    B1R = 204
    FXR = 206
    A("s_setprio 3")
    A(f"v_lshrrev_b32 v{vT0}, 3, v{vL}")
    A(f"v_and_b32 v{vT1}, 7, v{vL}")
    A(f"s_cmp_eq_u32 s{sW}, 3")
    A(f"s_movk_i32 s{sT0}, 3072")
    A(f"s_cselect_b32 s{sT0}, s{sT0}, 12288")
    A(f"v_mul_lo_u32 v{vOff}, v{vT0}, s{sT0}")
    A(f"v_lshl_add_u32 v{vOff}, v{vT1}, 4, v{vOff}")
    A(f"s_mul_i32 s{sOff}, s{sJ}, 80")
    A(f"s_mul_i32 s{sOff}, s{sOff}, s{sT0}")
    A(f"s_lshl_b32 s{sT3}, s{sT0}, 3")
    A(f"s_mul_i32 s{sT1}, s{sH}, 384")
    A(f"s_lshl_b32 s{sT2}, s{sW}, 7")
    A(f"s_add_u32 s{sT1}, s{sT1}, s{sT2}")
    A(f"s_min_u32 s{sT2}, s{sH}, 23")
    A(f"s_lshl_b32 s{sT2}, s{sT2}, 7")
    A(f"s_cmp_eq_u32 s{sW}, 3")
    A(f"s_cselect_b32 s{sT1}, s{sT2}, s{sT1}")
    A(f"s_add_u32 s{sOff}, s{sOff}, s{sT1}")
    A(f"v_lshrrev_b32 v{vT0}, 4, v{vL}")
    A(f"v_mul_u32_u24 v{vT0}, 1280, v{vT0}")
    A(f"v_and_b32 v{vT1}, 15, v{vL}")
    A(f"v_lshl_add_u32 v{vXa}, v{vT1}, 4, v{vT0}")
    A(f"v_lshl_add_u32 v{a}, v{vT1}, 3, s{sT2}")
    A(f"v_min_u32 v{vT1}, 9, v{vT1}")
    A(f"v_lshl_add_u32 v{vXb}, v{vT1}, 4, v{vT0}")
    A(f"s_mul_i32 s{sT1}, s{sJ}, 160")
    A(f"v_add_u32 v{vXb}, s{sT1}, v{vXb}")
    A(f"v_mov_b32 v{vOne_s}, 1")
    for i in range(32):
        A(f"v_mov_b32 v{ACC+i}, 0")
    A(f"v_and_b32 v{vT0}, 15, v{vL}")
    A(f"v_lshlrev_b32 v{vT0}, 2, v{vT0}")
    A(f"ds_write_b32 v{vT0}, v{ACC} offset:{L_SYNC}")
    A(f"s_cmp_lt_u32 s{sH}, 24")
    A(f"s_cselect_b32 s{rW+2}, 1966080, 0")
    A("s_waitcnt lgkmcnt(0)")
    stamp(1, "st")
    A(f"s_load_dword s{sTag}, s[{sWS}:{sWS+1}], {W_GEN}")
    for m in range(5):
        A(f"global_load_dwordx4 v[{XR+4*m}:{XR+4*m+3}], v{vXa}, s[{sX}:{sX+1}] offset:{256*m}")
    A(f"global_load_dwordx4 v[{XC}:{XC+3}], v{vXb}, s[{sX}:{sX+1}]")
    A(f"s_cmp_eq_u32 s{sW}, 3")
    A(f"s_cselect_b32 s{rW}, s{sW1p}, s{sWQp}")
    A(f"s_cselect_b32 s{rW+1}, s{sW1p+1}, s{sWQp+1}")
    A(f"s_cselect_b32 s{rW+2}, s{rW+2}, 7864320")
    A(f"s_mov_b32 s{rW+3}, 0x20000")
    for t in range(10):
        if stop != 1:
            A(f"buffer_load_dwordx4 v[{WR+4*t}:{WR+4*t+3}], v{vOff}, s[{rW}:{rW+3}], s{sOff} offen nt")
        if t < 9:
            A(f"s_add_u32 s{sOff}, s{sOff}, s{sT3}")
    A(f"global_load_dwordx2 v[{B1R}:{B1R+1}], v{a}, s[{sB1p}:{sB1p+1}]")
    A(f"s_mul_i32 s{sOB}, s{sH}, 40960")
    A(f"s_add_u32 s{sOB}, s{sOB}, {W_QP}")
    stamp(2, "st")
    C("queue counter of this octet = 0 (j == 0, wave 0)")
    A(f"s_mul_i32 s{sT0}, s{sH}, {qstride}")
    A(f"s_add_u32 s{sT0}, s{sT0}, {W_QCNT}")
    A(f"v_mov_b32 v{vT0}, s{sT0}")
    A(f"s_or_b32 s{sT0}, s{sJ}, s{sW}")
    A(f"s_cmp_eq_u32 s{sT0}, 0")
    A("s_cbranch_scc0 L_noq")
    k.set_exec(1)
    A(f"global_store_dword v{vT0}, v{ACC}, s[{sWS}:{sWS+1}] {SC}")
    k.set_exec(-1)
    LB("noq")
    if tstep:
        C("translation warm-up through the scalar path: waves 0/1 static K/V range, waves 2/3 pool K/V")
        sB0 = 60
        A(f"s_bitcmp1_b32 s{sW}, 0")
        A(f"s_cselect_b32 s{sB0}, s{sVp}, s{sKp}")
        A(f"s_cselect_b32 s{sB0+1}, s{sVp+1}, s{sKp+1}")
        A(f"s_mul_i32 s{sT2}, s{sH}, 3145728")
        A(f"s_cmp_ge_u32 s{sW}, 2")
        A("s_cbranch_scc1 L_tw_pool")
        A(f"s_lshr_b32 s{sT0}, s{sJ}, 1")
        A(f"s_mul_i32 s{sT0}, s{sT0}, 100663296")
        A(f"s_add_u32 s{sT0}, s{sT0}, s{sT2}")
        A(f"s_and_b32 s{sT1}, s{sJ}, 1")
        A(f"s_mul_i32 s{sT1}, s{sT1}, {4*NS*6144}")
        A(f"s_add_u32 s{sT0}, s{sT0}, s{sT1}")
        ln = 4 * NS * 6144
        offs = list(range(0, ln, tstep)) + [ln - 64]
        for i, o in enumerate(offs):
            A(f"s_add_u32 s{sT1}, s{sT0}, {o}")
            A(f"s_load_dword s{62 + (i % 8)}, s[{sB0}:{sB0+1}], s{sT1}")
        A("s_branch L_tw_done")
        LB("tw_pool")
        ln = DP * 6144
        offs = list(range(0, ln, tstep)) + [ln - 64]
        i = 0
        for p in range(4):
            for o in offs:
                A(f"s_add_u32 s{sT1}, s{sT2}, {p*100663296 + (512-DP)*6144 + o}")
                A(f"s_load_dword s{62 + (i % 8)}, s[{sB0}:{sB0+1}], s{sT1}")
                i += 1
        LB("tw_done")
    C("barrier 1 releases the stream waves")
    if bar1:
        A("s_barrier")
    if noq:
        A("s_barrier")
    if stop == 1:
        A("s_waitcnt vmcnt(0) lgkmcnt(0)")
        A("s_branch L_svc_end")
    C("---- LayerNorm statistics, 16 lanes per batch ----")
    A(f"s_waitcnt vmcnt({11 + 2*pre1})")
    stamp(1, "pro")
    for i in range(20):
        A(f"v_lshlrev_b32 v{X+2*i}, 16, v{XR+i}")
        A(f"v_and_b32 v{X+2*i+1}, s{k.sMsk}, v{XR+i}")
    A(f"v_pk_add_f32 v[{a}:{a+1}], v[{X}:{X+1}], v[{X+2}:{X+3}]")
    A(f"v_pk_add_f32 v[{a+2}:{a+3}], v[{X+4}:{X+5}], v[{X+6}:{X+7}]")
    for i in range(4, 20):
        d = a + 2 * (i & 1)
        A(f"v_pk_add_f32 v[{d}:{d+1}], v[{d}:{d+1}], v[{X+2*i}:{X+2*i+1}]")
    A(f"v_pk_add_f32 v[{a}:{a+1}], v[{a}:{a+1}], v[{a+2}:{a+3}]")
    A(f"v_add_f32 v{a}, v{a}, v{a+1}")
    k.butterfly("v_add_f32", [a], 4)
    A(f"v_mul_f32 v{a}, {-1.0/640.0!r}, v{a}")
    for i in range(20):
        A(f"v_pk_add_f32 v[{X+2*i}:{X+2*i+1}], v[{X+2*i}:{X+2*i+1}], v[{a}:{a+1}] op_sel_hi:[1,0]")
    A(f"v_pk_mul_f32 v[{a+2}:{a+3}], v[{X}:{X+1}], v[{X}:{X+1}]")
    A(f"v_pk_mul_f32 v[{a+4}:{a+5}], v[{X+2}:{X+3}], v[{X+2}:{X+3}]")
    for i in range(2, 20):
        d = a + 2 + 2 * (i & 1)
        A(f"v_pk_fma_f32 v[{d}:{d+1}], v[{X+2*i}:{X+2*i+1}], v[{X+2*i}:{X+2*i+1}], v[{d}:{d+1}]")
    A(f"v_pk_add_f32 v[{a+2}:{a+3}], v[{a+2}:{a+3}], v[{a+4}:{a+5}]")
    A(f"v_add_f32 v{a+2}, v{a+2}, v{a+3}")
    k.butterfly("v_add_f32", [a + 2], 4)
    A(f"v_mul_f32 v{a+2}, {1.0/640.0!r}, v{a+2}")
    k.rnd2(a, a + 2, a + 1)
    A(f"v_add_f32 v{a+2}, 0x3727c5ac, v{a+2}")
    k.rnd1(a + 2, a + 1)
    A(f"v_sqrt_f32 v{a+2}, v{a+2}")
    A("s_waitcnt lgkmcnt(0)")
    for i in range(4):
        A(f"v_lshlrev_b32 v{E+2*i}, 16, v{XC+i}")
        A(f"v_and_b32 v{E+2*i+1}, s{k.sMsk}, v{XC+i}")
    k.rnd1(a + 2, a + 1)
    A(f"v_rcp_f32 v{a+3}, v{a+2}")
    for i in range(8):
        A(f"v_add_f32 v{E+i}, v{E+i}, v{a}")
    for i in range(0, 8, 2):
        k.rnd2(E + i, E + i + 1, a + 1)
    for i in range(8):
        A(f"v_mul_f32 v{a+4}, v{E+i}, v{a+3}")
        A(f"v_fma_f32 v{a+5}, -v{a+4}, v{a+2}, v{E+i}")
        A(f"v_fma_f32 v{E+i}, v{a+5}, v{a+3}, v{a+4}")
    for i in range(0, 8, 2):
        k.rnd2(E + i, E + i + 1, a + 1)
    A(f"s_mul_i32 s{sT0}, s{sW}, 1280")
    A(f"v_and_b32 v{vT1}, 15, v{vL}")
    A(f"v_min_u32 v{vT1}, 9, v{vT1}")
    A(f"v_lshl_add_u32 v{vT1}, v{vT1}, 7, s{sT0}")
    A(f"v_lshrrev_b32 v{vT0}, 4, v{vL}")
    A(f"v_lshl_add_u32 v{vT1}, v{vT0}, 2, v{vT1}")
    for i in range(8):
        A(f"ds_write_b32 v{vT1}, v{E+i} offset:{L_XN+16*i}")
    A(f"v_lshrrev_b32 v{vT0}, 3, v{vL}")
    A(f"v_lshl_add_u32 v{vT0}, v{vT0}, 4, s{sT0}")
    A(f"s_add_u32 s{sTag}, s{sTag}, 1")
    A(f"s_addc_u32 s{sTag}, s{sTag}, 0")
    A(f"s_cmp_eq_u32 s{sTag}, 0x80000001")
    A(f"s_addc_u32 s{sTag}, s{sTag}, 0")
    A(f"s_xor_b32 s{sTagY}, s{sTag}, 0x80000001")
    XN = X
    for t in range(10):
        A(f"ds_read_b128 v[{XN+4*t}:{XN+4*t+3}], v{vT0} offset:{L_XN+128*t}")
    C("granule index 16w + 2e + half, row b = l>>4")
    A(f"v_and_b32 v{vT0}, 7, v{vL}")
    A(f"v_bfe_u32 v{vT1}, v{vL}, 3, 1")
    A(f"v_lshl_add_u32 v{vT0}, v{vT0}, 1, v{vT1}")
    A(f"s_lshl_b32 s{sT0}, s{sW}, 4")
    A(f"v_add_u32 v{vT0}, s{sT0}, v{vT0}")
    A(f"v_lshrrev_b32 v{vT1}, 4, v{vL}")
    A(f"v_lshl_add_u32 v{vT0}, v{vT1}, 6, v{vT0}")
    A(f"s_lshl_b32 s{sT0}, s{sJ}, 12")
    A(f"s_add_u32 s{sT0}, s{sT0}, s{sOB}")
    A(f"s_lshl_b32 s{sT1}, s{sJ}, 10")
    A(f"s_lshl_b32 s{sT2}, s{sW}, 8")
    A(f"s_add_u32 s{sT1}, s{sT1}, s{sT2}")
    A(f"s_add_u32 s{sT1}, s{sT1}, s{sOB}")
    A(f"s_add_u32 s{sT1}, s{sT1}, 32768")
    A(f"v_lshl_add_u32 v{vXa}, v{vT0}, 4, s{sT0}")
    A(f"v_lshl_add_u32 v{vXb}, v{vL}, 2, s{sT1}")
    stamp(1)
    stamp(2, "pro")
    for t in range(10):
        A(f"s_waitcnt vmcnt({10-t+2*pre1 if t < 9 else 0}) lgkmcnt({9-t})")
        if t == 0:
            stamp(3, "pro")
        if t == 9:
            stamp(4, "pro")
        for d in range(4):
            tt = k.unpack(WR + 4 * t + d)
            for b in range(4):
                k.pkfma(ACC + 8 * b + 2 * d, tt, XN + 4 * t + b)
    C("reduce-scatter over lane bits 5,4,3")
    A("s_nop 1")
    for i in range(16):
        A(f"v_permlane32_swap_b32 v{ACC+i}, v{ACC+16+i}")
    for i in range(16):
        A(f"v_add_f32 v{ACC+i}, v{ACC+i}, v{ACC+16+i}")
    A("s_nop 1")
    for i in range(8):
        A(f"v_permlane16_swap_b32 v{ACC+i}, v{ACC+8+i}")
    for i in range(8):
        A(f"v_add_f32 v{ACC+i}, v{ACC+i}, v{ACC+8+i}")
    A("s_nop 1")
    for i in range(4):
        A(f"v_add_f32_dpp v{E+i}, v{ACC+i}, v{ACC+i} row_ror:8 row_mask:0xf bank_mask:0x3")
        A(f"v_add_f32_dpp v{E+i}, v{ACC+4+i}, v{ACC+4+i} row_ror:8 row_mask:0xf bank_mask:0xc")
    A(f"global_store_dwordx4 v{vXa}, v[{E}:{E+3}], s[{sWS}:{sWS+1}] {SCS}")
    xor3(E + 4, f"v{E}", f"v{E+1}", f"v{E+2}")
    xor3(E + 4, f"v{E+4}", f"v{E+3}", f"s{sTag}")
    A(f"global_store_dword v{vXb}, v{E+4}, s[{sWS}:{sWS+1}] {SCS}")
    stamp(2)
    stamp(5, "pro")
    if stop == 2:
        A("s_waitcnt vmcnt(0) lgkmcnt(0)")
        A("s_branch L_svc_end")
    C("addresses: final row FR[h*4+w], LDS row w")
    vFr, vQl = a + 6, a + 7
    A(f"s_lshl_b32 s{sT0}, s{sH}, 2")
    A(f"s_add_u32 s{sT0}, s{sT0}, s{sW}")
    A(f"s_lshl_b32 s{sT0}, s{sT0}, 10")
    A(f"s_add_u32 s{sT0}, s{sT0}, {W_FR}")
    A(f"v_lshl_add_u32 v{vFr}, v{vL}, 4, s{sT0}")
    A(f"s_lshl_b32 s{sT1}, s{sW}, 9")
    A(f"v_lshl_add_u32 v{vQl}, v{vL}, 3, s{sT1}")
    A(f"s_mov_b32 s{sSpin}, {SPIN}")
    C("rows < NDIR are gathered by every workgroup; row w >= NDIR by workgroup j == 2w, which publishes it")
    A(f"s_lshl_b32 s{sT0}, s{sW}, 2")
    A(f"s_add_u32 s{sT0}, s{sT0}, {L_SYNC + 32}")
    A(f"v_mov_b32 v{E}, s{sT0}")
    A(f"s_lshl_b32 s{sPairCur}, s{sW}, 1")
    A(f"s_cmp_eq_u32 s{sPairCur}, s{sJ}")
    A(f"s_cselect_b32 s{sPairCur}, 1, 0")
    A(f"s_cmp_lt_u32 s{sW}, {NDIR}")
    A(f"s_cselect_b32 s{sPairCur}, 2, s{sPairCur}")
    A(f"s_cmp_eq_u32 s{sPairCur}, 0")
    A("s_cbranch_scc1 L_nonhome")
    C("---- home wave: gather the 8 partial rows ----")
    A(f"s_lshl_b32 s{sT1}, s{sW}, 10")
    A(f"s_add_u32 s{sT0}, s{sOB}, s{sT1}")
    A(f"v_lshl_add_u32 v{vXa}, v{vL}, 4, s{sT0}")
    C("check of granule l: [wg][w' = l>>4][16 b + 8 (l&1) + ((l&15)>>1)]")
    A(f"s_lshl_b32 s{sT2}, s{sW}, 6")
    A(f"s_add_u32 s{sT1}, s{sOB}, s{sT2}")
    A(f"s_add_u32 s{sT1}, s{sT1}, 32768")
    A(f"v_lshrrev_b32 v{vT0}, 4, v{vL}")
    A(f"v_lshl_add_u32 v{vXb}, v{vT0}, 8, s{sT1}")
    A(f"v_and_b32 v{vT0}, 1, v{vL}")
    A(f"v_lshl_add_u32 v{vXb}, v{vT0}, 5, v{vXb}")
    A(f"v_bfe_u32 v{vT0}, v{vL}, 1, 3")
    A(f"v_lshl_add_u32 v{vXb}, v{vT0}, 2, v{vXb}")
    A(f"v_add_u32 v{vT1}, 4096, v{vXb}")
    for i in range(qsleep // 100):
        A("s_sleep 100")
    if qsleep % 100:
        A(f"s_sleep {qsleep % 100}")
    A(f"s_mov_b32 s{sT3}, {1 if ypos else 0}")
    LB("qpoll")
    A(f"v_mov_b32 v{vT0}, v{vXa}")
    for j in range(8):
        if j:
            A(f"v_add_u32 v{vT0}, 4096, v{vT0}")
        A(f"global_load_dwordx4 v[{QL+4*j}:{QL+4*j+3}], v{vT0}, s[{sWS}:{sWS+1}] {SCL}")
        va = vXb if j < 4 else vT1
        A(f"global_load_dword v{QK+j}, v{va}, s[{sWS}:{sWS+1}] offset:{1024*(j%4)} {SCL}")
    if ypos:
        C("first round issued: release the stream waves parked at the yield barrier")
        A(f"s_cmp_eq_u32 s{sT3}, 0")
        A("s_cbranch_scc1 L_noyb")
        A("s_barrier")
        A(f"s_mov_b32 s{sT3}, 0")
        LB("noyb")
    for j in range(8):
        A(f"s_waitcnt vmcnt({14-2*j})")
        xor3(a, f"v{QL+4*j}", f"v{QL+4*j+1}", f"v{QL+4*j+2}")
        xor3(a + 1, f"v{QL+4*j+3}", f"v{QK+j}", f"s{sTag}")
        if j == 0:
            A(f"v_xor_b32 v{a+2}, v{a}, v{a+1}")
        else:
            A(f"v_xor_b32 v{a}, v{a}, v{a+1}")
            A(f"v_or_b32 v{a+2}, v{a+2}, v{a}")
    A(f"v_cmp_ne_u32 vcc, 0, v{a+2}")
    A("s_cbranch_vccz L_qok")
    spin_tail("qpoll")
    LB("qok")
    for j in range(1, 8):
        A(f"v_pk_add_f32 v[{QL}:{QL+1}], v[{QL}:{QL+1}], v[{QL+4*j}:{QL+4*j+1}]")
        A(f"v_pk_add_f32 v[{QL+2}:{QL+3}], v[{QL+2}:{QL+3}], v[{QL+4*j+2}:{QL+4*j+3}]")
    A(f"v_cvt_pk_bf16_f32 v{QL+4}, v{QL}, v{QL+1}")
    A(f"v_cvt_pk_bf16_f32 v{QL+5}, v{QL+2}, v{QL+3}")
    A(f"ds_write_b64 v{vQl}, v[{QL+4}:{QL+5}] offset:{L_QH}")
    stamp(3)
    stamp(3, "ret")
    if stamps == "ret":
        A(f"s_sub_u32 s{sTs+1}, {SPIN}, s{sSpin}")
        A(f"s_mul_i32 s{sTs+1}, s{sTs+1}, 400")
        A(f"s_add_u32 s{sTs+1}, s{sTs+1}, s{sTs}")
        A(f"s_mov_b32 s{sTs+2}, s{sTs}")
        A(f"s_mov_b32 s{sTs+4}, s{sTs}")
        A(f"s_mov_b32 s{sTs+5}, s{sTs}")
    A(f"ds_write_b32 v{E}, v{vOne_s}")
    A("s_setprio 0")
    C("hid = bf16(relu(bf16(bf16(sum) + b1))^2) on lanes 48..63")
    Hh = QL + 8
    A(f"v_lshlrev_b32 v{Hh}, 16, v{QL+4}")
    A(f"v_and_b32 v{Hh+1}, s{k.sMsk}, v{QL+4}")
    A(f"v_lshlrev_b32 v{Hh+2}, 16, v{QL+5}")
    A(f"v_and_b32 v{Hh+3}, s{k.sMsk}, v{QL+5}")
    A(f"v_lshlrev_b32 v{Hh+4}, 16, v{B1R}")
    A(f"v_and_b32 v{Hh+5}, s{k.sMsk}, v{B1R}")
    A(f"v_lshlrev_b32 v{Hh+6}, 16, v{B1R+1}")
    A(f"v_and_b32 v{Hh+7}, s{k.sMsk}, v{B1R+1}")
    for i in range(4):
        A(f"v_add_f32 v{Hh+i}, v{Hh+i}, v{Hh+4+i}")
    k.rnd2(Hh, Hh + 1, a)
    k.rnd2(Hh + 2, Hh + 3, a)
    for i in range(4):
        A(f"v_cmp_gt_f32 vcc, v{Hh+i}, 0")
        A("s_nop 1")
        A(f"v_cndmask_b32 v{Hh+i}, 0, v{Hh+i}, vcc")
    for i in range(4):
        A(f"v_mul_f32 v{Hh+i}, v{Hh+i}, v{Hh+i}")
    k.set_exec(0xffff << 48)
    A(f"v_cvt_pk_bf16_f32 v{QL+4}, v{Hh}, v{Hh+1}")
    A(f"v_cvt_pk_bf16_f32 v{QL+5}, v{Hh+2}, v{Hh+3}")
    A(f"ds_write_b64 v{vQl}, v[{QL+4}:{QL+5}] offset:{L_QH}")
    k.set_exec(-1)
    xor3(QL + 6, f"v{QL+4}", f"v{QL+5}", f"s{sTag}")
    A(f"s_cmp_eq_u32 s{sPairCur}, 1")
    A("s_cbranch_scc0 L_rowdone")
    A(f"global_store_dwordx4 v{vFr}, v[{QL+4}:{QL+7}], s[{sWS}:{sWS+1}] {SCS}")
    A("s_branch L_rowdone")
    C("---- other waves: fetch the finished row later ----")
    LB("nonhome")
    if ypos:
        A("s_barrier")
    A("s_waitcnt lgkmcnt(0)")
    if not noq and not qflag:
        A("s_barrier")
    A("s_setprio 0")
    for i in range(fsleep // 100):
        A("s_sleep 100")
    A(f"s_sleep {fsleep % 100}")
    LB("fpoll")
    A(f"global_load_dwordx4 v[{QL+4}:{QL+7}], v{vFr}, s[{sWS}:{sWS+1}] {SCL}")
    A("s_waitcnt vmcnt(0)")
    xor3(a, f"v{QL+4}", f"v{QL+5}", f"v{QL+6}")
    A(f"v_cmp_ne_u32 vcc, s{sTag}, v{a}")
    A("s_cbranch_vccz L_fok")
    spin_tail("fpoll", sleep=32)
    LB("fok")
    stamp(4, "ret")
    if stamps == "ret":
        A(f"s_sub_u32 s{sTs+2}, {SPIN}, s{sSpin}")
        A(f"s_mul_i32 s{sTs+2}, s{sTs+2}, 133")
        A(f"s_add_u32 s{sTs+2}, s{sTs+2}, s{sTs}")
        A(f"s_mov_b32 s{sTs+1}, s{sTs}")
        A(f"s_mov_b32 s{sTs+3}, s{sTs}")
        A(f"s_mov_b32 s{sTs+5}, s{sTs}")
    A(f"ds_write_b64 v{vQl}, v[{QL+4}:{QL+5}] offset:{L_QH}")
    A(f"ds_write_b32 v{E}, v{vOne_s}")
    stamp(3)
    LB("rowdone")
    stamp(1, "svc")
    if stop == 3:
        A("s_waitcnt vmcnt(0) lgkmcnt(0)")
        A("s_branch L_svc_end")
    A(f"v_mov_b32 v{vT1}, {L_SYNC}")
    A("s_waitcnt lgkmcnt(0)")
    k.set_exec(1)
    A(f"ds_add_u32 v{vT1}, v{vOne_s}")
    k.set_exec(-1)
    C("---- address setup for the late phases ----")
    G = 20
    FB = 116
    WS = 116
    F2 = 212
    AF = 228
    DD = 8
    vG = vOff
    vTr, vAf, vYa, vYa2 = G, G + 1, G + 2, G + 3
    vRh, vRd, vRd2, vOl = G + 16, G + 17, G + 18, G + 19
    Yv = G + 40
    Ya = G + 72
    YO = [252, QK]
    rW2 = 44
    sOff2 = 62
    sFin = sWs
    sLoad, sOk, sHv = 6, 7, 12
    A(f"v_lshrrev_b32 v{vT0}, 3, v{vL}")
    A(f"v_mul_u32_u24 v{vG}, {1280-128}, v{vT0}")
    A(f"v_lshl_add_u32 v{vG}, v{vL}, 4, v{vG}")
    k.srd(rW, sWOp, 7864320)
    k.srd(rW2, sW2p, 1966080)
    A(f"s_lshl_b32 s{sT0}, s{sH}, 2")
    A(f"s_add_u32 s{sT0}, s{sT0}, s{sW}")
    A(f"s_lshl_b32 s{sT2}, s{sJ}, 7")
    A(f"s_mul_i32 s{sOff}, s{sT0}, {48*1280}")
    A(f"s_add_u32 s{sOff}, s{sOff}, s{sT2}")
    A(f"s_mul_i32 s{sOff2}, s{sT0}, {16*1280}")
    A(f"s_add_u32 s{sOff2}, s{sOff2}, s{sT2}")
    C("record addresses for batch w")
    A(f"s_lshl_b32 s{sT1}, s{sT0}, 10")
    A(f"s_add_u32 s{sT1}, s{sT1}, {W_RH}")
    A(f"v_and_b32 v{vT0}, 7, v{vL}")
    A(f"v_lshl_add_u32 v{vRh}, v{vT0}, 7, s{sT1}")
    A(f"s_lshl_b32 s{sT1}, s{sT0}, 13")
    A(f"s_add_u32 s{sT1}, s{sT1}, {W_REC}")
    A(f"v_lshl_add_u32 v{vRd}, v{vL}, 4, s{sT1}")
    A(f"v_add_u32 v{vRd2}, 4096, v{vRd}")
    A(f"s_mul_i32 s{sT1}, s{sW}, 384")
    A(f"v_lshl_add_u32 v{vOl}, v{vL}, 1, s{sT1}")
    C("LDS staging addresses")
    A(f"s_mul_i32 s{sT0}, s{sW}, {48*128}")
    A(f"s_add_u32 s{sT0}, s{sT0}, {L_WT}")
    A(f"v_lshl_add_u32 v{vXa}, v{vL}, 4, s{sT0}")
    A(f"s_lshl_b32 s{sT0}, s{sW}, 11")
    A(f"s_add_u32 s{sT0}, s{sT0}, {L_WT + 192*128}")
    A(f"v_lshl_add_u32 v{vXb}, v{vL}, 4, s{sT0}")
    C("transpose-read address: (8g + r)*128 + c*8 + w*32")
    A(f"v_lshrrev_b32 v{vT0}, 4, v{vL}")
    A(f"v_lshlrev_b32 v{vT0}, 3, v{vT0}")
    A(f"v_bfe_u32 v{vTr}, v{vL}, 2, 2")
    A(f"v_add_lshl_u32 v{vTr}, v{vTr}, v{vT0}, 7")
    A(f"v_and_b32 v{vT0}, 3, v{vL}")
    A(f"v_lshl_add_u32 v{vTr}, v{vT0}, 3, v{vTr}")
    A(f"s_lshl_b32 s{sT0}, s{sW}, 5")
    A(f"s_add_u32 s{sT0}, s{sT0}, {L_WT}")
    A(f"v_add_u32 v{vTr}, s{sT0}, v{vTr}")
    C("Y address: octet block + (4j + w) KB")
    A(f"s_lshl_b32 s{sT0}, s{sJ}, 2")
    A(f"s_add_u32 s{sT0}, s{sT0}, s{sW}")
    A(f"s_lshl_b32 s{sT0}, s{sT0}, 10")
    A(f"s_add_u32 s{sT0}, s{sT0}, s{sOB}")
    A(f"v_lshl_add_u32 v{vYa}, v{vL}, 4, s{sT0}")
    A(f"v_add_u32 v{vYa2}, 32768, v{vYa}")
    C("finaliser task (h < 4, or h < 8 when j < 2): group 4(j + 8(h>>2)) + w, batch h&3")
    A(f"s_cmp_lt_u32 s{sJ}, 2")
    A(f"s_cselect_b32 s{sT1}, 8, 4")
    A(f"s_cmp_lt_u32 s{sH}, s{sT1}")
    A(f"s_cselect_b32 s{sFin}, 1, 0")
    A(f"s_cselect_b32 s{sT2}, s{sH}, 0")
    A(f"s_lshr_b32 s{sT0}, s{sT2}, 2")
    A(f"s_lshl_b32 s{sT0}, s{sT0}, 3")
    A(f"s_add_u32 s{sT0}, s{sT0}, s{sJ}")
    A(f"s_lshl_b32 s{sT0}, s{sT0}, 2")
    A(f"s_add_u32 s{sT0}, s{sT0}, s{sW}")
    A(f"s_and_b32 s{sT2}, s{sT2}, 3")
    A(f"s_lshl_b32 s{sT1}, s{sT0}, 10")
    A(f"s_lshl_b32 s{sT3}, s{sT2}, 8")
    A(f"s_add_u32 s{sT1}, s{sT1}, s{sT3}")
    A(f"v_lshrrev_b32 v{vT0}, 4, v{vL}")
    A(f"v_mul_u32_u24 v{a}, 40960, v{vT0}")
    A(f"v_add_u32 v{a}, s{sT1}, v{a}")
    A(f"v_and_b32 v{vT0}, 15, v{vL}")
    A(f"v_lshl_add_u32 v{a}, v{vT0}, 4, v{a}")
    A(f"s_lshl_b32 s{sT0}, s{sT0}, 5")
    A(f"v_lshl_add_u32 v{vT1}, v{vT0}, 1, s{sT0}")
    A(f"s_mul_i32 s{sT2}, s{sT2}, 1280")
    A(f"v_add_u32 v{FXR+5}, s{sT2}, v{vT1}")
    for i in range(8):
        A(f"v_add_u32 v{Ya+i}, {W_QP + 4*40960*i}, v{a}")
    A(f"s_cmp_eq_u32 s{sFin}, 0")
    A("s_cbranch_scc1 L_nofin1")
    A(f"global_load_ushort v{FXR}, v{FXR+5}, s[{sX}:{sX+1}]")
    A(f"global_load_ushort v{FXR+1}, v{vT1}, s[{sB2p}:{sB2p+1}]")
    A("s_waitcnt vmcnt(0)")
    for i in range(2):
        A(f"v_lshlrev_b32 v{FXR+i}, 16, v{FXR+i}")
    LB("nofin1")
    C("hid A fragments once all four rows are in LDS: batch row (l&15)>>2, k offset 16*(l>>4) bytes")
    lds_wait4("rows", vT1, vT0, off=0, sleep=16)
    A(f"v_bfe_u32 v{vT0}, v{vL}, 2, 2")
    A(f"v_lshrrev_b32 v{vT1}, 4, v{vL}")
    A(f"v_lshlrev_b32 v{vT1}, 4, v{vT1}")
    A(f"v_lshl_add_u32 v{vAf}, v{vT0}, 9, v{vT1}")
    HF = G + 4
    for kb in range(2):
        A(f"ds_read_b128 v[{HF+4*kb}:{HF+4*kb+3}], v{vAf} offset:{L_QH+384+64*kb}")
    A(f"v_mul_u32_u24 v{vAf}, 384, v{vT0}")
    A(f"v_add_u32 v{vAf}, v{vAf}, v{vT1}")
    A(f"s_mov_b32 s{sLoad}, 0")
    A(f"s_mov_b32 s{sOk}, 0")
    WSP = [116, Yv]
    luid = [0]

    def only_j01():
        luid[0] += 1
        A(f"s_cmp_lt_u32 s{sJ}, 2")
        A(f"s_cbranch_scc0 L_j01_{luid[0]}")
        return f"j01_{luid[0]}"

    def w_loads(parts):
        lab = None
        for kind, p in parts:
            if p == 1 and lab is None:
                lab = only_j01()
            if kind == "o":
                for i in range(6):
                    A(f"s_add_u32 s{sT0}, s{sOff}, {8*1280*i}")
                    A(f"buffer_load_dwordx4 v[{WSP[p]+4*i}:{WSP[p]+4*i+3}], v{vG}, s[{rW}:{rW+3}], s{sT0} offen offset:{1024*p} nt")
            else:
                for i in range(2):
                    A(f"s_add_u32 s{sT0}, s{sOff2}, {8*1280*i}")
                    A(f"buffer_load_dwordx4 v[{WSP[p]+24+4*i}:{WSP[p]+24+4*i+3}], v{vG}, s[{rW2}:{rW2+3}], s{sT0} offen offset:{1024*p} nt")
        if lab:
            LB(lab)

    def w_stage(parts, cnt):
        lab = None
        for kind, p in parts:
            if p == 1 and lab is None:
                lab = only_j01()
            if kind == "o":
                for i in range(6):
                    A(f"ds_write_b128 v{vXa}, v[{WSP[p]+4*i}:{WSP[p]+4*i+3}] offset:{32768*p+1024*i}")
            else:
                for i in range(2):
                    A(f"ds_write_b128 v{vXb}, v[{WSP[p]+24+4*i}:{WSP[p]+24+4*i+3}] offset:{32768*p+1024*i}")
        if lab:
            LB(lab)
        A(f"v_mov_b32 v{vT1}, {L_SYNC}")
        k.set_exec(1)
        A(f"ds_add_u32 v{vT1}, v{vOne_s} offset:{cnt}")
        k.set_exec(-1)

    def frags(nkb, dst, row0, p):
        for kb in range(nkb):
            for hh in range(2):
                r = dst + 4 * kb + 2 * hh
                A(f"ds_read_b64_tr_b16 v[{r}:{r+1}], v{vTr} offset:{(row0+32*kb+4*hh)*128 + 32768*p}")

    def w_frags(parts):
        lab = None
        for kind, p in parts:
            if p == 1 and lab is None:
                lab = only_j01()
            if kind == "o":
                frags(6, FB + 24 * p, 0, p)
            else:
                frags(2, F2 + 8 * p, 192, p)
        if lab:
            LB(lab)
        A("s_waitcnt lgkmcnt(0)")
        if ("2", 0) in parts:
            C("FFN2 partial B (zero for h >= 24)")
            for p in range(2):
                d = DD + 4 * p
                for kb in range(2):
                    c = "0" if kb == 0 else f"v[{d}:{d+3}]"
                    f = F2 + p * 8 + 4 * kb
                    A(f"v_mfma_f32_16x16x32_bf16 v[{d}:{d+3}], v[{HF+4*kb}:{HF+4*kb+3}], v[{f}:{f+3}], {c}")
            A(f"s_cmp_lt_u32 s{sH}, 24")
            A(f"s_cselect_b32 s{sT0}, -1, 0")
            A("s_nop 6")
            for p in range(2):
                A(f"v_and_b32 v{YO[p]+1}, s{sT0}, v{DD+4*p}")
                A(f"v_xor_b32 v{YO[p]+3}, s{sTagY}, v{YO[p]+1}")

    ALLP = [("o", 0), ("2", 0), ("o", 1), ("2", 1)]
    EARLYP = [("2", 0), ("o", 1), ("2", 1)] if split else []
    LATEP = [x for x in ALLP if x not in EARLYP]
    sStg = 63
    A(f"s_mov_b32 s{sStg}, 0")
    if EARLYP:
        w_loads(EARLYP)
        A("s_waitcnt vmcnt(0)")
        w_stage(EARLYP, 20)
        lds_wait4("rdy0", vT1, vT0, off=20, sleep=4)
        w_frags(EARLYP)
    if late:
        C("the weight lines are fetched while the stream drains")
        if late <= 4:
            lds_wait4("nl", vT1, vT0, off=8, n=late, sleep=8)
        else:
            lds_wait4("nl", vT1, vT0, off=12, n=late - 4, sleep=6)
        A("s_setprio 3")
    stamp(1, "epi")
    w_loads(LATEP)
    if not ovl:
        A("s_waitcnt vmcnt(0)")
        w_stage(LATEP, 4)
        lds_wait4("rdy", vT1, vT0, off=4, sleep=0 if late else 4)
        w_frags(LATEP)

    def proj_store(nkb, frag, fstride, tagl):
        for kb in range(nkb):
            for p in range(2):
                d = DD + 4 * p
                c = "0" if kb == 0 else f"v[{d}:{d+3}]"
                f = frag + p * fstride + 4 * kb
                A(f"s_waitcnt lgkmcnt({nkb-1-kb})") if p == 0 else None
                A(f"v_mfma_f32_16x16x32_bf16 v[{d}:{d+3}], v[{AF+4*kb}:{AF+4*kb+3}], v[{f}:{f+3}], {c}")
        A(f"s_cmp_lt_u32 s{sJ}, 2")
        A("s_nop 5")
        for p in range(2):
            if p == 1:
                A(f"s_cbranch_scc0 L_{tagl}")
            A(f"v_mov_b32 v{YO[p]}, v{DD+4*p}")
            A(f"v_xor_b32 v{YO[p]+2}, v{DD+4*p}, v{YO[p]+3}")
            va = vYa if p == 0 else vYa2
            A(f"global_store_dwordx4 v{va}, v[{YO[p]}:{YO[p]+3}], s[{sWS}:{sWS+1}] {SC}")
        LB(tagl)

    def ysum(ybase, tagl, sleep, nld):
        sMiss = 6
        A(f"s_mov_b32 s{sSpin}, {SPIN}")
        A(f"s_mov_b32 s{sMiss}, 0xff")
        LB(tagl)
        for i in range(nld):
            A(f"s_bitcmp1_b32 s{sMiss}, {i}")
            A(f"s_cbranch_scc0 L_ys{i}")
            A(f"global_load_dwordx4 v[{Yv+4*i}:{Yv+4*i+3}], v{Ya+i}, s[{sWS}:{sWS+1}] {SC}")
            LB(f"ys{i}")
        A("s_waitcnt vmcnt(0)")
        for i in range(nld):
            xor3(a + (i & 1), f"v{Yv+4*i}", f"v{Yv+4*i+1}", f"v{Yv+4*i+2}")
            A(f"v_cmp_ne_u32 vcc, s{sTagY}, v{a+(i&1)}")
            A(f"s_cbranch_vccnz L_yv{i}")
            A(f"s_bitset0_b32 s{sMiss}, {i}")
            LB(f"yv{i}")
        A(f"s_cmp_eq_u32 s{sMiss}, 0")
        A(f"s_cbranch_scc1 L_{tagl}ok")
        spin_tail(tagl, sleep=sleep)
        LB(tagl + "ok")
        for i in range(0, 8, 2):
            A(f"v_pk_add_f32 v[{Yv+4*i}:{Yv+4*i+1}], v[{Yv+4*i}:{Yv+4*i+1}], v[{Yv+4*i+4}:{Yv+4*i+5}]")
        A(f"v_pk_add_f32 v[{Yv}:{Yv+1}], v[{Yv}:{Yv+1}], v[{Yv+8}:{Yv+9}]")
        A(f"v_pk_add_f32 v[{Yv+16}:{Yv+17}], v[{Yv+16}:{Yv+17}], v[{Yv+24}:{Yv+25}]")
        A(f"v_pk_add_f32 v[{Yv}:{Yv+1}], v[{Yv}:{Yv+1}], v[{Yv+16}:{Yv+17}]")
        for op in ("v_permlane16_swap_b32", "v_permlane32_swap_b32"):
            A(f"v_mov_b32 v{Yv+2}, v{Yv}")
            A(f"v_mov_b32 v{Yv+3}, v{Yv+1}")
            A("s_nop 0")
            A(f"{op} v{Yv}, v{Yv+2}")
            A(f"{op} v{Yv+1}, v{Yv+3}")
            A("s_nop 0")
            A(f"v_pk_add_f32 v[{Yv}:{Yv+1}], v[{Yv}:{Yv+1}], v[{Yv+2}:{Yv+3}]")

    stamp(2, "epi")
    C("start polling once this workgroup's stream waves have flushed")
    A(f"s_cmp_eq_u32 s{sW}, 3")
    A("s_cbranch_scc1 L_fl3")
    lds_wait4("fl1", vT1, vT0, off=12, n=etrig, sleep=2)
    A("s_branch L_fl2ok")
    LB("fl3")
    lds_wait4("fl2", vT1, vT0, off=12, n=etrig3, sleep=2 if late else 8)
    A("s_setprio 3")
    A(f"s_mov_b32 s{sSpin}, {SPIN}")
    stamp(4)
    HD = G + 24
    LB("rpoll")
    A(f"global_load_dwordx4 v[{HD}:{HD+3}], v{vRh}, s[{sWS}:{sWS+1}] {SC}")
    for j in range(8):
        va = vRd if j < 4 else vRd2
        A(f"s_bitcmp1_b32 s{sLoad}, {j}")
        A(f"s_cbranch_scc0 L_rs{j}")
        A(f"global_load_dwordx4 v[{QL+4*j}:{QL+4*j+3}], v{va}, s[{sWS}:{sWS+1}] offset:{1024*(j%4)} {SC}")
        LB(f"rs{j}")
    if ovl:
        C("second round onwards: fragments while the poll is in flight")
        A(f"s_cmp_eq_u32 s{sStg}, 1")
        A("s_cbranch_scc0 L_nofr")
        A(f"s_mov_b32 s{sT3}, s{sSpin}")
        A(f"s_call_b64 s[{sRet}:{sRet+1}], L_dofr")
        A(f"s_mov_b32 s{sSpin}, s{sT3}")
        LB("nofr")
    A("s_waitcnt vmcnt(0)")
    if ovl:
        A(f"s_cmp_eq_u32 s{sStg}, 0")
        A("s_cbranch_scc0 L_nost")
        w_stage(LATEP, 4)
        A(f"s_mov_b32 s{sStg}, 1")
        LB("nost")
    xor3(HD + 4, f"v{HD}", f"v{HD+1}", f"v{HD+2}")
    A(f"v_cmp_eq_u32 vcc, s{sTag}, v{HD+4}")
    A(f"s_and_b32 s{sHv}, vcc_lo, 0xff")
    for j in range(8):
        A(f"s_bitcmp1_b32 s{sLoad}, {j}")
        A(f"s_cbranch_scc0 L_rv{j}")
        xor3(a, f"v{QL+4*j}", f"v{QL+4*j+1}", f"v{QL+4*j+2}")
        A(f"v_xor_b32 v{a}, v{a}, v{QL+4*j+3}")
        A(f"v_cmp_ne_u32 vcc, s{sTag}, v{a}")
        A(f"s_cbranch_vccnz L_rv{j}")
        A(f"s_bitset1_b32 s{sOk}, {j}")
        LB(f"rv{j}")
    A(f"s_and_b32 s{sT0}, s{sOk}, s{sHv}")
    A(f"s_cmp_eq_u32 s{sT0}, 0xff")
    A("s_cbranch_scc1 L_rok")
    A(f"s_bcnt1_i32_b32 s{sT0}, s{sHv}")
    A(f"s_cmp_ge_u32 s{sT0}, {8-nmiss}")
    A(f"s_cselect_b32 s{sLoad}, 0xff, s{sHv}")
    A("s_cbranch_scc1 L_rfast")
    A(f"s_sleep {esleep}")
    LB("rfast")
    A(f"s_andn2_b32 s{sLoad}, s{sLoad}, s{sOk}")
    spin_tail("rpoll", sleep=0)
    LB("rok")
    stamp(3, "epi")
    A(f"v_mov_b32 v{HD+4}, v{HD}")
    k.butterfly("v_max_f32", [HD + 4], 3)
    A(f"v_sub_f32 v{HD+5}, v{HD}, v{HD+4}")
    A(f"v_mul_f32 v{HD+5}, {LOG2E}, v{HD+5}")
    A(f"v_exp_f32 v{HD+5}, v{HD+5}")
    A("s_nop 0")
    A(f"v_mul_f32 v{HD+6}, v{HD+5}, v{HD+1}")
    for j in range(8):
        A(f"v_readlane_b32 s{sWt+j}, v{HD+5}, {j}")
    k.dpp("v_add_f32", HD + 6, "quad_perm:[1,0,3,2]")
    O = HD + 8
    A(f"v_pk_mul_f32 v[{O}:{O+1}], v[{QL}:{QL+1}], s[{sWt}:{sWt+1}] op_sel_hi:[1,0]")
    A(f"v_mul_f32 v{O+2}, s{sWt}, v{QL+2}")
    k.dpp("v_add_f32", HD + 6, "quad_perm:[2,3,0,1]")
    for j in range(1, 8):
        k.pkfma(O, QL + 4 * j, sWt + j, pre="s")
        A(f"v_fmac_f32 v{O+2}, s{sWt+j}, v{QL+4*j+2}")
        if j == 1:
            k.dpp("v_add_f32", HD + 6, "row_half_mirror")
        if j == 2:
            A(f"v_rcp_f32 v{HD+7}, v{HD+6}")
    for i in range(3):
        A(f"v_mul_f32 v{O+4+i}, v{O+i}, v{HD+7}")
    for i in range(3):
        A(f"v_fma_f32 v{O+i}, -v{O+4+i}, v{HD+6}, v{O+i}")
    for i in range(3):
        A(f"v_fma_f32 v{O+i}, v{O+i}, v{HD+7}, v{O+4+i}")
    A(f"v_cvt_pk_bf16_f32 v{O+4}, v{O}, v{O+1}")
    A(f"v_cvt_pk_bf16_f32 v{O+5}, v{O+2}, v{O+2}")
    A(f"ds_write_b16 v{vOl}, v{O+4} offset:{L_OB}")
    A(f"ds_write_b16_d16_hi v{vOl}, v{O+4} offset:{L_OB+128}")
    A(f"ds_write_b16 v{vOl}, v{O+5} offset:{L_OB+256}")
    A("s_waitcnt lgkmcnt(0)")
    A("s_barrier")
    for kb in range(6):
        A(f"ds_read_b128 v[{AF+4*kb}:{AF+4*kb+3}], v{vAf} offset:{L_OB+64*kb}")
    proj_store(6, FB, 24, "ya_done")
    stamp(4, "epi")
    A(f"s_cmp_eq_u32 s{sFin}, 0")
    A("s_cbranch_scc1 L_svc_end")
    ysum(W_YA, "yap", ysleep, 8)
    k.set_exec(0xffff)
    k.rnd2(Yv, Yv + 1, Yv + 2)
    A(f"v_pk_add_f32 v[{Yv}:{Yv+1}], v[{Yv}:{Yv+1}], v[{FXR}:{FXR+1}]")
    k.rnd2(Yv, Yv + 1, Yv + 2)
    A(f"v_add_f32 v{Yv}, v{Yv}, v{Yv+1}")
    A(f"v_cvt_pk_bf16_f32 v{Yv}, v{Yv}, v{Yv}")
    A(f"global_store_short v{FXR+5}, v{Yv}, s[{sOUT}:{sOUT+1}]")
    k.set_exec(-1)
    C("generation bump by (h=0, j=0, w=0)")
    A(f"s_or_b32 s{sT0}, s2, s{sW}")
    A(f"s_cmp_eq_u32 s{sT0}, 0")
    A("s_cbranch_scc0 L_svc_end")
    A(f"v_mov_b32 v{vT0}, {W_GEN}")
    A(f"v_mov_b32 v{vT1}, s{sTag}")
    k.set_exec(1)
    A(f"global_store_dword v{vT0}, v{vT1}, s[{sWS}:{sWS+1}] {SC}")
    k.set_exec(-1)
    A("s_branch L_svc_end")
    if ovl:
        LB("dofr")
        lds_wait4("rdy", vT1, vT0, off=4, sleep=0)
        w_frags(LATEP)
        A(f"s_mov_b32 s{sStg}, 2")
        A(f"s_setpc_b64 s[{sRet}:{sRet+1}]")
    LB("svc_end")
    stamp(5)
    stamp(5, "epi")
    write_stamps(QL, vT0)
    A("s_endpgm")
    LB("stream")
    in_service[0] = False
    C("================= stream waves (4..7) =================")
    vKoff, vCl, vOne, vM, vLs, vAl, vQa, vCa = 2, 5, 6, 7, 8, 9, 10, 11
    vHi, vBase, vSa, vSr, vS = 0, 252, 253, 254, 255
    P = 12
    S = 12
    QF = 16
    k.TP = 28
    k.ntp = 4
    D = 28
    ACC = 36
    SL = 60
    MG = 60
    rCur = 52
    sRunBase, sD, sU0, sC = 56, 57, 58, 59
    sLog = 60
    sStep, sCi, sCp, sSingle, sNeedW = 80, 82, 83, 84, 95
    VP0 = (32 if NIT == 7 else 0) + 4 * NSD
    PPS = 64 - VP0
    NPOOL = 8 * PPS
    n3 = NPOOL - n1 * g1 - n2 * g2
    assert n3 >= 0 and (n1 * g1) % g2 == 0 and PPS % g1 == 0 and PPS % g2 == 0
    CT = n1 + n2 + n3
    MAGIC = 65536 // PPS + 1
    assert all((u * MAGIC) >> 16 == u // PPS for u in range(NPOOL))

    def T(t):
        return SL + 24 * t

    def loads(base, srd):
        for j in range(6):
            r = base + 4 * j
            A(f"buffer_load_dwordx4 v[{r}:{r+3}], v{vKoff}, s[{srd}:{srd+3}], s{sNxt} offen offset:{boff[j]} nt")

    def k_tile(s0):
        Da, Db = D, D + 4
        for n in range(3):
            ca = "0" if n == 0 else f"v[{Da}:{Da+3}]"
            cb = "0" if n == 0 else f"v[{Db}:{Db+3}]"
            A(f"v_mfma_f32_16x16x32_bf16 v[{Da}:{Da+3}], v[{QF+4*n}:{QF+4*n+3}], v[{s0+4*n}:{s0+4*n+3}], {ca}")
            A(f"v_mfma_f32_16x16x32_bf16 v[{Db}:{Db+3}], v[{QF+4*n}:{QF+4*n+3}], v[{s0+12+4*n}:{s0+12+4*n+3}], {cb}")

    def softmax():
        for t in range(2):
            d = D + 4 * t
            A(f"v_add_f32_dpp v{S+t}, v{d+1}, v{d} row_ror:8 row_mask:0xf bank_mask:0x3")
            A(f"v_add_f32_dpp v{S+t}, v{d}, v{d+1} row_ror:8 row_mask:0xf bank_mask:0xc")
        k.rnd2(S, S + 1, vT0)
        for t in range(2):
            A(f"v_mul_f32 v{S+t}, {SCALE}, v{S+t}")
        k.rnd2(S, S + 1, vT0)
        A(f"v_max3_f32 v{vT0}, v{vM}, v{S}, v{S+1}")
        A(f"v_sub_f32 v{vAl}, v{vM}, v{vT0}")
        for t in range(2):
            A(f"v_sub_f32 v{S+t}, v{S+t}, v{vT0}")
        A(f"v_mul_f32 v{vAl}, {LOG2E}, v{vAl}")
        for t in range(2):
            A(f"v_mul_f32 v{S+t}, {LOG2E}, v{S+t}")
        A(f"v_exp_f32 v{vAl}, v{vAl}")
        for t in range(2):
            A(f"v_exp_f32 v{S+t}, v{S+t}")
        A(f"v_mov_b32 v{vM}, v{vT0}")
        A(f"v_fma_f32 v{vLs}, v{vLs}, v{vAl}, v{S}")
        for i in range(12):
            k.pkmul(ACC + 2 * i, vAl)
        A(f"v_add_f32 v{vLs}, v{vLs}, v{S+1}")

    def softmax16():
        for t in range(8):
            A(f"ds_read2_b32 v[{P+2*t}:{P+2*t+1}], v{vSr} offset0:{16*t} offset1:{16*t+8}")
        A(f"v_add_u32 v{vSr}, 512, v{vSr}")
        A("s_waitcnt lgkmcnt(0)")
        A(f"v_max3_f32 v{vT0}, v{vM}, v{P}, v{P+1}")
        A(f"v_max3_f32 v{vT1}, v{P+2}, v{P+3}, v{P+4}")
        for i in range(5, 13, 4):
            A(f"v_max3_f32 v{vT0}, v{vT0}, v{P+i}, v{P+i+1}")
            A(f"v_max3_f32 v{vT1}, v{vT1}, v{P+i+2}, v{P+i+3}")
        A(f"v_max3_f32 v{vT0}, v{vT0}, v{P+13}, v{P+14}")
        A(f"v_max3_f32 v{vT0}, v{vT0}, v{vT1}, v{P+15}")
        A(f"v_sub_f32 v{vAl}, v{vM}, v{vT0}")
        A(f"v_sub_f32 v{vT1}, 0, v{vT0}")
        A(f"v_mul_f32 v{vAl}, {LOG2E}, v{vAl}")
        for t in range(8):
            A(f"v_pk_add_f32 v[{P+2*t}:{P+2*t+1}], v[{P+2*t}:{P+2*t+1}], v[{vT1}:{vT1+1}] op_sel_hi:[1,0]")
        A(f"v_exp_f32 v{vAl}, v{vAl}")
        for t in range(8):
            A(f"v_pk_mul_f32 v[{P+2*t}:{P+2*t+1}], v[{P+2*t}:{P+2*t+1}], s[{sLog}:{sLog+1}] op_sel_hi:[1,0]")
        for i in range(16):
            A(f"v_exp_f32 v{P+i}, v{P+i}")
        A(f"v_mov_b32 v{vM}, v{vT0}")
        for i in range(12):
            k.pkmul(ACC + 2 * i, vAl)
        t0 = k.TP
        A(f"v_pk_add_f32 v[{t0}:{t0+1}], v[{P}:{P+1}], v[{P+2}:{P+3}]")
        A(f"v_pk_add_f32 v[{t0+2}:{t0+3}], v[{P+4}:{P+5}], v[{P+6}:{P+7}]")
        for i in range(8, 16, 4):
            A(f"v_pk_add_f32 v[{t0}:{t0+1}], v[{t0}:{t0+1}], v[{P+i}:{P+i+1}]")
            A(f"v_pk_add_f32 v[{t0+2}:{t0+3}], v[{t0+2}:{t0+3}], v[{P+i+2}:{P+i+3}]")
        A(f"v_pk_add_f32 v[{t0}:{t0+1}], v[{t0}:{t0+1}], v[{t0+2}:{t0+3}]")
        A(f"v_fma_f32 v{vLs}, v{vLs}, v{vAl}, v{t0}")
        A(f"v_add_f32 v{vLs}, v{vLs}, v{t0+1}")

    def v_tile(s0, p0):
        items = [(s0 + 12 * half + 4 * n + d, ACC + 8 * n + 2 * d, p0 + half)
                 for half in range(2) for n in range(3) for d in range(4)]
        pend = []
        for it in items:
            t = k.unpack(it[0])
            pend.append((it[1], t, it[2]))
            if len(pend) > 2:
                ac, tt, m = pend.pop(0)
                k.pkfma(ac, tt, m)
        for ac, tt, m in pend:
            k.pkfma(ac, tt, m)

    def flush():
        A(f"v_mov_b32 v{vT0}, v{vM}")
        k.butterfly("v_max_f32", [vT0], 3)
        A(f"v_sub_f32 v{vAl}, v{vM}, v{vT0}")
        A(f"v_mul_f32 v{vAl}, {LOG2E}, v{vAl}")
        A(f"v_exp_f32 v{vAl}, v{vAl}")
        A(f"s_lshl_b32 s{sT0}, s{sWs}, 2")
        A(f"s_add_u32 s{sT0}, s{sT0}, s{sSlot}")
        A(f"s_lshl_b32 s{sT1}, s{sT0}, 10")
        A(f"v_mul_f32 v{vLs}, v{vLs}, v{vAl}")
        for i in range(12):
            k.pkmul(ACC + 2 * i, vAl)
        k.dpp("v_add_f32", vLs, "quad_perm:[1,0,3,2]")
        for n in range(3):
            for c in range(4):
                x, y = ACC + 8 * n + c, ACC + 8 * n + c + 4
                A(f"v_add_f32_dpp v{x}, v{x}, v{x} row_half_mirror row_mask:0xf bank_mask:0x5")
                A(f"v_add_f32_dpp v{x}, v{y}, v{y} row_half_mirror row_mask:0xf bank_mask:0xa")
        k.dpp("v_add_f32", vLs, "quad_perm:[2,3,0,1]")
        for n in range(3):
            for c in range(2):
                x, y = ACC + 8 * n + c, ACC + 8 * n + c + 2
                A(f"v_cndmask_b32 v{x+4}, v{y}, v{x}, s[{sM1}:{sM1+1}]")
                A(f"v_cndmask_b32 v{x}, v{x}, v{y}, s[{sM1}:{sM1+1}]")
        k.dpp("v_add_f32", vLs, "row_half_mirror")
        for n in range(3):
            for c in range(2):
                x = ACC + 8 * n + c
                A(f"v_add_f32_dpp v{x}, v{x+4}, v{x} quad_perm:[2,3,0,1] row_mask:0xf bank_mask:0xf")
        for n in range(3):
            x, y = ACC + 8 * n, ACC + 8 * n + 1
            A(f"v_cndmask_b32 v{x+4}, v{y}, v{x}, s[{sM0}:{sM0+1}]")
            A(f"v_cndmask_b32 v{x}, v{x}, v{y}, s[{sM0}:{sM0+1}]")
        A(f"v_lshl_add_u32 v{vT1}, v{vL}, 4, s{sT1}")
        A(f"s_lshl_b32 s{sT0}, s{sT0}, 3")
        for n in range(3):
            x = ACC + 8 * n
            A(f"v_add_f32_dpp v{D+n}, v{x+4}, v{x} quad_perm:[1,0,3,2] row_mask:0xf bank_mask:0xf")
        A(f"v_mov_b32 v{D+4}, v{vT0}")
        A(f"v_mov_b32 v{D+5}, v{vLs}")
        A(f"v_mov_b32 v{vT0}, s{sT0}")
        A(f"ds_write_b128 v{vT1}, v[{D}:{D+3}] offset:{L_REC}")
        A(f"ds_write_b64 v{vT0}, v[{D+4}:{D+5}] offset:{L_RHD}")
        A(f"s_add_u32 s{sSlot}, s{sSlot}, 1")

    def reset_state():
        A(f"v_mov_b32 v{vM}, {NEGBIG}")
        A(f"v_mov_b32 v{vLs}, 0")
        for i in range(24):
            A(f"v_mov_b32 v{ACC+i}, 0")

    def take():
        if pm == 0:
            A(f"s_mul_i32 s{sNxt}, s{sStat}, 6144")
            A(f"s_add_u32 s{sNxt}, s{sNxt}, s{sRunBase}")
        else:
            A(f"s_lshr_b32 s{sT0}, s{sStat}, 6")
            A(f"s_mul_i32 s{sT0}, s{sT0}, 393216")
            A(f"s_and_b32 s{sT1}, s{sStat}, 63")
            A(f"s_mul_i32 s{sT2}, s{sT1}, 3121")
            A(f"s_lshr_b32 s{sT2}, s{sT2}, 16")
            A(f"s_mul_i32 s{sT2}, s{sT2}, 22")
            A(f"s_add_u32 s{sT2}, s{sT2}, s{sT1}")
            A(f"s_cmp_eq_u32 s{sT1}, 63")
            A(f"s_cselect_b32 s{sT2}, 42, s{sT2}")
            A(f"s_cselect_b32 s{sD}, 43, 21")
            A(f"s_mul_i32 s{sD}, s{sD}, 3072")
            A(f"s_mul_i32 s{sT2}, s{sT2}, 3072")
            A(f"s_add_u32 s{sNxt}, s{sRunBase}, s{sT0}")
            A(f"s_add_u32 s{sNxt}, s{sNxt}, s{sT2}")
            A(f"v_mad_u32_u24 v{vKoff}, v{vHi}, s{sD}, v{vBase}")
        A(f"s_add_u32 s{sStat}, s{sStat}, s{sStep}")

    def set_issue():
        A(f"s_add_u32 s{sT0}, s{sC}, 1")
        A(f"s_cmp_ge_u32 s{sT0}, {NIT}")
        A(f"s_cselect_b32 s{rCur}, s{rV}, s{rK}")
        A(f"s_cselect_b32 s{rCur+1}, s{rV+1}, s{rK+1}")
        A(f"s_cselect_b32 s{sT1}, {NIT}, 0")
        A(f"s_sub_u32 s{sT0}, s{sT0}, s{sT1}")
        A(f"s_lshr_b32 s{sT1}, s{sT0}, 1")
        A(f"s_mul_i32 s{sRunBase}, s{sT1}, 100663296")
        A(f"s_add_u32 s{sRunBase}, s{sRunBase}, s{sHoff}")
        A(f"s_and_b32 s{sT0}, s{sT0}, 1")
        A(f"s_lshl_b32 s{sT0}, s{sT0}, 5")
        A(f"s_add_u32 s{sStat}, s{sU0}, s{sT0}")

    def issue_claim():
        A(f"s_lshl_b64 exec, 1, s{sCi}")
        A(f"global_atomic_add v{vCl}, v{vCa}, v{vOne}, s[{sWS}:{sWS+1}] sc0")
        k.set_exec(-1)
        A(f"s_add_u32 s{sCi}, s{sCi}, 1")

    stamp(1, "st")
    A(f"s_sub_u32 s{sWs}, s{sW}, 4")
    A(f"v_and_b32 v{vT0}, 7, v{vL}")
    A(f"v_lshrrev_b32 v{vT1}, 3, v{vL}")
    if pm == 1:
        A(f"v_lshrrev_b32 v{vHi}, 2, v{vT0}")
        A(f"v_and_b32 v{vT0}, 3, v{vT0}")
        A(f"v_mul_u32_u24 v{vBase}, 384, v{vT0}")
        A(f"v_lshl_add_u32 v{vBase}, v{vT1}, 4, v{vBase}")
    else:
        A(f"v_mul_u32_u24 v{vKoff}, 384, v{vT0}")
        A(f"v_lshl_add_u32 v{vKoff}, v{vT1}, 4, v{vKoff}")
    A(f"s_mul_i32 s{sHoff}, s{sH}, 3145728")
    A(f"s_mov_b32 s{sRunBase}, s{sHoff}")
    A(f"s_lshl_b32 s{sU0}, s{sJ}, 6")
    A(f"s_add_u32 s{sU0}, s{sU0}, s{sWs}")
    A(f"s_mov_b32 s{sStat}, s{sU0}")
    A(f"s_mov_b32 s{sStep}, 4")
    A("s_waitcnt lgkmcnt(0)")
    A(f"s_load_dword s{sTag}, s[{sWS}:{sWS+1}], {W_GEN}")
    k.srd(rK, sKp, 402653184)
    for t in range(8):
        if ypos and t == 2 * ypos:
            A("s_barrier")
        take()
        if t == 0:
            stamp(2, "st")
        loads(T(t), rK)
        if t == 0:
            stamp(3, "st")
            if stamps == "st":
                A("s_waitcnt vmcnt(0)")
            stamp(4, "st")
    k.srd(rV, sVp, 402653184)
    k.srd(rCur, sKp, 402653184)
    A(f"v_lshrrev_b32 v{vQa}, 4, v{vL}")
    A(f"v_lshlrev_b32 v{vQa}, 5, v{vQa}")
    A(f"v_and_b32 v{vT1}, 1, v{vL}")
    A(f"v_lshl_add_u32 v{vQa}, v{vT1}, 4, v{vQa}")
    A(f"v_mov_b32 v{vOne}, 1")
    A(f"s_mul_i32 s{sT0}, s{sH}, {qstride}")
    A(f"s_add_u32 s{sT0}, s{sT0}, {W_QCNT}")
    A(f"v_mov_b32 v{vCa}, s{sT0}")
    A(f"s_mul_i32 s{sT0}, s{sWs}, 3584")
    A(f"s_add_u32 s{sT0}, s{sT0}, {L_SC}")
    A(f"v_and_b32 v{vT0}, 15, v{vL}")
    A(f"v_lshl_add_u32 v{vSa}, v{vT0}, 2, s{sT0}")
    A(f"v_and_b32 v{vT0}, 7, v{vL}")
    A(f"v_lshl_add_u32 v{vSr}, v{vT0}, 2, s{sT0}")
    A(f"s_mov_b32 s{sSlot}, 0")
    A(f"s_mov_b32 s{sCi}, 0")
    A(f"s_mov_b32 s{sCp}, 0")
    A(f"s_mov_b32 s{sSingle}, 0")
    A(f"s_mov_b32 s{sNeedW}, 0")
    A(f"s_mov_b32 s{sC}, 0")
    A(f"s_mov_b32 s{sLog}, {LOG2E}")
    A(f"s_mov_b32 s{sLog+1}, {LOG2E}")
    A(f"s_mov_b32 s{sM1}, 0xcccccccc")
    A(f"s_mov_b32 s{sM1+1}, 0xcccccccc")
    A(f"s_mov_b32 s{sM0}, 0xaaaaaaaa")
    A(f"s_mov_b32 s{sM0+1}, 0xaaaaaaaa")
    reset_state()
    A("s_waitcnt lgkmcnt(0)")
    A(f"s_add_u32 s{sTag}, s{sTag}, 1")
    A(f"s_addc_u32 s{sTag}, s{sTag}, 0")
    A(f"s_cmp_eq_u32 s{sTag}, 0x80000001")
    A(f"s_addc_u32 s{sTag}, s{sTag}, 0")
    stamp(1)
    LB("kloop")
    A(f"s_bitcmp1_b32 s{sC}, 0")
    A("s_cbranch_scc1 L_sameq")
    C("new batch: wait for its q row, load the fragments")
    A(f"s_lshl_b32 s{sT1}, s{sC}, 1")
    A(f"s_add_u32 s{sT1}, s{sT1}, {L_SYNC + 32}")
    A(f"v_mov_b32 v{vT1}, s{sT1}")
    A(f"s_mov_b32 s{sSpin}, {SPIN*16}")
    LB("qf")
    A(f"ds_read_b32 v{vT0}, v{vT1}")
    A("s_waitcnt lgkmcnt(0)")
    A(f"v_readfirstlane_b32 s{sT0}, v{vT0}")
    A(f"s_sub_u32 s{sSpin}, s{sSpin}, 1")
    A(f"s_cselect_b32 s{sT0}, 1, s{sT0}")
    A(f"s_cmp_ge_u32 s{sT0}, 1")
    A("s_cbranch_scc1 L_qfok")
    A("s_sleep 1")
    A("s_branch L_qf")
    LB("qfok")
    A(f"s_lshl_b32 s{sT0}, s{sC}, 8")
    A(f"v_add_u32 v{vT0}, s{sT0}, v{vQa}")
    for n in range(3):
        A(f"ds_read_b128 v[{QF+4*n}:{QF+4*n+3}], v{vT0} offset:{L_QH+128*n}")
    A("s_waitcnt lgkmcnt(0)")
    LB("sameq")
    if stamps == "ph":
        A(f"s_cmp_eq_u32 s{sC}, 2")
        A("s_cbranch_scc0 L_nost1")
        stamp(1, "ph")
        LB("nost1")
    set_issue()
    for t in range(8):
        A("s_waitcnt vmcnt(42)")
        k_tile(T(t))
        take()
        loads(T(t), rCur)
        if pm == 0:
            A("s_nop 1")
        A(f"v_add_f32_dpp v{vS}, v{D+1}, v{D} row_ror:8 row_mask:0xf bank_mask:0x3")
        A(f"v_add_f32_dpp v{vS}, v{D+4}, v{D+5} row_ror:8 row_mask:0xf bank_mask:0xc")
        k.rnd1(vS, vT0)
        A(f"v_mul_f32 v{vS}, {SCALE}, v{vS}")
        k.rnd1(vS, vT0)
        A(f"ds_write_b32 v{vSa}, v{vS} offset:{64*t}")
    A(f"v_add_u32 v{vSa}, 512, v{vSa}")
    A(f"s_add_u32 s{sC}, s{sC}, 1")
    A(f"s_cmp_lt_u32 s{sC}, {NIT}")
    A("s_cbranch_scc1 L_kloop")
    stamp(2)
    LB("vloop")
    set_issue()
    softmax16()
    for t in range(8):
        A("s_waitcnt vmcnt(42)")
        v_tile(T(t), P + 2 * t)
        take()
        loads(T(t), rCur)
    A(f"s_bitcmp1_b32 s{sC}, 0")
    A(f"s_cbranch_scc{NIT & 1} L_nofl")
    A(f"s_call_b64 s[{sRet2}:{sRet2+1}], L_flush")
    A(f"v_mov_b32 v{vT1}, {L_SYNC}")
    k.set_exec(1)
    A(f"ds_add_u32 v{vT1}, v{vOne} offset:24")
    k.set_exec(-1)
    reset_state()
    LB("nofl")
    A(f"s_add_u32 s{sC}, s{sC}, 1")
    A(f"s_cmp_lt_u32 s{sC}, {2*NIT-1}")
    A("s_cbranch_scc1 L_vloop")
    C("last two-pass iteration: start the single-pass units (batch 3) behind it")
    stamp(3, "ph")
    if NIT == 6:
        set_issue()
    softmax16()
    A(f"s_mov_b32 s{sRem}, {NSD - 2}")
    for t in range(8):
        A(f"s_waitcnt vmcnt({42 if t <= 4 else 42 - 6*(t-4)})")
        v_tile(T(t), P + 2 * t)
        if t == 0 and NSD == 2:
            issue_claim()
        if t == 2 and NSD == 3:
            issue_claim()
        if t in (0, 2):
            take()
            loads(T(t), rK)
        if t in (1, 3):
            loads(T(t), rV)
    if NIT == 6:
        A(f"s_call_b64 s[{sRet2}:{sRet2+1}], L_flush")
        reset_state()
        lds_wait4("q3", vT1, vT0, off=44, n=1, sleep=1)
    A(f"v_add_u32 v{vT0}, {3*512}, v{vQa}")
    for n in range(3):
        A(f"ds_read_b128 v[{QF+4*n}:{QF+4*n+3}], v{vT0} offset:{L_QH+128*n}")
    A("s_waitcnt lgkmcnt(0)")
    stamp(4, "ph")
    LB("loop")
    for x in range(2):
        A("s_waitcnt vmcnt(18)")
        k_tile(T(2 * x))
        A(f"s_sub_u32 s{sRem}, s{sRem}, 1")
        A(f"s_cmp_gt_i32 s{sRem}, 1")
        A(f"s_cbranch_scc0 L_dyn{x}")
        take()
        LB(f"dynret{x}")
        loads(T(2 * x), rK)
        softmax()
        A("s_waitcnt vmcnt(18)")
        v_tile(T(2 * x + 1), S)
        loads(T(2 * x + 1), rV)
    A("s_branch L_loop")
    for x in range(2):
        LB(f"dyn{x}")
        A(f"s_cmp_ge_i32 s{sRem}, 0")
        A(f"s_cbranch_scc1 L_take{x}")
        C("current run exhausted: pop the oldest claim")
        A(f"s_cmp_eq_u32 s{sNeedW}, 0")
        A(f"s_cbranch_scc1 L_now{x}")
        A("s_waitcnt vmcnt(12)")
        A(f"s_mov_b32 s{sNeedW}, 0")
        LB(f"now{x}")
        A(f"s_and_b32 s{sT1}, s{sCp}, 63")
        A(f"v_readlane_b32 s{sT0}, v{vCl}, s{sT1}")
        A(f"s_add_u32 s{sCp}, s{sCp}, 1")
        A("s_nop 2")
        A(f"s_cmp_ge_u32 s{sT0}, {CT}")
        A(f"s_cbranch_scc1 L_last{x}")
        A(f"s_add_u32 s{sT1}, s{sT0}, {n1*g1 + n2*g2 - n1 - n2}")
        A(f"s_mov_b32 s{sRem}, 0")
        A(f"s_mul_i32 s{sT2}, s{sT0}, {g2}")
        A(f"s_add_u32 s{sT2}, s{sT2}, {n1*g1 - n1*g2}")
        A(f"s_cmp_lt_u32 s{sT0}, {n1+n2}")
        A(f"s_cselect_b32 s{sT1}, s{sT2}, s{sT1}")
        A(f"s_cselect_b32 s{sRem}, {g2-1}, s{sRem}")
        A(f"s_mul_i32 s{sT2}, s{sT0}, {g1}")
        A(f"s_cmp_lt_u32 s{sT0}, {n1}")
        A(f"s_cselect_b32 s{sT1}, s{sT2}, s{sT1}")
        A(f"s_cselect_b32 s{sRem}, {g1-1}, s{sRem}")
        C("pool unit u -> unit index 64*(u/PPS) + VP0 + u%PPS")
        A(f"s_mul_i32 s{sT2}, s{sT1}, {MAGIC}")
        A(f"s_lshr_b32 s{sT2}, s{sT2}, 16")
        A(f"s_mul_i32 s{sT2}, s{sT2}, {VP0}")
        A(f"s_add_u32 s{sStat}, s{sT1}, s{sT2}")
        A(f"s_add_u32 s{sStat}, s{sStat}, {VP0}")
        A(f"s_mov_b32 s{sStep}, 1")
        C("first single-unit run: switch to two claims in flight")
        A(f"s_or_b32 s{sT1}, s{sRem}, s{sSingle}")
        A(f"s_cbranch_scc1 L_take{x}")
        A(f"s_mov_b32 s{sNeedW}, 1")
        A(f"s_mov_b32 s{sSingle}, 1")
        issue_claim()
        LB(f"take{x}")
        take()
        A(f"s_cmp_gt_i32 s{sRem}, 1")
        A(f"s_cbranch_scc1 L_dynret{x}")
        A(f"s_sub_u32 s{sT0}, s{sCi}, s{sCp}")
        A(f"s_cmp_gt_u32 s{sT0}, s{sSingle}")
        A(f"s_cbranch_scc1 L_dynret{x}")
        issue_claim()
        A(f"s_branch L_dynret{x}")
    LB("flush")
    flush()
    A(f"s_setpc_b64 s[{sRet2}:{sRet2+1}]")
    sB = 68
    sWm = 64
    Z = T(4)
    LB("merge")
    C("merge the four records of batch sB and publish them")
    zRa, zRh, zA0, zA1, zS, zW, zO, zH, zM = Z, Z + 1, Z + 2, Z + 3, Z + 4, Z + 6, Z + 8, Z + 12, Z + 16
    A(f"s_lshl_b32 s{sT1}, s{sB}, 3")
    A(f"v_and_b32 v{zA0}, 3, v{vL}")
    A(f"v_lshl_add_u32 v{zA0}, v{zA0}, 5, s{sT1}")
    A(f"s_lshl_b32 s{sT1}, s{sB}, 10")
    A(f"v_lshl_add_u32 v{zA1}, v{vL}, 4, s{sT1}")
    A(f"ds_read_b64 v[{zS}:{zS+1}], v{zA0} offset:{L_RHD}")
    for i in range(4):
        A(f"ds_read_b128 v[{zM+4*i}:{zM+4*i+3}], v{zA1} offset:{L_REC+4096*i}")
    A(f"s_lshl_b32 s{sT0}, s{sH}, 2")
    A(f"s_add_u32 s{sT0}, s{sT0}, s{sB}")
    A(f"s_lshl_b32 s{sT0}, s{sT0}, 3")
    A(f"s_add_u32 s{sT0}, s{sT0}, s{sJ}")
    A(f"s_lshl_b32 s{sT1}, s{sT0}, 10")
    A(f"s_add_u32 s{sT1}, s{sT1}, {W_REC}")
    A(f"v_lshl_add_u32 v{zRa}, v{vL}, 4, s{sT1}")
    A(f"s_lshl_b32 s{sT1}, s{sT0}, 7")
    A(f"s_add_u32 s{sT1}, s{sT1}, {W_RH}")
    A(f"v_lshl_add_u32 v{zRh}, v{vL}, 4, s{sT1}")
    A("s_waitcnt lgkmcnt(4)")
    A(f"v_mov_b32 v{zH}, v{zS}")
    k.butterfly("v_max_f32", [zH], 2)
    A(f"v_sub_f32 v{zW}, v{zS}, v{zH}")
    A(f"v_mul_f32 v{zW}, {LOG2E}, v{zW}")
    A(f"v_exp_f32 v{zW}, v{zW}")
    A("s_nop 0")
    A(f"v_mul_f32 v{zH+1}, v{zW}, v{zS+1}")
    for i in range(4):
        A(f"v_readlane_b32 s{sWm+i}, v{zW}, {i}")
        if i == 1:
            k.dpp("v_add_f32", zH + 1, "quad_perm:[1,0,3,2]")
    k.dpp("v_add_f32", zH + 1, "quad_perm:[2,3,0,1]")
    A("s_waitcnt lgkmcnt(0)")
    A(f"v_pk_mul_f32 v[{zO}:{zO+1}], v[{zM}:{zM+1}], s[{sWm}:{sWm+1}] op_sel_hi:[1,0]")
    A(f"v_mul_f32 v{zO+2}, s{sWm}, v{zM+2}")
    xor3(zH + 2, f"v{zH}", f"v{zH+1}", f"s{sTag}")
    for i in range(1, 4):
        k.pkfma(zO, zM + 4 * i, sWm + i, pre="s")
        A(f"v_fmac_f32 v{zO+2}, s{sWm+i}, v{zM+4*i+2}")
    xor3(zO + 3, f"v{zO}", f"v{zO+1}", f"v{zO+2}")
    A(f"v_xor_b32 v{zO+3}, s{sTag}, v{zO+3}")
    A(f"global_store_dwordx4 v{zRa}, v[{zO}:{zO+3}], s[{sWS}:{sWS+1}] {SC}")
    k.set_exec(0xff)
    A(f"global_store_dwordx4 v{zRh}, v[{zH}:{zH+3}], s[{sWS}:{sWS+1}] {SC}")
    k.set_exec(-1)
    A(f"s_setpc_b64 s[{sRet2}:{sRet2+1}]")
    for x in range(2):
        y = 1 - x
        LB(f"last{x}")
        stamp(3)
        A(f"v_mov_b32 v{vT1}, {L_SYNC}")
        k.set_exec(1)
        A(f"ds_add_u32 v{vT1}, v{vOne} offset:8")
        k.set_exec(-1)
        softmax()
        A("s_waitcnt vmcnt(12)")
        v_tile(T(2 * x + 1), S)
        A("s_waitcnt vmcnt(6)")
        k_tile(T(2 * y))
        A("s_nop 7")
        softmax()
        C("waves 0..2 publish the finished batches while the last tile is in flight")
        A(f"s_cmp_eq_u32 s{sWs}, 3")
        A(f"s_cbranch_scc1 L_w3_{x}")
        lds_wait4(f"f12_{x}", vT1, vT0, off=24, n=12, sleep=1)
        A(f"s_mov_b32 s{sB}, s{sWs}")
        A(f"s_call_b64 s[{sRet2}:{sRet2+1}], L_merge")
        A("s_waitcnt vmcnt(2)")
        A(f"s_branch L_w4_{x}")
        LB(f"w3_{x}")
        A("s_waitcnt vmcnt(0)")
        LB(f"w4_{x}")
        v_tile(T(2 * y + 1), S)
        if x == 0:
            A("s_branch L_fin")
    LB("fin")
    A(f"s_call_b64 s[{sRet2}:{sRet2+1}], L_flush")
    A(f"v_mov_b32 v{vAl}, {L_SYNC}")
    k.set_exec(1)
    A(f"ds_add_rtn_u32 v{vLs}, v{vAl}, v{vOne} offset:12")
    k.set_exec(-1)
    A(f"s_mov_b32 s{sB}, 3")
    A("s_waitcnt lgkmcnt(0)")
    A(f"v_readfirstlane_b32 s{sT0}, v{vLs}")
    stamp(4)
    A("s_nop 2")
    A(f"s_cmp_eq_u32 s{sT0}, 3")
    A("s_cbranch_scc0 L_nomerge")
    A(f"s_call_b64 s[{sRet2}:{sRet2+1}], L_merge")
    LB("nomerge")
    stamp(5)
    write_stamps(MG, vT1)
    LB("end")
    A("s_endpgm")
    return k, (256, 256), L_TOTAL


DOC = """;
;    128-byte column line per workgroup (MFMA), final sum over heads and the bf16 store.
;  stream waves 4..7: K of batches 0..3 (scores -> LDS, MFMA), then V of batches 0..3 (online softmax with the
;    running true max, fp32 FMA); the last part of batch 3 is handed out dynamically (atomic tickets per head).
;    derived from a generation word that the launch reads on entry and advances on exit), sc1 stores / loads.
"""


def build(stamps=False, **kw):
    k2, r2, l2 = build_main(stamps, **kw)
    txt = HEADER
    txt += f"; @launch grid=(256,1,1) block=(512,1,1) lds={l2}\n"
    txt += DOC
    txt += '.amdgcn_target "amdgcn-amd-amdhsa--gfx950"\n.text\n'
    txt += k2.text()
    txt += '.section .rodata,"a"\n'
    txt += k2.desc(*r2)
    return txt


if __name__ == "__main__":
    out = sys.argv[1] if len(sys.argv) > 1 else f"cdna_kernels/{NAME}.s"
    stamps = sys.argv[2] if len(sys.argv) > 2 and sys.argv[2] != "-" else False
    kw = {}
    for a in sys.argv[3:]:
        n, v = a.split("=")
        kw[n] = int(v)
    open(out, "w").write(build(stamps, **kw))
    print("wrote", out)
```

```python
import sys
from gen_v1 import HEADER, NAME
from gen_v2 import K, load_kernargs, SCALE, LOG2E, NEGBIG
from gen_v2 import sX, sKp, sVp, sWQp, sWOp, sW1p, sB1p, sW2p, sB2p, sOUT, sDBG, sWS

W_GEN = 0x0
W_QCNT = 0x800000
W_RH = 0xE0000
W_FR = 0x20000
W_YA = 0x400000
W_REC = 0x100000
W_QC = 0x200000
W_YB = 0x240000
W_QP = 0x300000
W_STAMP = 0x1000000
SPIN = 0x80000


def build_main(stamps=False, DP=64, NPRE=2, mimic=1, hsleep=1, qsleep=64, nmiss=4, pre1=0, pre2=0, noq=0, stop=0, ysleep=1, qstride=4352, stnt=0, ldnt=0, fsleep=120, dbg=0, ilv=4, rot=1, bar1=0, early=0, ymiss=1, esleep=4, alias=0, n1=24, g1=4, n2=24, g2=2, tstep=0, late=5, la1=0, ypos=3, qflag=1, ovl=1, split=1, pm=1, NDIR=1, NSD=2, NIT=7, epub=1, etrig=1, etrig3=2, fwait=1):
    ldsync = 1 if (early or late) else 0
    SCS = "sc1 nt" if stnt else "sc1"
    SCL = "sc1 nt" if ldnt else "sc1"
    SC = "sc1"
    k = K(f"{NAME}_kernel")
    k.lab = lambda s: f"L_{s}"
    k.LB = lambda s: k.L.append(f"L_{s}:")
    A, LB, C = k.A, k.LB, k.C
    sT0, sT1, sT2, sT3 = k.sT
    NS = (512 - DP) // 8
    LDP = DP.bit_length() - 1
    NPOOL = 4 * DP
    sW, sH, sJ = 3, 4, 5
    sRem, sStat, sNxt = 6, 7, 12
    sPairCur, sPairSt, sSlot, sHoff = 13, 14, 42, 43
    rK, rV = 44, 48
    sPair = [52, 53]
    sRet = 54
    sWt = 56
    sTm = 76
    sTag = 78
    sTagY = 94
    sOB = 95
    sSpin = 79
    rW = 80
    sOff = 84
    sWs = 85
    sM1, sM0 = 86, 88
    sRet2 = 92
    sTs = 96
    L_QH = 0
    L_SYNC = 2048
    L_RHD = 2112
    L_OB = 2560
    L_REC = 4096
    L_XN = L_REC + 16384
    L_WT = 32768
    L_SC = L_WT + 65536
    L_TOTAL = L_SC + 4 * 3584
    boff = [0, 128, 256, 1536, 1664, 1792] if pm == 1 else [0, 128, 256, 3072, 3200, 3328]
    in_service = [True]

    def stamp(i, mode="stamps"):
        if stamps == "ph" and mode == "stamps" and not in_service[0] and i in (1, 3, 4):
            return
        if stamps == "st" and mode == "stamps" and not in_service[0] and i in (1, 2, 3, 4):
            return
        if stamps and (mode == stamps or (mode == "stamps" and (i == 0 or not in_service[0]))):
            A(f"s_memrealtime s[{sTm}:{sTm+1}]")
            A("s_waitcnt lgkmcnt(0)")
            A(f"s_mov_b32 s{sTs+i}, s{sTm}")

    def write_stamps(tmp, vA):
        if stamps and dbg:
            if in_service[0]:
                C("debug: WGs 0,40,85,130 wave 0 report (t1,t3,t5) - t0 and xcc")
                A(f"s_cmp_eq_u32 s{sW}, 0")
                A("s_cbranch_scc0 L_nodbg")
                A(f"s_mul_i32 s{sT1}, s2, 1457")
                A(f"s_lshr_b32 s{sT1}, s{sT1}, 16")
                A(f"s_mul_i32 s{sT3}, s{sT1}, 45")
                A(f"s_cmp_eq_u32 s{sT3}, s2")
                A("s_cbranch_scc0 L_nodbg")
                A(f"s_cmp_lt_u32 s{sT1}, 4")
                A("s_cbranch_scc0 L_nodbg")
                A(f"s_getreg_b32 s{sT2}, hwreg(HW_REG_XCC_ID)")
                A(f"s_lshl_b32 s{sT1}, s{sT1}, 4")
                for n, i in enumerate((1, 3, 5)):
                    A(f"s_sub_u32 s{sT3}, s{sTs+i}, s{sTs}")
                    A(f"v_mov_b32 v{tmp+n}, s{sT3}")
                A(f"v_mov_b32 v{tmp+3}, s{sT2}")
                A(f"v_mov_b32 v{vA}, s{sT1}")
                k.set_exec(1)
                A(f"global_store_dwordx4 v{vA}, v[{tmp}:{tmp+3}], s[{sDBG}:{sDBG+1}]")
                k.set_exec(-1)
                LB("nodbg")
        elif stamps:
            A(f"s_getreg_b32 s{sT2}, hwreg(HW_REG_XCC_ID)")
            A(f"s_lshl_b32 s{sT1}, s2, 3")
            A(f"s_add_u32 s{sT1}, s{sT1}, s{sW}")
            A(f"s_lshl_b32 s{sT1}, s{sT1}, 5")
            A(f"s_add_u32 s{sT1}, s{sT1}, {W_STAMP}")
            for i in range(6):
                A(f"v_mov_b32 v{tmp+i}, s{sTs+i}")
            A(f"v_mov_b32 v{tmp+6}, s{sT2}")
            A(f"v_mov_b32 v{tmp+7}, 0x12345678")
            A(f"v_mov_b32 v{vA}, s{sT1}")
            k.set_exec(1)
            A(f"global_store_dwordx4 v{vA}, v[{tmp}:{tmp+3}], s[{sWS}:{sWS+1}]")
            A(f"global_store_dwordx4 v{vA}, v[{tmp+4}:{tmp+7}], s[{sWS}:{sWS+1}] offset:16")
            k.set_exec(-1)

    def xor3(d, a, b, c):
        A(f"v_bitop3_b32 v{d}, {a}, {b}, {c} bitop3:0x96")

    def spin_tail(loop, sleep=None):
        if sleep:
            A(f"s_sleep {sleep}")
        A(f"s_sub_u32 s{sSpin}, s{sSpin}, 1")
        A(f"s_cmp_lg_u32 s{sSpin}, 0")
        A(f"s_cbranch_scc1 L_{loop}")

    def lds_wait4(tagl, vA, vD, off=0, n=4, sleep=4):
        A(f"v_mov_b32 v{vA}, {L_SYNC}")
        A(f"s_mov_b32 s{sSpin}, {SPIN*16}")
        LB(tagl)
        A(f"ds_read_b32 v{vD}, v{vA} offset:{off}")
        A("s_waitcnt lgkmcnt(0)")
        A(f"v_readfirstlane_b32 s{sT0}, v{vD}")
        A(f"s_sub_u32 s{sSpin}, s{sSpin}, 1")
        A(f"s_cselect_b32 s{sT0}, {n}, s{sT0}")
        A(f"s_cmp_ge_u32 s{sT0}, {n}")
        if sleep:
            A(f"s_cbranch_scc1 L_{tagl}ok")
            A(f"s_sleep {sleep}")
            A(f"s_branch L_{tagl}")
        else:
            A(f"s_cbranch_scc0 L_{tagl}")
        LB(tagl + "ok")

    vL, vT0, vT1 = 1, 3, 4
    A("s_cmp_ge_u32 s2, 256")
    A("s_cbranch_scc1 L_end")
    stamp(0)
    load_kernargs(k)
    A(f"v_and_b32 v{vL}, 63, v0")
    A(f"v_lshrrev_b32 v{vT0}, 6, v0")
    A(f"s_mov_b32 s{k.sMsk}, 0xffff0000")
    A(f"v_readfirstlane_b32 s{sW}, v{vT0}")
    A(f"s_lshr_b32 s{sH}, s2, 3")
    A(f"s_and_b32 s{sJ}, s2, 7")
    A(f"s_cmp_ge_u32 s{sW}, 4")
    A("s_cbranch_scc1 L_stream")
    C("================= service waves (0..3) =================")
    vOff, vXa, vXb, vOne_s = 2, 5, 6, 7
    a = 8
    k.TP = 16
    k.ntp = 2
    XR = 20
    XC = 40
    X = 44
    ACC = 84
    WR = 116
    E = 156
    QL = 164
    QK = 196
    B1R = 204
    FXR = 206
    A("s_setprio 3")
    A(f"v_lshrrev_b32 v{vT0}, 3, v{vL}")
    A(f"v_and_b32 v{vT1}, 7, v{vL}")
    A(f"s_cmp_eq_u32 s{sW}, 3")
    A(f"s_movk_i32 s{sT0}, 3072")
    A(f"s_cselect_b32 s{sT0}, s{sT0}, 12288")
    A(f"v_mul_lo_u32 v{vOff}, v{vT0}, s{sT0}")
    A(f"v_lshl_add_u32 v{vOff}, v{vT1}, 4, v{vOff}")
    A(f"s_mul_i32 s{sOff}, s{sJ}, 80")
    A(f"s_mul_i32 s{sOff}, s{sOff}, s{sT0}")
    A(f"s_lshl_b32 s{sT3}, s{sT0}, 3")
    A(f"s_mul_i32 s{sT1}, s{sH}, 384")
    A(f"s_lshl_b32 s{sT2}, s{sW}, 7")
    A(f"s_add_u32 s{sT1}, s{sT1}, s{sT2}")
    A(f"s_min_u32 s{sT2}, s{sH}, 23")
    A(f"s_lshl_b32 s{sT2}, s{sT2}, 7")
    A(f"s_cmp_eq_u32 s{sW}, 3")
    A(f"s_cselect_b32 s{sT1}, s{sT2}, s{sT1}")
    A(f"s_add_u32 s{sOff}, s{sOff}, s{sT1}")
    A(f"v_lshrrev_b32 v{vT0}, 4, v{vL}")
    A(f"v_mul_u32_u24 v{vT0}, 1280, v{vT0}")
    A(f"v_and_b32 v{vT1}, 15, v{vL}")
    A(f"v_lshl_add_u32 v{vXa}, v{vT1}, 4, v{vT0}")
    A(f"v_lshl_add_u32 v{a}, v{vT1}, 3, s{sT2}")
    A(f"v_min_u32 v{vT1}, 9, v{vT1}")
    A(f"v_lshl_add_u32 v{vXb}, v{vT1}, 4, v{vT0}")
    A(f"s_mul_i32 s{sT1}, s{sJ}, 160")
    A(f"v_add_u32 v{vXb}, s{sT1}, v{vXb}")
    A(f"v_mov_b32 v{vOne_s}, 1")
    for i in range(32):
        A(f"v_mov_b32 v{ACC+i}, 0")
    A(f"v_and_b32 v{vT0}, 15, v{vL}")
    A(f"v_lshlrev_b32 v{vT0}, 2, v{vT0}")
    A(f"ds_write_b32 v{vT0}, v{ACC} offset:{L_SYNC}")
    if stop:
        A(f"v_and_b32 v{vT0}, 12, v{vT0}")
        A(f"ds_write_b32 v{vT0}, v{vOne_s} offset:{L_SYNC+32}")
    A(f"s_cmp_lt_u32 s{sH}, 24")
    A(f"s_cselect_b32 s{rW+2}, 1966080, 0")
    A("s_waitcnt lgkmcnt(0)")
    stamp(1, "st")
    A(f"s_load_dword s{sTag}, s[{sWS}:{sWS+1}], {W_GEN}")
    for m in range(5):
        A(f"global_load_dwordx4 v[{XR+4*m}:{XR+4*m+3}], v{vXa}, s[{sX}:{sX+1}] offset:{256*m}")
    A(f"global_load_dwordx4 v[{XC}:{XC+3}], v{vXb}, s[{sX}:{sX+1}]")
    A(f"s_cmp_eq_u32 s{sW}, 3")
    A(f"s_cselect_b32 s{rW}, s{sW1p}, s{sWQp}")
    A(f"s_cselect_b32 s{rW+1}, s{sW1p+1}, s{sWQp+1}")
    A(f"s_cselect_b32 s{rW+2}, s{rW+2}, 7864320")
    A(f"s_mov_b32 s{rW+3}, 0x20000")
    for t in range(10):
        if stop != 1:
            A(f"buffer_load_dwordx4 v[{WR+4*t}:{WR+4*t+3}], v{vOff}, s[{rW}:{rW+3}], s{sOff} offen nt")
        if t < 9:
            A(f"s_add_u32 s{sOff}, s{sOff}, s{sT3}")
    A(f"global_load_dwordx2 v[{B1R}:{B1R+1}], v{a}, s[{sB1p}:{sB1p+1}]")
    A(f"s_mul_i32 s{sOB}, s{sH}, 40960")
    A(f"s_add_u32 s{sOB}, s{sOB}, {W_QP}")
    stamp(2, "st")
    C("queue counter of this octet = 0 (j == 0, wave 0)")
    A(f"s_mul_i32 s{sT0}, s{sH}, {qstride}")
    A(f"s_add_u32 s{sT0}, s{sT0}, {W_QCNT}")
    A(f"v_mov_b32 v{vT0}, s{sT0}")
    A(f"s_or_b32 s{sT0}, s{sJ}, s{sW}")
    A(f"s_cmp_eq_u32 s{sT0}, 0")
    A("s_cbranch_scc0 L_noq")
    k.set_exec(1)
    A(f"global_store_dword v{vT0}, v{ACC}, s[{sWS}:{sWS+1}] {SC}")
    k.set_exec(-1)
    LB("noq")
    if tstep:
        C("translation warm-up through the scalar path: waves 0/1 static K/V range, waves 2/3 pool K/V")
        sB0 = 60
        A(f"s_bitcmp1_b32 s{sW}, 0")
        A(f"s_cselect_b32 s{sB0}, s{sVp}, s{sKp}")
        A(f"s_cselect_b32 s{sB0+1}, s{sVp+1}, s{sKp+1}")
        A(f"s_mul_i32 s{sT2}, s{sH}, 3145728")
        A(f"s_cmp_ge_u32 s{sW}, 2")
        A("s_cbranch_scc1 L_tw_pool")
        A(f"s_lshr_b32 s{sT0}, s{sJ}, 1")
        A(f"s_mul_i32 s{sT0}, s{sT0}, 100663296")
        A(f"s_add_u32 s{sT0}, s{sT0}, s{sT2}")
        A(f"s_and_b32 s{sT1}, s{sJ}, 1")
        A(f"s_mul_i32 s{sT1}, s{sT1}, {4*NS*6144}")
        A(f"s_add_u32 s{sT0}, s{sT0}, s{sT1}")
        ln = 4 * NS * 6144
        offs = list(range(0, ln, tstep)) + [ln - 64]
        for i, o in enumerate(offs):
            A(f"s_add_u32 s{sT1}, s{sT0}, {o}")
            A(f"s_load_dword s{62 + (i % 8)}, s[{sB0}:{sB0+1}], s{sT1}")
        A("s_branch L_tw_done")
        LB("tw_pool")
        ln = DP * 6144
        offs = list(range(0, ln, tstep)) + [ln - 64]
        i = 0
        for p in range(4):
            for o in offs:
                A(f"s_add_u32 s{sT1}, s{sT2}, {p*100663296 + (512-DP)*6144 + o}")
                A(f"s_load_dword s{62 + (i % 8)}, s[{sB0}:{sB0+1}], s{sT1}")
                i += 1
        LB("tw_done")
    C("barrier 1 releases the stream waves")
    if bar1:
        A("s_barrier")
    if noq:
        A("s_barrier")
    if stop == 1:
        A("s_waitcnt vmcnt(0) lgkmcnt(0)")
        A("s_branch L_svc_end")
    C("---- LayerNorm statistics, 16 lanes per batch ----")
    A(f"s_waitcnt vmcnt({11 + 2*pre1})")
    stamp(1, "pro")
    for i in range(20):
        A(f"v_lshlrev_b32 v{X+2*i}, 16, v{XR+i}")
        A(f"v_and_b32 v{X+2*i+1}, s{k.sMsk}, v{XR+i}")
    A(f"v_pk_add_f32 v[{a}:{a+1}], v[{X}:{X+1}], v[{X+2}:{X+3}]")
    A(f"v_pk_add_f32 v[{a+2}:{a+3}], v[{X+4}:{X+5}], v[{X+6}:{X+7}]")
    for i in range(4, 20):
        d = a + 2 * (i & 1)
        A(f"v_pk_add_f32 v[{d}:{d+1}], v[{d}:{d+1}], v[{X+2*i}:{X+2*i+1}]")
    A(f"v_pk_add_f32 v[{a}:{a+1}], v[{a}:{a+1}], v[{a+2}:{a+3}]")
    A(f"v_add_f32 v{a}, v{a}, v{a+1}")
    k.butterfly("v_add_f32", [a], 4)
    A(f"v_mul_f32 v{a}, {-1.0/640.0!r}, v{a}")
    for i in range(20):
        A(f"v_pk_add_f32 v[{X+2*i}:{X+2*i+1}], v[{X+2*i}:{X+2*i+1}], v[{a}:{a+1}] op_sel_hi:[1,0]")
    A(f"v_pk_mul_f32 v[{a+2}:{a+3}], v[{X}:{X+1}], v[{X}:{X+1}]")
    A(f"v_pk_mul_f32 v[{a+4}:{a+5}], v[{X+2}:{X+3}], v[{X+2}:{X+3}]")
    for i in range(2, 20):
        d = a + 2 + 2 * (i & 1)
        A(f"v_pk_fma_f32 v[{d}:{d+1}], v[{X+2*i}:{X+2*i+1}], v[{X+2*i}:{X+2*i+1}], v[{d}:{d+1}]")
    A(f"v_pk_add_f32 v[{a+2}:{a+3}], v[{a+2}:{a+3}], v[{a+4}:{a+5}]")
    A(f"v_add_f32 v{a+2}, v{a+2}, v{a+3}")
    k.butterfly("v_add_f32", [a + 2], 4)
    A(f"v_mul_f32 v{a+2}, {1.0/640.0!r}, v{a+2}")
    k.rnd2(a, a + 2, a + 1)
    A(f"v_add_f32 v{a+2}, 0x3727c5ac, v{a+2}")
    k.rnd1(a + 2, a + 1)
    A(f"v_sqrt_f32 v{a+2}, v{a+2}")
    A("s_waitcnt lgkmcnt(0)")
    for i in range(4):
        A(f"v_lshlrev_b32 v{E+2*i}, 16, v{XC+i}")
        A(f"v_and_b32 v{E+2*i+1}, s{k.sMsk}, v{XC+i}")
    k.rnd1(a + 2, a + 1)
    A(f"v_rcp_f32 v{a+3}, v{a+2}")
    for i in range(8):
        A(f"v_add_f32 v{E+i}, v{E+i}, v{a}")
    for i in range(0, 8, 2):
        k.rnd2(E + i, E + i + 1, a + 1)
    for i in range(8):
        A(f"v_mul_f32 v{a+4}, v{E+i}, v{a+3}")
        A(f"v_fma_f32 v{a+5}, -v{a+4}, v{a+2}, v{E+i}")
        A(f"v_fma_f32 v{E+i}, v{a+5}, v{a+3}, v{a+4}")
    for i in range(0, 8, 2):
        k.rnd2(E + i, E + i + 1, a + 1)
    A(f"s_mul_i32 s{sT0}, s{sW}, 1280")
    A(f"v_and_b32 v{vT1}, 15, v{vL}")
    A(f"v_min_u32 v{vT1}, 9, v{vT1}")
    A(f"v_lshl_add_u32 v{vT1}, v{vT1}, 7, s{sT0}")
    A(f"v_lshrrev_b32 v{vT0}, 4, v{vL}")
    A(f"v_lshl_add_u32 v{vT1}, v{vT0}, 2, v{vT1}")
    for i in range(8):
        A(f"ds_write_b32 v{vT1}, v{E+i} offset:{L_XN+16*i}")
    A(f"v_lshrrev_b32 v{vT0}, 3, v{vL}")
    A(f"v_lshl_add_u32 v{vT0}, v{vT0}, 4, s{sT0}")
    A(f"s_add_u32 s{sTag}, s{sTag}, 1")
    A(f"s_addc_u32 s{sTag}, s{sTag}, 0")
    A(f"s_cmp_eq_u32 s{sTag}, 0x80000001")
    A(f"s_addc_u32 s{sTag}, s{sTag}, 0")
    A(f"s_xor_b32 s{sTagY}, s{sTag}, 0x80000001")
    XN = X
    for t in range(10):
        A(f"ds_read_b128 v[{XN+4*t}:{XN+4*t+3}], v{vT0} offset:{L_XN+128*t}")
    C("granule index 16w + 2e + half, row b = l>>4")
    A(f"v_and_b32 v{vT0}, 7, v{vL}")
    A(f"v_bfe_u32 v{vT1}, v{vL}, 3, 1")
    A(f"v_lshl_add_u32 v{vT0}, v{vT0}, 1, v{vT1}")
    A(f"s_lshl_b32 s{sT0}, s{sW}, 4")
    A(f"v_add_u32 v{vT0}, s{sT0}, v{vT0}")
    A(f"v_lshrrev_b32 v{vT1}, 4, v{vL}")
    A(f"v_lshl_add_u32 v{vT0}, v{vT1}, 6, v{vT0}")
    A(f"s_lshl_b32 s{sT0}, s{sJ}, 12")
    A(f"s_add_u32 s{sT0}, s{sT0}, s{sOB}")
    A(f"s_lshl_b32 s{sT1}, s{sJ}, 10")
    A(f"s_lshl_b32 s{sT2}, s{sW}, 8")
    A(f"s_add_u32 s{sT1}, s{sT1}, s{sT2}")
    A(f"s_add_u32 s{sT1}, s{sT1}, s{sOB}")
    A(f"s_add_u32 s{sT1}, s{sT1}, 32768")
    A(f"v_lshl_add_u32 v{vXa}, v{vT0}, 4, s{sT0}")
    A(f"v_lshl_add_u32 v{vXb}, v{vL}, 2, s{sT1}")
    stamp(1)
    stamp(2, "pro")
    for t in range(10):
        A(f"s_waitcnt vmcnt({10-t+2*pre1 if t < 9 else 0}) lgkmcnt({9-t})")
        if t == 0:
            stamp(3, "pro")
        if t == 9:
            stamp(4, "pro")
        for d in range(4):
            tt = k.unpack(WR + 4 * t + d)
            for b in range(4):
                k.pkfma(ACC + 8 * b + 2 * d, tt, XN + 4 * t + b)
    C("reduce-scatter over lane bits 5,4,3")
    A("s_nop 1")
    for i in range(16):
        A(f"v_permlane32_swap_b32 v{ACC+i}, v{ACC+16+i}")
    for i in range(16):
        A(f"v_add_f32 v{ACC+i}, v{ACC+i}, v{ACC+16+i}")
    A("s_nop 1")
    for i in range(8):
        A(f"v_permlane16_swap_b32 v{ACC+i}, v{ACC+8+i}")
    for i in range(8):
        A(f"v_add_f32 v{ACC+i}, v{ACC+i}, v{ACC+8+i}")
    A("s_nop 1")
    for i in range(4):
        A(f"v_add_f32_dpp v{E+i}, v{ACC+i}, v{ACC+i} row_ror:8 row_mask:0xf bank_mask:0x3")
        A(f"v_add_f32_dpp v{E+i}, v{ACC+4+i}, v{ACC+4+i} row_ror:8 row_mask:0xf bank_mask:0xc")
    A(f"global_store_dwordx4 v{vXa}, v[{E}:{E+3}], s[{sWS}:{sWS+1}] {SCS}")
    xor3(E + 4, f"v{E}", f"v{E+1}", f"v{E+2}")
    xor3(E + 4, f"v{E+4}", f"v{E+3}", f"s{sTag}")
    A(f"global_store_dword v{vXb}, v{E+4}, s[{sWS}:{sWS+1}] {SCS}")
    stamp(2)
    stamp(5, "pro")
    if stop == 2:
        A("s_waitcnt vmcnt(0) lgkmcnt(0)")
        A("s_branch L_svc_end")
    C("addresses: final row FR[h*4+w], LDS row w")
    vFr, vQl = a + 6, a + 7
    A(f"s_lshl_b32 s{sT0}, s{sH}, 2")
    A(f"s_add_u32 s{sT0}, s{sT0}, s{sW}")
    A(f"s_lshl_b32 s{sT0}, s{sT0}, 10")
    A(f"s_add_u32 s{sT0}, s{sT0}, {W_FR}")
    A(f"v_lshl_add_u32 v{vFr}, v{vL}, 4, s{sT0}")
    A(f"s_lshl_b32 s{sT1}, s{sW}, 9")
    A(f"v_lshl_add_u32 v{vQl}, v{vL}, 3, s{sT1}")
    A(f"s_mov_b32 s{sSpin}, {SPIN}")
    C("rows < NDIR are gathered by every workgroup; row w >= NDIR by workgroup j == 2w, which publishes it")
    A(f"s_lshl_b32 s{sT0}, s{sW}, 2")
    A(f"s_add_u32 s{sT0}, s{sT0}, {L_SYNC + 32}")
    A(f"v_mov_b32 v{E}, s{sT0}")
    A(f"s_lshl_b32 s{sPairCur}, s{sW}, 1")
    A(f"s_cmp_eq_u32 s{sPairCur}, s{sJ}")
    A(f"s_cselect_b32 s{sPairCur}, 1, 0")
    A(f"s_cmp_lt_u32 s{sW}, {NDIR}")
    A(f"s_cselect_b32 s{sPairCur}, 2, s{sPairCur}")
    A(f"s_cmp_eq_u32 s{sPairCur}, 0")
    A("s_cbranch_scc1 L_nonhome")
    C("---- home wave: gather the 8 partial rows ----")
    A(f"s_lshl_b32 s{sT1}, s{sW}, 10")
    A(f"s_add_u32 s{sT0}, s{sOB}, s{sT1}")
    A(f"v_lshl_add_u32 v{vXa}, v{vL}, 4, s{sT0}")
    C("check of granule l: [wg][w' = l>>4][16 b + 8 (l&1) + ((l&15)>>1)]")
    A(f"s_lshl_b32 s{sT2}, s{sW}, 6")
    A(f"s_add_u32 s{sT1}, s{sOB}, s{sT2}")
    A(f"s_add_u32 s{sT1}, s{sT1}, 32768")
    A(f"v_lshrrev_b32 v{vT0}, 4, v{vL}")
    A(f"v_lshl_add_u32 v{vXb}, v{vT0}, 8, s{sT1}")
    A(f"v_and_b32 v{vT0}, 1, v{vL}")
    A(f"v_lshl_add_u32 v{vXb}, v{vT0}, 5, v{vXb}")
    A(f"v_bfe_u32 v{vT0}, v{vL}, 1, 3")
    A(f"v_lshl_add_u32 v{vXb}, v{vT0}, 2, v{vXb}")
    A(f"v_add_u32 v{vT1}, 4096, v{vXb}")
    C("wait until the stream waves pause their prefetch")
    A("s_barrier")
    A(f"s_mov_b32 s{sT3}, {1 if ypos else 0}")
    LB("qpoll")
    A(f"v_mov_b32 v{vT0}, v{vXa}")
    for j in range(8):
        if j:
            A(f"v_add_u32 v{vT0}, 4096, v{vT0}")
        A(f"global_load_dwordx4 v[{QL+4*j}:{QL+4*j+3}], v{vT0}, s[{sWS}:{sWS+1}] {SCL}")
        va = vXb if j < 4 else vT1
        A(f"global_load_dword v{QK+j}, v{va}, s[{sWS}:{sWS+1}] offset:{1024*(j%4)} {SCL}")
    if ypos:
        C("first round issued: release the stream waves parked at the yield barrier")
        A(f"s_cmp_eq_u32 s{sT3}, 0")
        A("s_cbranch_scc1 L_noyb")
        A("s_barrier")
        A(f"s_mov_b32 s{sT3}, 0")
        LB("noyb")
    for j in range(8):
        A(f"s_waitcnt vmcnt({14-2*j})")
        xor3(a, f"v{QL+4*j}", f"v{QL+4*j+1}", f"v{QL+4*j+2}")
        xor3(a + 1, f"v{QL+4*j+3}", f"v{QK+j}", f"s{sTag}")
        if j == 0:
            A(f"v_xor_b32 v{a+2}, v{a}, v{a+1}")
        else:
            A(f"v_xor_b32 v{a}, v{a}, v{a+1}")
            A(f"v_or_b32 v{a+2}, v{a+2}, v{a}")
    A(f"v_cmp_ne_u32 vcc, 0, v{a+2}")
    A("s_cbranch_vccz L_qok")
    spin_tail("qpoll")
    LB("qok")
    for j in range(1, 8):
        A(f"v_pk_add_f32 v[{QL}:{QL+1}], v[{QL}:{QL+1}], v[{QL+4*j}:{QL+4*j+1}]")
        A(f"v_pk_add_f32 v[{QL+2}:{QL+3}], v[{QL+2}:{QL+3}], v[{QL+4*j+2}:{QL+4*j+3}]")
    A(f"v_cvt_pk_bf16_f32 v{QL+4}, v{QL}, v{QL+1}")
    A(f"v_cvt_pk_bf16_f32 v{QL+5}, v{QL+2}, v{QL+3}")
    A(f"ds_write_b64 v{vQl}, v[{QL+4}:{QL+5}] offset:{L_QH}")
    stamp(3)
    stamp(3, "ret")
    if stamps == "ret":
        A(f"s_sub_u32 s{sTs+1}, {SPIN}, s{sSpin}")
        A(f"s_mul_i32 s{sTs+1}, s{sTs+1}, 400")
        A(f"s_add_u32 s{sTs+1}, s{sTs+1}, s{sTs}")
        A(f"s_mov_b32 s{sTs+2}, s{sTs}")
        A(f"s_mov_b32 s{sTs+4}, s{sTs}")
        A(f"s_mov_b32 s{sTs+5}, s{sTs}")
    A(f"ds_write_b32 v{E}, v{vOne_s}")
    A("s_setprio 0")
    C("hid = bf16(relu(bf16(bf16(sum) + b1))^2) on lanes 48..63")
    Hh = QL + 8
    A(f"v_lshlrev_b32 v{Hh}, 16, v{QL+4}")
    A(f"v_and_b32 v{Hh+1}, s{k.sMsk}, v{QL+4}")
    A(f"v_lshlrev_b32 v{Hh+2}, 16, v{QL+5}")
    A(f"v_and_b32 v{Hh+3}, s{k.sMsk}, v{QL+5}")
    A(f"v_lshlrev_b32 v{Hh+4}, 16, v{B1R}")
    A(f"v_and_b32 v{Hh+5}, s{k.sMsk}, v{B1R}")
    A(f"v_lshlrev_b32 v{Hh+6}, 16, v{B1R+1}")
    A(f"v_and_b32 v{Hh+7}, s{k.sMsk}, v{B1R+1}")
    for i in range(4):
        A(f"v_add_f32 v{Hh+i}, v{Hh+i}, v{Hh+4+i}")
    k.rnd2(Hh, Hh + 1, a)
    k.rnd2(Hh + 2, Hh + 3, a)
    for i in range(4):
        A(f"v_cmp_gt_f32 vcc, v{Hh+i}, 0")
        A("s_nop 1")
        A(f"v_cndmask_b32 v{Hh+i}, 0, v{Hh+i}, vcc")
    for i in range(4):
        A(f"v_mul_f32 v{Hh+i}, v{Hh+i}, v{Hh+i}")
    k.set_exec(0xffff << 48)
    A(f"v_cvt_pk_bf16_f32 v{QL+4}, v{Hh}, v{Hh+1}")
    A(f"v_cvt_pk_bf16_f32 v{QL+5}, v{Hh+2}, v{Hh+3}")
    A(f"ds_write_b64 v{vQl}, v[{QL+4}:{QL+5}] offset:{L_QH}")
    k.set_exec(-1)
    xor3(QL + 6, f"v{QL+4}", f"v{QL+5}", f"s{sTag}")
    A(f"s_cmp_eq_u32 s{sPairCur}, 1")
    A("s_cbranch_scc0 L_rowdone")
    A(f"global_store_dwordx4 v{vFr}, v[{QL+4}:{QL+7}], s[{sWS}:{sWS+1}] {SCS}")
    A("s_branch L_rowdone")
    C("---- other waves: fetch the finished row later ----")
    LB("nonhome")
    A("s_barrier")
    A("s_barrier")
    A("s_waitcnt lgkmcnt(0)")
    if not noq and not qflag:
        A("s_barrier")
    A("s_setprio 0")
    C("the other rows are published about when the stream starts consuming: wait for its first step")
    lds_wait4("fw", vT1, vT0, off=28, n=fwait, sleep=8)
    A(f"s_mov_b32 s{sSpin}, {SPIN}")
    LB("fpoll")
    A(f"global_load_dwordx4 v[{QL+4}:{QL+7}], v{vFr}, s[{sWS}:{sWS+1}] {SCL}")
    A("s_waitcnt vmcnt(0)")
    xor3(a, f"v{QL+4}", f"v{QL+5}", f"v{QL+6}")
    A(f"v_cmp_ne_u32 vcc, s{sTag}, v{a}")
    A("s_cbranch_vccz L_fok")
    spin_tail("fpoll", sleep=32)
    LB("fok")
    stamp(4, "ret")
    if stamps == "ret":
        A(f"s_sub_u32 s{sTs+2}, {SPIN}, s{sSpin}")
        A(f"s_mul_i32 s{sTs+2}, s{sTs+2}, 133")
        A(f"s_add_u32 s{sTs+2}, s{sTs+2}, s{sTs}")
        A(f"s_mov_b32 s{sTs+1}, s{sTs}")
        A(f"s_mov_b32 s{sTs+3}, s{sTs}")
        A(f"s_mov_b32 s{sTs+5}, s{sTs}")
    A(f"ds_write_b64 v{vQl}, v[{QL+4}:{QL+5}] offset:{L_QH}")
    A(f"ds_write_b32 v{E}, v{vOne_s}")
    stamp(3)
    LB("rowdone")
    stamp(1, "svc")
    if stop == 3:
        A("s_waitcnt vmcnt(0) lgkmcnt(0)")
        A("s_branch L_svc_end")
    A(f"v_mov_b32 v{vT1}, {L_SYNC}")
    A("s_waitcnt lgkmcnt(0)")
    k.set_exec(1)
    A(f"ds_add_u32 v{vT1}, v{vOne_s}")
    k.set_exec(-1)
    C("---- address setup for the late phases ----")
    G = 20
    FB = 116
    WS = 116
    F2 = 212
    AF = 228
    DD = 8
    vG = vOff
    vTr, vAf, vYa, vYa2 = G, G + 1, G + 2, G + 3
    vRh, vRd, vRd2, vOl = G + 16, G + 17, G + 18, G + 19
    Yv = G + 40
    Ya = G + 72
    YO = [252, QK]
    rW2 = 44
    sOff2 = 62
    sFin = sWs
    sLoad, sOk, sHv = 6, 7, 12
    A(f"v_lshrrev_b32 v{vT0}, 3, v{vL}")
    A(f"v_mul_u32_u24 v{vG}, {1280-128}, v{vT0}")
    A(f"v_lshl_add_u32 v{vG}, v{vL}, 4, v{vG}")
    k.srd(rW, sWOp, 7864320)
    k.srd(rW2, sW2p, 1966080)
    A(f"s_lshl_b32 s{sT0}, s{sH}, 2")
    A(f"s_add_u32 s{sT0}, s{sT0}, s{sW}")
    A(f"s_lshl_b32 s{sT2}, s{sJ}, 7")
    A(f"s_mul_i32 s{sOff}, s{sT0}, {48*1280}")
    A(f"s_add_u32 s{sOff}, s{sOff}, s{sT2}")
    A(f"s_mul_i32 s{sOff2}, s{sT0}, {16*1280}")
    A(f"s_add_u32 s{sOff2}, s{sOff2}, s{sT2}")
    C("record addresses for batch w")
    A(f"s_lshl_b32 s{sT1}, s{sT0}, 10")
    A(f"s_add_u32 s{sT1}, s{sT1}, {W_RH}")
    A(f"v_and_b32 v{vT0}, 7, v{vL}")
    A(f"v_lshl_add_u32 v{vRh}, v{vT0}, 7, s{sT1}")
    A(f"s_lshl_b32 s{sT1}, s{sT0}, 13")
    A(f"s_add_u32 s{sT1}, s{sT1}, {W_REC}")
    A(f"v_lshl_add_u32 v{vRd}, v{vL}, 4, s{sT1}")
    A(f"v_add_u32 v{vRd2}, 4096, v{vRd}")
    A(f"s_mul_i32 s{sT1}, s{sW}, 384")
    A(f"v_lshl_add_u32 v{vOl}, v{vL}, 1, s{sT1}")
    C("LDS staging addresses")
    A(f"s_mul_i32 s{sT0}, s{sW}, {48*128}")
    A(f"s_add_u32 s{sT0}, s{sT0}, {L_WT}")
    A(f"v_lshl_add_u32 v{vXa}, v{vL}, 4, s{sT0}")
    A(f"s_lshl_b32 s{sT0}, s{sW}, 11")
    A(f"s_add_u32 s{sT0}, s{sT0}, {L_WT + 192*128}")
    A(f"v_lshl_add_u32 v{vXb}, v{vL}, 4, s{sT0}")
    C("transpose-read address: (8g + r)*128 + c*8 + w*32")
    A(f"v_lshrrev_b32 v{vT0}, 4, v{vL}")
    A(f"v_lshlrev_b32 v{vT0}, 3, v{vT0}")
    A(f"v_bfe_u32 v{vTr}, v{vL}, 2, 2")
    A(f"v_add_lshl_u32 v{vTr}, v{vTr}, v{vT0}, 7")
    A(f"v_and_b32 v{vT0}, 3, v{vL}")
    A(f"v_lshl_add_u32 v{vTr}, v{vT0}, 3, v{vTr}")
    A(f"s_lshl_b32 s{sT0}, s{sW}, 5")
    A(f"s_add_u32 s{sT0}, s{sT0}, {L_WT}")
    A(f"v_add_u32 v{vTr}, s{sT0}, v{vTr}")
    C("Y address: octet block + (4j + w) KB")
    A(f"s_lshl_b32 s{sT0}, s{sJ}, 2")
    A(f"s_add_u32 s{sT0}, s{sT0}, s{sW}")
    A(f"s_lshl_b32 s{sT0}, s{sT0}, 10")
    A(f"s_add_u32 s{sT0}, s{sT0}, s{sOB}")
    A(f"v_lshl_add_u32 v{vYa}, v{vL}, 4, s{sT0}")
    A(f"v_add_u32 v{vYa2}, 32768, v{vYa}")
    C("finaliser task (h < 4, or h < 8 when j < 2): group 4(j + 8(h>>2)) + w, batch h&3")
    A(f"s_cmp_lt_u32 s{sJ}, 2")
    A(f"s_cselect_b32 s{sT1}, 8, 4")
    A(f"s_cmp_lt_u32 s{sH}, s{sT1}")
    A(f"s_cselect_b32 s{sFin}, 1, 0")
    A(f"s_cselect_b32 s{sT2}, s{sH}, 0")
    A(f"s_lshr_b32 s{sT0}, s{sT2}, 2")
    A(f"s_lshl_b32 s{sT0}, s{sT0}, 3")
    A(f"s_add_u32 s{sT0}, s{sT0}, s{sJ}")
    A(f"s_lshl_b32 s{sT0}, s{sT0}, 2")
    A(f"s_add_u32 s{sT0}, s{sT0}, s{sW}")
    A(f"s_and_b32 s{sT2}, s{sT2}, 3")
    A(f"s_lshl_b32 s{sT1}, s{sT0}, 10")
    A(f"s_lshl_b32 s{sT3}, s{sT2}, 8")
    A(f"s_add_u32 s{sT1}, s{sT1}, s{sT3}")
    A(f"v_lshrrev_b32 v{vT0}, 4, v{vL}")
    A(f"v_mul_u32_u24 v{a}, 40960, v{vT0}")
    A(f"v_add_u32 v{a}, s{sT1}, v{a}")
    A(f"v_and_b32 v{vT0}, 15, v{vL}")
    A(f"v_lshl_add_u32 v{a}, v{vT0}, 4, v{a}")
    A(f"s_lshl_b32 s{sT0}, s{sT0}, 5")
    A(f"v_lshl_add_u32 v{vT1}, v{vT0}, 1, s{sT0}")
    A(f"s_mul_i32 s{sT2}, s{sT2}, 1280")
    A(f"v_add_u32 v{FXR+5}, s{sT2}, v{vT1}")
    for i in range(8):
        A(f"v_add_u32 v{Ya+i}, {W_QP + 4*40960*i}, v{a}")
    A(f"s_cmp_eq_u32 s{sFin}, 0")
    A("s_cbranch_scc1 L_nofin1")
    A(f"global_load_ushort v{FXR}, v{FXR+5}, s[{sX}:{sX+1}]")
    A(f"global_load_ushort v{FXR+1}, v{vT1}, s[{sB2p}:{sB2p+1}]")
    A("s_waitcnt vmcnt(0)")
    for i in range(2):
        A(f"v_lshlrev_b32 v{FXR+i}, 16, v{FXR+i}")
    LB("nofin1")
    C("hid A fragments once all four rows are in LDS: batch row (l&15)>>2, k offset 16*(l>>4) bytes")
    lds_wait4("rows", vT1, vT0, off=0, sleep=16)
    A(f"v_bfe_u32 v{vT0}, v{vL}, 2, 2")
    A(f"v_lshrrev_b32 v{vT1}, 4, v{vL}")
    A(f"v_lshlrev_b32 v{vT1}, 4, v{vT1}")
    A(f"v_lshl_add_u32 v{vAf}, v{vT0}, 9, v{vT1}")
    HF = G + 4
    for kb in range(2):
        A(f"ds_read_b128 v[{HF+4*kb}:{HF+4*kb+3}], v{vAf} offset:{L_QH+384+64*kb}")
    A(f"v_mul_u32_u24 v{vAf}, 384, v{vT0}")
    A(f"v_add_u32 v{vAf}, v{vAf}, v{vT1}")
    A(f"s_mov_b32 s{sLoad}, 0")
    A(f"s_mov_b32 s{sOk}, 0")
    WSP = [116, Yv]
    luid = [0]

    def only_j01():
        luid[0] += 1
        A(f"s_cmp_lt_u32 s{sJ}, 2")
        A(f"s_cbranch_scc0 L_j01_{luid[0]}")
        return f"j01_{luid[0]}"

    def w_loads(parts):
        lab = None
        for kind, p in parts:
            if p == 1 and lab is None:
                lab = only_j01()
            if kind == "o":
                for i in range(6):
                    A(f"s_add_u32 s{sT0}, s{sOff}, {8*1280*i}")
                    A(f"buffer_load_dwordx4 v[{WSP[p]+4*i}:{WSP[p]+4*i+3}], v{vG}, s[{rW}:{rW+3}], s{sT0} offen offset:{1024*p} nt")
            else:
                for i in range(2):
                    A(f"s_add_u32 s{sT0}, s{sOff2}, {8*1280*i}")
                    A(f"buffer_load_dwordx4 v[{WSP[p]+24+4*i}:{WSP[p]+24+4*i+3}], v{vG}, s[{rW2}:{rW2+3}], s{sT0} offen offset:{1024*p} nt")
        if lab:
            LB(lab)

    def w_stage(parts, cnt):
        lab = None
        for kind, p in parts:
            if p == 1 and lab is None:
                lab = only_j01()
            if kind == "o":
                for i in range(6):
                    A(f"ds_write_b128 v{vXa}, v[{WSP[p]+4*i}:{WSP[p]+4*i+3}] offset:{32768*p+1024*i}")
            else:
                for i in range(2):
                    A(f"ds_write_b128 v{vXb}, v[{WSP[p]+24+4*i}:{WSP[p]+24+4*i+3}] offset:{32768*p+1024*i}")
        if lab:
            LB(lab)
        A(f"v_mov_b32 v{vT1}, {L_SYNC}")
        k.set_exec(1)
        A(f"ds_add_u32 v{vT1}, v{vOne_s} offset:{cnt}")
        k.set_exec(-1)

    def frags(nkb, dst, row0, p):
        for kb in range(nkb):
            for hh in range(2):
                r = dst + 4 * kb + 2 * hh
                A(f"ds_read_b64_tr_b16 v[{r}:{r+1}], v{vTr} offset:{(row0+32*kb+4*hh)*128 + 32768*p}")

    def w_frags(parts):
        lab = None
        for kind, p in parts:
            if p == 1 and lab is None:
                lab = only_j01()
            if kind == "o":
                frags(6, FB + 24 * p, 0, p)
            else:
                frags(2, F2 + 8 * p, 192, p)
        if lab:
            LB(lab)
        A("s_waitcnt lgkmcnt(0)")
        if ("2", 0) in parts:
            C("FFN2 partial B (zero for h >= 24)")
            for p in range(2):
                d = DD + 4 * p
                for kb in range(2):
                    c = "0" if kb == 0 else f"v[{d}:{d+3}]"
                    f = F2 + p * 8 + 4 * kb
                    A(f"v_mfma_f32_16x16x32_bf16 v[{d}:{d+3}], v[{HF+4*kb}:{HF+4*kb+3}], v[{f}:{f+3}], {c}")
            A(f"s_cmp_lt_u32 s{sH}, 24")
            A(f"s_cselect_b32 s{sT0}, -1, 0")
            A("s_nop 6")
            for p in range(2):
                A(f"v_and_b32 v{YO[p]+1}, s{sT0}, v{DD+4*p}")
                A(f"v_xor_b32 v{YO[p]+3}, s{sTagY}, v{YO[p]+1}")

    ALLP = [("o", 0), ("2", 0), ("o", 1), ("2", 1)]
    EARLYP = [("2", 0), ("o", 1), ("2", 1)] if split else []
    LATEP = [x for x in ALLP if x not in EARLYP]
    sStg = 63
    A(f"s_mov_b32 s{sStg}, 0")
    if EARLYP:
        w_loads(EARLYP)
        A("s_waitcnt vmcnt(0)")
        w_stage(EARLYP, 20)
        lds_wait4("rdy0", vT1, vT0, off=20, sleep=4)
        w_frags(EARLYP)
    if late:
        C("the weight lines are fetched while the stream drains")
        if late <= 4:
            lds_wait4("nl", vT1, vT0, off=8, n=late, sleep=8)
        else:
            lds_wait4("nl", vT1, vT0, off=12, n=late - 4, sleep=6)
        A("s_setprio 3")
    stamp(1, "epi")
    w_loads(LATEP)
    if not ovl:
        A("s_waitcnt vmcnt(0)")
        w_stage(LATEP, 4)
        lds_wait4("rdy", vT1, vT0, off=4, sleep=0 if late else 4)
        w_frags(LATEP)

    def proj_store(nkb, frag, fstride, tagl):
        for kb in range(nkb):
            for p in range(2):
                d = DD + 4 * p
                c = "0" if kb == 0 else f"v[{d}:{d+3}]"
                f = frag + p * fstride + 4 * kb
                A(f"s_waitcnt lgkmcnt({nkb-1-kb})") if p == 0 else None
                A(f"v_mfma_f32_16x16x32_bf16 v[{d}:{d+3}], v[{AF+4*kb}:{AF+4*kb+3}], v[{f}:{f+3}], {c}")
        A(f"s_cmp_lt_u32 s{sJ}, 2")
        A("s_nop 5")
        for p in range(2):
            if p == 1:
                A(f"s_cbranch_scc0 L_{tagl}")
            A(f"v_mov_b32 v{YO[p]}, v{DD+4*p}")
            A(f"v_xor_b32 v{YO[p]+2}, v{DD+4*p}, v{YO[p]+3}")
            va = vYa if p == 0 else vYa2
            A(f"global_store_dwordx4 v{va}, v[{YO[p]}:{YO[p]+3}], s[{sWS}:{sWS+1}] {SC}")
        LB(tagl)

    def ysum(ybase, tagl, sleep, nld):
        sMiss = 6
        A(f"s_mov_b32 s{sSpin}, {SPIN}")
        A(f"s_mov_b32 s{sMiss}, 0xff")
        LB(tagl)
        for i in range(nld):
            A(f"s_bitcmp1_b32 s{sMiss}, {i}")
            A(f"s_cbranch_scc0 L_ys{i}")
            A(f"global_load_dwordx4 v[{Yv+4*i}:{Yv+4*i+3}], v{Ya+i}, s[{sWS}:{sWS+1}] {SC}")
            LB(f"ys{i}")
        A("s_waitcnt vmcnt(0)")
        for i in range(nld):
            xor3(a + (i & 1), f"v{Yv+4*i}", f"v{Yv+4*i+1}", f"v{Yv+4*i+2}")
            A(f"v_cmp_ne_u32 vcc, s{sTagY}, v{a+(i&1)}")
            A(f"s_cbranch_vccnz L_yv{i}")
            A(f"s_bitset0_b32 s{sMiss}, {i}")
            LB(f"yv{i}")
        A(f"s_cmp_eq_u32 s{sMiss}, 0")
        A(f"s_cbranch_scc1 L_{tagl}ok")
        spin_tail(tagl, sleep=sleep)
        LB(tagl + "ok")
        for i in range(0, 8, 2):
            A(f"v_pk_add_f32 v[{Yv+4*i}:{Yv+4*i+1}], v[{Yv+4*i}:{Yv+4*i+1}], v[{Yv+4*i+4}:{Yv+4*i+5}]")
        A(f"v_pk_add_f32 v[{Yv}:{Yv+1}], v[{Yv}:{Yv+1}], v[{Yv+8}:{Yv+9}]")
        A(f"v_pk_add_f32 v[{Yv+16}:{Yv+17}], v[{Yv+16}:{Yv+17}], v[{Yv+24}:{Yv+25}]")
        A(f"v_pk_add_f32 v[{Yv}:{Yv+1}], v[{Yv}:{Yv+1}], v[{Yv+16}:{Yv+17}]")
        for op in ("v_permlane16_swap_b32", "v_permlane32_swap_b32"):
            A(f"v_mov_b32 v{Yv+2}, v{Yv}")
            A(f"v_mov_b32 v{Yv+3}, v{Yv+1}")
            A("s_nop 0")
            A(f"{op} v{Yv}, v{Yv+2}")
            A(f"{op} v{Yv+1}, v{Yv+3}")
            A("s_nop 0")
            A(f"v_pk_add_f32 v[{Yv}:{Yv+1}], v[{Yv}:{Yv+1}], v[{Yv+2}:{Yv+3}]")

    stamp(2, "epi")
    C("start polling once this workgroup's stream waves have flushed")
    A(f"s_cmp_eq_u32 s{sW}, 3")
    A("s_cbranch_scc1 L_fl3")
    lds_wait4("fl1", vT1, vT0, off=12, n=etrig, sleep=2)
    A("s_branch L_fl2ok")
    LB("fl3")
    lds_wait4("fl2", vT1, vT0, off=12, n=etrig3, sleep=2 if late else 8)
    A("s_setprio 3")
    A(f"s_mov_b32 s{sSpin}, {SPIN}")
    stamp(4)
    HD = G + 24
    LB("rpoll")
    A(f"global_load_dwordx4 v[{HD}:{HD+3}], v{vRh}, s[{sWS}:{sWS+1}] {SC}")
    for j in range(8):
        va = vRd if j < 4 else vRd2
        A(f"s_bitcmp1_b32 s{sLoad}, {j}")
        A(f"s_cbranch_scc0 L_rs{j}")
        A(f"global_load_dwordx4 v[{QL+4*j}:{QL+4*j+3}], v{va}, s[{sWS}:{sWS+1}] offset:{1024*(j%4)} {SC}")
        LB(f"rs{j}")
    if ovl:
        C("second round onwards: fragments while the poll is in flight")
        A(f"s_cmp_eq_u32 s{sStg}, 1")
        A("s_cbranch_scc0 L_nofr")
        A(f"s_mov_b32 s{sT3}, s{sSpin}")
        A(f"s_call_b64 s[{sRet}:{sRet+1}], L_dofr")
        A(f"s_mov_b32 s{sSpin}, s{sT3}")
        LB("nofr")
    A("s_waitcnt vmcnt(0)")
    if ovl:
        A(f"s_cmp_eq_u32 s{sStg}, 0")
        A("s_cbranch_scc0 L_nost")
        w_stage(LATEP, 4)
        A(f"s_mov_b32 s{sStg}, 1")
        LB("nost")
    xor3(HD + 4, f"v{HD}", f"v{HD+1}", f"v{HD+2}")
    A(f"v_cmp_eq_u32 vcc, s{sTag}, v{HD+4}")
    A(f"s_and_b32 s{sHv}, vcc_lo, 0xff")
    for j in range(8):
        A(f"s_bitcmp1_b32 s{sLoad}, {j}")
        A(f"s_cbranch_scc0 L_rv{j}")
        xor3(a, f"v{QL+4*j}", f"v{QL+4*j+1}", f"v{QL+4*j+2}")
        A(f"v_xor_b32 v{a}, v{a}, v{QL+4*j+3}")
        A(f"v_cmp_ne_u32 vcc, s{sTag}, v{a}")
        A(f"s_cbranch_vccnz L_rv{j}")
        A(f"s_bitset1_b32 s{sOk}, {j}")
        LB(f"rv{j}")
    A(f"s_and_b32 s{sT0}, s{sOk}, s{sHv}")
    A(f"s_cmp_eq_u32 s{sT0}, 0xff")
    A("s_cbranch_scc1 L_rok")
    A(f"s_bcnt1_i32_b32 s{sT0}, s{sHv}")
    A(f"s_cmp_ge_u32 s{sT0}, {8-nmiss}")
    A(f"s_cselect_b32 s{sLoad}, 0xff, s{sHv}")
    A("s_cbranch_scc1 L_rfast")
    A(f"s_sleep {esleep}")
    LB("rfast")
    A(f"s_andn2_b32 s{sLoad}, s{sLoad}, s{sOk}")
    spin_tail("rpoll", sleep=0)
    LB("rok")
    stamp(3, "epi")
    A(f"v_mov_b32 v{HD+4}, v{HD}")
    k.butterfly("v_max_f32", [HD + 4], 3)
    A(f"v_sub_f32 v{HD+5}, v{HD}, v{HD+4}")
    A(f"v_mul_f32 v{HD+5}, {LOG2E}, v{HD+5}")
    A(f"v_exp_f32 v{HD+5}, v{HD+5}")
    A("s_nop 0")
    A(f"v_mul_f32 v{HD+6}, v{HD+5}, v{HD+1}")
    for j in range(8):
        A(f"v_readlane_b32 s{sWt+j}, v{HD+5}, {j}")
    k.dpp("v_add_f32", HD + 6, "quad_perm:[1,0,3,2]")
    O = HD + 8
    A(f"v_pk_mul_f32 v[{O}:{O+1}], v[{QL}:{QL+1}], s[{sWt}:{sWt+1}] op_sel_hi:[1,0]")
    A(f"v_mul_f32 v{O+2}, s{sWt}, v{QL+2}")
    k.dpp("v_add_f32", HD + 6, "quad_perm:[2,3,0,1]")
    for j in range(1, 8):
        k.pkfma(O, QL + 4 * j, sWt + j, pre="s")
        A(f"v_fmac_f32 v{O+2}, s{sWt+j}, v{QL+4*j+2}")
        if j == 1:
            k.dpp("v_add_f32", HD + 6, "row_half_mirror")
        if j == 2:
            A(f"v_rcp_f32 v{HD+7}, v{HD+6}")
    for i in range(3):
        A(f"v_mul_f32 v{O+4+i}, v{O+i}, v{HD+7}")
    for i in range(3):
        A(f"v_fma_f32 v{O+i}, -v{O+4+i}, v{HD+6}, v{O+i}")
    for i in range(3):
        A(f"v_fma_f32 v{O+i}, v{O+i}, v{HD+7}, v{O+4+i}")
    A(f"v_cvt_pk_bf16_f32 v{O+4}, v{O}, v{O+1}")
    A(f"v_cvt_pk_bf16_f32 v{O+5}, v{O+2}, v{O+2}")
    A(f"ds_write_b16 v{vOl}, v{O+4} offset:{L_OB}")
    A(f"ds_write_b16_d16_hi v{vOl}, v{O+4} offset:{L_OB+128}")
    A(f"ds_write_b16 v{vOl}, v{O+5} offset:{L_OB+256}")
    A("s_waitcnt lgkmcnt(0)")
    A("s_barrier")
    for kb in range(6):
        A(f"ds_read_b128 v[{AF+4*kb}:{AF+4*kb+3}], v{vAf} offset:{L_OB+64*kb}")
    proj_store(6, FB, 24, "ya_done")
    stamp(4, "epi")
    A(f"s_cmp_eq_u32 s{sFin}, 0")
    A("s_cbranch_scc1 L_svc_end")
    ysum(W_YA, "yap", ysleep, 8)
    k.set_exec(0xffff)
    k.rnd2(Yv, Yv + 1, Yv + 2)
    A(f"v_pk_add_f32 v[{Yv}:{Yv+1}], v[{Yv}:{Yv+1}], v[{FXR}:{FXR+1}]")
    k.rnd2(Yv, Yv + 1, Yv + 2)
    A(f"v_add_f32 v{Yv}, v{Yv}, v{Yv+1}")
    A(f"v_cvt_pk_bf16_f32 v{Yv}, v{Yv}, v{Yv}")
    A(f"global_store_short v{FXR+5}, v{Yv}, s[{sOUT}:{sOUT+1}]")
    k.set_exec(-1)
    C("generation bump by (h=0, j=0, w=0)")
    A(f"s_or_b32 s{sT0}, s2, s{sW}")
    A(f"s_cmp_eq_u32 s{sT0}, 0")
    A("s_cbranch_scc0 L_svc_end")
    A(f"v_mov_b32 v{vT0}, {W_GEN}")
    A(f"v_mov_b32 v{vT1}, s{sTag}")
    k.set_exec(1)
    A(f"global_store_dword v{vT0}, v{vT1}, s[{sWS}:{sWS+1}] {SC}")
    k.set_exec(-1)
    A("s_branch L_svc_end")
    if ovl:
        LB("dofr")
        lds_wait4("rdy", vT1, vT0, off=4, sleep=0)
        w_frags(LATEP)
        A(f"s_mov_b32 s{sStg}, 2")
        A(f"s_setpc_b64 s[{sRet}:{sRet+1}]")
    LB("svc_end")
    stamp(5)
    stamp(5, "epi")
    write_stamps(QL, vT0)
    A("s_endpgm")
    LB("stream")
    in_service[0] = False
    C("================= stream waves (4..7) =================")
    vKoff, vCl, vOne, vM, vLs, vAl, vQa, vCa = 2, 5, 6, 7, 8, 9, 10, 11
    vHi, vBase, vSa, vSr, vS = 0, 252, 253, 254, 255
    P = 12
    S = 12
    QF = 16
    k.TP = 28
    k.ntp = 4
    D = 28
    ACC = 36
    SL = 60
    MG = 60
    rCur = 52
    sRunBase, sD, sU0, sC = 56, 57, 58, 59
    sLog = 60
    sStep, sCi, sCp, sSingle, sNeedW = 80, 82, 83, 84, 95
    VP0 = (32 if NIT == 7 else 0) + 4 * NSD
    PPS = 64 - VP0
    NPOOL = 8 * PPS
    n3 = NPOOL - n1 * g1 - n2 * g2
    assert n3 >= 0 and (n1 * g1) % g2 == 0 and PPS % g1 == 0 and PPS % g2 == 0
    CT = n1 + n2 + n3
    MAGIC = 65536 // PPS + 1
    assert all((u * MAGIC) >> 16 == u // PPS for u in range(NPOOL))

    def T(t):
        return SL + 24 * t

    def loads(base, srd):
        for j in range(6):
            r = base + 4 * j
            A(f"buffer_load_dwordx4 v[{r}:{r+3}], v{vKoff}, s[{srd}:{srd+3}], s{sNxt} offen offset:{boff[j]} nt")

    def k_tile(s0):
        Da, Db = D, D + 4
        for n in range(3):
            ca = "0" if n == 0 else f"v[{Da}:{Da+3}]"
            cb = "0" if n == 0 else f"v[{Db}:{Db+3}]"
            A(f"v_mfma_f32_16x16x32_bf16 v[{Da}:{Da+3}], v[{QF+4*n}:{QF+4*n+3}], v[{s0+4*n}:{s0+4*n+3}], {ca}")
            A(f"v_mfma_f32_16x16x32_bf16 v[{Db}:{Db+3}], v[{QF+4*n}:{QF+4*n+3}], v[{s0+12+4*n}:{s0+12+4*n+3}], {cb}")

    def softmax():
        for t in range(2):
            d = D + 4 * t
            A(f"v_add_f32_dpp v{S+t}, v{d+1}, v{d} row_ror:8 row_mask:0xf bank_mask:0x3")
            A(f"v_add_f32_dpp v{S+t}, v{d}, v{d+1} row_ror:8 row_mask:0xf bank_mask:0xc")
        k.rnd2(S, S + 1, vT0)
        for t in range(2):
            A(f"v_mul_f32 v{S+t}, {SCALE}, v{S+t}")
        k.rnd2(S, S + 1, vT0)
        A(f"v_max3_f32 v{vT0}, v{vM}, v{S}, v{S+1}")
        A(f"v_sub_f32 v{vAl}, v{vM}, v{vT0}")
        for t in range(2):
            A(f"v_sub_f32 v{S+t}, v{S+t}, v{vT0}")
        A(f"v_mul_f32 v{vAl}, {LOG2E}, v{vAl}")
        for t in range(2):
            A(f"v_mul_f32 v{S+t}, {LOG2E}, v{S+t}")
        A(f"v_exp_f32 v{vAl}, v{vAl}")
        for t in range(2):
            A(f"v_exp_f32 v{S+t}, v{S+t}")
        A(f"v_mov_b32 v{vM}, v{vT0}")
        A(f"v_fma_f32 v{vLs}, v{vLs}, v{vAl}, v{S}")
        for i in range(12):
            k.pkmul(ACC + 2 * i, vAl)
        A(f"v_add_f32 v{vLs}, v{vLs}, v{S+1}")

    def softmax16():
        for t in range(8):
            A(f"ds_read2_b32 v[{P+2*t}:{P+2*t+1}], v{vSr} offset0:{16*t} offset1:{16*t+8}")
        A(f"v_add_u32 v{vSr}, 512, v{vSr}")
        A("s_waitcnt lgkmcnt(0)")
        A(f"v_max3_f32 v{vT0}, v{vM}, v{P}, v{P+1}")
        A(f"v_max3_f32 v{vT1}, v{P+2}, v{P+3}, v{P+4}")
        for i in range(5, 13, 4):
            A(f"v_max3_f32 v{vT0}, v{vT0}, v{P+i}, v{P+i+1}")
            A(f"v_max3_f32 v{vT1}, v{vT1}, v{P+i+2}, v{P+i+3}")
        A(f"v_max3_f32 v{vT0}, v{vT0}, v{P+13}, v{P+14}")
        A(f"v_max3_f32 v{vT0}, v{vT0}, v{vT1}, v{P+15}")
        A(f"v_sub_f32 v{vAl}, v{vM}, v{vT0}")
        A(f"v_sub_f32 v{vT1}, 0, v{vT0}")
        A(f"v_mul_f32 v{vAl}, {LOG2E}, v{vAl}")
        for t in range(8):
            A(f"v_pk_add_f32 v[{P+2*t}:{P+2*t+1}], v[{P+2*t}:{P+2*t+1}], v[{vT1}:{vT1+1}] op_sel_hi:[1,0]")
        A(f"v_exp_f32 v{vAl}, v{vAl}")
        for t in range(8):
            A(f"v_pk_mul_f32 v[{P+2*t}:{P+2*t+1}], v[{P+2*t}:{P+2*t+1}], s[{sLog}:{sLog+1}] op_sel_hi:[1,0]")
        for i in range(16):
            A(f"v_exp_f32 v{P+i}, v{P+i}")
        A(f"v_mov_b32 v{vM}, v{vT0}")
        for i in range(12):
            k.pkmul(ACC + 2 * i, vAl)
        t0 = k.TP
        A(f"v_pk_add_f32 v[{t0}:{t0+1}], v[{P}:{P+1}], v[{P+2}:{P+3}]")
        A(f"v_pk_add_f32 v[{t0+2}:{t0+3}], v[{P+4}:{P+5}], v[{P+6}:{P+7}]")
        for i in range(8, 16, 4):
            A(f"v_pk_add_f32 v[{t0}:{t0+1}], v[{t0}:{t0+1}], v[{P+i}:{P+i+1}]")
            A(f"v_pk_add_f32 v[{t0+2}:{t0+3}], v[{t0+2}:{t0+3}], v[{P+i+2}:{P+i+3}]")
        A(f"v_pk_add_f32 v[{t0}:{t0+1}], v[{t0}:{t0+1}], v[{t0+2}:{t0+3}]")
        A(f"v_fma_f32 v{vLs}, v{vLs}, v{vAl}, v{t0}")
        A(f"v_add_f32 v{vLs}, v{vLs}, v{t0+1}")

    def v_tile(s0, p0):
        items = [(s0 + 12 * half + 4 * n + d, ACC + 8 * n + 2 * d, p0 + half)
                 for half in range(2) for n in range(3) for d in range(4)]
        pend = []
        for it in items:
            t = k.unpack(it[0])
            pend.append((it[1], t, it[2]))
            if len(pend) > 2:
                ac, tt, m = pend.pop(0)
                k.pkfma(ac, tt, m)
        for ac, tt, m in pend:
            k.pkfma(ac, tt, m)

    def flush():
        A(f"v_mov_b32 v{vT0}, v{vM}")
        k.butterfly("v_max_f32", [vT0], 3)
        A(f"v_sub_f32 v{vAl}, v{vM}, v{vT0}")
        A(f"v_mul_f32 v{vAl}, {LOG2E}, v{vAl}")
        A(f"v_exp_f32 v{vAl}, v{vAl}")
        A(f"s_lshl_b32 s{sT0}, s{sWs}, 2")
        A(f"s_add_u32 s{sT0}, s{sT0}, s{sSlot}")
        A(f"s_lshl_b32 s{sT1}, s{sT0}, 10")
        A(f"v_mul_f32 v{vLs}, v{vLs}, v{vAl}")
        for i in range(12):
            k.pkmul(ACC + 2 * i, vAl)
        k.dpp("v_add_f32", vLs, "quad_perm:[1,0,3,2]")
        for n in range(3):
            for c in range(4):
                x, y = ACC + 8 * n + c, ACC + 8 * n + c + 4
                A(f"v_add_f32_dpp v{x}, v{x}, v{x} row_half_mirror row_mask:0xf bank_mask:0x5")
                A(f"v_add_f32_dpp v{x}, v{y}, v{y} row_half_mirror row_mask:0xf bank_mask:0xa")
        k.dpp("v_add_f32", vLs, "quad_perm:[2,3,0,1]")
        for n in range(3):
            for c in range(2):
                x, y = ACC + 8 * n + c, ACC + 8 * n + c + 2
                A(f"v_cndmask_b32 v{x+4}, v{y}, v{x}, s[{sM1}:{sM1+1}]")
                A(f"v_cndmask_b32 v{x}, v{x}, v{y}, s[{sM1}:{sM1+1}]")
        k.dpp("v_add_f32", vLs, "row_half_mirror")
        for n in range(3):
            for c in range(2):
                x = ACC + 8 * n + c
                A(f"v_add_f32_dpp v{x}, v{x+4}, v{x} quad_perm:[2,3,0,1] row_mask:0xf bank_mask:0xf")
        for n in range(3):
            x, y = ACC + 8 * n, ACC + 8 * n + 1
            A(f"v_cndmask_b32 v{x+4}, v{y}, v{x}, s[{sM0}:{sM0+1}]")
            A(f"v_cndmask_b32 v{x}, v{x}, v{y}, s[{sM0}:{sM0+1}]")
        A(f"v_lshl_add_u32 v{vT1}, v{vL}, 4, s{sT1}")
        A(f"s_lshl_b32 s{sT0}, s{sT0}, 3")
        for n in range(3):
            x = ACC + 8 * n
            A(f"v_add_f32_dpp v{D+n}, v{x+4}, v{x} quad_perm:[1,0,3,2] row_mask:0xf bank_mask:0xf")
        A(f"v_mov_b32 v{D+4}, v{vT0}")
        A(f"v_mov_b32 v{D+5}, v{vLs}")
        A(f"v_mov_b32 v{vT0}, s{sT0}")
        A(f"ds_write_b128 v{vT1}, v[{D}:{D+3}] offset:{L_REC}")
        A(f"ds_write_b64 v{vT0}, v[{D+4}:{D+5}] offset:{L_RHD}")
        A(f"s_add_u32 s{sSlot}, s{sSlot}, 1")

    def reset_state():
        A(f"v_mov_b32 v{vM}, {NEGBIG}")
        A(f"v_mov_b32 v{vLs}, 0")
        for i in range(24):
            A(f"v_mov_b32 v{ACC+i}, 0")

    def take():
        if pm == 0:
            A(f"s_mul_i32 s{sNxt}, s{sStat}, 6144")
            A(f"s_add_u32 s{sNxt}, s{sNxt}, s{sRunBase}")
        else:
            A(f"s_lshr_b32 s{sT0}, s{sStat}, 6")
            A(f"s_mul_i32 s{sT0}, s{sT0}, 393216")
            A(f"s_and_b32 s{sT1}, s{sStat}, 63")
            A(f"s_mul_i32 s{sT2}, s{sT1}, 3121")
            A(f"s_lshr_b32 s{sT2}, s{sT2}, 16")
            A(f"s_mul_i32 s{sT2}, s{sT2}, 22")
            A(f"s_add_u32 s{sT2}, s{sT2}, s{sT1}")
            A(f"s_cmp_eq_u32 s{sT1}, 63")
            A(f"s_cselect_b32 s{sT2}, 42, s{sT2}")
            A(f"s_cselect_b32 s{sD}, 43, 21")
            A(f"s_mul_i32 s{sD}, s{sD}, 3072")
            A(f"s_mul_i32 s{sT2}, s{sT2}, 3072")
            A(f"s_add_u32 s{sNxt}, s{sRunBase}, s{sT0}")
            A(f"s_add_u32 s{sNxt}, s{sNxt}, s{sT2}")
            A(f"v_mad_u32_u24 v{vKoff}, v{vHi}, s{sD}, v{vBase}")
        A(f"s_add_u32 s{sStat}, s{sStat}, s{sStep}")

    def set_issue():
        A(f"s_add_u32 s{sT0}, s{sC}, 1")
        A(f"s_cmp_ge_u32 s{sT0}, {NIT}")
        A(f"s_cselect_b32 s{rCur}, s{rV}, s{rK}")
        A(f"s_cselect_b32 s{rCur+1}, s{rV+1}, s{rK+1}")
        A(f"s_cselect_b32 s{sT1}, {NIT}, 0")
        A(f"s_sub_u32 s{sT0}, s{sT0}, s{sT1}")
        A(f"s_lshr_b32 s{sT1}, s{sT0}, 1")
        A(f"s_mul_i32 s{sRunBase}, s{sT1}, 100663296")
        A(f"s_add_u32 s{sRunBase}, s{sRunBase}, s{sHoff}")
        A(f"s_and_b32 s{sT0}, s{sT0}, 1")
        A(f"s_lshl_b32 s{sT0}, s{sT0}, 5")
        A(f"s_add_u32 s{sStat}, s{sU0}, s{sT0}")

    def issue_claim():
        A(f"s_lshl_b64 exec, 1, s{sCi}")
        A(f"global_atomic_add v{vCl}, v{vCa}, v{vOne}, s[{sWS}:{sWS+1}] sc0")
        k.set_exec(-1)
        A(f"s_add_u32 s{sCi}, s{sCi}, 1")

    stamp(1, "st")
    A(f"s_sub_u32 s{sWs}, s{sW}, 4")
    A(f"v_and_b32 v{vT0}, 7, v{vL}")
    A(f"v_lshrrev_b32 v{vT1}, 3, v{vL}")
    if pm == 1:
        A(f"v_lshrrev_b32 v{vHi}, 2, v{vT0}")
        A(f"v_and_b32 v{vT0}, 3, v{vT0}")
        A(f"v_mul_u32_u24 v{vBase}, 384, v{vT0}")
        A(f"v_lshl_add_u32 v{vBase}, v{vT1}, 4, v{vBase}")
    else:
        A(f"v_mul_u32_u24 v{vKoff}, 384, v{vT0}")
        A(f"v_lshl_add_u32 v{vKoff}, v{vT1}, 4, v{vKoff}")
    A(f"s_mul_i32 s{sHoff}, s{sH}, 3145728")
    A(f"s_mov_b32 s{sRunBase}, s{sHoff}")
    A(f"s_lshl_b32 s{sU0}, s{sJ}, 6")
    A(f"s_add_u32 s{sU0}, s{sU0}, s{sWs}")
    A(f"s_mov_b32 s{sStat}, s{sU0}")
    A(f"s_mov_b32 s{sStep}, 4")
    A("s_waitcnt lgkmcnt(0)")
    A(f"s_load_dword s{sTag}, s[{sWS}:{sWS+1}], {W_GEN}")
    k.srd(rK, sKp, 402653184)
    for t in range(8):
        if ypos and t == 2 * ypos:
            A("s_barrier")
            A("s_barrier")
        take()
        if t == 0:
            stamp(2, "st")
        loads(T(t), rK)
        if t == 0:
            stamp(3, "st")
            if stamps == "st":
                A("s_waitcnt vmcnt(0)")
            stamp(4, "st")
    k.srd(rV, sVp, 402653184)
    k.srd(rCur, sKp, 402653184)
    A(f"v_lshrrev_b32 v{vQa}, 4, v{vL}")
    A(f"v_lshlrev_b32 v{vQa}, 5, v{vQa}")
    A(f"v_and_b32 v{vT1}, 1, v{vL}")
    A(f"v_lshl_add_u32 v{vQa}, v{vT1}, 4, v{vQa}")
    A(f"v_mov_b32 v{vOne}, 1")
    A(f"s_mul_i32 s{sT0}, s{sH}, {qstride}")
    A(f"s_add_u32 s{sT0}, s{sT0}, {W_QCNT}")
    A(f"v_mov_b32 v{vCa}, s{sT0}")
    A(f"s_mul_i32 s{sT0}, s{sWs}, 3584")
    A(f"s_add_u32 s{sT0}, s{sT0}, {L_SC}")
    A(f"v_and_b32 v{vT0}, 15, v{vL}")
    A(f"v_lshl_add_u32 v{vSa}, v{vT0}, 2, s{sT0}")
    A(f"v_and_b32 v{vT0}, 7, v{vL}")
    A(f"v_lshl_add_u32 v{vSr}, v{vT0}, 2, s{sT0}")
    A(f"s_mov_b32 s{sSlot}, 0")
    A(f"s_mov_b32 s{sCi}, 0")
    A(f"s_mov_b32 s{sCp}, 0")
    A(f"s_mov_b32 s{sSingle}, 0")
    A(f"s_mov_b32 s{sNeedW}, 0")
    A(f"s_mov_b32 s{sC}, 0")
    A(f"s_mov_b32 s{sLog}, {LOG2E}")
    A(f"s_mov_b32 s{sLog+1}, {LOG2E}")
    A(f"s_mov_b32 s{sM1}, 0xcccccccc")
    A(f"s_mov_b32 s{sM1+1}, 0xcccccccc")
    A(f"s_mov_b32 s{sM0}, 0xaaaaaaaa")
    A(f"s_mov_b32 s{sM0+1}, 0xaaaaaaaa")
    reset_state()
    A("s_waitcnt lgkmcnt(0)")
    A(f"s_add_u32 s{sTag}, s{sTag}, 1")
    A(f"s_addc_u32 s{sTag}, s{sTag}, 0")
    A(f"s_cmp_eq_u32 s{sTag}, 0x80000001")
    A(f"s_addc_u32 s{sTag}, s{sTag}, 0")
    stamp(1)
    LB("kloop")
    A(f"s_bitcmp1_b32 s{sC}, 0")
    A("s_cbranch_scc1 L_sameq")
    C("new batch: wait for its q row, load the fragments")
    A(f"s_lshl_b32 s{sT1}, s{sC}, 1")
    A(f"s_add_u32 s{sT1}, s{sT1}, {L_SYNC + 32}")
    A(f"v_mov_b32 v{vT1}, s{sT1}")
    A(f"s_mov_b32 s{sSpin}, {SPIN*16}")
    LB("qf")
    A(f"ds_read_b32 v{vT0}, v{vT1}")
    A("s_waitcnt lgkmcnt(0)")
    A(f"v_readfirstlane_b32 s{sT0}, v{vT0}")
    A(f"s_sub_u32 s{sSpin}, s{sSpin}, 1")
    A(f"s_cselect_b32 s{sT0}, 1, s{sT0}")
    A(f"s_cmp_ge_u32 s{sT0}, 1")
    A("s_cbranch_scc1 L_qfok")
    A("s_sleep 1")
    A("s_branch L_qf")
    LB("qfok")
    A(f"v_mov_b32 v{vT1}, {L_SYNC}")
    k.set_exec(1)
    A(f"ds_add_u32 v{vT1}, v{vOne} offset:28")
    k.set_exec(-1)
    A(f"s_lshl_b32 s{sT0}, s{sC}, 8")
    A(f"v_add_u32 v{vT0}, s{sT0}, v{vQa}")
    for n in range(3):
        A(f"ds_read_b128 v[{QF+4*n}:{QF+4*n+3}], v{vT0} offset:{L_QH+128*n}")
    A("s_waitcnt lgkmcnt(0)")
    LB("sameq")
    if stamps == "ph":
        A(f"s_cmp_eq_u32 s{sC}, 2")
        A("s_cbranch_scc0 L_nost1")
        stamp(1, "ph")
        LB("nost1")
    set_issue()
    for t in range(8):
        A("s_waitcnt vmcnt(42)")
        k_tile(T(t))
        take()
        loads(T(t), rCur)
        if pm == 0:
            A("s_nop 1")
        A(f"v_add_f32_dpp v{vS}, v{D+1}, v{D} row_ror:8 row_mask:0xf bank_mask:0x3")
        A(f"v_add_f32_dpp v{vS}, v{D+4}, v{D+5} row_ror:8 row_mask:0xf bank_mask:0xc")
        k.rnd1(vS, vT0)
        A(f"v_mul_f32 v{vS}, {SCALE}, v{vS}")
        k.rnd1(vS, vT0)
        A(f"ds_write_b32 v{vSa}, v{vS} offset:{64*t}")
    A(f"v_add_u32 v{vSa}, 512, v{vSa}")
    A(f"s_add_u32 s{sC}, s{sC}, 1")
    A(f"s_cmp_lt_u32 s{sC}, {NIT}")
    A("s_cbranch_scc1 L_kloop")
    stamp(2)
    LB("vloop")
    set_issue()
    softmax16()
    for t in range(8):
        A("s_waitcnt vmcnt(42)")
        v_tile(T(t), P + 2 * t)
        take()
        loads(T(t), rCur)
    A(f"s_bitcmp1_b32 s{sC}, 0")
    A(f"s_cbranch_scc{NIT & 1} L_nofl")
    A(f"s_call_b64 s[{sRet2}:{sRet2+1}], L_flush")
    A(f"v_mov_b32 v{vT1}, {L_SYNC}")
    k.set_exec(1)
    A(f"ds_add_u32 v{vT1}, v{vOne} offset:24")
    k.set_exec(-1)
    reset_state()
    LB("nofl")
    A(f"s_add_u32 s{sC}, s{sC}, 1")
    A(f"s_cmp_lt_u32 s{sC}, {2*NIT-1}")
    A("s_cbranch_scc1 L_vloop")
    C("last two-pass iteration: start the single-pass units (batch 3) behind it")
    stamp(3, "ph")
    if NIT == 6:
        set_issue()
    softmax16()
    A(f"s_mov_b32 s{sRem}, {NSD - 2}")
    for t in range(8):
        A(f"s_waitcnt vmcnt({42 if t <= 4 else 42 - 6*(t-4)})")
        v_tile(T(t), P + 2 * t)
        if t == 0 and NSD == 2:
            issue_claim()
        if t == 2 and NSD == 3:
            issue_claim()
        if t in (0, 2):
            take()
            loads(T(t), rK)
        if t in (1, 3):
            loads(T(t), rV)
    if NIT == 6:
        A(f"s_call_b64 s[{sRet2}:{sRet2+1}], L_flush")
        reset_state()
        lds_wait4("q3", vT1, vT0, off=44, n=1, sleep=1)
    A(f"v_add_u32 v{vT0}, {3*512}, v{vQa}")
    for n in range(3):
        A(f"ds_read_b128 v[{QF+4*n}:{QF+4*n+3}], v{vT0} offset:{L_QH+128*n}")
    A("s_waitcnt lgkmcnt(0)")
    stamp(4, "ph")
    LB("loop")
    for x in range(2):
        A("s_waitcnt vmcnt(18)")
        k_tile(T(2 * x))
        A(f"s_sub_u32 s{sRem}, s{sRem}, 1")
        A(f"s_cmp_gt_i32 s{sRem}, 1")
        A(f"s_cbranch_scc0 L_dyn{x}")
        take()
        LB(f"dynret{x}")
        loads(T(2 * x), rK)
        softmax()
        A("s_waitcnt vmcnt(18)")
        v_tile(T(2 * x + 1), S)
        loads(T(2 * x + 1), rV)
    A("s_branch L_loop")
    for x in range(2):
        LB(f"dyn{x}")
        A(f"s_cmp_ge_i32 s{sRem}, 0")
        A(f"s_cbranch_scc1 L_take{x}")
        C("current run exhausted: pop the oldest claim")
        A(f"s_cmp_eq_u32 s{sNeedW}, 0")
        A(f"s_cbranch_scc1 L_now{x}")
        A("s_waitcnt vmcnt(12)")
        A(f"s_mov_b32 s{sNeedW}, 0")
        LB(f"now{x}")
        A(f"s_and_b32 s{sT1}, s{sCp}, 63")
        A(f"v_readlane_b32 s{sT0}, v{vCl}, s{sT1}")
        A(f"s_add_u32 s{sCp}, s{sCp}, 1")
        A("s_nop 2")
        A(f"s_cmp_ge_u32 s{sT0}, {CT}")
        A(f"s_cbranch_scc1 L_last{x}")
        A(f"s_add_u32 s{sT1}, s{sT0}, {n1*g1 + n2*g2 - n1 - n2}")
        A(f"s_mov_b32 s{sRem}, 0")
        A(f"s_mul_i32 s{sT2}, s{sT0}, {g2}")
        A(f"s_add_u32 s{sT2}, s{sT2}, {n1*g1 - n1*g2}")
        A(f"s_cmp_lt_u32 s{sT0}, {n1+n2}")
        A(f"s_cselect_b32 s{sT1}, s{sT2}, s{sT1}")
        A(f"s_cselect_b32 s{sRem}, {g2-1}, s{sRem}")
        A(f"s_mul_i32 s{sT2}, s{sT0}, {g1}")
        A(f"s_cmp_lt_u32 s{sT0}, {n1}")
        A(f"s_cselect_b32 s{sT1}, s{sT2}, s{sT1}")
        A(f"s_cselect_b32 s{sRem}, {g1-1}, s{sRem}")
        C("pool unit u -> unit index 64*(u/PPS) + VP0 + u%PPS")
        A(f"s_mul_i32 s{sT2}, s{sT1}, {MAGIC}")
        A(f"s_lshr_b32 s{sT2}, s{sT2}, 16")
        A(f"s_mul_i32 s{sT2}, s{sT2}, {VP0}")
        A(f"s_add_u32 s{sStat}, s{sT1}, s{sT2}")
        A(f"s_add_u32 s{sStat}, s{sStat}, {VP0}")
        A(f"s_mov_b32 s{sStep}, 1")
        C("first single-unit run: switch to two claims in flight")
        A(f"s_or_b32 s{sT1}, s{sRem}, s{sSingle}")
        A(f"s_cbranch_scc1 L_take{x}")
        A(f"s_mov_b32 s{sNeedW}, 1")
        A(f"s_mov_b32 s{sSingle}, 1")
        issue_claim()
        LB(f"take{x}")
        take()
        A(f"s_cmp_gt_i32 s{sRem}, 1")
        A(f"s_cbranch_scc1 L_dynret{x}")
        A(f"s_sub_u32 s{sT0}, s{sCi}, s{sCp}")
        A(f"s_cmp_gt_u32 s{sT0}, s{sSingle}")
        A(f"s_cbranch_scc1 L_dynret{x}")
        issue_claim()
        A(f"s_branch L_dynret{x}")
    LB("flush")
    flush()
    A(f"s_setpc_b64 s[{sRet2}:{sRet2+1}]")
    sB = 68
    sWm = 64
    Z = T(4)
    LB("merge")
    C("merge the four records of batch sB and publish them")
    zRa, zRh, zA0, zA1, zS, zW, zO, zH, zM = Z, Z + 1, Z + 2, Z + 3, Z + 4, Z + 6, Z + 8, Z + 12, Z + 16
    A(f"s_lshl_b32 s{sT1}, s{sB}, 3")
    A(f"v_and_b32 v{zA0}, 3, v{vL}")
    A(f"v_lshl_add_u32 v{zA0}, v{zA0}, 5, s{sT1}")
    A(f"s_lshl_b32 s{sT1}, s{sB}, 10")
    A(f"v_lshl_add_u32 v{zA1}, v{vL}, 4, s{sT1}")
    A(f"ds_read_b64 v[{zS}:{zS+1}], v{zA0} offset:{L_RHD}")
    for i in range(4):
        A(f"ds_read_b128 v[{zM+4*i}:{zM+4*i+3}], v{zA1} offset:{L_REC+4096*i}")
    A(f"s_lshl_b32 s{sT0}, s{sH}, 2")
    A(f"s_add_u32 s{sT0}, s{sT0}, s{sB}")
    A(f"s_lshl_b32 s{sT0}, s{sT0}, 3")
    A(f"s_add_u32 s{sT0}, s{sT0}, s{sJ}")
    A(f"s_lshl_b32 s{sT1}, s{sT0}, 10")
    A(f"s_add_u32 s{sT1}, s{sT1}, {W_REC}")
    A(f"v_lshl_add_u32 v{zRa}, v{vL}, 4, s{sT1}")
    A(f"s_lshl_b32 s{sT1}, s{sT0}, 7")
    A(f"s_add_u32 s{sT1}, s{sT1}, {W_RH}")
    A(f"v_lshl_add_u32 v{zRh}, v{vL}, 4, s{sT1}")
    A("s_waitcnt lgkmcnt(4)")
    A(f"v_mov_b32 v{zH}, v{zS}")
    k.butterfly("v_max_f32", [zH], 2)
    A(f"v_sub_f32 v{zW}, v{zS}, v{zH}")
    A(f"v_mul_f32 v{zW}, {LOG2E}, v{zW}")
    A(f"v_exp_f32 v{zW}, v{zW}")
    A("s_nop 0")
    A(f"v_mul_f32 v{zH+1}, v{zW}, v{zS+1}")
    for i in range(4):
        A(f"v_readlane_b32 s{sWm+i}, v{zW}, {i}")
        if i == 1:
            k.dpp("v_add_f32", zH + 1, "quad_perm:[1,0,3,2]")
    k.dpp("v_add_f32", zH + 1, "quad_perm:[2,3,0,1]")
    A("s_waitcnt lgkmcnt(0)")
    A(f"v_pk_mul_f32 v[{zO}:{zO+1}], v[{zM}:{zM+1}], s[{sWm}:{sWm+1}] op_sel_hi:[1,0]")
    A(f"v_mul_f32 v{zO+2}, s{sWm}, v{zM+2}")
    xor3(zH + 2, f"v{zH}", f"v{zH+1}", f"s{sTag}")
    for i in range(1, 4):
        k.pkfma(zO, zM + 4 * i, sWm + i, pre="s")
        A(f"v_fmac_f32 v{zO+2}, s{sWm+i}, v{zM+4*i+2}")
    xor3(zO + 3, f"v{zO}", f"v{zO+1}", f"v{zO+2}")
    A(f"v_xor_b32 v{zO+3}, s{sTag}, v{zO+3}")
    A(f"global_store_dwordx4 v{zRa}, v[{zO}:{zO+3}], s[{sWS}:{sWS+1}] {SC}")
    k.set_exec(0xff)
    A(f"global_store_dwordx4 v{zRh}, v[{zH}:{zH+3}], s[{sWS}:{sWS+1}] {SC}")
    k.set_exec(-1)
    A(f"s_setpc_b64 s[{sRet2}:{sRet2+1}]")
    for x in range(2):
        y = 1 - x
        LB(f"last{x}")
        stamp(3)
        A(f"v_mov_b32 v{vT1}, {L_SYNC}")
        k.set_exec(1)
        A(f"ds_add_u32 v{vT1}, v{vOne} offset:8")
        k.set_exec(-1)
        softmax()
        A("s_waitcnt vmcnt(12)")
        v_tile(T(2 * x + 1), S)
        A("s_waitcnt vmcnt(6)")
        k_tile(T(2 * y))
        A("s_nop 7")
        softmax()
        C("waves 0..2 publish the finished batches while the last tile is in flight")
        A(f"s_cmp_eq_u32 s{sWs}, 3")
        A(f"s_cbranch_scc1 L_w3_{x}")
        lds_wait4(f"f12_{x}", vT1, vT0, off=24, n=12, sleep=1)
        A(f"s_mov_b32 s{sB}, s{sWs}")
        A(f"s_call_b64 s[{sRet2}:{sRet2+1}], L_merge")
        A("s_waitcnt vmcnt(2)")
        A(f"s_branch L_w4_{x}")
        LB(f"w3_{x}")
        A("s_waitcnt vmcnt(0)")
        LB(f"w4_{x}")
        v_tile(T(2 * y + 1), S)
        if x == 0:
            A("s_branch L_fin")
    LB("fin")
    A(f"s_call_b64 s[{sRet2}:{sRet2+1}], L_flush")
    A(f"v_mov_b32 v{vAl}, {L_SYNC}")
    k.set_exec(1)
    A(f"ds_add_rtn_u32 v{vLs}, v{vAl}, v{vOne} offset:12")
    k.set_exec(-1)
    A(f"s_mov_b32 s{sB}, 3")
    A("s_waitcnt lgkmcnt(0)")
    A(f"v_readfirstlane_b32 s{sT0}, v{vLs}")
    stamp(4)
    A("s_nop 2")
    A(f"s_cmp_eq_u32 s{sT0}, 3")
    A("s_cbranch_scc0 L_nomerge")
    A(f"s_call_b64 s[{sRet2}:{sRet2+1}], L_merge")
    LB("nomerge")
    stamp(5)
    write_stamps(MG, vT1)
    LB("end")
    A("s_endpgm")
    return k, (256, 256), L_TOTAL


DOC = """;
;    128-byte column line per workgroup (MFMA), final sum over heads and the bf16 store.
;  stream waves 4..7: K of batches 0..3 (scores -> LDS, MFMA), then V of batches 0..3 (online softmax with the
;    running true max, fp32 FMA); the last part of batch 3 is handed out dynamically (atomic tickets per head).
;    derived from a generation word that the launch reads on entry and advances on exit), sc1 stores / loads.
"""


def build(stamps=False, **kw):
    k2, r2, l2 = build_main(stamps, **kw)
    txt = HEADER
    txt += f"; @launch grid=(256,1,1) block=(512,1,1) lds={l2}\n"
    txt += DOC
    txt += '.amdgcn_target "amdgcn-amd-amdhsa--gfx950"\n.text\n'
    txt += k2.text()
    txt += '.section .rodata,"a"\n'
    txt += k2.desc(*r2)
    return txt


if __name__ == "__main__":
    out = sys.argv[1] if len(sys.argv) > 1 else f"cdna_kernels/{NAME}.s"
    stamps = sys.argv[2] if len(sys.argv) > 2 and sys.argv[2] != "-" else False
    kw = {}
    for a in sys.argv[3:]:
        n, v = a.split("=")
        kw[n] = int(v)
    open(out, "w").write(build(stamps, **kw))
    print("wrote", out)
```

```python
import sys
from gen_v1 import HEADER, NAME
from gen_v2 import K, load_kernargs, SCALE, LOG2E, NEGBIG
from gen_v2 import sX, sKp, sVp, sWQp, sWOp, sW1p, sB1p, sW2p, sB2p, sOUT, sDBG, sWS

W_GEN = 0x0
W_QCNT = 0x800000
W_RH = 0xE0000
W_FR = 0x20000
W_YA = 0x400000
W_REC = 0x100000
W_QC = 0x200000
W_YB = 0x240000
W_QP = 0x300000
W_STAMP = 0x1000000
SPIN = 0x80000


def build_main(stamps=False, DP=64, NPRE=2, mimic=1, hsleep=1, qsleep=64, nmiss=4, pre1=0, pre2=0, noq=0, stop=0, ysleep=1, qstride=4352, stnt=0, ldnt=0, fsleep=120, dbg=0, ilv=4, rot=1, bar1=0, early=0, ymiss=1, esleep=4, alias=0, n1=24, g1=4, n2=24, g2=2, tstep=0, late=5, la1=0, ypos=2, qflag=1, ovl=1, split=1, pm=1, NDIR=1, NSD=2, NIT=7, epub=1, etrig=1, etrig3=2, fwait=4, osc=0, thr=0, thro=0, tu=2, tg=6, tsp=0, ti=2, tui=-1):
    ldsync = 1 if (early or late) else 0
    SCS = "sc1 nt" if stnt else "sc1"
    SCL = "sc1 nt" if ldnt else "sc1"
    SC = "sc1"
    k = K(f"{NAME}_kernel")
    k.lab = lambda s: f"L_{s}"
    k.LB = lambda s: k.L.append(f"L_{s}:")
    A, LB, C = k.A, k.LB, k.C
    sT0, sT1, sT2, sT3 = k.sT
    NS = (512 - DP) // 8
    LDP = DP.bit_length() - 1
    NPOOL = 4 * DP
    sW, sH, sJ = 3, 4, 5
    sRem, sStat, sNxt = 6, 7, 12
    sPairCur, sPairSt, sSlot, sHoff = 13, 14, 42, 43
    rK, rV = 44, 48
    sPair = [52, 53]
    sRet = 54
    sWt = 56
    sTm = 76
    sTag = 78
    sTagY = 94
    sOB = 95
    sSpin = 79
    rW = 80
    sOff = 84
    sWs = 85
    sM1, sM0 = 86, 88
    sRet2 = 92
    sTs = 96
    L_QH = 0
    L_SYNC = 2048
    L_RHD = 2112
    L_OB = 2560
    L_REC = 4096
    L_XN = L_REC + 16384
    L_WT = 32768
    L_SC = L_WT + 65536
    L_TOTAL = L_SC + 4 * 3584
    boff = [0, 128, 256, 1536, 1664, 1792] if pm == 1 else [0, 128, 256, 3072, 3200, 3328]
    in_service = [True]

    def stamp(i, mode="stamps"):
        if stamps == "ph" and mode == "stamps" and not in_service[0] and i in (1, 3, 4):
            return
        if stamps == "st" and mode == "stamps" and not in_service[0] and i in (1, 2, 3, 4):
            return
        if stamps and (mode == stamps or (mode == "stamps" and (i == 0 or not in_service[0]))):
            A(f"s_memrealtime s[{sTm}:{sTm+1}]")
            A("s_waitcnt lgkmcnt(0)")
            A(f"s_mov_b32 s{sTs+i}, s{sTm}")

    def write_stamps(tmp, vA):
        if stamps and dbg:
            if in_service[0]:
                C("debug: WGs 0,40,85,130 wave 0 report (t1,t3,t5) - t0 and xcc")
                A(f"s_cmp_eq_u32 s{sW}, 0")
                A("s_cbranch_scc0 L_nodbg")
                A(f"s_mul_i32 s{sT1}, s2, 1457")
                A(f"s_lshr_b32 s{sT1}, s{sT1}, 16")
                A(f"s_mul_i32 s{sT3}, s{sT1}, 45")
                A(f"s_cmp_eq_u32 s{sT3}, s2")
                A("s_cbranch_scc0 L_nodbg")
                A(f"s_cmp_lt_u32 s{sT1}, 4")
                A("s_cbranch_scc0 L_nodbg")
                A(f"s_getreg_b32 s{sT2}, hwreg(HW_REG_XCC_ID)")
                A(f"s_lshl_b32 s{sT1}, s{sT1}, 4")
                for n, i in enumerate((1, 3, 5)):
                    A(f"s_sub_u32 s{sT3}, s{sTs+i}, s{sTs}")
                    A(f"v_mov_b32 v{tmp+n}, s{sT3}")
                A(f"v_mov_b32 v{tmp+3}, s{sT2}")
                A(f"v_mov_b32 v{vA}, s{sT1}")
                k.set_exec(1)
                A(f"global_store_dwordx4 v{vA}, v[{tmp}:{tmp+3}], s[{sDBG}:{sDBG+1}]")
                k.set_exec(-1)
                LB("nodbg")
        elif stamps:
            A(f"s_getreg_b32 s{sT2}, hwreg(HW_REG_XCC_ID)")
            A(f"s_lshl_b32 s{sT1}, s2, 3")
            A(f"s_add_u32 s{sT1}, s{sT1}, s{sW}")
            A(f"s_lshl_b32 s{sT1}, s{sT1}, 5")
            A(f"s_add_u32 s{sT1}, s{sT1}, {W_STAMP}")
            for i in range(6):
                A(f"v_mov_b32 v{tmp+i}, s{sTs+i}")
            A(f"v_mov_b32 v{tmp+6}, s{sT2}")
            A(f"v_mov_b32 v{tmp+7}, 0x12345678")
            A(f"v_mov_b32 v{vA}, s{sT1}")
            k.set_exec(1)
            A(f"global_store_dwordx4 v{vA}, v[{tmp}:{tmp+3}], s[{sWS}:{sWS+1}]")
            A(f"global_store_dwordx4 v{vA}, v[{tmp+4}:{tmp+7}], s[{sWS}:{sWS+1}] offset:16")
            k.set_exec(-1)

    def xor3(d, a, b, c):
        A(f"v_bitop3_b32 v{d}, {a}, {b}, {c} bitop3:0x96")

    def spin_tail(loop, sleep=None):
        if sleep:
            A(f"s_sleep {sleep}")
        A(f"s_sub_u32 s{sSpin}, s{sSpin}, 1")
        A(f"s_cmp_lg_u32 s{sSpin}, 0")
        A(f"s_cbranch_scc1 L_{loop}")

    def lds_wait4(tagl, vA, vD, off=0, n=4, sleep=4):
        A(f"v_mov_b32 v{vA}, {L_SYNC}")
        A(f"s_mov_b32 s{sSpin}, {SPIN*16}")
        LB(tagl)
        A(f"ds_read_b32 v{vD}, v{vA} offset:{off}")
        A("s_waitcnt lgkmcnt(0)")
        A(f"v_readfirstlane_b32 s{sT0}, v{vD}")
        A(f"s_sub_u32 s{sSpin}, s{sSpin}, 1")
        A(f"s_cselect_b32 s{sT0}, {n}, s{sT0}")
        A(f"s_cmp_ge_u32 s{sT0}, {n}")
        if sleep:
            A(f"s_cbranch_scc1 L_{tagl}ok")
            A(f"s_sleep {sleep}")
            A(f"s_branch L_{tagl}")
        else:
            A(f"s_cbranch_scc0 L_{tagl}")
        LB(tagl + "ok")

    vL, vT0, vT1 = 1, 3, 4
    A("s_cmp_ge_u32 s2, 256")
    A("s_cbranch_scc1 L_end")
    stamp(0)
    load_kernargs(k)
    A(f"v_and_b32 v{vL}, 63, v0")
    A(f"v_lshrrev_b32 v{vT0}, 6, v0")
    A(f"s_mov_b32 s{k.sMsk}, 0xffff0000")
    A(f"v_readfirstlane_b32 s{sW}, v{vT0}")
    A(f"s_lshr_b32 s{sH}, s2, 3")
    A(f"s_and_b32 s{sJ}, s2, 7")
    A(f"s_cmp_ge_u32 s{sW}, 4")
    A("s_cbranch_scc1 L_stream")
    C("================= service waves (0..3) =================")
    vOff, vXa, vXb, vOne_s = 2, 5, 6, 7
    a = 8
    k.TP = 16
    k.ntp = 2
    XR = 20
    XC = 40
    X = 44
    ACC = 84
    WR = 116
    E = 156
    QL = 164
    QK = 196
    B1R = 204
    FXR = 206
    A("s_setprio 3")
    A(f"v_lshrrev_b32 v{vT0}, 3, v{vL}")
    A(f"v_and_b32 v{vT1}, 7, v{vL}")
    A(f"s_cmp_eq_u32 s{sW}, 3")
    A(f"s_movk_i32 s{sT0}, 3072")
    A(f"s_cselect_b32 s{sT0}, s{sT0}, 12288")
    A(f"v_mul_lo_u32 v{vOff}, v{vT0}, s{sT0}")
    A(f"v_lshl_add_u32 v{vOff}, v{vT1}, 4, v{vOff}")
    A(f"s_mul_i32 s{sOff}, s{sJ}, 80")
    A(f"s_mul_i32 s{sOff}, s{sOff}, s{sT0}")
    A(f"s_lshl_b32 s{sT3}, s{sT0}, 3")
    A(f"s_mul_i32 s{sT1}, s{sH}, 384")
    A(f"s_lshl_b32 s{sT2}, s{sW}, 7")
    A(f"s_add_u32 s{sT1}, s{sT1}, s{sT2}")
    A(f"s_min_u32 s{sT2}, s{sH}, 23")
    A(f"s_lshl_b32 s{sT2}, s{sT2}, 7")
    A(f"s_cmp_eq_u32 s{sW}, 3")
    A(f"s_cselect_b32 s{sT1}, s{sT2}, s{sT1}")
    A(f"s_add_u32 s{sOff}, s{sOff}, s{sT1}")
    A(f"v_lshrrev_b32 v{vT0}, 4, v{vL}")
    A(f"v_mul_u32_u24 v{vT0}, 1280, v{vT0}")
    A(f"v_and_b32 v{vT1}, 15, v{vL}")
    A(f"v_lshl_add_u32 v{vXa}, v{vT1}, 4, v{vT0}")
    A(f"v_lshl_add_u32 v{a}, v{vT1}, 3, s{sT2}")
    A(f"v_min_u32 v{vT1}, 9, v{vT1}")
    A(f"v_lshl_add_u32 v{vXb}, v{vT1}, 4, v{vT0}")
    A(f"s_mul_i32 s{sT1}, s{sJ}, 160")
    A(f"v_add_u32 v{vXb}, s{sT1}, v{vXb}")
    A(f"v_mov_b32 v{vOne_s}, 1")
    for i in range(32):
        A(f"v_mov_b32 v{ACC+i}, 0")
    A(f"v_and_b32 v{vT0}, 15, v{vL}")
    A(f"v_lshlrev_b32 v{vT0}, 2, v{vT0}")
    A(f"ds_write_b32 v{vT0}, v{ACC} offset:{L_SYNC}")
    if stop:
        A(f"v_and_b32 v{vT0}, 12, v{vT0}")
        A(f"ds_write_b32 v{vT0}, v{vOne_s} offset:{L_SYNC+32}")
    A(f"s_cmp_lt_u32 s{sH}, 24")
    A(f"s_cselect_b32 s{rW+2}, 1966080, 0")
    A("s_waitcnt lgkmcnt(0)")
    stamp(1, "st")
    A(f"s_load_dword s{sTag}, s[{sWS}:{sWS+1}], {W_GEN}")
    for m in range(5):
        A(f"global_load_dwordx4 v[{XR+4*m}:{XR+4*m+3}], v{vXa}, s[{sX}:{sX+1}] offset:{256*m}")
    A(f"global_load_dwordx4 v[{XC}:{XC+3}], v{vXb}, s[{sX}:{sX+1}]")
    A(f"s_cmp_eq_u32 s{sW}, 3")
    A(f"s_cselect_b32 s{rW}, s{sW1p}, s{sWQp}")
    A(f"s_cselect_b32 s{rW+1}, s{sW1p+1}, s{sWQp+1}")
    A(f"s_cselect_b32 s{rW+2}, s{rW+2}, 7864320")
    A(f"s_mov_b32 s{rW+3}, 0x20000")
    for t in range(10):
        if stop != 1:
            A(f"buffer_load_dwordx4 v[{WR+4*t}:{WR+4*t+3}], v{vOff}, s[{rW}:{rW+3}], s{sOff} offen nt")
        if t < 9:
            A(f"s_add_u32 s{sOff}, s{sOff}, s{sT3}")
    A(f"global_load_dwordx2 v[{B1R}:{B1R+1}], v{a}, s[{sB1p}:{sB1p+1}]")
    A(f"s_mul_i32 s{sOB}, s{sH}, 40960")
    A(f"s_add_u32 s{sOB}, s{sOB}, {W_QP}")
    stamp(2, "st")
    C("queue counter of this octet = 0 (j == 0, wave 0)")
    A(f"s_mul_i32 s{sT0}, s{sH}, {qstride}")
    A(f"s_add_u32 s{sT0}, s{sT0}, {W_QCNT}")
    A(f"v_mov_b32 v{vT0}, s{sT0}")
    A(f"s_or_b32 s{sT0}, s{sJ}, s{sW}")
    A(f"s_cmp_eq_u32 s{sT0}, 0")
    A("s_cbranch_scc0 L_noq")
    k.set_exec(1)
    A(f"global_store_dword v{vT0}, v{ACC}, s[{sWS}:{sWS+1}] {SC}")
    k.set_exec(-1)
    LB("noq")
    if tstep:
        C("translation warm-up through the scalar path: waves 0/1 static K/V range, waves 2/3 pool K/V")
        sB0 = 60
        A(f"s_bitcmp1_b32 s{sW}, 0")
        A(f"s_cselect_b32 s{sB0}, s{sVp}, s{sKp}")
        A(f"s_cselect_b32 s{sB0+1}, s{sVp+1}, s{sKp+1}")
        A(f"s_mul_i32 s{sT2}, s{sH}, 3145728")
        A(f"s_cmp_ge_u32 s{sW}, 2")
        A("s_cbranch_scc1 L_tw_pool")
        A(f"s_lshr_b32 s{sT0}, s{sJ}, 1")
        A(f"s_mul_i32 s{sT0}, s{sT0}, 100663296")
        A(f"s_add_u32 s{sT0}, s{sT0}, s{sT2}")
        A(f"s_and_b32 s{sT1}, s{sJ}, 1")
        A(f"s_mul_i32 s{sT1}, s{sT1}, {4*NS*6144}")
        A(f"s_add_u32 s{sT0}, s{sT0}, s{sT1}")
        ln = 4 * NS * 6144
        offs = list(range(0, ln, tstep)) + [ln - 64]
        for i, o in enumerate(offs):
            A(f"s_add_u32 s{sT1}, s{sT0}, {o}")
            A(f"s_load_dword s{62 + (i % 8)}, s[{sB0}:{sB0+1}], s{sT1}")
        A("s_branch L_tw_done")
        LB("tw_pool")
        ln = DP * 6144
        offs = list(range(0, ln, tstep)) + [ln - 64]
        i = 0
        for p in range(4):
            for o in offs:
                A(f"s_add_u32 s{sT1}, s{sT2}, {p*100663296 + (512-DP)*6144 + o}")
                A(f"s_load_dword s{62 + (i % 8)}, s[{sB0}:{sB0+1}], s{sT1}")
                i += 1
        LB("tw_done")
    C("barrier 1 releases the stream waves")
    if bar1:
        A("s_barrier")
    if noq:
        A("s_barrier")
    if stop == 1:
        A("s_waitcnt vmcnt(0) lgkmcnt(0)")
        A("s_branch L_svc_end")
    C("---- LayerNorm statistics, 16 lanes per batch ----")
    A(f"s_waitcnt vmcnt({11 + 2*pre1})")
    stamp(1, "pro")
    for i in range(20):
        A(f"v_lshlrev_b32 v{X+2*i}, 16, v{XR+i}")
        A(f"v_and_b32 v{X+2*i+1}, s{k.sMsk}, v{XR+i}")
    A(f"v_pk_add_f32 v[{a}:{a+1}], v[{X}:{X+1}], v[{X+2}:{X+3}]")
    A(f"v_pk_add_f32 v[{a+2}:{a+3}], v[{X+4}:{X+5}], v[{X+6}:{X+7}]")
    for i in range(4, 20):
        d = a + 2 * (i & 1)
        A(f"v_pk_add_f32 v[{d}:{d+1}], v[{d}:{d+1}], v[{X+2*i}:{X+2*i+1}]")
    A(f"v_pk_add_f32 v[{a}:{a+1}], v[{a}:{a+1}], v[{a+2}:{a+3}]")
    A(f"v_add_f32 v{a}, v{a}, v{a+1}")
    k.butterfly("v_add_f32", [a], 4)
    A(f"v_mul_f32 v{a}, {-1.0/640.0!r}, v{a}")
    for i in range(20):
        A(f"v_pk_add_f32 v[{X+2*i}:{X+2*i+1}], v[{X+2*i}:{X+2*i+1}], v[{a}:{a+1}] op_sel_hi:[1,0]")
    A(f"v_pk_mul_f32 v[{a+2}:{a+3}], v[{X}:{X+1}], v[{X}:{X+1}]")
    A(f"v_pk_mul_f32 v[{a+4}:{a+5}], v[{X+2}:{X+3}], v[{X+2}:{X+3}]")
    for i in range(2, 20):
        d = a + 2 + 2 * (i & 1)
        A(f"v_pk_fma_f32 v[{d}:{d+1}], v[{X+2*i}:{X+2*i+1}], v[{X+2*i}:{X+2*i+1}], v[{d}:{d+1}]")
    A(f"v_pk_add_f32 v[{a+2}:{a+3}], v[{a+2}:{a+3}], v[{a+4}:{a+5}]")
    A(f"v_add_f32 v{a+2}, v{a+2}, v{a+3}")
    k.butterfly("v_add_f32", [a + 2], 4)
    A(f"v_mul_f32 v{a+2}, {1.0/640.0!r}, v{a+2}")
    k.rnd2(a, a + 2, a + 1)
    A(f"v_add_f32 v{a+2}, 0x3727c5ac, v{a+2}")
    k.rnd1(a + 2, a + 1)
    A(f"v_sqrt_f32 v{a+2}, v{a+2}")
    A("s_waitcnt lgkmcnt(0)")
    for i in range(4):
        A(f"v_lshlrev_b32 v{E+2*i}, 16, v{XC+i}")
        A(f"v_and_b32 v{E+2*i+1}, s{k.sMsk}, v{XC+i}")
    k.rnd1(a + 2, a + 1)
    A(f"v_rcp_f32 v{a+3}, v{a+2}")
    for i in range(8):
        A(f"v_add_f32 v{E+i}, v{E+i}, v{a}")
    for i in range(0, 8, 2):
        k.rnd2(E + i, E + i + 1, a + 1)
    for i in range(8):
        A(f"v_mul_f32 v{a+4}, v{E+i}, v{a+3}")
        A(f"v_fma_f32 v{a+5}, -v{a+4}, v{a+2}, v{E+i}")
        A(f"v_fma_f32 v{E+i}, v{a+5}, v{a+3}, v{a+4}")
    for i in range(0, 8, 2):
        k.rnd2(E + i, E + i + 1, a + 1)
    A(f"s_mul_i32 s{sT0}, s{sW}, 1280")
    A(f"v_and_b32 v{vT1}, 15, v{vL}")
    A(f"v_min_u32 v{vT1}, 9, v{vT1}")
    A(f"v_lshl_add_u32 v{vT1}, v{vT1}, 7, s{sT0}")
    A(f"v_lshrrev_b32 v{vT0}, 4, v{vL}")
    A(f"v_lshl_add_u32 v{vT1}, v{vT0}, 2, v{vT1}")
    for i in range(8):
        A(f"ds_write_b32 v{vT1}, v{E+i} offset:{L_XN+16*i}")
    A(f"v_lshrrev_b32 v{vT0}, 3, v{vL}")
    A(f"v_lshl_add_u32 v{vT0}, v{vT0}, 4, s{sT0}")
    A(f"s_add_u32 s{sTag}, s{sTag}, 1")
    A(f"s_addc_u32 s{sTag}, s{sTag}, 0")
    A(f"s_cmp_eq_u32 s{sTag}, 0x80000001")
    A(f"s_addc_u32 s{sTag}, s{sTag}, 0")
    A(f"s_xor_b32 s{sTagY}, s{sTag}, 0x80000001")
    XN = X
    for t in range(10):
        A(f"ds_read_b128 v[{XN+4*t}:{XN+4*t+3}], v{vT0} offset:{L_XN+128*t}")
    C("granule index 16w + 2e + half, row b = l>>4")
    A(f"v_and_b32 v{vT0}, 7, v{vL}")
    A(f"v_bfe_u32 v{vT1}, v{vL}, 3, 1")
    A(f"v_lshl_add_u32 v{vT0}, v{vT0}, 1, v{vT1}")
    A(f"s_lshl_b32 s{sT0}, s{sW}, 4")
    A(f"v_add_u32 v{vT0}, s{sT0}, v{vT0}")
    A(f"v_lshrrev_b32 v{vT1}, 4, v{vL}")
    A(f"v_lshl_add_u32 v{vT0}, v{vT1}, 6, v{vT0}")
    A(f"s_lshl_b32 s{sT0}, s{sJ}, 12")
    A(f"s_add_u32 s{sT0}, s{sT0}, s{sOB}")
    A(f"s_lshl_b32 s{sT1}, s{sJ}, 10")
    A(f"s_lshl_b32 s{sT2}, s{sW}, 8")
    A(f"s_add_u32 s{sT1}, s{sT1}, s{sT2}")
    A(f"s_add_u32 s{sT1}, s{sT1}, s{sOB}")
    A(f"s_add_u32 s{sT1}, s{sT1}, 32768")
    A(f"v_lshl_add_u32 v{vXa}, v{vT0}, 4, s{sT0}")
    A(f"v_lshl_add_u32 v{vXb}, v{vL}, 2, s{sT1}")
    stamp(1)
    stamp(2, "pro")
    for t in range(10):
        A(f"s_waitcnt vmcnt({10-t+2*pre1 if t < 9 else 0}) lgkmcnt({9-t})")
        if t == 0:
            stamp(3, "pro")
        if t == 9:
            stamp(4, "pro")
        for d in range(4):
            tt = k.unpack(WR + 4 * t + d)
            for b in range(4):
                k.pkfma(ACC + 8 * b + 2 * d, tt, XN + 4 * t + b)
    C("reduce-scatter over lane bits 5,4,3")
    A("s_nop 1")
    for i in range(16):
        A(f"v_permlane32_swap_b32 v{ACC+i}, v{ACC+16+i}")
    for i in range(16):
        A(f"v_add_f32 v{ACC+i}, v{ACC+i}, v{ACC+16+i}")
    A("s_nop 1")
    for i in range(8):
        A(f"v_permlane16_swap_b32 v{ACC+i}, v{ACC+8+i}")
    for i in range(8):
        A(f"v_add_f32 v{ACC+i}, v{ACC+i}, v{ACC+8+i}")
    A("s_nop 1")
    for i in range(4):
        A(f"v_add_f32_dpp v{E+i}, v{ACC+i}, v{ACC+i} row_ror:8 row_mask:0xf bank_mask:0x3")
        A(f"v_add_f32_dpp v{E+i}, v{ACC+4+i}, v{ACC+4+i} row_ror:8 row_mask:0xf bank_mask:0xc")
    A(f"global_store_dwordx4 v{vXa}, v[{E}:{E+3}], s[{sWS}:{sWS+1}] {SCS}")
    xor3(E + 4, f"v{E}", f"v{E+1}", f"v{E+2}")
    xor3(E + 4, f"v{E+4}", f"v{E+3}", f"s{sTag}")
    A(f"global_store_dword v{vXb}, v{E+4}, s[{sWS}:{sWS+1}] {SCS}")
    stamp(2)
    stamp(5, "pro")
    if stop == 2:
        A("s_waitcnt vmcnt(0) lgkmcnt(0)")
        A("s_branch L_svc_end")
    C("addresses: final row FR[h*4+w], LDS row w")
    vFr, vQl = a + 6, a + 7
    A(f"s_lshl_b32 s{sT0}, s{sH}, 2")
    A(f"s_add_u32 s{sT0}, s{sT0}, s{sW}")
    A(f"s_lshl_b32 s{sT0}, s{sT0}, 10")
    A(f"s_add_u32 s{sT0}, s{sT0}, {W_FR}")
    A(f"v_lshl_add_u32 v{vFr}, v{vL}, 4, s{sT0}")
    A(f"s_lshl_b32 s{sT1}, s{sW}, 9")
    A(f"v_lshl_add_u32 v{vQl}, v{vL}, 3, s{sT1}")
    A(f"s_mov_b32 s{sSpin}, {SPIN}")
    C("rows < NDIR are gathered by every workgroup; row w >= NDIR by workgroup j == 2w, which publishes it")
    A(f"s_lshl_b32 s{sT0}, s{sW}, 2")
    A(f"s_add_u32 s{sT0}, s{sT0}, {L_SYNC + 32}")
    A(f"v_mov_b32 v{E}, s{sT0}")
    A(f"s_lshl_b32 s{sPairCur}, s{sW}, 1")
    A(f"s_cmp_eq_u32 s{sPairCur}, s{sJ}")
    A(f"s_cselect_b32 s{sPairCur}, 1, 0")
    A(f"s_cmp_lt_u32 s{sW}, {NDIR}")
    A(f"s_cselect_b32 s{sPairCur}, 2, s{sPairCur}")
    A(f"s_cmp_eq_u32 s{sPairCur}, 0")
    A("s_cbranch_scc1 L_nonhome")
    C("---- home wave: gather the 8 partial rows ----")
    A(f"s_lshl_b32 s{sT1}, s{sW}, 10")
    A(f"s_add_u32 s{sT0}, s{sOB}, s{sT1}")
    A(f"v_lshl_add_u32 v{vXa}, v{vL}, 4, s{sT0}")
    C("check of granule l: [wg][w' = l>>4][16 b + 8 (l&1) + ((l&15)>>1)]")
    A(f"s_lshl_b32 s{sT2}, s{sW}, 6")
    A(f"s_add_u32 s{sT1}, s{sOB}, s{sT2}")
    A(f"s_add_u32 s{sT1}, s{sT1}, 32768")
    A(f"v_lshrrev_b32 v{vT0}, 4, v{vL}")
    A(f"v_lshl_add_u32 v{vXb}, v{vT0}, 8, s{sT1}")
    A(f"v_and_b32 v{vT0}, 1, v{vL}")
    A(f"v_lshl_add_u32 v{vXb}, v{vT0}, 5, v{vXb}")
    A(f"v_bfe_u32 v{vT0}, v{vL}, 1, 3")
    A(f"v_lshl_add_u32 v{vXb}, v{vT0}, 2, v{vXb}")
    A(f"v_add_u32 v{vT1}, 4096, v{vXb}")
    C("wait until the stream waves pause their prefetch")
    A("s_barrier")
    A(f"s_mov_b32 s{sT3}, {1 if ypos else 0}")
    LB("qpoll")
    A(f"v_mov_b32 v{vT0}, v{vXa}")
    for j in range(8):
        if j:
            A(f"v_add_u32 v{vT0}, 4096, v{vT0}")
        A(f"global_load_dwordx4 v[{QL+4*j}:{QL+4*j+3}], v{vT0}, s[{sWS}:{sWS+1}] {SCL}")
        va = vXb if j < 4 else vT1
        A(f"global_load_dword v{QK+j}, v{va}, s[{sWS}:{sWS+1}] offset:{1024*(j%4)} {SCL}")
    if ypos:
        C("first round issued: release the stream waves parked at the yield barrier")
        A(f"s_cmp_eq_u32 s{sT3}, 0")
        A("s_cbranch_scc1 L_noyb")
        A("s_barrier")
        A(f"s_mov_b32 s{sT3}, 0")
        LB("noyb")
    for j in range(8):
        A(f"s_waitcnt vmcnt({14-2*j})")
        xor3(a, f"v{QL+4*j}", f"v{QL+4*j+1}", f"v{QL+4*j+2}")
        xor3(a + 1, f"v{QL+4*j+3}", f"v{QK+j}", f"s{sTag}")
        if j == 0:
            A(f"v_xor_b32 v{a+2}, v{a}, v{a+1}")
        else:
            A(f"v_xor_b32 v{a}, v{a}, v{a+1}")
            A(f"v_or_b32 v{a+2}, v{a+2}, v{a}")
    A(f"v_cmp_ne_u32 vcc, 0, v{a+2}")
    A("s_cbranch_vccz L_qok")
    spin_tail("qpoll")
    LB("qok")
    for j in range(1, 8):
        A(f"v_pk_add_f32 v[{QL}:{QL+1}], v[{QL}:{QL+1}], v[{QL+4*j}:{QL+4*j+1}]")
        A(f"v_pk_add_f32 v[{QL+2}:{QL+3}], v[{QL+2}:{QL+3}], v[{QL+4*j+2}:{QL+4*j+3}]")
    A(f"v_cvt_pk_bf16_f32 v{QL+4}, v{QL}, v{QL+1}")
    A(f"v_cvt_pk_bf16_f32 v{QL+5}, v{QL+2}, v{QL+3}")
    A(f"ds_write_b64 v{vQl}, v[{QL+4}:{QL+5}] offset:{L_QH}")
    stamp(3)
    stamp(3, "ret")
    if stamps == "ret":
        A(f"s_sub_u32 s{sTs+1}, {SPIN}, s{sSpin}")
        A(f"s_mul_i32 s{sTs+1}, s{sTs+1}, 400")
        A(f"s_add_u32 s{sTs+1}, s{sTs+1}, s{sTs}")
        A(f"s_mov_b32 s{sTs+2}, s{sTs}")
        A(f"s_mov_b32 s{sTs+4}, s{sTs}")
        A(f"s_mov_b32 s{sTs+5}, s{sTs}")
    A(f"ds_write_b32 v{E}, v{vOne_s}")
    A("s_setprio 0")
    C("hid = bf16(relu(bf16(bf16(sum) + b1))^2) on lanes 48..63")
    Hh = QL + 8
    A(f"v_lshlrev_b32 v{Hh}, 16, v{QL+4}")
    A(f"v_and_b32 v{Hh+1}, s{k.sMsk}, v{QL+4}")
    A(f"v_lshlrev_b32 v{Hh+2}, 16, v{QL+5}")
    A(f"v_and_b32 v{Hh+3}, s{k.sMsk}, v{QL+5}")
    A(f"v_lshlrev_b32 v{Hh+4}, 16, v{B1R}")
    A(f"v_and_b32 v{Hh+5}, s{k.sMsk}, v{B1R}")
    A(f"v_lshlrev_b32 v{Hh+6}, 16, v{B1R+1}")
    A(f"v_and_b32 v{Hh+7}, s{k.sMsk}, v{B1R+1}")
    for i in range(4):
        A(f"v_add_f32 v{Hh+i}, v{Hh+i}, v{Hh+4+i}")
    k.rnd2(Hh, Hh + 1, a)
    k.rnd2(Hh + 2, Hh + 3, a)
    for i in range(4):
        A(f"v_cmp_gt_f32 vcc, v{Hh+i}, 0")
        A("s_nop 1")
        A(f"v_cndmask_b32 v{Hh+i}, 0, v{Hh+i}, vcc")
    for i in range(4):
        A(f"v_mul_f32 v{Hh+i}, v{Hh+i}, v{Hh+i}")
    k.set_exec(0xffff << 48)
    A(f"v_cvt_pk_bf16_f32 v{QL+4}, v{Hh}, v{Hh+1}")
    A(f"v_cvt_pk_bf16_f32 v{QL+5}, v{Hh+2}, v{Hh+3}")
    A(f"ds_write_b64 v{vQl}, v[{QL+4}:{QL+5}] offset:{L_QH}")
    k.set_exec(-1)
    xor3(QL + 6, f"v{QL+4}", f"v{QL+5}", f"s{sTag}")
    A(f"s_cmp_eq_u32 s{sPairCur}, 1")
    A("s_cbranch_scc0 L_rowdone")
    A(f"global_store_dwordx4 v{vFr}, v[{QL+4}:{QL+7}], s[{sWS}:{sWS+1}] {SCS}")
    A("s_branch L_rowdone")
    C("---- other waves: fetch the finished row later ----")
    LB("nonhome")
    A("s_barrier")
    A("s_barrier")
    A("s_waitcnt lgkmcnt(0)")
    if not noq and not qflag:
        A("s_barrier")
    A("s_setprio 0")
    C("the other rows are published about when the stream starts consuming: wait for its first step")
    lds_wait4("fw", vT1, vT0, off=28, n=fwait, sleep=8)
    A(f"s_mov_b32 s{sSpin}, {SPIN}")
    LB("fpoll")
    A(f"global_load_dwordx4 v[{QL+4}:{QL+7}], v{vFr}, s[{sWS}:{sWS+1}] {SCL}")
    A("s_waitcnt vmcnt(0)")
    xor3(a, f"v{QL+4}", f"v{QL+5}", f"v{QL+6}")
    A(f"v_cmp_ne_u32 vcc, s{sTag}, v{a}")
    A("s_cbranch_vccz L_fok")
    spin_tail("fpoll", sleep=32)
    LB("fok")
    stamp(4, "ret")
    if stamps == "ret":
        A(f"s_sub_u32 s{sTs+2}, {SPIN}, s{sSpin}")
        A(f"s_mul_i32 s{sTs+2}, s{sTs+2}, 133")
        A(f"s_add_u32 s{sTs+2}, s{sTs+2}, s{sTs}")
        A(f"s_mov_b32 s{sTs+1}, s{sTs}")
        A(f"s_mov_b32 s{sTs+3}, s{sTs}")
        A(f"s_mov_b32 s{sTs+5}, s{sTs}")
    A(f"ds_write_b64 v{vQl}, v[{QL+4}:{QL+5}] offset:{L_QH}")
    A(f"ds_write_b32 v{E}, v{vOne_s}")
    stamp(3)
    LB("rowdone")
    stamp(1, "svc")
    if stop == 3:
        A("s_waitcnt vmcnt(0) lgkmcnt(0)")
        A("s_branch L_svc_end")
    A(f"v_mov_b32 v{vT1}, {L_SYNC}")
    A("s_waitcnt lgkmcnt(0)")
    k.set_exec(1)
    A(f"ds_add_u32 v{vT1}, v{vOne_s}")
    k.set_exec(-1)
    C("---- address setup for the late phases ----")
    G = 20
    FB = 116
    WS = 116
    F2 = 212
    AF = 228
    DD = 8
    vG = vOff
    vTr, vAf, vYa, vYa2 = G, G + 1, G + 2, G + 3
    vRh, vRd, vRd2, vOl = G + 16, G + 17, G + 18, G + 19
    Yv = G + 40
    Ya = G + 72
    YO = [252, QK]
    rW2 = 44
    sOff2 = 62
    sFin = sWs
    sLoad, sOk, sHv = 6, 7, 12
    A(f"v_lshrrev_b32 v{vT0}, 3, v{vL}")
    A(f"v_mul_u32_u24 v{vG}, {1280-128}, v{vT0}")
    A(f"v_lshl_add_u32 v{vG}, v{vL}, 4, v{vG}")
    k.srd(rW, sWOp, 7864320)
    k.srd(rW2, sW2p, 1966080)
    A(f"s_lshl_b32 s{sT0}, s{sH}, 2")
    A(f"s_add_u32 s{sT0}, s{sT0}, s{sW}")
    A(f"s_lshl_b32 s{sT2}, s{sJ}, 7")
    A(f"s_mul_i32 s{sOff}, s{sT0}, {48*1280}")
    A(f"s_add_u32 s{sOff}, s{sOff}, s{sT2}")
    A(f"s_mul_i32 s{sOff2}, s{sT0}, {16*1280}")
    A(f"s_add_u32 s{sOff2}, s{sOff2}, s{sT2}")
    C("record addresses for batch w")
    A(f"s_lshl_b32 s{sT1}, s{sT0}, 10")
    A(f"s_add_u32 s{sT1}, s{sT1}, {W_RH}")
    A(f"v_and_b32 v{vT0}, 7, v{vL}")
    A(f"v_lshl_add_u32 v{vRh}, v{vT0}, 7, s{sT1}")
    A(f"s_lshl_b32 s{sT1}, s{sT0}, 13")
    A(f"s_add_u32 s{sT1}, s{sT1}, {W_REC}")
    A(f"v_lshl_add_u32 v{vRd}, v{vL}, 4, s{sT1}")
    A(f"v_add_u32 v{vRd2}, 4096, v{vRd}")
    A(f"s_mul_i32 s{sT1}, s{sW}, 384")
    A(f"v_lshl_add_u32 v{vOl}, v{vL}, 1, s{sT1}")
    C("LDS staging addresses")
    A(f"s_mul_i32 s{sT0}, s{sW}, {48*128}")
    A(f"s_add_u32 s{sT0}, s{sT0}, {L_WT}")
    A(f"v_lshl_add_u32 v{vXa}, v{vL}, 4, s{sT0}")
    A(f"s_lshl_b32 s{sT0}, s{sW}, 11")
    A(f"s_add_u32 s{sT0}, s{sT0}, {L_WT + 192*128}")
    A(f"v_lshl_add_u32 v{vXb}, v{vL}, 4, s{sT0}")
    C("transpose-read address: (8g + r)*128 + c*8 + w*32")
    A(f"v_lshrrev_b32 v{vT0}, 4, v{vL}")
    A(f"v_lshlrev_b32 v{vT0}, 3, v{vT0}")
    A(f"v_bfe_u32 v{vTr}, v{vL}, 2, 2")
    A(f"v_add_lshl_u32 v{vTr}, v{vTr}, v{vT0}, 7")
    A(f"v_and_b32 v{vT0}, 3, v{vL}")
    A(f"v_lshl_add_u32 v{vTr}, v{vT0}, 3, v{vTr}")
    A(f"s_lshl_b32 s{sT0}, s{sW}, 5")
    A(f"s_add_u32 s{sT0}, s{sT0}, {L_WT}")
    A(f"v_add_u32 v{vTr}, s{sT0}, v{vTr}")
    C("Y address: octet block + (4j + w) KB")
    A(f"s_lshl_b32 s{sT0}, s{sJ}, 2")
    A(f"s_add_u32 s{sT0}, s{sT0}, s{sW}")
    A(f"s_lshl_b32 s{sT0}, s{sT0}, 10")
    A(f"s_add_u32 s{sT0}, s{sT0}, s{sOB}")
    A(f"v_lshl_add_u32 v{vYa}, v{vL}, 4, s{sT0}")
    A(f"v_add_u32 v{vYa2}, 32768, v{vYa}")
    C("finaliser task (h < 4, or h < 8 when j < 2): group 4(j + 8(h>>2)) + w, batch h&3")
    A(f"s_cmp_lt_u32 s{sJ}, 2")
    A(f"s_cselect_b32 s{sT1}, 8, 4")
    A(f"s_cmp_lt_u32 s{sH}, s{sT1}")
    A(f"s_cselect_b32 s{sFin}, 1, 0")
    A(f"s_cselect_b32 s{sT2}, s{sH}, 0")
    A(f"s_lshr_b32 s{sT0}, s{sT2}, 2")
    A(f"s_lshl_b32 s{sT0}, s{sT0}, 3")
    A(f"s_add_u32 s{sT0}, s{sT0}, s{sJ}")
    A(f"s_lshl_b32 s{sT0}, s{sT0}, 2")
    A(f"s_add_u32 s{sT0}, s{sT0}, s{sW}")
    A(f"s_and_b32 s{sT2}, s{sT2}, 3")
    A(f"s_lshl_b32 s{sT1}, s{sT0}, 10")
    A(f"s_lshl_b32 s{sT3}, s{sT2}, 8")
    A(f"s_add_u32 s{sT1}, s{sT1}, s{sT3}")
    A(f"v_lshrrev_b32 v{vT0}, 4, v{vL}")
    A(f"v_mul_u32_u24 v{a}, 40960, v{vT0}")
    A(f"v_add_u32 v{a}, s{sT1}, v{a}")
    A(f"v_and_b32 v{vT0}, 15, v{vL}")
    A(f"v_lshl_add_u32 v{a}, v{vT0}, 4, v{a}")
    A(f"s_lshl_b32 s{sT0}, s{sT0}, 5")
    A(f"v_lshl_add_u32 v{vT1}, v{vT0}, 1, s{sT0}")
    A(f"s_mul_i32 s{sT2}, s{sT2}, 1280")
    A(f"v_add_u32 v{FXR+5}, s{sT2}, v{vT1}")
    for i in range(8):
        A(f"v_add_u32 v{Ya+i}, {W_QP + 4*40960*i}, v{a}")
    A(f"s_cmp_eq_u32 s{sFin}, 0")
    A("s_cbranch_scc1 L_nofin1")
    A(f"global_load_ushort v{FXR}, v{FXR+5}, s[{sX}:{sX+1}]")
    A(f"global_load_ushort v{FXR+1}, v{vT1}, s[{sB2p}:{sB2p+1}]")
    A("s_waitcnt vmcnt(0)")
    for i in range(2):
        A(f"v_lshlrev_b32 v{FXR+i}, 16, v{FXR+i}")
    LB("nofin1")
    C("hid A fragments once all four rows are in LDS: batch row (l&15)>>2, k offset 16*(l>>4) bytes")
    lds_wait4("rows", vT1, vT0, off=0, sleep=16)
    A(f"v_bfe_u32 v{vT0}, v{vL}, 2, 2")
    A(f"v_lshrrev_b32 v{vT1}, 4, v{vL}")
    A(f"v_lshlrev_b32 v{vT1}, 4, v{vT1}")
    A(f"v_lshl_add_u32 v{vAf}, v{vT0}, 9, v{vT1}")
    HF = G + 4
    for kb in range(2):
        A(f"ds_read_b128 v[{HF+4*kb}:{HF+4*kb+3}], v{vAf} offset:{L_QH+384+64*kb}")
    A(f"v_mul_u32_u24 v{vAf}, 384, v{vT0}")
    A(f"v_add_u32 v{vAf}, v{vAf}, v{vT1}")
    A(f"s_mov_b32 s{sLoad}, 0")
    A(f"s_mov_b32 s{sOk}, 0")
    WSP = [116, Yv]
    luid = [0]

    def only_j01():
        luid[0] += 1
        A(f"s_cmp_lt_u32 s{sJ}, 2")
        A(f"s_cbranch_scc0 L_j01_{luid[0]}")
        return f"j01_{luid[0]}"

    def w_loads(parts):
        lab = None
        for kind, p in parts:
            if p == 1 and lab is None:
                lab = only_j01()
            if kind == "o":
                for i in range(6):
                    A(f"s_add_u32 s{sT0}, s{sOff}, {8*1280*i}")
                    A(f"buffer_load_dwordx4 v[{WSP[p]+4*i}:{WSP[p]+4*i+3}], v{vG}, s[{rW}:{rW+3}], s{sT0} offen offset:{1024*p} nt")
            else:
                for i in range(2):
                    A(f"s_add_u32 s{sT0}, s{sOff2}, {8*1280*i}")
                    A(f"buffer_load_dwordx4 v[{WSP[p]+24+4*i}:{WSP[p]+24+4*i+3}], v{vG}, s[{rW2}:{rW2+3}], s{sT0} offen offset:{1024*p} nt")
        if lab:
            LB(lab)

    def w_stage(parts, cnt):
        lab = None
        for kind, p in parts:
            if p == 1 and lab is None:
                lab = only_j01()
            if kind == "o":
                for i in range(6):
                    A(f"ds_write_b128 v{vXa}, v[{WSP[p]+4*i}:{WSP[p]+4*i+3}] offset:{32768*p+1024*i}")
            else:
                for i in range(2):
                    A(f"ds_write_b128 v{vXb}, v[{WSP[p]+24+4*i}:{WSP[p]+24+4*i+3}] offset:{32768*p+1024*i}")
        if lab:
            LB(lab)
        A(f"v_mov_b32 v{vT1}, {L_SYNC}")
        k.set_exec(1)
        A(f"ds_add_u32 v{vT1}, v{vOne_s} offset:{cnt}")
        k.set_exec(-1)

    def frags(nkb, dst, row0, p):
        for kb in range(nkb):
            for hh in range(2):
                r = dst + 4 * kb + 2 * hh
                A(f"ds_read_b64_tr_b16 v[{r}:{r+1}], v{vTr} offset:{(row0+32*kb+4*hh)*128 + 32768*p}")

    def w_frags(parts):
        lab = None
        for kind, p in parts:
            if p == 1 and lab is None:
                lab = only_j01()
            if kind == "o":
                frags(6, FB + 24 * p, 0, p)
            else:
                frags(2, F2 + 8 * p, 192, p)
        if lab:
            LB(lab)
        A("s_waitcnt lgkmcnt(0)")
        if ("2", 0) in parts:
            C("FFN2 partial B (zero for h >= 24)")
            for p in range(2):
                d = DD + 4 * p
                for kb in range(2):
                    c = "0" if kb == 0 else f"v[{d}:{d+3}]"
                    f = F2 + p * 8 + 4 * kb
                    A(f"v_mfma_f32_16x16x32_bf16 v[{d}:{d+3}], v[{HF+4*kb}:{HF+4*kb+3}], v[{f}:{f+3}], {c}")
            A(f"s_cmp_lt_u32 s{sH}, 24")
            A(f"s_cselect_b32 s{sT0}, -1, 0")
            A("s_nop 6")
            for p in range(2):
                A(f"v_and_b32 v{YO[p]+1}, s{sT0}, v{DD+4*p}")
                A(f"v_xor_b32 v{YO[p]+3}, s{sTagY}, v{YO[p]+1}")

    ALLP = [("o", 0), ("2", 0), ("o", 1), ("2", 1)]
    EARLYP = [("2", 0), ("o", 1), ("2", 1)] if split else []
    LATEP = [x for x in ALLP if x not in EARLYP]
    sStg = 63
    A(f"s_mov_b32 s{sStg}, 0")
    if EARLYP:
        w_loads(EARLYP)
        A("s_waitcnt vmcnt(0)")
        w_stage(EARLYP, 20)
        lds_wait4("rdy0", vT1, vT0, off=20, sleep=4)
        w_frags(EARLYP)
    if late:
        C("the weight lines are fetched while the stream drains")
        if late <= 4:
            lds_wait4("nl", vT1, vT0, off=8, n=late, sleep=8)
        else:
            lds_wait4("nl", vT1, vT0, off=12, n=late - 4, sleep=6)
        A("s_setprio 3")
    stamp(1, "epi")
    w_loads(LATEP)
    if not ovl:
        A("s_waitcnt vmcnt(0)")
        w_stage(LATEP, 4)
        lds_wait4("rdy", vT1, vT0, off=4, sleep=0 if late else 4)
        w_frags(LATEP)

    def proj_store(nkb, frag, fstride, tagl):
        for kb in range(nkb):
            for p in range(2):
                d = DD + 4 * p
                c = "0" if kb == 0 else f"v[{d}:{d+3}]"
                f = frag + p * fstride + 4 * kb
                A(f"s_waitcnt lgkmcnt({nkb-1-kb})") if p == 0 else None
                A(f"v_mfma_f32_16x16x32_bf16 v[{d}:{d+3}], v[{AF+4*kb}:{AF+4*kb+3}], v[{f}:{f+3}], {c}")
        A(f"s_cmp_lt_u32 s{sJ}, 2")
        A("s_nop 5")
        for p in range(2):
            if p == 1:
                A(f"s_cbranch_scc0 L_{tagl}")
            A(f"v_mov_b32 v{YO[p]}, v{DD+4*p}")
            A(f"v_xor_b32 v{YO[p]+2}, v{DD+4*p}, v{YO[p]+3}")
            va = vYa if p == 0 else vYa2
            A(f"global_store_dwordx4 v{va}, v[{YO[p]}:{YO[p]+3}], s[{sWS}:{sWS+1}] {SC}")
        LB(tagl)

    def ysum(ybase, tagl, sleep, nld):
        sMiss = 6
        A(f"s_mov_b32 s{sSpin}, {SPIN}")
        A(f"s_mov_b32 s{sMiss}, 0xff")
        LB(tagl)
        for i in range(nld):
            A(f"s_bitcmp1_b32 s{sMiss}, {i}")
            A(f"s_cbranch_scc0 L_ys{i}")
            A(f"global_load_dwordx4 v[{Yv+4*i}:{Yv+4*i+3}], v{Ya+i}, s[{sWS}:{sWS+1}] {SC}")
            LB(f"ys{i}")
        A("s_waitcnt vmcnt(0)")
        for i in range(nld):
            xor3(a + (i & 1), f"v{Yv+4*i}", f"v{Yv+4*i+1}", f"v{Yv+4*i+2}")
            A(f"v_cmp_ne_u32 vcc, s{sTagY}, v{a+(i&1)}")
            A(f"s_cbranch_vccnz L_yv{i}")
            A(f"s_bitset0_b32 s{sMiss}, {i}")
            LB(f"yv{i}")
        A(f"s_cmp_eq_u32 s{sMiss}, 0")
        A(f"s_cbranch_scc1 L_{tagl}ok")
        spin_tail(tagl, sleep=sleep)
        LB(tagl + "ok")
        for i in range(0, 8, 2):
            A(f"v_pk_add_f32 v[{Yv+4*i}:{Yv+4*i+1}], v[{Yv+4*i}:{Yv+4*i+1}], v[{Yv+4*i+4}:{Yv+4*i+5}]")
        A(f"v_pk_add_f32 v[{Yv}:{Yv+1}], v[{Yv}:{Yv+1}], v[{Yv+8}:{Yv+9}]")
        A(f"v_pk_add_f32 v[{Yv+16}:{Yv+17}], v[{Yv+16}:{Yv+17}], v[{Yv+24}:{Yv+25}]")
        A(f"v_pk_add_f32 v[{Yv}:{Yv+1}], v[{Yv}:{Yv+1}], v[{Yv+16}:{Yv+17}]")
        for op in ("v_permlane16_swap_b32", "v_permlane32_swap_b32"):
            A(f"v_mov_b32 v{Yv+2}, v{Yv}")
            A(f"v_mov_b32 v{Yv+3}, v{Yv+1}")
            A("s_nop 0")
            A(f"{op} v{Yv}, v{Yv+2}")
            A(f"{op} v{Yv+1}, v{Yv+3}")
            A("s_nop 0")
            A(f"v_pk_add_f32 v[{Yv}:{Yv+1}], v[{Yv}:{Yv+1}], v[{Yv+2}:{Yv+3}]")

    stamp(2, "epi")
    C("start polling once this workgroup's stream waves have flushed")
    A(f"s_cmp_eq_u32 s{sW}, 3")
    A("s_cbranch_scc1 L_fl3")
    lds_wait4("fl1", vT1, vT0, off=12, n=etrig, sleep=2)
    A("s_branch L_fl2ok")
    LB("fl3")
    lds_wait4("fl2", vT1, vT0, off=12, n=etrig3, sleep=2 if late else 8)
    A("s_setprio 3")
    A(f"s_mov_b32 s{sSpin}, {SPIN}")
    stamp(4)
    HD = G + 24
    LB("rpoll")
    A(f"global_load_dwordx4 v[{HD}:{HD+3}], v{vRh}, s[{sWS}:{sWS+1}] {SC}")
    for j in range(8):
        va = vRd if j < 4 else vRd2
        A(f"s_bitcmp1_b32 s{sLoad}, {j}")
        A(f"s_cbranch_scc0 L_rs{j}")
        A(f"global_load_dwordx4 v[{QL+4*j}:{QL+4*j+3}], v{va}, s[{sWS}:{sWS+1}] offset:{1024*(j%4)} {SC}")
        LB(f"rs{j}")
    if ovl:
        C("second round onwards: fragments while the poll is in flight")
        A(f"s_cmp_eq_u32 s{sStg}, 1")
        A("s_cbranch_scc0 L_nofr")
        A(f"s_mov_b32 s{sT3}, s{sSpin}")
        A(f"s_call_b64 s[{sRet}:{sRet+1}], L_dofr")
        A(f"s_mov_b32 s{sSpin}, s{sT3}")
        LB("nofr")
    A("s_waitcnt vmcnt(0)")
    if ovl:
        A(f"s_cmp_eq_u32 s{sStg}, 0")
        A("s_cbranch_scc0 L_nost")
        w_stage(LATEP, 4)
        A(f"s_mov_b32 s{sStg}, 1")
        LB("nost")
    xor3(HD + 4, f"v{HD}", f"v{HD+1}", f"v{HD+2}")
    A(f"v_cmp_eq_u32 vcc, s{sTag}, v{HD+4}")
    A(f"s_and_b32 s{sHv}, vcc_lo, 0xff")
    for j in range(8):
        A(f"s_bitcmp1_b32 s{sLoad}, {j}")
        A(f"s_cbranch_scc0 L_rv{j}")
        xor3(a, f"v{QL+4*j}", f"v{QL+4*j+1}", f"v{QL+4*j+2}")
        A(f"v_xor_b32 v{a}, v{a}, v{QL+4*j+3}")
        A(f"v_cmp_ne_u32 vcc, s{sTag}, v{a}")
        A(f"s_cbranch_vccnz L_rv{j}")
        A(f"s_bitset1_b32 s{sOk}, {j}")
        LB(f"rv{j}")
    A(f"s_and_b32 s{sT0}, s{sOk}, s{sHv}")
    A(f"s_cmp_eq_u32 s{sT0}, 0xff")
    A("s_cbranch_scc1 L_rok")
    A(f"s_bcnt1_i32_b32 s{sT0}, s{sHv}")
    A(f"s_cmp_ge_u32 s{sT0}, {8-nmiss}")
    A(f"s_cselect_b32 s{sLoad}, 0xff, s{sHv}")
    A("s_cbranch_scc1 L_rfast")
    A(f"s_sleep {esleep}")
    LB("rfast")
    A(f"s_andn2_b32 s{sLoad}, s{sLoad}, s{sOk}")
    spin_tail("rpoll", sleep=0)
    LB("rok")
    stamp(3, "epi")
    A(f"v_mov_b32 v{HD+4}, v{HD}")
    k.butterfly("v_max_f32", [HD + 4], 3)
    A(f"v_sub_f32 v{HD+5}, v{HD}, v{HD+4}")
    A(f"v_mul_f32 v{HD+5}, {LOG2E}, v{HD+5}")
    A(f"v_exp_f32 v{HD+5}, v{HD+5}")
    A("s_nop 0")
    A(f"v_mul_f32 v{HD+6}, v{HD+5}, v{HD+1}")
    for j in range(8):
        A(f"v_readlane_b32 s{sWt+j}, v{HD+5}, {j}")
    k.dpp("v_add_f32", HD + 6, "quad_perm:[1,0,3,2]")
    O = HD + 8
    A(f"v_pk_mul_f32 v[{O}:{O+1}], v[{QL}:{QL+1}], s[{sWt}:{sWt+1}] op_sel_hi:[1,0]")
    A(f"v_mul_f32 v{O+2}, s{sWt}, v{QL+2}")
    k.dpp("v_add_f32", HD + 6, "quad_perm:[2,3,0,1]")
    for j in range(1, 8):
        k.pkfma(O, QL + 4 * j, sWt + j, pre="s")
        A(f"v_fmac_f32 v{O+2}, s{sWt+j}, v{QL+4*j+2}")
        if j == 1:
            k.dpp("v_add_f32", HD + 6, "row_half_mirror")
        if j == 2:
            A(f"v_rcp_f32 v{HD+7}, v{HD+6}")
    for i in range(3):
        A(f"v_mul_f32 v{O+4+i}, v{O+i}, v{HD+7}")
    for i in range(3):
        A(f"v_fma_f32 v{O+i}, -v{O+4+i}, v{HD+6}, v{O+i}")
    for i in range(3):
        A(f"v_fma_f32 v{O+i}, v{O+i}, v{HD+7}, v{O+4+i}")
    A(f"v_cvt_pk_bf16_f32 v{O+4}, v{O}, v{O+1}")
    A(f"v_cvt_pk_bf16_f32 v{O+5}, v{O+2}, v{O+2}")
    A(f"ds_write_b16 v{vOl}, v{O+4} offset:{L_OB}")
    A(f"ds_write_b16_d16_hi v{vOl}, v{O+4} offset:{L_OB+128}")
    A(f"ds_write_b16 v{vOl}, v{O+5} offset:{L_OB+256}")
    A("s_waitcnt lgkmcnt(0)")
    A("s_barrier")
    for kb in range(6):
        A(f"ds_read_b128 v[{AF+4*kb}:{AF+4*kb+3}], v{vAf} offset:{L_OB+64*kb}")
    proj_store(6, FB, 24, "ya_done")
    stamp(4, "epi")
    A(f"s_cmp_eq_u32 s{sFin}, 0")
    A("s_cbranch_scc1 L_svc_end")
    ysum(W_YA, "yap", ysleep, 8)
    k.set_exec(0xffff)
    k.rnd2(Yv, Yv + 1, Yv + 2)
    A(f"v_pk_add_f32 v[{Yv}:{Yv+1}], v[{Yv}:{Yv+1}], v[{FXR}:{FXR+1}]")
    k.rnd2(Yv, Yv + 1, Yv + 2)
    A(f"v_add_f32 v{Yv}, v{Yv}, v{Yv+1}")
    A(f"v_cvt_pk_bf16_f32 v{Yv}, v{Yv}, v{Yv}")
    A(f"global_store_short v{FXR+5}, v{Yv}, s[{sOUT}:{sOUT+1}]" + ["", " sc1", " nt", " sc0 sc1"][osc])
    k.set_exec(-1)
    C("generation bump by (h=0, j=0, w=0)")
    A(f"s_or_b32 s{sT0}, s2, s{sW}")
    A(f"s_cmp_eq_u32 s{sT0}, 0")
    A("s_cbranch_scc0 L_svc_end")
    A(f"v_mov_b32 v{vT0}, {W_GEN}")
    A(f"v_mov_b32 v{vT1}, s{sTag}")
    k.set_exec(1)
    A(f"global_store_dword v{vT0}, v{vT1}, s[{sWS}:{sWS+1}] {SC}")
    k.set_exec(-1)
    A("s_branch L_svc_end")
    if ovl:
        LB("dofr")
        lds_wait4("rdy", vT1, vT0, off=4, sleep=0)
        w_frags(LATEP)
        A(f"s_mov_b32 s{sStg}, 2")
        A(f"s_setpc_b64 s[{sRet}:{sRet+1}]")
    LB("svc_end")
    stamp(5)
    stamp(5, "epi")
    write_stamps(QL, vT0)
    A("s_endpgm")
    LB("stream")
    in_service[0] = False
    C("================= stream waves (4..7) =================")
    vKoff, vCl, vOne, vM, vLs, vAl, vQa, vCa = 2, 5, 6, 7, 8, 9, 10, 11
    vHi, vBase, vSa, vSr, vS = 0, 252, 253, 254, 255
    P = 12
    S = 12
    QF = 16
    k.TP = 28
    k.ntp = 4
    D = 28
    ACC = 36
    SL = 60
    MG = 60
    rCur = 52
    sRunBase, sD, sU0, sC = 56, 57, 58, 59
    sLog = 60
    sStep, sCi, sCp, sSingle, sNeedW = 80, 82, 83, 84, 95
    VP0 = (32 if NIT == 7 else 0) + 4 * NSD
    PPS = 64 - VP0
    NPOOL = 8 * PPS
    n3 = NPOOL - n1 * g1 - n2 * g2
    assert n3 >= 0 and (n1 * g1) % g2 == 0 and PPS % g1 == 0 and PPS % g2 == 0
    CT = n1 + n2 + n3
    MAGIC = 65536 // PPS + 1
    assert all((u * MAGIC) >> 16 == u // PPS for u in range(NPOOL))

    def T(t):
        return SL + 24 * t

    sThr = 74
    tid = [0]
    tsp_on = [False]

    def loads(base, srd, th=False):
        if th and (thr or thro):
            tid[0] += 1
            if thro:
                A(f"s_waitcnt vmcnt({thro})")
            A(f"s_cmp_eq_u32 s{sThr}, 0")
            A(f"s_cbranch_scc0 L_th{tid[0]}")
            A(f"s_waitcnt vmcnt({thr})")
            LB(f"th{tid[0]}")
        for j in range(6):
            if tu >= 0 and (th or tsp_on[0]) and j % tg == 0:
                A(f"s_waitcnt vmcnt({tsp if tsp_on[0] else (tui if (th == 2 and tui >= 0) else tu)})")
            r = base + 4 * j
            A(f"buffer_load_dwordx4 v[{r}:{r+3}], v{vKoff}, s[{srd}:{srd+3}], s{sNxt} offen offset:{boff[j]} nt")

    def k_tile(s0):
        Da, Db = D, D + 4
        for n in range(3):
            ca = "0" if n == 0 else f"v[{Da}:{Da+3}]"
            cb = "0" if n == 0 else f"v[{Db}:{Db+3}]"
            A(f"v_mfma_f32_16x16x32_bf16 v[{Da}:{Da+3}], v[{QF+4*n}:{QF+4*n+3}], v[{s0+4*n}:{s0+4*n+3}], {ca}")
            A(f"v_mfma_f32_16x16x32_bf16 v[{Db}:{Db+3}], v[{QF+4*n}:{QF+4*n+3}], v[{s0+12+4*n}:{s0+12+4*n+3}], {cb}")

    def softmax():
        for t in range(2):
            d = D + 4 * t
            A(f"v_add_f32_dpp v{S+t}, v{d+1}, v{d} row_ror:8 row_mask:0xf bank_mask:0x3")
            A(f"v_add_f32_dpp v{S+t}, v{d}, v{d+1} row_ror:8 row_mask:0xf bank_mask:0xc")
        k.rnd2(S, S + 1, vT0)
        for t in range(2):
            A(f"v_mul_f32 v{S+t}, {SCALE}, v{S+t}")
        k.rnd2(S, S + 1, vT0)
        A(f"v_max3_f32 v{vT0}, v{vM}, v{S}, v{S+1}")
        A(f"v_sub_f32 v{vAl}, v{vM}, v{vT0}")
        for t in range(2):
            A(f"v_sub_f32 v{S+t}, v{S+t}, v{vT0}")
        A(f"v_mul_f32 v{vAl}, {LOG2E}, v{vAl}")
        for t in range(2):
            A(f"v_mul_f32 v{S+t}, {LOG2E}, v{S+t}")
        A(f"v_exp_f32 v{vAl}, v{vAl}")
        for t in range(2):
            A(f"v_exp_f32 v{S+t}, v{S+t}")
        A(f"v_mov_b32 v{vM}, v{vT0}")
        A(f"v_fma_f32 v{vLs}, v{vLs}, v{vAl}, v{S}")
        for i in range(12):
            k.pkmul(ACC + 2 * i, vAl)
        A(f"v_add_f32 v{vLs}, v{vLs}, v{S+1}")

    def softmax16():
        for t in range(8):
            A(f"ds_read2_b32 v[{P+2*t}:{P+2*t+1}], v{vSr} offset0:{16*t} offset1:{16*t+8}")
        A(f"v_add_u32 v{vSr}, 512, v{vSr}")
        A("s_waitcnt lgkmcnt(0)")
        A(f"v_max3_f32 v{vT0}, v{vM}, v{P}, v{P+1}")
        A(f"v_max3_f32 v{vT1}, v{P+2}, v{P+3}, v{P+4}")
        for i in range(5, 13, 4):
            A(f"v_max3_f32 v{vT0}, v{vT0}, v{P+i}, v{P+i+1}")
            A(f"v_max3_f32 v{vT1}, v{vT1}, v{P+i+2}, v{P+i+3}")
        A(f"v_max3_f32 v{vT0}, v{vT0}, v{P+13}, v{P+14}")
        A(f"v_max3_f32 v{vT0}, v{vT0}, v{vT1}, v{P+15}")
        A(f"v_sub_f32 v{vAl}, v{vM}, v{vT0}")
        A(f"v_sub_f32 v{vT1}, 0, v{vT0}")
        A(f"v_mul_f32 v{vAl}, {LOG2E}, v{vAl}")
        for t in range(8):
            A(f"v_pk_add_f32 v[{P+2*t}:{P+2*t+1}], v[{P+2*t}:{P+2*t+1}], v[{vT1}:{vT1+1}] op_sel_hi:[1,0]")
        A(f"v_exp_f32 v{vAl}, v{vAl}")
        for t in range(8):
            A(f"v_pk_mul_f32 v[{P+2*t}:{P+2*t+1}], v[{P+2*t}:{P+2*t+1}], s[{sLog}:{sLog+1}] op_sel_hi:[1,0]")
        for i in range(16):
            A(f"v_exp_f32 v{P+i}, v{P+i}")
        A(f"v_mov_b32 v{vM}, v{vT0}")
        for i in range(12):
            k.pkmul(ACC + 2 * i, vAl)
        t0 = k.TP
        A(f"v_pk_add_f32 v[{t0}:{t0+1}], v[{P}:{P+1}], v[{P+2}:{P+3}]")
        A(f"v_pk_add_f32 v[{t0+2}:{t0+3}], v[{P+4}:{P+5}], v[{P+6}:{P+7}]")
        for i in range(8, 16, 4):
            A(f"v_pk_add_f32 v[{t0}:{t0+1}], v[{t0}:{t0+1}], v[{P+i}:{P+i+1}]")
            A(f"v_pk_add_f32 v[{t0+2}:{t0+3}], v[{t0+2}:{t0+3}], v[{P+i+2}:{P+i+3}]")
        A(f"v_pk_add_f32 v[{t0}:{t0+1}], v[{t0}:{t0+1}], v[{t0+2}:{t0+3}]")
        A(f"v_fma_f32 v{vLs}, v{vLs}, v{vAl}, v{t0}")
        A(f"v_add_f32 v{vLs}, v{vLs}, v{t0+1}")

    def v_tile(s0, p0):
        items = [(s0 + 12 * half + 4 * n + d, ACC + 8 * n + 2 * d, p0 + half)
                 for half in range(2) for n in range(3) for d in range(4)]
        pend = []
        for it in items:
            t = k.unpack(it[0])
            pend.append((it[1], t, it[2]))
            if len(pend) > 2:
                ac, tt, m = pend.pop(0)
                k.pkfma(ac, tt, m)
        for ac, tt, m in pend:
            k.pkfma(ac, tt, m)

    def flush():
        A(f"v_mov_b32 v{vT0}, v{vM}")
        k.butterfly("v_max_f32", [vT0], 3)
        A(f"v_sub_f32 v{vAl}, v{vM}, v{vT0}")
        A(f"v_mul_f32 v{vAl}, {LOG2E}, v{vAl}")
        A(f"v_exp_f32 v{vAl}, v{vAl}")
        A(f"s_lshl_b32 s{sT0}, s{sWs}, 2")
        A(f"s_add_u32 s{sT0}, s{sT0}, s{sSlot}")
        A(f"s_lshl_b32 s{sT1}, s{sT0}, 10")
        A(f"v_mul_f32 v{vLs}, v{vLs}, v{vAl}")
        for i in range(12):
            k.pkmul(ACC + 2 * i, vAl)
        k.dpp("v_add_f32", vLs, "quad_perm:[1,0,3,2]")
        for n in range(3):
            for c in range(4):
                x, y = ACC + 8 * n + c, ACC + 8 * n + c + 4
                A(f"v_add_f32_dpp v{x}, v{x}, v{x} row_half_mirror row_mask:0xf bank_mask:0x5")
                A(f"v_add_f32_dpp v{x}, v{y}, v{y} row_half_mirror row_mask:0xf bank_mask:0xa")
        k.dpp("v_add_f32", vLs, "quad_perm:[2,3,0,1]")
        for n in range(3):
            for c in range(2):
                x, y = ACC + 8 * n + c, ACC + 8 * n + c + 2
                A(f"v_cndmask_b32 v{x+4}, v{y}, v{x}, s[{sM1}:{sM1+1}]")
                A(f"v_cndmask_b32 v{x}, v{x}, v{y}, s[{sM1}:{sM1+1}]")
        k.dpp("v_add_f32", vLs, "row_half_mirror")
        for n in range(3):
            for c in range(2):
                x = ACC + 8 * n + c
                A(f"v_add_f32_dpp v{x}, v{x+4}, v{x} quad_perm:[2,3,0,1] row_mask:0xf bank_mask:0xf")
        for n in range(3):
            x, y = ACC + 8 * n, ACC + 8 * n + 1
            A(f"v_cndmask_b32 v{x+4}, v{y}, v{x}, s[{sM0}:{sM0+1}]")
            A(f"v_cndmask_b32 v{x}, v{x}, v{y}, s[{sM0}:{sM0+1}]")
        A(f"v_lshl_add_u32 v{vT1}, v{vL}, 4, s{sT1}")
        A(f"s_lshl_b32 s{sT0}, s{sT0}, 3")
        for n in range(3):
            x = ACC + 8 * n
            A(f"v_add_f32_dpp v{D+n}, v{x+4}, v{x} quad_perm:[1,0,3,2] row_mask:0xf bank_mask:0xf")
        A(f"v_mov_b32 v{D+4}, v{vT0}")
        A(f"v_mov_b32 v{D+5}, v{vLs}")
        A(f"v_mov_b32 v{vT0}, s{sT0}")
        A(f"ds_write_b128 v{vT1}, v[{D}:{D+3}] offset:{L_REC}")
        A(f"ds_write_b64 v{vT0}, v[{D+4}:{D+5}] offset:{L_RHD}")
        A(f"s_add_u32 s{sSlot}, s{sSlot}, 1")

    def reset_state():
        A(f"v_mov_b32 v{vM}, {NEGBIG}")
        A(f"v_mov_b32 v{vLs}, 0")
        for i in range(24):
            A(f"v_mov_b32 v{ACC+i}, 0")

    def take():
        if pm == 0:
            A(f"s_mul_i32 s{sNxt}, s{sStat}, 6144")
            A(f"s_add_u32 s{sNxt}, s{sNxt}, s{sRunBase}")
        else:
            A(f"s_lshr_b32 s{sT0}, s{sStat}, 6")
            A(f"s_mul_i32 s{sT0}, s{sT0}, 393216")
            A(f"s_and_b32 s{sT1}, s{sStat}, 63")
            A(f"s_mul_i32 s{sT2}, s{sT1}, 3121")
            A(f"s_lshr_b32 s{sT2}, s{sT2}, 16")
            A(f"s_mul_i32 s{sT2}, s{sT2}, 22")
            A(f"s_add_u32 s{sT2}, s{sT2}, s{sT1}")
            A(f"s_cmp_eq_u32 s{sT1}, 63")
            A(f"s_cselect_b32 s{sT2}, 42, s{sT2}")
            A(f"s_cselect_b32 s{sD}, 43, 21")
            A(f"s_mul_i32 s{sD}, s{sD}, 3072")
            A(f"s_mul_i32 s{sT2}, s{sT2}, 3072")
            A(f"s_add_u32 s{sNxt}, s{sRunBase}, s{sT0}")
            A(f"s_add_u32 s{sNxt}, s{sNxt}, s{sT2}")
            A(f"v_mad_u32_u24 v{vKoff}, v{vHi}, s{sD}, v{vBase}")
        A(f"s_add_u32 s{sStat}, s{sStat}, s{sStep}")

    def set_issue():
        A(f"s_add_u32 s{sT0}, s{sC}, 1")
        A(f"s_cmp_ge_u32 s{sT0}, {NIT}")
        A(f"s_cselect_b32 s{rCur}, s{rV}, s{rK}")
        A(f"s_cselect_b32 s{rCur+1}, s{rV+1}, s{rK+1}")
        A(f"s_cselect_b32 s{sT1}, {NIT}, 0")
        A(f"s_sub_u32 s{sT0}, s{sT0}, s{sT1}")
        A(f"s_lshr_b32 s{sT1}, s{sT0}, 1")
        A(f"s_mul_i32 s{sRunBase}, s{sT1}, 100663296")
        A(f"s_add_u32 s{sRunBase}, s{sRunBase}, s{sHoff}")
        A(f"s_and_b32 s{sT0}, s{sT0}, 1")
        A(f"s_lshl_b32 s{sT0}, s{sT0}, 5")
        A(f"s_add_u32 s{sStat}, s{sU0}, s{sT0}")

    def issue_claim():
        A(f"s_lshl_b64 exec, 1, s{sCi}")
        A(f"global_atomic_add v{vCl}, v{vCa}, v{vOne}, s[{sWS}:{sWS+1}] sc0")
        k.set_exec(-1)
        A(f"s_add_u32 s{sCi}, s{sCi}, 1")

    stamp(1, "st")
    A(f"s_sub_u32 s{sWs}, s{sW}, 4")
    A(f"v_and_b32 v{vT0}, 7, v{vL}")
    A(f"v_lshrrev_b32 v{vT1}, 3, v{vL}")
    if pm == 1:
        A(f"v_lshrrev_b32 v{vHi}, 2, v{vT0}")
        A(f"v_and_b32 v{vT0}, 3, v{vT0}")
        A(f"v_mul_u32_u24 v{vBase}, 384, v{vT0}")
        A(f"v_lshl_add_u32 v{vBase}, v{vT1}, 4, v{vBase}")
    else:
        A(f"v_mul_u32_u24 v{vKoff}, 384, v{vT0}")
        A(f"v_lshl_add_u32 v{vKoff}, v{vT1}, 4, v{vKoff}")
    A(f"s_mul_i32 s{sHoff}, s{sH}, 3145728")
    A(f"s_mov_b32 s{sRunBase}, s{sHoff}")
    A(f"s_lshl_b32 s{sU0}, s{sJ}, 6")
    A(f"s_add_u32 s{sU0}, s{sU0}, s{sWs}")
    A(f"s_mov_b32 s{sStat}, s{sU0}")
    A(f"s_mov_b32 s{sStep}, 4")
    A("s_waitcnt lgkmcnt(0)")
    A(f"s_load_dword s{sTag}, s[{sWS}:{sWS+1}], {W_GEN}")
    k.srd(rK, sKp, 402653184)
    for t in range(8):
        if ypos and t == 2 * ypos:
            A("s_barrier")
            A("s_barrier")
        take()
        if t == 0:
            stamp(2, "st")
        loads(T(t), rK, 2 if (ti and t >= ti) else False)
        if t == 0:
            stamp(3, "st")
            if stamps == "st":
                A("s_waitcnt vmcnt(0)")
            stamp(4, "st")
    k.srd(rV, sVp, 402653184)
    k.srd(rCur, sKp, 402653184)
    A(f"v_lshrrev_b32 v{vQa}, 4, v{vL}")
    A(f"v_lshlrev_b32 v{vQa}, 5, v{vQa}")
    A(f"v_and_b32 v{vT1}, 1, v{vL}")
    A(f"v_lshl_add_u32 v{vQa}, v{vT1}, 4, v{vQa}")
    A(f"v_mov_b32 v{vOne}, 1")
    A(f"s_mul_i32 s{sT0}, s{sH}, {qstride}")
    A(f"s_add_u32 s{sT0}, s{sT0}, {W_QCNT}")
    A(f"v_mov_b32 v{vCa}, s{sT0}")
    A(f"s_mul_i32 s{sT0}, s{sWs}, 3584")
    A(f"s_add_u32 s{sT0}, s{sT0}, {L_SC}")
    A(f"v_and_b32 v{vT0}, 15, v{vL}")
    A(f"v_lshl_add_u32 v{vSa}, v{vT0}, 2, s{sT0}")
    A(f"v_and_b32 v{vT0}, 7, v{vL}")
    A(f"v_lshl_add_u32 v{vSr}, v{vT0}, 2, s{sT0}")
    A(f"s_mov_b32 s{sSlot}, 0")
    A(f"s_mov_b32 s{sCi}, 0")
    A(f"s_mov_b32 s{sCp}, 0")
    A(f"s_mov_b32 s{sSingle}, 0")
    A(f"s_mov_b32 s{sNeedW}, 0")
    A(f"s_mov_b32 s{sC}, 0")
    if thr or thro:
        A(f"s_getreg_b32 s{sThr}, hwreg(HW_REG_XCC_ID)")
        A(f"s_and_b32 s{sThr}, s{sThr}, 1")
    A(f"s_mov_b32 s{sLog}, {LOG2E}")
    A(f"s_mov_b32 s{sLog+1}, {LOG2E}")
    A(f"s_mov_b32 s{sM1}, 0xcccccccc")
    A(f"s_mov_b32 s{sM1+1}, 0xcccccccc")
    A(f"s_mov_b32 s{sM0}, 0xaaaaaaaa")
    A(f"s_mov_b32 s{sM0+1}, 0xaaaaaaaa")
    reset_state()
    A("s_waitcnt lgkmcnt(0)")
    A(f"s_add_u32 s{sTag}, s{sTag}, 1")
    A(f"s_addc_u32 s{sTag}, s{sTag}, 0")
    A(f"s_cmp_eq_u32 s{sTag}, 0x80000001")
    A(f"s_addc_u32 s{sTag}, s{sTag}, 0")
    stamp(1)
    LB("kloop")
    A(f"s_bitcmp1_b32 s{sC}, 0")
    A("s_cbranch_scc1 L_sameq")
    C("new batch: wait for its q row, load the fragments")
    A(f"s_lshl_b32 s{sT1}, s{sC}, 1")
    A(f"s_add_u32 s{sT1}, s{sT1}, {L_SYNC + 32}")
    A(f"v_mov_b32 v{vT1}, s{sT1}")
    A(f"s_mov_b32 s{sSpin}, {SPIN*16}")
    LB("qf")
    A(f"ds_read_b32 v{vT0}, v{vT1}")
    A("s_waitcnt lgkmcnt(0)")
    A(f"v_readfirstlane_b32 s{sT0}, v{vT0}")
    A(f"s_sub_u32 s{sSpin}, s{sSpin}, 1")
    A(f"s_cselect_b32 s{sT0}, 1, s{sT0}")
    A(f"s_cmp_ge_u32 s{sT0}, 1")
    A("s_cbranch_scc1 L_qfok")
    A("s_sleep 1")
    A("s_branch L_qf")
    LB("qfok")
    A(f"v_mov_b32 v{vT1}, {L_SYNC}")
    k.set_exec(1)
    A(f"ds_add_u32 v{vT1}, v{vOne} offset:28")
    k.set_exec(-1)
    A(f"s_lshl_b32 s{sT0}, s{sC}, 8")
    A(f"v_add_u32 v{vT0}, s{sT0}, v{vQa}")
    for n in range(3):
        A(f"ds_read_b128 v[{QF+4*n}:{QF+4*n+3}], v{vT0} offset:{L_QH+128*n}")
    A("s_waitcnt lgkmcnt(0)")
    LB("sameq")
    if stamps == "ph":
        A(f"s_cmp_eq_u32 s{sC}, 2")
        A("s_cbranch_scc0 L_nost1")
        stamp(1, "ph")
        LB("nost1")
    set_issue()
    for t in range(8):
        A("s_waitcnt vmcnt(42)")
        k_tile(T(t))
        take()
        loads(T(t), rCur, True)
        if pm == 0:
            A("s_nop 1")
        A(f"v_add_f32_dpp v{vS}, v{D+1}, v{D} row_ror:8 row_mask:0xf bank_mask:0x3")
        A(f"v_add_f32_dpp v{vS}, v{D+4}, v{D+5} row_ror:8 row_mask:0xf bank_mask:0xc")
        k.rnd1(vS, vT0)
        A(f"v_mul_f32 v{vS}, {SCALE}, v{vS}")
        k.rnd1(vS, vT0)
        A(f"ds_write_b32 v{vSa}, v{vS} offset:{64*t}")
    A(f"v_add_u32 v{vSa}, 512, v{vSa}")
    A(f"s_add_u32 s{sC}, s{sC}, 1")
    A(f"s_cmp_lt_u32 s{sC}, {NIT}")
    A("s_cbranch_scc1 L_kloop")
    stamp(2)
    LB("vloop")
    set_issue()
    softmax16()
    for t in range(8):
        A("s_waitcnt vmcnt(42)")
        v_tile(T(t), P + 2 * t)
        take()
        loads(T(t), rCur, True)
    A(f"s_bitcmp1_b32 s{sC}, 0")
    A(f"s_cbranch_scc{NIT & 1} L_nofl")
    A(f"s_call_b64 s[{sRet2}:{sRet2+1}], L_flush")
    A(f"v_mov_b32 v{vT1}, {L_SYNC}")
    k.set_exec(1)
    A(f"ds_add_u32 v{vT1}, v{vOne} offset:24")
    k.set_exec(-1)
    reset_state()
    LB("nofl")
    A(f"s_add_u32 s{sC}, s{sC}, 1")
    A(f"s_cmp_lt_u32 s{sC}, {2*NIT-1}")
    A("s_cbranch_scc1 L_vloop")
    tsp_on[0] = bool(tsp)
    C("last two-pass iteration: start the single-pass units (batch 3) behind it")
    stamp(3, "ph")
    if NIT == 6:
        set_issue()
    softmax16()
    A(f"s_mov_b32 s{sRem}, {NSD - 2}")
    for t in range(8):
        A(f"s_waitcnt vmcnt({42 if t <= 4 else 42 - 6*(t-4)})")
        v_tile(T(t), P + 2 * t)
        if t == 0 and NSD == 2:
            issue_claim()
        if t == 2 and NSD == 3:
            issue_claim()
        if t in (0, 2):
            take()
            loads(T(t), rK)
        if t in (1, 3):
            loads(T(t), rV)
    if NIT == 6:
        A(f"s_call_b64 s[{sRet2}:{sRet2+1}], L_flush")
        reset_state()
        lds_wait4("q3", vT1, vT0, off=44, n=1, sleep=1)
    A(f"v_add_u32 v{vT0}, {3*512}, v{vQa}")
    for n in range(3):
        A(f"ds_read_b128 v[{QF+4*n}:{QF+4*n+3}], v{vT0} offset:{L_QH+128*n}")
    A("s_waitcnt lgkmcnt(0)")
    stamp(4, "ph")
    LB("loop")
    for x in range(2):
        A("s_waitcnt vmcnt(18)")
        k_tile(T(2 * x))
        A(f"s_sub_u32 s{sRem}, s{sRem}, 1")
        A(f"s_cmp_gt_i32 s{sRem}, 1")
        A(f"s_cbranch_scc0 L_dyn{x}")
        take()
        LB(f"dynret{x}")
        loads(T(2 * x), rK)
        softmax()
        A("s_waitcnt vmcnt(18)")
        v_tile(T(2 * x + 1), S)
        loads(T(2 * x + 1), rV)
    A("s_branch L_loop")
    for x in range(2):
        LB(f"dyn{x}")
        A(f"s_cmp_ge_i32 s{sRem}, 0")
        A(f"s_cbranch_scc1 L_take{x}")
        C("current run exhausted: pop the oldest claim")
        A(f"s_cmp_eq_u32 s{sNeedW}, 0")
        A(f"s_cbranch_scc1 L_now{x}")
        A("s_waitcnt vmcnt(12)")
        A(f"s_mov_b32 s{sNeedW}, 0")
        LB(f"now{x}")
        A(f"s_and_b32 s{sT1}, s{sCp}, 63")
        A(f"v_readlane_b32 s{sT0}, v{vCl}, s{sT1}")
        A(f"s_add_u32 s{sCp}, s{sCp}, 1")
        A("s_nop 2")
        A(f"s_cmp_ge_u32 s{sT0}, {CT}")
        A(f"s_cbranch_scc1 L_last{x}")
        A(f"s_add_u32 s{sT1}, s{sT0}, {n1*g1 + n2*g2 - n1 - n2}")
        A(f"s_mov_b32 s{sRem}, 0")
        A(f"s_mul_i32 s{sT2}, s{sT0}, {g2}")
        A(f"s_add_u32 s{sT2}, s{sT2}, {n1*g1 - n1*g2}")
        A(f"s_cmp_lt_u32 s{sT0}, {n1+n2}")
        A(f"s_cselect_b32 s{sT1}, s{sT2}, s{sT1}")
        A(f"s_cselect_b32 s{sRem}, {g2-1}, s{sRem}")
        A(f"s_mul_i32 s{sT2}, s{sT0}, {g1}")
        A(f"s_cmp_lt_u32 s{sT0}, {n1}")
        A(f"s_cselect_b32 s{sT1}, s{sT2}, s{sT1}")
        A(f"s_cselect_b32 s{sRem}, {g1-1}, s{sRem}")
        C("pool unit u -> unit index 64*(u/PPS) + VP0 + u%PPS")
        A(f"s_mul_i32 s{sT2}, s{sT1}, {MAGIC}")
        A(f"s_lshr_b32 s{sT2}, s{sT2}, 16")
        A(f"s_mul_i32 s{sT2}, s{sT2}, {VP0}")
        A(f"s_add_u32 s{sStat}, s{sT1}, s{sT2}")
        A(f"s_add_u32 s{sStat}, s{sStat}, {VP0}")
        A(f"s_mov_b32 s{sStep}, 1")
        C("first single-unit run: switch to two claims in flight")
        A(f"s_or_b32 s{sT1}, s{sRem}, s{sSingle}")
        A(f"s_cbranch_scc1 L_take{x}")
        A(f"s_mov_b32 s{sNeedW}, 1")
        A(f"s_mov_b32 s{sSingle}, 1")
        issue_claim()
        LB(f"take{x}")
        take()
        A(f"s_cmp_gt_i32 s{sRem}, 1")
        A(f"s_cbranch_scc1 L_dynret{x}")
        A(f"s_sub_u32 s{sT0}, s{sCi}, s{sCp}")
        A(f"s_cmp_gt_u32 s{sT0}, s{sSingle}")
        A(f"s_cbranch_scc1 L_dynret{x}")
        issue_claim()
        A(f"s_branch L_dynret{x}")
    LB("flush")
    flush()
    A(f"s_setpc_b64 s[{sRet2}:{sRet2+1}]")
    sB = 68
    sWm = 64
    Z = T(4)
    LB("merge")
    C("merge the four records of batch sB and publish them")
    zRa, zRh, zA0, zA1, zS, zW, zO, zH, zM = Z, Z + 1, Z + 2, Z + 3, Z + 4, Z + 6, Z + 8, Z + 12, Z + 16
    A(f"s_lshl_b32 s{sT1}, s{sB}, 3")
    A(f"v_and_b32 v{zA0}, 3, v{vL}")
    A(f"v_lshl_add_u32 v{zA0}, v{zA0}, 5, s{sT1}")
    A(f"s_lshl_b32 s{sT1}, s{sB}, 10")
    A(f"v_lshl_add_u32 v{zA1}, v{vL}, 4, s{sT1}")
    A(f"ds_read_b64 v[{zS}:{zS+1}], v{zA0} offset:{L_RHD}")
    for i in range(4):
        A(f"ds_read_b128 v[{zM+4*i}:{zM+4*i+3}], v{zA1} offset:{L_REC+4096*i}")
    A(f"s_lshl_b32 s{sT0}, s{sH}, 2")
    A(f"s_add_u32 s{sT0}, s{sT0}, s{sB}")
    A(f"s_lshl_b32 s{sT0}, s{sT0}, 3")
    A(f"s_add_u32 s{sT0}, s{sT0}, s{sJ}")
    A(f"s_lshl_b32 s{sT1}, s{sT0}, 10")
    A(f"s_add_u32 s{sT1}, s{sT1}, {W_REC}")
    A(f"v_lshl_add_u32 v{zRa}, v{vL}, 4, s{sT1}")
    A(f"s_lshl_b32 s{sT1}, s{sT0}, 7")
    A(f"s_add_u32 s{sT1}, s{sT1}, {W_RH}")
    A(f"v_lshl_add_u32 v{zRh}, v{vL}, 4, s{sT1}")
    A("s_waitcnt lgkmcnt(4)")
    A(f"v_mov_b32 v{zH}, v{zS}")
    k.butterfly("v_max_f32", [zH], 2)
    A(f"v_sub_f32 v{zW}, v{zS}, v{zH}")
    A(f"v_mul_f32 v{zW}, {LOG2E}, v{zW}")
    A(f"v_exp_f32 v{zW}, v{zW}")
    A("s_nop 0")
    A(f"v_mul_f32 v{zH+1}, v{zW}, v{zS+1}")
    for i in range(4):
        A(f"v_readlane_b32 s{sWm+i}, v{zW}, {i}")
        if i == 1:
            k.dpp("v_add_f32", zH + 1, "quad_perm:[1,0,3,2]")
    k.dpp("v_add_f32", zH + 1, "quad_perm:[2,3,0,1]")
    A("s_waitcnt lgkmcnt(0)")
    A(f"v_pk_mul_f32 v[{zO}:{zO+1}], v[{zM}:{zM+1}], s[{sWm}:{sWm+1}] op_sel_hi:[1,0]")
    A(f"v_mul_f32 v{zO+2}, s{sWm}, v{zM+2}")
    xor3(zH + 2, f"v{zH}", f"v{zH+1}", f"s{sTag}")
    for i in range(1, 4):
        k.pkfma(zO, zM + 4 * i, sWm + i, pre="s")
        A(f"v_fmac_f32 v{zO+2}, s{sWm+i}, v{zM+4*i+2}")
    xor3(zO + 3, f"v{zO}", f"v{zO+1}", f"v{zO+2}")
    A(f"v_xor_b32 v{zO+3}, s{sTag}, v{zO+3}")
    A(f"global_store_dwordx4 v{zRa}, v[{zO}:{zO+3}], s[{sWS}:{sWS+1}] {SC}")
    k.set_exec(0xff)
    A(f"global_store_dwordx4 v{zRh}, v[{zH}:{zH+3}], s[{sWS}:{sWS+1}] {SC}")
    k.set_exec(-1)
    A(f"s_setpc_b64 s[{sRet2}:{sRet2+1}]")
    for x in range(2):
        y = 1 - x
        LB(f"last{x}")
        stamp(3)
        A(f"v_mov_b32 v{vT1}, {L_SYNC}")
        k.set_exec(1)
        A(f"ds_add_u32 v{vT1}, v{vOne} offset:8")
        k.set_exec(-1)
        softmax()
        A("s_waitcnt vmcnt(12)")
        v_tile(T(2 * x + 1), S)
        A("s_waitcnt vmcnt(6)")
        k_tile(T(2 * y))
        A("s_nop 7")
        softmax()
        C("waves 0..2 publish the finished batches while the last tile is in flight")
        A(f"s_cmp_eq_u32 s{sWs}, 3")
        A(f"s_cbranch_scc1 L_w3_{x}")
        lds_wait4(f"f12_{x}", vT1, vT0, off=24, n=12, sleep=1)
        A(f"s_mov_b32 s{sB}, s{sWs}")
        A(f"s_call_b64 s[{sRet2}:{sRet2+1}], L_merge")
        A("s_waitcnt vmcnt(2)")
        A(f"s_branch L_w4_{x}")
        LB(f"w3_{x}")
        A("s_waitcnt vmcnt(0)")
        LB(f"w4_{x}")
        v_tile(T(2 * y + 1), S)
        if x == 0:
            A("s_branch L_fin")
    LB("fin")
    A(f"s_call_b64 s[{sRet2}:{sRet2+1}], L_flush")
    A(f"v_mov_b32 v{vAl}, {L_SYNC}")
    k.set_exec(1)
    A(f"ds_add_rtn_u32 v{vLs}, v{vAl}, v{vOne} offset:12")
    k.set_exec(-1)
    A(f"s_mov_b32 s{sB}, 3")
    A("s_waitcnt lgkmcnt(0)")
    A(f"v_readfirstlane_b32 s{sT0}, v{vLs}")
    stamp(4)
    A("s_nop 2")
    A(f"s_cmp_eq_u32 s{sT0}, 3")
    A("s_cbranch_scc0 L_nomerge")
    A(f"s_call_b64 s[{sRet2}:{sRet2+1}], L_merge")
    LB("nomerge")
    stamp(5)
    write_stamps(MG, vT1)
    LB("end")
    A("s_endpgm")
    return k, (256, 256), L_TOTAL


DOC = """;
;    128-byte column line per workgroup (MFMA), final sum over heads and the bf16 store.
;  stream waves 4..7: K of batches 0..3 (scores -> LDS, MFMA), then V of batches 0..3 (online softmax with the
;    running true max, fp32 FMA); the last part of batch 3 is handed out dynamically (atomic tickets per head).
;    derived from a generation word that the launch reads on entry and advances on exit), sc1 stores / loads.
"""


def build(stamps=False, **kw):
    k2, r2, l2 = build_main(stamps, **kw)
    txt = HEADER
    txt += f"; @launch grid=(256,1,1) block=(512,1,1) lds={l2}\n"
    txt += DOC
    txt += '.amdgcn_target "amdgcn-amd-amdhsa--gfx950"\n.text\n'
    txt += k2.text()
    txt += '.section .rodata,"a"\n'
    txt += k2.desc(*r2)
    return txt


if __name__ == "__main__":
    out = sys.argv[1] if len(sys.argv) > 1 else f"cdna_kernels/{NAME}.s"
    stamps = sys.argv[2] if len(sys.argv) > 2 and sys.argv[2] != "-" else False
    kw = {}
    for a in sys.argv[3:]:
        n, v = a.split("=")
        kw[n] = int(v)
    open(out, "w").write(build(stamps, **kw))
    print("wrote", out)
```
